```python
import torch

def _softmax(x, axis=-1):
    return torch.softmax(x, dim=axis)
def _gelu(x):
    return torch.nn.functional.gelu(x, approximate="tanh")
def _silu(x):
    return torch.nn.functional.silu(x)
def _sigmoid(x):
    return torch.sigmoid(x)
def _layernorm(x, axis=-1, eps=1e-5):
    m = x.mean(dim=axis, keepdim=True)
    v = x.var(dim=axis, keepdim=True, unbiased=False)
    return (x - m) / torch.sqrt(v + eps)
def _scatter_add(tgt, idx, src, axis=0):
    return tgt.clone().index_add_(axis, idx, src)
def _segment_sum(src, seg, n):
    out = torch.zeros((n,) + src.shape[1:], dtype=src.dtype)
    return out.index_add_(0, seg, src)
def _pad(x, pw):
    flat = tuple(v for pair in reversed(pw) for v in pair)
    return torch.nn.functional.pad(x, flat)

kernel_name = 'gated_mix__linear_kernel_hedgehog__grouped_kv_mqa__prompt'

def setup_inputs():

    _w = (lambda a: (lambda t: t.to(torch.bfloat16) if t.is_floating_point() else t)(torch.as_tensor(a)))
    def _A_setup():
        B, S, D, H = 1, 2048, 512, 32
        Dh = D // H
        return {
            "x": _w((lambda *s: torch.randn(*s, dtype=torch.bfloat16) * 0.05)(B, S, D)),
            "wqkv": _w((lambda *s: torch.randn(*s, dtype=torch.bfloat16) * 1.6)(D, 3 * D)),
            "w_phi": _w((lambda *s: torch.randn(*s, dtype=torch.bfloat16) * 1.6)(H, Dh, Dh) * (Dh ** -0.5)),
            "wo": _w((lambda *s: torch.randn(*s, dtype=torch.bfloat16) * 0.4)(D, D)),
        }
    _A_in = _A_setup()

    def _B_setup():
        B, S, D, H = 1, 2048, 512, 32
        Dh = D // H
        return {
            "x": _w((lambda *s: torch.randn(*s, dtype=torch.bfloat16) * 0.05)(B, S, D)),
            "wq": _w((lambda *s: torch.randn(*s, dtype=torch.bfloat16) * 3.2)(D, H * Dh)),
            "wk": _w((lambda *s: torch.randn(*s, dtype=torch.bfloat16) * 3.2)(D, Dh)),
            "wv": _w((lambda *s: torch.randn(*s, dtype=torch.bfloat16) * 0.1)(D, Dh)),
            "wo": _w((lambda *s: torch.randn(*s, dtype=torch.bfloat16) * 0.1)(H * Dh, D)),
        }
    _B_in = _B_setup()

    return {
        "A_x": _A_in["x"],
        "A_wqkv": _A_in["wqkv"],
        "A_w_phi": _A_in["w_phi"],
        "A_wo": _A_in["wo"],
        "B_x": _B_in["x"],
        "B_wq": _B_in["wq"],
        "B_wk": _B_in["wk"],
        "B_wv": _B_in["wv"],
        "B_wo": _B_in["wo"],
        "gate_w": _w((lambda *s: torch.randn(*s, dtype=torch.bfloat16) * 0.05)(512) * 16.0),
    }

def reference(A_x, A_wqkv, A_w_phi, A_wo, B_x, B_wq, B_wk, B_wv, B_wo, gate_w):
    def _A_ref(x, wqkv, w_phi, wo):
        B, S, D = x.shape
        H = 32; Dh = D // H
        qkv = (lambda x, *d: x.permute(*d))((x @ wqkv).reshape(B, S, 3, H, Dh), 2, 0, 3, 1, 4)
        q, k, v = qkv[0], qkv[1], qkv[2]
        pq = torch.einsum("bhsd,hdf->bhsf", q, w_phi)
        pk = torch.einsum("bhsd,hdf->bhsf", k, w_phi)
        phi_q = torch.concatenate([_softmax(pq, axis=-1), _softmax(-pq, axis=-1)], axis=-1)
        phi_k = torch.concatenate([_softmax(pk, axis=-1), _softmax(-pk, axis=-1)], axis=-1)
        kv = torch.einsum("bhsf,bhsd->bhfd", phi_k, v)
        z  = torch.einsum("bhsf->bhf", phi_k)
        num = torch.einsum("bhqf,bhfd->bhqd", phi_q, kv)
        den = torch.einsum("bhqf,bhf->bhq", phi_q, z)[..., None] + 1e-6
        o = num / den
        return (lambda x, *d: x.permute(*d))(o, 0, 2, 1, 3).reshape(B, S, D) @ wo

    def _B_ref(x, wq, wk, wv, wo):
        B, S, D = x.shape
        H = 32
        Dh = D // H
        q = (lambda x, *d: x.permute(*d))((x @ wq).reshape(B, S, H, Dh), 0, 2, 1, 3)
        k = x @ wk
        v = x @ wv
        scores = torch.einsum("bhqd,bkd->bhqk", q, k) * (Dh ** -0.5)
        p = _softmax(scores, axis=-1)
        o = torch.einsum("bhqk,bkd->bhqd", p, v)
        return (lambda x, *d: x.permute(*d))(o, 0, 2, 1, 3).reshape(B, S, H * Dh) @ wo

    x = A_x
    g = _sigmoid((x * gate_w).sum(-1, keepdims=True))
    a = _A_ref(x, A_wqkv, A_w_phi, A_wo)
    b = _B_ref(x, B_wq, B_wk, B_wv, B_wo)
    return g * a + (1 - g) * b
```

```python
import re

TRANS = ("v_exp_f32", "v_rcp_f32", "v_log_f32", "v_rsq_f32", "v_sqrt_f32", "v_sin_f32", "v_cos_f32",
         "v_exp_f16", "v_rcp_f16", "v_rcp_iflag_f32")

def regs_of(tok):
    tok = tok.strip()
    tok = re.sub(r"^-", "", tok)
    m = re.match(r"^abs\((.*)\)$", tok)
    if m: tok = m.group(1)
    m = re.match(r"^\|(.*)\|$", tok)
    if m: tok = m.group(1)
    m = re.match(r"^([vsa])(\d+)$", tok)
    if m: return {(m.group(1), int(m.group(2)))}
    m = re.match(r"^([vsa])\[(\d+):(\d+)\]$", tok)
    if m: return {(m.group(1), i) for i in range(int(m.group(2)), int(m.group(3)) + 1)}
    if tok in ("vcc", "exec", "m0", "scc"): return {(tok, 0)}
    if tok in ("vcc_lo", "vcc_hi"): return {("vcc", 0)}
    if tok in ("exec_lo", "exec_hi"): return {("exec", 0)}
    return set()

class Ins:
    def __init__(self, text):
        self.text = text
        t = text.split(";")[0].strip()
        self.label = t.endswith(":")
        self.directive = t.startswith(".")
        self.kind = None; self.w = set(); self.r = set(); self.ws = 0
        self.mA = self.mB = self.mC = set()
        self.passes = 0; self.wide_store = set(); self.lds_dma = False
        if not t or self.label or self.directive:
            return
        parts = t.split(None, 1)
        self.op = op = parts[0]
        ops = []
        if len(parts) > 1:
            cur = ""; depth = 0
            for ch in parts[1]:
                if ch in "[(": depth += 1
                if ch in "])": depth -= 1
                if ch == "," and depth == 0:
                    ops.append(cur.strip()); cur = ""
                else: cur += ch
            ops.append(cur.strip())
        mods = ""
        if ops:
            last = ops[-1].split(None, 1)
            ops[-1] = last[0]
            if len(last) > 1: mods = last[1]
        self.ops = ops; self.mods = mods
        self.ws = 1
        R = lambda i: regs_of(ops[i]) if i < len(ops) else set()
        if op == "s_nop":
            self.kind = "nop"; self.ws = int(ops[0], 0) + 1
        elif op.startswith("v_mfma") or op.startswith("v_smfmac"):
            self.kind = "mfma"; self.w = R(0); self.mA = R(1); self.mB = R(2); self.mC = R(3)
            self.r = self.mA | self.mB | self.mC
            self.passes = 8 if "32x32" in op else 4
        elif op.startswith("v_"):
            self.kind = "trans" if op.replace("_e32", "").replace("_e64", "") in TRANS else "valu"
            if op.startswith("v_permlane") and "swap" in op:
                self.w = R(0) | R(1); self.r = R(0) | R(1); self.kind = "permlane"
            elif op.startswith("v_cmp"):
                self.w = R(0); self.r = R(1) | R(2)
                if op.startswith("v_cmpx"): self.w |= {("exec", 0)}
            elif op.startswith("v_readfirstlane") or op.startswith("v_readlane") or op.startswith("v_writelane"):
                self.w = R(0); self.r = R(1) | R(2); self.kind = "readlane"
            elif "_co_" in op:
                self.w = R(0) | R(1); self.r = set().union(*[R(i) for i in range(2, len(ops))])
            else:
                self.w = R(0); self.r = set().union(*[R(i) for i in range(1, len(ops))]) if len(ops) > 1 else set()
                if op.startswith("v_fmac") or op.startswith("v_pk_fmac") or "UNUSED_PRESERVE" in mods or op.startswith("v_dot2c"):
                    self.r |= R(0)
            self.dpp = ("row_" in mods or "quad_perm" in mods or "_dpp" in op)
        elif op.startswith("ds_"):
            self.kind = "ds"
            if op.startswith("ds_read") or op.startswith("ds_bpermute") or op.startswith("ds_swizzle") or op.startswith("ds_permute"):
                self.w = R(0); self.r = set().union(*[R(i) for i in range(1, len(ops))])
            else:
                self.r = set().union(*[R(i) for i in range(0, len(ops))])
        elif op.startswith("buffer_") or op.startswith("global_"):
            self.kind = "vmem"
            allr = set().union(*[R(i) for i in range(0, len(ops))])
            if " lds" in (" " + mods) or op.startswith("global_load_lds"):
                self.r = allr | {("m0", 0)}; self.lds_dma = True
            elif "_load" in op:
                self.w = R(0); self.r = set().union(*[R(i) for i in range(1, len(ops))])
            else:
                self.r = allr
                if "dwordx4" in op or "dwordx3" in op:
                    self.wide_store = R(0) if op.startswith("buffer_") else R(1)
        elif op.startswith("s_"):
            self.kind = "salu"
            if op.startswith("s_cmp") or op.startswith("s_cbranch") or op.startswith("s_branch") or op in ("s_barrier", "s_waitcnt", "s_endpgm", "s_setprio", "s_sleep"):
                self.r = set().union(*[R(i) for i in range(0, len(ops))]) if ops else set()
            else:
                self.w = R(0); self.r = set().union(*[R(i) for i in range(1, len(ops))]) if len(ops) > 1 else set()
                if "saveexec" in op: self.w |= {("exec", 0)}
        else:
            raise ValueError("unknown instruction: " + text)

VALUK = ("valu", "trans", "permlane", "readlane")
def need(p, c):
    n = 0
    vw = {x for x in p.w if x[0] in "va"}
    sw = {x for x in p.w if x[0] in ("s", "vcc")}
    if p.kind in VALUK:
        if c.kind == "mfma" and vw & c.r: n = max(n, 2)
        if c.kind == "permlane" and vw & c.r: n = max(n, 2)
        if c.kind == "readlane" and vw & c.r: n = max(n, 1)
        if c.kind in VALUK and getattr(c, "dpp", False) and vw & c.r: n = max(n, 2)
        if p.kind == "permlane" and c.kind in VALUK + ("vmem", "ds") and vw & c.r: n = max(n, 3)
        if p.kind == "trans" and c.kind in VALUK + ("mfma",) and c.kind != "trans" and vw & (c.r | c.w): n = max(n, 1)
        if sw:
            if c.kind == "vmem" and sw & c.r: n = max(n, 5)
            if c.kind in VALUK and sw & c.r: n = max(n, 4 if c.kind == "readlane" else 2)
            if c.kind == "salu" and sw & c.r: n = max(n, 1)
        if ("exec", 0) in p.w:
            n = max(n, 5)
        if "sdwa" in p.op or "op_sel" in p.mods and not p.op.startswith("v_pk"):
            if c.kind in VALUK and vw & (c.r | c.w): n = max(n, 1)
    if p.kind == "mfma":
        big = {4: 8, 8: 12}[p.passes]
        if c.kind == "mfma":
            if vw & (c.mA | c.mB): n = max(n, big)
            if vw & c.mC:
                if not (c.mC == p.w and c.passes == p.passes): n = max(n, {4: 6, 8: 10}[p.passes])
            if vw & c.w and not (c.mC == p.w and c.w == p.w):
                if not (vw & c.mC): n = max(n, {4: 6, 8: 10}[p.passes])
        elif c.kind in VALUK + ("ds", "vmem"):
            if vw & (c.r | c.w): n = max(n, big)
        if c.kind in VALUK and {x for x in p.mC if x[0] in "va"} & c.w:
            n = max(n, {4: 3, 8: 7}[p.passes])
    if p.kind == "salu" and ("m0", 0) in p.w and c.lds_dma: n = max(n, 1)
    if p.wide_store and p.wide_store & c.w:
        n = max(n, 2 if c.kind in VALUK + ("mfma",) else 1)
    return n

def fix_hazards(lines, pre=None, report=None):
    hist = [Ins(l) for l in (pre or [])]
    hist = [h for h in hist if h.kind]
    out = []
    for l in lines:
        c = Ins(l)
        if c.kind:
            dist = 0; req = 0
            for p in reversed(hist):
                nd = need(p, c)
                if nd > dist: req = max(req, nd - dist)
                dist += p.ws
                if dist >= 20: break
            if req:
                if report is not None: report.append((l.strip(), req))
                while req > 0:
                    k = min(req, 16)
                    nl = f"    s_nop {k-1}"
                    out.append(nl); hist.append(Ins(nl)); req -= k
            hist.append(c)
        out.append(l)
    return out

class Emitter:
    def __init__(self):
        self.lines = []
    def __call__(self, s):
        for l in s.split("\n"):
            l = l.strip()
            if not l: continue
            if l.endswith(":") or l.startswith("."): self.lines.append(l)
            else: self.lines.append("    " + l)
    def label(self, n): self.lines.append(n + ":")
    def extend(self, ls):
        for l in ls: self(l)

def vr(a, n=1):
    return f"v{a}" if n == 1 else f"v[{a}:{a+n-1}]"
def sr(a, n=1):
    return f"s{a}" if n == 1 else f"s[{a}:{a+n-1}]"
def mfma(d, a, b, c):
    cs = "0" if c is None else vr(c, 16)
    return f"v_mfma_f32_32x32x16_bf16 {vr(d,16)}, {vr(a,4)}, {vr(b,4)}, {cs}"
def interleave(*seqs):
    out = []; n = max(len(s) for s in seqs)
    for i in range(n):
        for s in seqs:
            if i < len(s): out.append(s[i])
    return out
```

```python
import sys, math, struct
from asmlib import *

NAME = "gated_mix__linear_kernel_hedgehog__grouped_kv_mqa__prompt"
WS_QB   = 0x000000
WS_PHIQ = 0x200000
WS_KVB  = 0x600000
WS_GATE = 0x620000
WS_PART = 0x640000
WS_OC   = 0x900000
WS_SIZE = 0xD00000

def fbits(x): return "0x%08x" % struct.unpack("<I", struct.pack("<f", x))[0]
LOG2E = math.log2(math.e)
OPT = dict(k1map=0, k1rot=1, round_pq=0, k3rot=1, mtiles=2)

def srd(e, d, lo, nbytes):
    e(f"s_mov_b32 s{d}, s{lo}")
    e(f"s_mov_b32 s{d+1}, s{lo+1}")
    e(f"s_mov_b32 s{d+2}, {hex(nbytes)}")
    e(f"s_mov_b32 s{d+3}, 0x00020000")

def phi_unit(P, T, O, sL, sNL):
    l = []
    if OPT["round_pq"]:
        for q in range(4): l.append(f"v_cvt_pk_bf16_f32 v{P+8+q}, v{P+2*q}, v{P+2*q+1}")
        for q in range(4):
            l.append(f"v_lshlrev_b32 v{P+2*q}, 16, v{P+8+q}")
            l.append(f"v_and_b32 v{P+2*q+1}, 0xffff0000, v{P+8+q}")
    l += [f"v_max3_f32 v{T}, v{P}, v{P+1}, v{P+2}",
          f"v_max3_f32 v{T+1}, -v{P}, -v{P+1}, -v{P+2}",
          f"v_max3_f32 v{T}, v{T}, v{P+3}, v{P+4}",
          f"v_max3_f32 v{T+1}, v{T+1}, -v{P+3}, -v{P+4}",
          f"v_max3_f32 v{T}, v{T}, v{P+5}, v{P+6}",
          f"v_max3_f32 v{T+1}, v{T+1}, -v{P+5}, -v{P+6}",
          f"v_max_f32 v{T}, v{T}, v{P+7}",
          f"v_max_f32_e64 v{T+1}, v{T+1}, -v{P+7}",
          f"v_permlane32_swap_b32 v{T}, v{T+1}",
          f"v_max_f32 v{T}, v{T}, v{T+1}",
          f"v_mul_f32 v{T}, s{sNL}, v{T}",
          f"v_mov_b32 v{T+1}, v{T}",
          f"v_permlane32_swap_b32 v{T}, v{T+1}"]
    for i in range(8):
        l.append(f"v_fma_f32 v{P+8+i}, -v{P+i}, s{sL}, v{T+1}")
        l.append(f"v_fma_f32 v{P+i}, v{P+i}, s{sL}, v{T}")
    for i in range(16): l.append(f"v_exp_f32 v{P+i}, v{P+i}")
    l.append(f"v_add_f32 v{T+2}, v{P}, v{P+1}")
    l.append(f"v_add_f32 v{T+3}, v{P+8}, v{P+9}")
    for i in range(2, 8):
        l.append(f"v_add_f32 v{T+2}, v{T+2}, v{P+i}")
        l.append(f"v_add_f32 v{T+3}, v{T+3}, v{P+8+i}")
    l += [f"v_permlane32_swap_b32 v{T+2}, v{T+3}",
          f"v_add_f32 v{T+2}, v{T+2}, v{T+3}",
          f"v_rcp_f32 v{T+2}, v{T+2}",
          f"v_mov_b32 v{T+3}, v{T+2}",
          f"v_permlane32_swap_b32 v{T+2}, v{T+3}"]
    for i in range(8):
        l.append(f"v_mul_f32 v{P+i}, v{P+i}, v{T+2}")
        l.append(f"v_mul_f32 v{P+8+i}, v{P+8+i}, v{T+3}")
    for q in range(8): l.append(f"v_cvt_pk_bf16_f32 v{O+q}, v{P+2*q}, v{P+2*q+1}")
    return l

K1_LDS = 151552
def gen_k1():
    e = Emitter()
    EXT = 131072; WPH = 147456
    e("s_cmp_ge_u32 s2, 256")
    e("s_cbranch_scc1 K1_done")
    e("s_load_dwordx16 s[48:63], s[0:1], 0")
    e("s_load_dwordx8 s[64:71], s[0:1], 64")
    e("s_load_dwordx2 s[72:73], s[0:1], 96")
    e("v_and_b32 v1, 63, v0")
    e("v_lshrrev_b32 v11, 6, v0")
    e("v_readfirstlane_b32 s30, v11")
    e("s_and_b32 s36, s2, 7")
    e("s_lshr_b32 s37, s2, 3")
    if OPT["k1map"] == 0:
        e("s_lshr_b32 s28, s36, 1"); e("s_lshl_b32 s28, s28, 2"); e("s_lshr_b32 s38, s37, 3"); e("s_add_u32 s28, s28, s38")
        e("s_and_b32 s29, s36, 1"); e("s_lshl_b32 s29, s29, 3"); e("s_and_b32 s38, s37, 7"); e("s_add_u32 s29, s29, s38")
    else:
        e("s_lshl_b32 s28, s36, 1"); e("s_lshr_b32 s38, s37, 4"); e("s_add_u32 s28, s28, s38")
        e("s_and_b32 s29, s37, 15")
    if OPT["k1rot"]:
        e("s_add_u32 s31, s28, s29"); e("s_and_b32 s31, s31, 7")
    else:
        e("s_mov_b32 s31, 0")
    e("s_mov_b32 s42, s31")
    e("v_lshrrev_b32 v11, 3, v1")
    e("v_and_b32 v12, 7, v1")
    e("v_lshrrev_b32 v13, 4, v1")
    e("v_xor_b32 v14, v12, v13")
    e("v_lshlrev_b32 v14, 4, v14")
    e("v_lshl_add_u32 v2, v11, 10, v14")
    e("v_xor_b32 v3, 64, v2")
    e(f"v_add_u32 v4, {2*7168}, v2")
    e(f"v_add_u32 v5, {3*7168}, v3")
    e(f"v_add_u32 v3, {7168}, v3")
    e("v_and_b32 v13, 1, v13")
    e("v_lshlrev_b32 v13, 2, v13")
    e("v_xor_b32 v14, v12, v13")
    e("v_lshlrev_b32 v14, 4, v14")
    e("v_mul_u32_u24 v6, 3072, v11")
    e("v_add_u32 v6, v6, v14")
    e(f"v_add_u32 v7, {8*3072-1024}, v6")
    e("v_lshlrev_b32 v10, 4, v1")
    e("s_and_b32 s43, s29, 7")
    e("s_lshl_b32 s38, s43, 7")
    e("s_cmp_lt_u32 s29, 8")
    e("s_mov_b32 s35, 1024")
    e("s_cselect_b32 s35, 3072, s35")
    e("s_cselect_b32 s36, 1024, 0")
    e("s_cselect_b32 s37, 2048, 0")
    e("s_add_u32 s36, s36, s38")
    e("s_add_u32 s37, s37, s38")
    e("v_mul_lo_u32 v8, v11, s35")
    e("v_add_u32 v8, v8, v14")
    e("s_lshl_b32 s38, s35, 3")
    e("s_sub_u32 s38, s38, 1024")
    e("v_add_u32 v9, s38, v8")
    e("s_mul_i32 s33, s30, 49152")
    e("s_add_u32 s33, s33, s36")
    e("s_mul_i32 s34, s30, s35")
    e("s_lshl_b32 s34, s34, 4")
    e("s_add_u32 s34, s34, s37")
    e("s_lshl_b32 s35, s35, 6")
    e("s_lshl_b32 s32, s28, 17")
    e("s_lshl_b32 s38, s30, 15")
    e("s_add_u32 s32, s32, s38")
    e("s_lshl_b32 s40, s30, 12")
    e("s_lshl_b32 s41, s30, 11")
    e("s_add_u32 s41, s41, 16384")
    e("s_waitcnt lgkmcnt(0)")
    srd(e, 4, 48, 2048*512*2)
    srd(e, 8, 50, 512*1536*2)
    e("s_cmp_lt_u32 s29, 8")
    e("s_cselect_b32 s12, s50, s58")
    e("s_cselect_b32 s13, s51, s59")
    e(f"s_mov_b32 s14, {hex(512*512*2)}")
    e(f"s_cselect_b32 s14, {hex(512*1536*2)}, s14")
    e("s_mov_b32 s15, 0x00020000")
    srd(e, 20, 52, 32*16*16*2)
    srd(e, 24, 72, WS_SIZE)
    e("s_cmp_eq_u32 s29, 8")
    e("s_cselect_b32 s16, s60, s62")
    e("s_cselect_b32 s17, s61, s63")
    e("s_cmp_eq_u32 s29, 10")
    e("s_cselect_b32 s16, s66, s16")
    e("s_cselect_b32 s17, s67, s17")
    e("s_mov_b32 s18, 16384")
    e("s_cselect_b32 s18, 1024, s18")
    e("s_mov_b32 s19, 0x00020000")
    e("s_sub_u32 s38, s29, 8")
    e("s_cmp_gt_u32 s38, 2")
    e("s_cbranch_scc1 K1_noext")
    e(f"s_add_u32 m0, s40, {EXT}")
    for i in range(4):
        e(f"buffer_load_dwordx4 v10, s[16:19], s40 offen offset:{i*1024} lds")
    e.label("K1_noext")
    e("s_lshr_b32 s44, s30, 1")
    e("s_lshl_b32 s45, s43, 2")
    e("s_lshl_b32 s38, s44, 1")
    e("s_add_u32 s45, s45, s38")
    e("s_lshl_b32 s38, s45, 9")
    e("s_lshl_b32 s39, s30, 10")
    e(f"s_add_u32 m0, s39, {WPH}")
    e("s_nop 0")
    e("buffer_load_dwordx4 v10, s[20:23], s38 offen lds")

    def dma(slot):
        l = []
        l.append("s_lshl_b32 s38, s31, 7")
        l.append("s_add_u32 s38, s38, s32")
        l.append(f"s_add_u32 m0, s40, {slot*32768}")
        l.append("s_mul_i32 s39, s31, 196608")
        for i in range(4):
            l.append(f"buffer_load_dwordx4 v{2+i}, s[4:7], s38 offen offset:{i*1024} lds")
        l.append("s_add_u32 s39, s39, s33")
        l.append(f"s_add_u32 m0, s41, {slot*32768}")
        l.append("s_mul_i32 s38, s31, s35")
        for j in range(2):
            l.append(f"buffer_load_dwordx4 v{6+j}, s[8:11], s39 offen offset:{j*1024} lds")
        l.append("s_add_u32 s38, s38, s34")
        l.append(f"s_add_u32 m0, s41, {slot*32768+8192}")
        l.append("s_add_u32 s31, s31, 1")
        for j in range(2):
            l.append(f"buffer_load_dwordx4 v{8+j}, s[12:15], s38 offen offset:{j*1024} lds")
        l.append("s_and_b32 s31, s31, 7")
        return l
    for s in range(4): e.extend(dma(s))
    e("v_and_b32 v11, 31, v1")
    e("v_lshrrev_b32 v28, 5, v1")
    e("v_bfe_u32 v29, v1, 1, 3")
    e("v_xor_b32 v29, v29, v28")
    e("v_lshlrev_b32 v29, 4, v29")
    e("v_lshl_add_u32 v12, v11, 7, v29")
    e("s_and_b32 s46, s30, 1")
    e("s_lshl_b32 s46, s46, 1")
    e("s_add_u32 s46, s46, s44")
    e("s_lshl_b32 s38, s46, 12")
    e("v_add_u32 v12, s38, v12")
    for t in range(1, 4): e(f"v_xor_b32 v{12+t}, {32*t}, v12")
    for t in range(4): e(f"v_xor_b32 v{16+t}, 0x1000, v{12+t}")
    for t in range(8): e(f"v_add_u32 v{20+t}, 0x10000, v{12+t}")
    e("v_bfe_u32 v30, v1, 2, 2")
    e("v_lshl_add_u32 v31, v28, 3, v30")
    e("v_lshlrev_b32 v31, 7, v31")
    e("v_lshrrev_b32 v30, 1, v30")
    e("v_xor_b32 v30, s44, v30")
    e("v_lshl_add_u32 v31, v30, 6, v31")
    e("v_bfe_u32 v30, v1, 4, 1")
    e("v_lshl_add_u32 v31, v30, 5, v31")
    e("v_and_b32 v30, 3, v1")
    e("v_lshl_add_u32 v31, v30, 3, v31")
    e("v_and_b32 v210, 15, v1")
    e("v_lshlrev_b32 v210, 3, v210")
    e("v_lshl_add_u32 v209, v28, 7, v210")
    e("s_lshl_b32 s39, s30, 10")
    e(f"s_add_u32 s39, s39, {WPH}")
    e("v_add_u32 v209, s39, v209")
    e("v_lshl_add_u32 v211, v28, 8, v210")
    e("v_lshlrev_b32 v210, 4, v28")
    e(f"v_add_u32 v211, {EXT}, v211")
    e(f"v_add_u32 v210, {EXT}, v210")
    e("v_mov_b32 v28, v31")
    e("v_add_u32 v29, 0x10000, v31")
    e(f"s_mov_b32 s74, {fbits(LOG2E)}")
    e(f"s_mov_b32 s75, {fbits(-LOG2E)}")
    e("s_lshl_b32 s47, s28, 2")
    e("s_add_u32 s47, s47, s46")
    e("s_cmp_lt_u32 s29, 8")
    e("s_cbranch_scc1 K1_kv")
    e("s_cmp_eq_u32 s29, 8")
    e("s_cbranch_scc1 K1_qk")
    e("s_cmp_eq_u32 s29, 9")
    e("s_cbranch_scc1 K1_qv")
    e("s_cmp_eq_u32 s29, 10")
    e("s_cbranch_scc1 K1_qg")

    ACC = 112; EACC = 176
    def reads(var, F, slot, tp):
        l = []
        hi = slot >= 2; so = (slot & 1) * 32768
        for tt in range(2):
            t = 2 * tp + tt; b = F + 20 * tt
            l.append(f"ds_read_b128 {vr(b,4)}, v{(20 if hi else 12)+t} offset:{so}")
            for seg in range(2):
                for u in range(2):
                    l.append(f"ds_read_b64_tr_b16 {vr(b+8+4*seg+2*u,2)}, v{29 if hi else 28} offset:{so+16384+seg*8192+(16*t+4*u)*128}")
            l.append(f"ds_read_b128 {vr(b+4,4)}, v{(24 if hi else 16)+t} offset:{so}")
            if var in ("qk", "qv"):
                for u in range(2):
                    l.append(f"ds_read_b64_tr_b16 {vr(b+16+2*u,2)}, v30 offset:{t*512+u*128}")
            elif var == "qg":
                l.append(f"ds_read_b128 {vr(b+16,4)}, v30 offset:{t*32}")
        return l
    def mfmas(var, F, first):
        l = []
        for tt in range(2):
            b = F + 20 * tt
            z = first and tt == 0
            c = lambda r: None if z else r
            l.append(mfma(ACC, b+8, b, c(ACC)))
            if var == "kv": l.append(mfma(ACC+32, b, b+12, c(ACC+32)))
            else: l.append(mfma(ACC+32, b+12, b, c(ACC+32)))
            l.append(mfma(ACC+16, b+8, b+4, c(ACC+16)))
            if var == "kv": l.append(mfma(ACC+48, b+4, b+12, c(ACC+48)))
            else: l.append(mfma(ACC+48, b+12, b+4, c(ACC+48)))
            if var in ("qk", "qg"): l.append(mfma(EACC, b+16, b, c(EACC)))
            elif var == "qv": l.append(mfma(EACC, b, b+16, c(EACC)))
        return l
    def extaddr(var):
        if var in ("qk", "qv"):
            return ["s_lshl_b32 s38, s42, 11", "v_add_u32 v30, s38, v211", "s_add_u32 s42, s42, 1", "s_and_b32 s42, s42, 7"]
        if var == "qg":
            return ["s_lshl_b32 s38, s42, 7", "v_add_u32 v30, s38, v210", "s_add_u32 s42, s42, 1", "s_and_b32 s42, s42, 7"]
        return []
    def mainloop(var, pre):
        F0, F1 = 32, 72
        e.extend(pre)
        e.extend(extaddr(var))
        e("s_waitcnt vmcnt(24)")
        e("s_barrier")
        r = reads(var, F0, 0, 0); n = len(r)
        e.extend(r)
        for m in range(2):
            for u in range(2):
                e(f"ds_read_b64_tr_b16 {vr(192+4*m+2*u,2)}, v209 offset:{m*512+u*256}")
        vm = [24, 16, 16, 16, 16, 16, 8, 0]
        for c in range(8):
            r = reads(var, F1, c % 4, 1)
            mm = mfmas(var, F0, c == 0)
            e("s_waitcnt lgkmcnt(0)")
            k = 0
            per = (len(r) + len(mm) - 1) // len(mm) + 1
            for x in mm:
                e(x)
                e.extend(r[k:k+per]); k += per
            e.extend(r[k:])
            mm = mfmas(var, F1, False)
            if c < 7:
                e(f"s_waitcnt vmcnt({vm[c+1]}) lgkmcnt(0)")
                e("s_barrier")
                e.extend(extaddr(var))
                r = reads(var, F0, (c + 1) % 4, 0)
                d = dma(c % 4) if c + 4 <= 7 else []
                r = r + d
                k = 0
                per = (len(r) + len(mm) - 1) // len(mm) + 1
                for x in mm:
                    e(x)
                    e.extend(r[k:k+per]); k += per
                e.extend(r[k:])
            else:
                e("s_waitcnt lgkmcnt(0)")
                e.extend(mm)
    PU = [32, 48, 64, 80]; PH = [96, 104, 212, 220]; TM = [228, 232, 236, 240]
    def phi_front():
        l = []
        for u in range(4):
            st, m = u >> 1, u & 1
            a = ACC + 16 * st + 8 * m
            for q in range(4): l.append(f"v_cvt_pk_bf16_f32 v{PH[u]+q}, v{a+2*q}, v{a+2*q+1}")
        for u in range(4):
            l.append(mfma(PU[u], 192 + 4 * (u & 1), PH[u], None))
        return l
    def phi_all():
        return interleave(*[phi_unit(PU[u], TM[u], PH[u], 74, 75) for u in range(4)])

    def qq_epilogue():
        e.extend(phi_front())
        e(f"s_mov_b32 s76, {fbits(0.25*LOG2E)}")
        for st in range(2):
            a = ACC + 32 + 16 * st
            for i in range(16): e(f"v_mul_f32 v{a+i}, s76, v{a+i}")
            for q in range(8): e(f"v_cvt_pk_bf16_f32 v{a+q}, v{a+2*q}, v{a+2*q+1}")
            for m in range(2):
                e(f"s_add_u32 s38, s45, {m}")
                e("s_lshl_b32 s38, s38, 6")
                e(f"s_xor_b32 s39, s47, {st}")
                e("s_add_u32 s38, s38, s39")
                e("s_lshl_b32 s38, s38, 10")
                if WS_QB: e(f"s_add_u32 s38, s38, {WS_QB}")
                e(f"buffer_store_dwordx4 {vr(a+4*m,4)}, v10, s[24:27], s38 offen")
        e.extend(phi_all())
        for u in range(4):
            st, m = u >> 1, u & 1
            e(f"s_add_u32 s38, s45, {m}")
            e("s_lshl_b32 s38, s38, 6")
            e(f"s_xor_b32 s39, s47, {st}")
            e("s_add_u32 s38, s38, s39")
            e("s_lshl_b32 s38, s38, 11")
            e(f"s_add_u32 s38, s38, {WS_PHIQ}")
            e(f"buffer_store_dwordx4 {vr(PH[u],4)}, v10, s[24:27], s38 offen")
            e(f"buffer_store_dwordx4 {vr(PH[u]+4,4)}, v10, s[24:27], s38 offen offset:1024")
        e("s_endpgm")

    mainloop("qq", [])
    e.label("K1_qq_epi")
    e("s_nop 7"); e("s_nop 7")
    qq_epilogue()
    e.label("K1_qk")
    mainloop("qk", [])
    for q in range(4): e(f"v_cvt_pk_bf16_f32 v{EACC+q}, v{EACC+2*q}, v{EACC+2*q+1}")
    e("s_lshl_b32 s38, s47, 11")
    e(f"s_add_u32 s38, s38, {WS_KVB}")
    e(f"buffer_store_dwordx4 {vr(EACC,4)}, v10, s[24:27], s38 offen")
    e("s_branch K1_qq_epi")
    e.label("K1_qv")
    mainloop("qv", [])
    for q in range(8): e(f"v_cvt_pk_bf16_f32 v{EACC+q}, v{EACC+2*q}, v{EACC+2*q+1}")
    e("v_lshrrev_b32 v11, 5, v1")
    e("v_and_b32 v12, 15, v1")
    e("v_lshlrev_b32 v12, 4, v12")
    e("v_lshl_add_u32 v12, v11, 8, v12")
    e("s_lshl_b32 s38, s47, 11")
    e(f"s_add_u32 s38, s38, {WS_KVB+1024}")
    e("s_mov_b32 exec_lo, 0xffff")
    e("s_mov_b32 exec_hi, 0xffff")
    e(f"buffer_store_dwordx4 {vr(EACC,4)}, v12, s[24:27], s38 offen")
    e(f"buffer_store_dwordx4 {vr(EACC+4,4)}, v12, s[24:27], s38 offen offset:512")
    e("s_mov_b64 exec, -1")
    e("s_branch K1_qq_epi")
    e.label("K1_qg")
    mainloop("qg", [])
    e(f"v_cvt_pk_bf16_f32 v11, v{EACC}, v{EACC}")
    e("v_and_b32 v11, 0xffff0000, v11")
    e("v_mul_f32 v11, s75, v11")
    e("v_exp_f32 v11, v11")
    e("v_add_f32 v11, 1.0, v11")
    e("v_rcp_f32 v11, v11")
    e("v_cvt_pk_bf16_f32 v11, v11, v11")
    e("v_and_b32 v11, 0xffff0000, v11")
    e("v_lshlrev_b32 v12, 2, v1")
    e("s_lshl_b32 s38, s47, 7")
    e(f"s_add_u32 s38, s38, {WS_GATE}")
    e("s_mov_b32 exec_hi, 0")
    e("buffer_store_dword v11, v12, s[24:27], s38 offen")
    e("s_mov_b64 exec, -1")
    e("s_branch K1_qq_epi")
    e.label("K1_kv")
    pre = []
    pre.append("v_and_b32 v244, 31, v1")
    pre.append("v_lshrrev_b32 v245, 5, v1")
    pre.append("v_lshlrev_b32 v245, 2, v245")
    pre.append("v_sub_u32 v244, v244, v245")
    pre.append("v_mov_b32 v246, 0x3f80")
    pre.append("v_mov_b32 v247, 0x3f800000")
    for sgn in range(2):
        for q in range(4):
            f0 = 16 * sgn + (2 * q if q < 2 else 8 + 2 * (q - 2))
            pre.append(f"v_cmp_eq_u32 vcc, {f0}, v244")
            pre.append(f"v_cndmask_b32 v{200+4*sgn+q}, 0, v246, vcc")
            pre.append(f"v_cmp_eq_u32 vcc, {f0+1}, v244")
            pre.append(f"v_cndmask_b32 v{200+4*sgn+q}, v{200+4*sgn+q}, v247, vcc")
    pre.append("v_bfe_u32 v208, v1, 4, 1")
    pre.append("v_add_u32 v208, -1, v208")
    pre.append("v_mov_b32 v252, 0x3f803f80")
    mainloop("kv", pre)
    e.extend(phi_front())
    for st in range(2):
        a = ACC + 32 + 16 * st
        for q in range(8): e(f"v_cvt_pk_bf16_f32 v{244+q}, v{a+2*q}, v{a+2*q+1}")
        for q in range(8):
            e(f"v_bfi_b32 v{ACC+16*st+q}, v208, v{244+q}, v252")
            e(f"v_bfi_b32 v{ACC+16*st+8+q}, v208, v252, v{244+q}")
    e.extend(phi_all())
    for u in range(4): e(mfma(PU[u], PH[u], 200, None))
    for u in range(4): e(mfma(PU[u], PH[u] + 4, 204, PU[u]))
    D3 = [ACC + 32, ACC + 48]
    for u in range(4):
        for q in range(8): e(f"v_cvt_pk_bf16_f32 v{PH[u]+q}, v{PU[u]+2*q}, v{PU[u]+2*q+1}")
    for u in range(4):
        st, m = u >> 1, u & 1
        e(mfma(D3[m], PH[u], ACC + 16 * st + 8 * m, None if st == 0 else D3[m]))
        e(mfma(D3[m], PH[u] + 4, ACC + 16 * st + 8 * m + 4, D3[m]))
    e("v_add_u32 v11, s40, v10")
    e("v_xor_b32 v12, 0x1000, v11")
    e("s_and_b32 s38, s30, 1")
    e("s_add_u32 s45, s45, s38")
    e("s_lshl_b32 s39, s38, 7")
    e("v_lshlrev_b32 v13, 3, v1")
    e("v_xor_b32 v13, s39, v13")
    e("s_lshl_b32 s45, s45, 16")
    e("s_lshl_b32 s39, s28, 9")
    e("s_add_u32 s45, s45, s39")
    e(f"s_add_u32 s45, s45, {WS_PART}")
    e("s_nop 7")
    e("s_cmp_eq_u32 s38, 0")
    e("s_cbranch_scc0 K1_kv_odd")
    for par in range(2):
        if par: e.label("K1_kv_odd")
        keep, send = D3[par], D3[par ^ 1]
        e("s_nop 7")
        for q in range(4): e(f"ds_write_b128 v11, {vr(send+4*q,4)} offset:{q*1024}")
        e("s_waitcnt lgkmcnt(0)")
        e("s_barrier")
        for q in range(4): e(f"ds_read_b128 {vr(32+4*q,4)}, v12 offset:{q*1024}")
        e("s_waitcnt lgkmcnt(0)")
        for i in range(16): e(f"v_add_f32 v{keep+i}, v{keep+i}, v{32+i}")
        for p in range(8):
            e(f"buffer_store_dwordx2 {vr(keep+2*p,2)}, v13, s[24:27], s45 offen")
            if p < 7: e("s_add_u32 s45, s45, 8192")
        e("s_endpgm")
    e.label("K1_done")
    e("s_endpgm")
    return fix_hazards(e.lines)

K2_LDS = 131072 + 4096
def gen_k2():
    e = Emitter()
    RED = 131072
    Q = 4; NM = 8; O = 24; S = [40, 56]; PK = 72; KF = [80, 84]; VF = [88, 96]
    PHQ = 104; PP = 112; G = 144; AK = 2; AV = 3; T = 146
    e("s_cmp_ge_u32 s2, 256")
    e("s_cbranch_scc1 K2_done")
    e("s_load_dwordx2 s[8:9], s[0:1], 96")
    e("v_and_b32 v1, 63, v0")
    e("v_lshrrev_b32 v2, 6, v0")
    e("v_readfirstlane_b32 s12, v2")
    e("s_and_b32 s13, s2, 7")
    e("s_lshr_b32 s14, s2, 3")
    e("s_lshl_b32 s15, s13, 3")
    e("s_add_u32 s15, s15, s12")
    e("s_lshl_b32 s16, s14, 6")
    e("s_add_u32 s16, s16, s15")
    e(f"v_lshlrev_b32 v{AK}, 4, v1")
    e("s_lshl_b32 s17, s16, 10")
    e("s_lshl_b32 s18, s12, 10")
    e(f"s_add_u32 s19, s18, {WS_KVB}")
    e("s_mov_b32 m0, s18")
    e("s_waitcnt lgkmcnt(0)")
    srd(e, 4, 8, WS_SIZE)
    if WS_QB: e(f"s_add_u32 s17, s17, {WS_QB}")
    e(f"buffer_load_dwordx4 {vr(Q,4)}, v{AK}, s[4:7], s17 offen")
    for i in range(16):
        e(f"buffer_load_dwordx4 v{AK}, s[4:7], s19 offen lds")
        if i < 15:
            e("s_add_u32 m0, m0, 8192")
            e("s_add_u32 s19, s19, 8192")
    e("s_lshl_b32 s17, s16, 11")
    e(f"s_add_u32 s17, s17, {WS_PHIQ}")
    e(f"buffer_load_dwordx4 {vr(PHQ,4)}, v{AK}, s[4:7], s17 offen")
    e(f"buffer_load_dwordx4 {vr(PHQ+4,4)}, v{AK}, s[4:7], s17 offen offset:1024")
    e("s_lshl_b32 s17, s14, 3")
    e("s_add_u32 s17, s17, s12")
    e("s_lshl_b32 s17, s17, 13")
    e(f"s_add_u32 s17, s17, {WS_PART}")
    e(f"v_lshlrev_b32 v{T}, 3, v1")
    for p in range(16):
        if p == 8: e("s_add_u32 s17, s17, 4096")
        e(f"buffer_load_dwordx2 {vr(PP+2*p,2)}, v{T}, s[4:7], s17 offen offset:{(p&7)*512}")
    e(f"v_and_b32 v{T}, 31, v1")
    e(f"v_lshlrev_b32 v{T}, 2, v{T}")
    e("s_lshl_b32 s17, s15, 7")
    e(f"s_add_u32 s17, s17, {WS_GATE}")
    e(f"buffer_load_dword v{G}, v{T}, s[4:7], s17 offen")
    e(f"v_lshrrev_b32 v{T}, 5, v1")
    e(f"v_and_b32 v{AV}, 15, v1")
    e(f"v_lshlrev_b32 v{AV}, 4, v{AV}")
    e(f"v_lshl_add_u32 v{AV}, v{T}, 8, v{AV}")
    e(f"v_add_u32 v{AV}, 1024, v{AV}")
    e(f"v_and_b32 v{T}, 27, v1")
    e(f"v_mov_b32 v{T+1}, 0x3f803f80")
    e(f"v_cmp_eq_u32 vcc, 16, v{T}")
    e(f"v_cndmask_b32 v{VF[0]}, 0, v{T+1}, vcc")
    for i in range(1, 16): e(f"v_mov_b32 v{VF[0]+i}, v{VF[0]}")
    e("s_mov_b32 s20, 0xffff")
    e("s_mov_b32 s21, 0xffff")
    e("s_mov_b32 s22, 0")
    e("s_waitcnt vmcnt(33)")
    e("s_barrier")
    mt = OPT["mtiles"]
    e(f"ds_read_b128 {vr(KF[0],4)}, v{AK}")
    e(f"ds_read_b128 {vr(KF[1],4)}, v{AK} offset:2048")
    e("s_waitcnt lgkmcnt(0)")
    e(mfma(S[0], KF[0], Q, None))
    e(mfma(S[1], KF[1], Q, None))
    e(f"v_max3_f32 v{T}, v{S[0]}, v{S[0]+1}, v{S[0]+2}")
    rest = list(range(S[0] + 3, S[0] + 32))
    while len(rest) >= 2:
        e(f"v_max3_f32 v{T}, v{T}, v{rest[0]}, v{rest[1]}"); rest = rest[2:]
    if rest: e(f"v_max_f32 v{T}, v{T}, v{rest[0]}")
    e.label("K2_havemax")
    e(f"v_mov_b32 v{T+1}, v{T}")
    e(f"v_permlane32_swap_b32 v{T}, v{T+1}")
    e(f"v_max_f32 v{T}, v{T}, v{T+1}")
    for i in range(16): e(f"v_sub_f32 v{NM+i}, 0, v{T}")
    for i in range(16): e(f"v_mov_b32 v{O+i}, 0")
    e(f"ds_read_b128 {vr(KF[0],4)}, v{AK}")
    e(f"ds_read_b128 {vr(KF[1],4)}, v{AK} offset:2048")
    e("s_mov_b64 exec, s[20:21]")
    e(f"ds_read_b128 {vr(VF[0],4)}, v{AV}")
    e(f"ds_read_b128 {vr(VF[0]+4,4)}, v{AV} offset:512")
    e("s_mov_b64 exec, -1")
    e("s_waitcnt lgkmcnt(0)")
    e(mfma(S[0], KF[0], Q, NM))
    e("s_mov_b32 s23, 0")
    e("s_nop 7")
    e("s_nop 3")
    body = Emitter()
    U = 4
    for j in range(U):
        a = j & 1; b = a ^ 1
        Sa = S[a]
        body(mfma(S[b], KF[b], Q, NM))
        body(f"ds_read_b128 {vr(KF[a],4)}, v{AK} offset:{(j+2)*2048}")
        body("s_mov_b64 exec, s[20:21]")
        body(f"ds_read_b128 {vr(VF[b],4)}, v{AV} offset:{(j+1)*2048}")
        body(f"ds_read_b128 {vr(VF[b]+4,4)}, v{AV} offset:{(j+1)*2048+512}")
        body("s_mov_b64 exec, -1")
        for i in range(8): body(f"v_exp_f32 v{Sa+i}, v{Sa+i}")
        body(f"v_exp_f32 v{Sa+8}, v{Sa+8}")
        for q in range(4): body(f"v_cvt_pk_bf16_f32 v{PK+q}, v{Sa+2*q}, v{Sa+2*q+1}")
        body(f"v_exp_f32 v{Sa+9}, v{Sa+9}")
        body(f"v_exp_f32 v{Sa+10}, v{Sa+10}")
        body(mfma(O, VF[a], PK, O))
        for i in range(11, 16): body(f"v_exp_f32 v{Sa+i}, v{Sa+i}")
        for q in range(4, 8): body(f"v_cvt_pk_bf16_f32 v{PK+q}, v{Sa+2*q}, v{Sa+2*q+1}")
        if j == U - 1:
            body(f"v_add_u32 v{AK}, {U*2048}, v{AK}")
            body(f"v_add_u32 v{AV}, {U*2048}, v{AV}")
        else:
            body("s_nop 1")
        body(mfma(O, VF[a] + 4, PK + 4, O))
        body("s_waitcnt lgkmcnt(0)")
    rep = []
    fix_hazards(body.lines, pre=body.lines, report=rep)
    assert not rep, rep
    e(".p2align 6")
    e.label("K2_loop")
    e.extend(body.lines)
    e("s_add_u32 s23, s23, 1")
    e("s_cmp_lt_u32 s23, 6")
    e("s_cbranch_scc1 K2_side")
    e.label("K2_cont")
    e("s_cmp_lt_u32 s23, 16")
    e("s_cbranch_scc1 K2_loop")
    e(f"v_add_u32 v{AK}, {-16*U*2048 & 0xffffffff}, v{AK}")
    e(f"v_add_u32 v{AV}, {-16*U*2048 & 0xffffffff}, v{AV}")
    e("s_nop 7")
    e("s_nop 3")
    e("s_cmp_lg_u32 s22, 0")
    e("s_cbranch_scc1 K2_fin")
    e(f"v_mov_b32 v{T+1}, 0x207")
    e(f"s_mov_b32 s24, {fbits(2.0**120)}")
    e(f"v_cmp_ngt_f32 vcc, s24, v{O+8}")
    e("s_mov_b64 s[26:27], vcc")
    for i in range(8):
        e(f"v_cmp_class_f32 vcc, v{O+i}, v{T+1}")
        e("s_or_b64 s[26:27], s[26:27], vcc")
    e("s_cmp_lg_u64 s[26:27], 0")
    e("s_cbranch_scc1 K2_fallback")
    e.label("K2_fin")
    e(f"v_rcp_f32 v{T}, v{O+8}")
    e(f"v_sub_f32 v{T+1}, 1.0, v{G}")
    e(f"v_cvt_pk_bf16_f32 v{T+1}, v{T+1}, v{T+1}")
    e(f"v_and_b32 v{T+1}, 0xffff0000, v{T+1}")
    e(f"v_mul_f32 v{T}, v{T}, v{T+1}")
    for i in range(8): e(f"v_mul_f32 v{O+i}, v{O+i}, v{T}")
    for q in range(4): e(f"v_cvt_pk_bf16_f32 v{O+q}, v{O+2*q}, v{O+2*q+1}")
    e("s_lshl_b32 s17, s15, 6")
    e("s_add_u32 s17, s17, s14")
    e("s_lshl_b32 s17, s17, 10")
    e(f"s_add_u32 s17, s17, {WS_OC+32*1024}")
    e(f"buffer_store_dwordx4 {vr(O,4)}, v{AK}, s[4:7], s17 offen")
    e.label("K2_done")
    e("s_endpgm")
    e.label("K2_side")
    e("s_cmp_lg_u32 s22, 0")
    e("s_cbranch_scc1 K2_loop")
    e("s_cmp_eq_u32 s23, 1")
    e("s_cbranch_scc1 K2_s1")
    e("s_cmp_eq_u32 s23, 2")
    e("s_cbranch_scc1 K2_s2")
    e("s_cmp_eq_u32 s23, 4")
    e("s_cbranch_scc1 K2_s4")
    e("s_cmp_eq_u32 s23, 5")
    e("s_cbranch_scc0 K2_loop")
    e("s_barrier")
    e(f"v_lshlrev_b32 v{T}, 4, v1")
    e(f"v_add_u32 v{T+1}, {RED}, v{T}")
    e(f"ds_read_b128 {vr(PP,4)}, v{T+1}")
    e(f"ds_read_b128 {vr(PP+4,4)}, v{T+1} offset:1024")
    e("s_waitcnt lgkmcnt(0)")
    e(mfma(PP + 16, PP, PHQ, None))
    e(mfma(PP + 16, PP + 4, PHQ + 4, PP + 16))
    e("s_lshl_b32 s17, s15, 6")
    e("s_add_u32 s17, s17, s14")
    e("s_lshl_b32 s17, s17, 10")
    e(f"s_add_u32 s17, s17, {WS_OC}")
    e(f"v_add_f32 v{T+1}, {fbits(1e-6)}, v{PP+24}")
    e(f"v_rcp_f32 v{T+1}, v{T+1}")
    e(f"v_mul_f32 v{T+1}, v{T+1}, v{G}")
    for i in range(8): e(f"v_mul_f32 v{PP+16+i}, v{PP+16+i}, v{T+1}")
    for q in range(4): e(f"v_cvt_pk_bf16_f32 v{PP+16+q}, v{PP+16+2*q}, v{PP+16+2*q+1}")
    e(f"buffer_store_dwordx4 {vr(PP+16,4)}, v{T}, s[4:7], s17 offen")
    e("s_branch K2_loop")
    e.label("K2_s1")
    e("s_waitcnt vmcnt(32)")
    e("s_barrier")
    e("s_branch K2_loop")
    e.label("K2_s2")
    e("s_waitcnt vmcnt(19)")
    e("s_barrier")
    e("s_branch K2_loop")
    e.label("K2_s4")
    e("s_waitcnt vmcnt(0)")
    for st in (16, 8, 4, 2):
        for i in range(st): e(f"v_add_f32 v{PP+i}, v{PP+i}, v{PP+st+i}")
    e(f"v_cvt_pk_bf16_f32 v{PP}, v{PP}, v{PP+1}")
    e("s_lshr_b32 s17, s12, 2")
    e("s_lshl_b32 s17, s17, 10")
    e("s_and_b32 s18, s12, 3")
    e("s_lshl_b32 s18, s18, 2")
    e("s_add_u32 s17, s17, s18")
    e(f"s_add_u32 s17, s17, {RED}")
    e(f"v_lshlrev_b32 v{T}, 4, v1")
    e(f"v_add_u32 v{T}, s17, v{T}")
    e(f"ds_write_b32 v{T}, v{PP}")
    e("s_waitcnt lgkmcnt(0)")
    e("s_branch K2_loop")
    e.label("K2_fallback")
    e("s_mov_b32 s22, 1")
    e("s_mov_b32 s23, 0")
    e(f"v_mov_b32 v{T}, 0xff800000")
    e(f"v_mov_b32 v{T+2}, v{AK}")
    e.label("K2_fb_loop")
    e(f"ds_read_b128 {vr(KF[0],4)}, v{T+2}")
    e(f"v_add_u32 v{T+2}, 2048, v{T+2}")
    e("s_waitcnt lgkmcnt(0)")
    e(mfma(S[0], KF[0], Q, None))
    for i in range(8): e(f"v_max3_f32 v{T}, v{T}, v{S[0]+2*i}, v{S[0]+2*i+1}")
    e("s_add_u32 s23, s23, 1")
    e("s_cmp_lt_u32 s23, 64")
    e("s_cbranch_scc1 K2_fb_loop")
    e("s_branch K2_havemax")
    return fix_hazards(e.lines)

K3_LDS = 131072 + 16384
def gen_k3():
    e = Emitter()
    XCH = 131072
    OF = 64; ACC = [32, 48]; WF = [8, 16]
    e("s_cmp_ge_u32 s2, 256")
    e("s_cbranch_scc1 K3_done")
    e("s_load_dwordx2 s[20:21], s[0:1], 24")
    e("s_load_dwordx2 s[22:23], s[0:1], 64")
    e("s_load_dwordx2 s[24:25], s[0:1], 80")
    e("s_load_dwordx2 s[26:27], s[0:1], 96")
    e("v_and_b32 v1, 63, v0")
    e("v_lshrrev_b32 v2, 6, v0")
    e("v_readfirstlane_b32 s28, v2")
    e("s_and_b32 s36, s2, 7")
    e("s_lshr_b32 s37, s2, 3")
    e("s_lshl_b32 s29, s36, 2")
    e("s_lshr_b32 s38, s37, 3")
    e("s_add_u32 s29, s29, s38")
    e("s_and_b32 s30, s37, 7")
    e("s_and_b32 s31, s28, 1")
    e("s_lshr_b32 s32, s28, 1")
    if OPT["k3rot"]:
        e("s_add_u32 s33, s29, s30"); e("s_and_b32 s33, s33, 7")
    else:
        e("s_mov_b32 s33, 0")
    e("v_lshrrev_b32 v3, 3, v1")
    e("v_and_b32 v4, 7, v1")
    e("v_bfe_u32 v5, v1, 4, 1")
    e("v_lshlrev_b32 v5, 2, v5")
    e("v_xor_b32 v4, v4, v5")
    e("v_lshlrev_b32 v4, 4, v4")
    e("v_lshl_add_u32 v24, v3, 10, v4")
    for j in range(1, 4): e(f"v_add_u32 v{24+j}, {j*7168}, v24")
    e("v_lshlrev_b32 v2, 4, v1")
    e("s_lshl_b32 s34, s31, 15")
    e("s_lshl_b32 s38, s30, 7")
    e("s_add_u32 s34, s34, s38")
    e("s_lshl_b32 s35, s32, 16")
    e("s_lshl_b32 s38, s31, 12")
    e("s_add_u32 s39, s35, s38")
    e("s_lshl_b32 s40, s29, 1")
    e("s_add_u32 s40, s40, s31")
    e("s_lshl_b32 s41, s40, 16")
    e("s_lshl_b32 s38, s32, 15")
    e("s_add_u32 s41, s41, s38")
    e(f"s_add_u32 s41, s41, {WS_OC}")
    e("s_waitcnt lgkmcnt(0)")
    e("s_cmp_eq_u32 s32, 0")
    e("s_cselect_b32 s4, s20, s22")
    e("s_cselect_b32 s5, s21, s23")
    e(f"s_mov_b32 s6, {hex(512*512*2)}")
    e("s_mov_b32 s7, 0x00020000")
    srd(e, 8, 26, WS_SIZE)
    srd(e, 12, 24, 2048*512*2)
    for p in range(8):
        e("s_lshl_b32 s38, s33, 16")
        e("s_add_u32 s38, s38, s34")
        e(f"s_add_u32 m0, s39, {p*8192}")
        e("s_lshl_b32 s42, s33, 12")
        for j in range(4):
            e(f"buffer_load_dwordx4 v{24+j}, s[4:7], s38 offen offset:{j*1024} lds")
        e("s_add_u32 s42, s42, s41")
        e("s_add_u32 s33, s33, 1")
        for j in range(4):
            e(f"buffer_load_dwordx4 {vr(OF+16*p+4*j,4)}, v2, s[8:11], s42 offen offset:{j*1024}")
        e("s_and_b32 s33, s33, 7")
    e("v_lshrrev_b32 v3, 5, v1")
    e("v_bfe_u32 v4, v1, 2, 2")
    e("v_lshl_add_u32 v5, v3, 2, v4")
    e("v_lshlrev_b32 v5, 7, v5")
    e("v_lshrrev_b32 v4, 1, v4")
    e("v_xor_b32 v4, s32, v4")
    e("v_lshl_add_u32 v5, v4, 6, v5")
    e("v_bfe_u32 v4, v1, 4, 1")
    e("v_lshl_add_u32 v5, v4, 5, v5")
    e("v_and_b32 v4, 3, v1")
    e("v_lshl_add_u32 v5, v4, 3, v5")
    e("v_add_u32 v5, s35, v5")
    e("v_xor_b32 v6, 64, v5")
    def rd(p, t, buf):
        l = []
        for nt in range(2):
            for u in range(2):
                l.append(f"ds_read_b64_tr_b16 {vr(WF[buf]+4*nt+2*u,2)}, v{5+nt} offset:{p*8192+(16*t+8*u)*128}")
        return l
    for p in range(8):
        e(f"s_waitcnt vmcnt({8*(7-p)})")
        e("s_barrier")
        e.extend(rd(p, 0, 0))
        for t in range(4):
            if t < 3:
                e.extend(rd(p, t + 1, (t + 1) & 1))
                e("s_waitcnt lgkmcnt(4)")
            else:
                e("s_waitcnt lgkmcnt(0)")
            for nt in range(2):
                e(mfma(ACC[nt], WF[t & 1] + 4 * nt, OF + 16 * p + 4 * t, None if (p == 0 and t == 0) else ACC[nt]))
    e("s_lshl_b32 s38, s28, 12")
    e(f"s_add_u32 s38, s38, {XCH}")
    e("v_add_u32 v3, s38, v2")
    e("v_xor_b32 v4, 0x2000, v3")
    e("v_and_b32 v5, 31, v1")
    e("v_lshlrev_b32 v5, 10, v5")
    e("v_lshrrev_b32 v6, 5, v1")
    e("v_lshl_add_u32 v5, v6, 4, v5")
    e("s_lshl_b32 s38, s40, 15")
    e("s_lshl_b32 s39, s30, 7")
    e("s_add_u32 s38, s38, s39")
    e("s_lshl_b32 s39, s32, 6")
    e("s_add_u32 s38, s38, s39")
    for q in range(4): e(f"ds_write_b128 v3, {vr(ACC[1]+4*q,4)} offset:{q*1024}")
    e("s_waitcnt lgkmcnt(0)")
    e("s_barrier")
    for q in range(4): e(f"ds_read_b128 {vr(OF+4*q,4)}, v4 offset:{q*1024}")
    e("s_waitcnt lgkmcnt(0)")
    A = ACC[0]
    for i in range(16): e(f"v_add_f32 v{A+i}, v{A+i}, v{OF+i}")
    for q in range(8): e(f"v_cvt_pk_bf16_f32 v{A+q}, v{A+2*q}, v{A+2*q+1}")
    for pr in range(2):
        e(f"v_permlane32_swap_b32 v{A+4*pr}, v{A+4*pr+2}")
        e(f"v_permlane32_swap_b32 v{A+4*pr+1}, v{A+4*pr+3}")
    for pr in range(2):
        e(f"buffer_store_dwordx4 {vr(A+4*pr,4)}, v5, s[12:15], s38 offen offset:{pr*32}")
    e.label("K3_done")
    e("s_endpgm")
    return fix_hazards(e.lines)

def kd(name, nv, ns=102):
    return f""".p2align 6
.amdhsa_kernel {name}
  .amdhsa_next_free_vgpr {nv}
  .amdhsa_next_free_sgpr {ns}
  .amdhsa_accum_offset {(nv+3)//4*4}
  .amdhsa_group_segment_fixed_size 0
  .amdhsa_kernarg_size 104
  .amdhsa_user_sgpr_count 2
  .amdhsa_user_sgpr_kernarg_segment_ptr 1
  .amdhsa_system_sgpr_workgroup_id_x 1
.end_amdhsa_kernel
"""

def build():
    hdr = open("cdna_kernels/%s.s.ref" % NAME).read().split("\n")
    hdr = [l for l in hdr if l.startswith(";") and "@launch" not in l and "Override launch" not in l and "grid=ceil" not in l]
    out = list(hdr)
    out.append(f"; @launch kernel=gm_proj_kernel grid=(256,1,1) block=(256,1,1) lds={K1_LDS}")
    out.append(f"; @launch kernel=gm_attn_kernel grid=(256,1,1) block=(512,1,1) lds={K2_LDS}")
    out.append(f"; @launch kernel=gm_out_kernel grid=(256,1,1) block=(256,1,1) lds={K3_LDS}")
    out.append('.amdgcn_target "amdgcn-amd-amdhsa--gfx950"')
    out.append(".text")
    for name, g in (("gm_proj_kernel", gen_k1), ("gm_attn_kernel", gen_k2), ("gm_out_kernel", gen_k3)):
        out.append(f".globl {name}")
        out.append(".p2align 8")
        out.append(f".type {name},@function")
        out.append(f"{name}:")
        out += g()
    out.append('.section .rodata,"a"')
    out.append(kd("gm_proj_kernel", 256, 80))
    out.append(kd("gm_attn_kernel", 152, 32))
    out.append(kd("gm_out_kernel", 192, 48))
    return "\n".join(out) + "\n"

if __name__ == "__main__":
    dst = "cdna_kernels/%s.s" % NAME
    for a in sys.argv[1:]:
        if "=" in a:
            k, v = a.split("=");
            if k == "out": dst = v
            else: OPT[k] = int(v)
    open(dst, "w").write(build())
    print("wrote", dst)
```

```python
import sys, math, struct
from asmlib import *

NAME = "gated_mix__linear_kernel_hedgehog__grouped_kv_mqa__prompt"
WS_QB   = 0x000000
WS_PHIQ = 0x200000
WS_KVB  = 0x600000
WS_GATE = 0x620000
WS_PART = 0x640000
WS_OC   = 0x900000
WS_SIZE = 0xE00000

def fbits(x): return "0x%08x" % struct.unpack("<I", struct.pack("<f", x))[0]
LOG2E = math.log2(math.e)
OPT = dict(k1map=0, k1rot=1, round_pq=0, k3rot=1, mtiles=2)

ST = ""
def srd(e, d, lo, nbytes):
    e(f"s_mov_b32 s{d}, s{lo}")
    e(f"s_mov_b32 s{d+1}, s{lo+1}")
    e(f"s_mov_b32 s{d+2}, {hex(nbytes)}")
    e(f"s_mov_b32 s{d+3}, 0x00020000")

WS_STAMP = 0xD00000
def stamp_begin(e):
    if OPT.get("stamp"):
        e("s_memrealtime s[90:91]")
        e("s_memtime s[92:93]")
def stamp_mid(e, k):
    if OPT.get("stamp"):
        e(f"s_memtime s[{82+2*k}:{83+2*k}]")
def stamp_end(e, kid, srdreg, vtmp):
    if OPT.get("stamp"):
        e("s_waitcnt vmcnt(0)")
        e("s_memrealtime s[94:95]")
        e("s_memtime s[96:97]")
        e("s_waitcnt lgkmcnt(0)")
        e("s_sub_u32 s96, s96, s92")
        e("s_sub_u32 s82, s82, s92")
        e("s_sub_u32 s84, s84, s92")
        e("s_sub_u32 s86, s86, s92")
        e(f"v_lshrrev_b32 v{vtmp+8}, 6, v0")
        e(f"v_lshlrev_b32 v{vtmp+8}, 5, v{vtmp+8}")
        e("s_lshl_b32 s98, s2, 9")
        e(f"s_add_u32 s98, s98, {WS_STAMP + kid*0x40000}")
        for i, r in enumerate((90, 94, 96, 82, 84, 86, 88, 88)):
            e(f"v_mov_b32 v{vtmp+i}, s{r}")
        e(f"buffer_store_dwordx4 v[{vtmp}:{vtmp+3}], v{vtmp+8}, s[{srdreg}:{srdreg+3}], s98 offen")
        e(f"buffer_store_dwordx4 v[{vtmp+4}:{vtmp+7}], v{vtmp+8}, s[{srdreg}:{srdreg+3}], s98 offen offset:16")

def phi_unit(P, T, O, sL, sNL):
    l = []
    if OPT["round_pq"]:
        for q in range(4): l.append(f"v_cvt_pk_bf16_f32 v{P+8+q}, v{P+2*q}, v{P+2*q+1}")
        for q in range(4):
            l.append(f"v_lshlrev_b32 v{P+2*q}, 16, v{P+8+q}")
            l.append(f"v_and_b32 v{P+2*q+1}, 0xffff0000, v{P+8+q}")
    l += [f"v_max3_f32 v{T}, v{P}, v{P+1}, v{P+2}",
          f"v_max3_f32 v{T+1}, -v{P}, -v{P+1}, -v{P+2}",
          f"v_max3_f32 v{T}, v{T}, v{P+3}, v{P+4}",
          f"v_max3_f32 v{T+1}, v{T+1}, -v{P+3}, -v{P+4}",
          f"v_max3_f32 v{T}, v{T}, v{P+5}, v{P+6}",
          f"v_max3_f32 v{T+1}, v{T+1}, -v{P+5}, -v{P+6}",
          f"v_max_f32 v{T}, v{T}, v{P+7}",
          f"v_max_f32_e64 v{T+1}, v{T+1}, -v{P+7}",
          f"v_permlane32_swap_b32 v{T}, v{T+1}",
          f"v_max_f32 v{T}, v{T}, v{T+1}",
          f"v_mul_f32 v{T}, s{sNL}, v{T}",
          f"v_mov_b32 v{T+1}, v{T}",
          f"v_permlane32_swap_b32 v{T}, v{T+1}"]
    for i in range(8):
        l.append(f"v_fma_f32 v{P+8+i}, -v{P+i}, s{sL}, v{T+1}")
        l.append(f"v_fma_f32 v{P+i}, v{P+i}, s{sL}, v{T}")
    for i in range(16): l.append(f"v_exp_f32 v{P+i}, v{P+i}")
    l.append(f"v_add_f32 v{T+2}, v{P}, v{P+1}")
    l.append(f"v_add_f32 v{T+3}, v{P+8}, v{P+9}")
    for i in range(2, 8):
        l.append(f"v_add_f32 v{T+2}, v{T+2}, v{P+i}")
        l.append(f"v_add_f32 v{T+3}, v{T+3}, v{P+8+i}")
    l += [f"v_permlane32_swap_b32 v{T+2}, v{T+3}",
          f"v_add_f32 v{T+2}, v{T+2}, v{T+3}",
          f"v_rcp_f32 v{T+2}, v{T+2}",
          f"v_mov_b32 v{T+3}, v{T+2}",
          f"v_permlane32_swap_b32 v{T+2}, v{T+3}"]
    for i in range(8):
        l.append(f"v_mul_f32 v{P+i}, v{P+i}, v{T+2}")
        l.append(f"v_mul_f32 v{P+8+i}, v{P+8+i}, v{T+3}")
    for q in range(8): l.append(f"v_cvt_pk_bf16_f32 v{O+q}, v{P+2*q}, v{P+2*q+1}")
    return l

K1_LDS = 149504
def spread(e, mm, r):
    n = len(mm); k = 0
    for i, x in enumerate(mm):
        e(x)
        hi = (len(r) * (i + 1) + n - 1) // n
        e.extend(r[k:hi]); k = max(k, hi)
    e.extend(r[k:])

def gen_k1():
    e = Emitter()
    WB = 49152; EXT = 98304; WPH = 131072; XCH = 133120
    e("s_cmp_ge_u32 s2, 256")
    e("s_cbranch_scc1 K1_done")
    stamp_begin(e)
    e("s_load_dwordx16 s[48:63], s[0:1], 0")
    e("s_load_dwordx8 s[64:71], s[0:1], 64")
    e("s_load_dwordx2 s[72:73], s[0:1], 96")
    e("v_and_b32 v1, 63, v0")
    e("v_lshrrev_b32 v11, 6, v0")
    e("v_readfirstlane_b32 s30, v11")
    e("s_and_b32 s36, s2, 7")
    e("s_lshr_b32 s37, s2, 3")
    if OPT["k1map"] == 0:
        e("s_lshr_b32 s28, s36, 1"); e("s_lshl_b32 s28, s28, 2"); e("s_lshr_b32 s38, s37, 3"); e("s_add_u32 s28, s28, s38")
        e("s_and_b32 s29, s36, 1"); e("s_lshl_b32 s29, s29, 3"); e("s_and_b32 s38, s37, 7"); e("s_add_u32 s29, s29, s38")
    elif OPT["k1map"] == 1:
        e("s_lshl_b32 s28, s36, 1"); e("s_lshr_b32 s38, s37, 4"); e("s_add_u32 s28, s28, s38")
        e("s_and_b32 s29, s37, 15")
    else:
        e("s_lshr_b32 s28, s36, 2"); e("s_lshl_b32 s28, s28, 3"); e("s_lshr_b32 s38, s37, 2"); e("s_add_u32 s28, s28, s38")
        e("s_and_b32 s29, s36, 3"); e("s_lshl_b32 s29, s29, 2"); e("s_and_b32 s38, s37, 3"); e("s_add_u32 s29, s29, s38")
    if OPT["k1rot"]:
        e("s_add_u32 s31, s28, s29"); e("s_and_b32 s31, s31, 7")
    else:
        e("s_mov_b32 s31, 0")
    e("s_and_b32 s43, s29, 7")
    e("v_lshlrev_b32 v10, 4, v1")
    e("s_cmp_lt_u32 s30, 8")
    e("s_cbranch_scc1 K1_compute")
    e("s_setprio 3")
    e("s_sub_u32 s30, s30, 8")
    e("v_lshrrev_b32 v11, 3, v1")
    e("v_and_b32 v12, 7, v1")
    e("v_lshrrev_b32 v13, 4, v1")
    e("v_xor_b32 v14, v12, v13")
    e("v_lshlrev_b32 v14, 4, v14")
    e("v_lshl_add_u32 v2, v11, 10, v14")
    e("v_xor_b32 v3, 64, v2")
    e(f"v_add_u32 v4, {2*7168}, v2")
    e(f"v_add_u32 v5, {3*7168}, v3")
    e(f"v_add_u32 v3, {7168}, v3")
    e("v_and_b32 v13, 1, v13")
    e("v_lshlrev_b32 v13, 1, v13")
    e("v_xor_b32 v14, v12, v13")
    e("v_lshlrev_b32 v14, 4, v14")
    e("v_mul_u32_u24 v6, 3072, v11")
    e("v_add_u32 v6, v6, v14")
    e(f"v_add_u32 v7, {8*3072-1024}, v6")
    e("v_xor_b32 v14, 64, v14")
    e("s_lshl_b32 s38, s43, 7")
    e("s_cmp_lt_u32 s29, 8")
    e("s_mov_b32 s35, 1024")
    e("s_cselect_b32 s35, 3072, s35")
    e("s_cselect_b32 s36, 1024, 0")
    e("s_cselect_b32 s37, 2048, 0")
    e("s_add_u32 s36, s36, s38")
    e("s_add_u32 s37, s37, s38")
    e("v_mul_lo_u32 v8, v11, s35")
    e("v_add_u32 v8, v8, v14")
    e("s_lshl_b32 s38, s35, 3")
    e("s_sub_u32 s38, s38, 1024")
    e("v_add_u32 v9, s38, v8")
    e("s_mul_i32 s33, s30, 49152")
    e("s_add_u32 s33, s33, s36")
    e("s_mul_i32 s34, s30, s35")
    e("s_lshl_b32 s34, s34, 4")
    e("s_add_u32 s34, s34, s37")
    e("s_lshl_b32 s35, s35, 6")
    e("s_lshl_b32 s32, s28, 17")
    e("s_lshl_b32 s38, s30, 15")
    e("s_add_u32 s32, s32, s38")
    e("s_lshl_b32 s40, s30, 12")
    e("s_lshl_b32 s41, s30, 11")
    e(f"s_add_u32 s41, s41, {WB}")
    e("s_and_b32 s44, s30, 1")
    e("s_lshl_b32 s44, s44, 10")
    e("s_lshr_b32 s45, s30, 1")
    e("s_lshl_b32 s45, s45, 14")
    e(f"s_add_u32 s45, s45, {EXT}")
    e("s_waitcnt lgkmcnt(0)")
    srd(e, 4, 48, 2048*512*2)
    srd(e, 8, 50, 512*1536*2)
    e("s_cmp_lt_u32 s29, 8")
    e("s_cselect_b32 s12, s50, s58")
    e("s_cselect_b32 s13, s51, s59")
    e(f"s_mov_b32 s14, {hex(512*512*2)}")
    e(f"s_cselect_b32 s14, {hex(512*1536*2)}, s14")
    e("s_mov_b32 s15, 0x00020000")
    e("s_cmp_lt_u32 s30, 2")
    e("s_cselect_b32 s20, s52, s66")
    e("s_cselect_b32 s21, s53, s67")
    e("s_mov_b32 s22, 1024")
    e("s_cselect_b32 s22, 16384, s22")
    e("s_mov_b32 s23, 0x00020000")
    e("s_cselect_b32 s16, s60, s62")
    e("s_cselect_b32 s17, s61, s63")
    e("s_mov_b32 s18, 16384")
    e("s_mov_b32 s19, 0x00020000")
    e("s_lshl_b32 s38, s43, 11")
    e("s_add_u32 s38, s38, s44")
    e("s_cmp_lt_u32 s30, 2")
    e("s_cselect_b32 s38, s38, 0")
    e(f"s_add_u32 s39, s44, {WPH}")
    e("s_cmp_lt_u32 s30, 2")
    e(f"s_cselect_b32 m0, s39, {XCH}")
    e("s_nop 0")
    e("buffer_load_dwordx4 v10, s[20:23], s38 offen lds")
    def dma(slot, ext):
        l = []
        l.append("s_lshl_b32 s38, s31, 7")
        l.append("s_add_u32 s38, s38, s32")
        l.append(f"s_add_u32 m0, s40, {slot*16384}")
        l.append("s_mul_i32 s39, s31, 196608")
        for i in range(4):
            l.append(f"buffer_load_dwordx4 v{2+i}, s[4:7], s38 offen offset:{i*1024} lds")
        l.append("s_add_u32 s39, s39, s33")
        l.append(f"s_add_u32 m0, s41, {slot*16384}")
        l.append("s_mul_i32 s38, s31, s35")
        for j in range(2):
            l.append(f"buffer_load_dwordx4 v{6+j}, s[8:11], s39 offen offset:{j*1024} lds")
        l.append("s_add_u32 s38, s38, s34")
        l.append(f"s_add_u32 m0, s41, {slot*16384+8192}")
        l.append("s_lshl_b32 s39, s31, 11")
        for j in range(2):
            l.append(f"buffer_load_dwordx4 v{8+j}, s[12:15], s38 offen offset:{j*1024} lds")
        if ext:
            l.append("s_add_u32 s39, s39, s44")
            l.append("s_add_u32 m0, s39, s45")
            l.append("s_nop 0")
            l.append("buffer_load_dwordx4 v10, s[16:19], s39 offen lds")
        l.append("s_add_u32 s31, s31, 1")
        l.append("s_and_b32 s31, s31, 7")
        return l
    e("s_cmp_eq_u32 s29, 8")
    e("s_cbranch_scc1 K1_ld_ext")
    for ext in (0, 1):
        if ext: e.label("K1_ld_ext")
        n = 8 + ext
        e.extend(dma(0, ext)); e.extend(dma(1, ext))
        for c in range(8):
            e(f"s_waitcnt vmcnt({n if c < 7 else 0})")
            e("s_barrier")
            if c + 2 <= 7: e.extend(dma((c + 2) % 3, ext))
        e("s_endpgm")
    e.label("K1_compute")
    e("s_and_b32 s44, s30, 3")
    e("s_lshr_b32 s40, s30, 2")
    e("s_lshl_b32 s45, s43, 2")
    e("s_add_u32 s45, s45, s44")
    e("s_lshl_b32 s46, s40, 1")
    e("s_and_b32 s38, s44, 1")
    e("s_add_u32 s46, s46, s38")
    e("s_lshl_b32 s47, s28, 2")
    e("s_add_u32 s47, s47, s46")
    e("v_and_b32 v11, 31, v1")
    e("v_lshrrev_b32 v22, 5, v1")
    e("v_bfe_u32 v23, v1, 1, 3")
    e("v_xor_b32 v23, v23, v22")
    e("v_lshlrev_b32 v23, 4, v23")
    e("v_lshl_add_u32 v12, v11, 7, v23")
    e("s_lshl_b32 s38, s46, 12")
    e("v_add_u32 v12, s38, v12")
    for t in range(1, 4): e(f"v_xor_b32 v{12+t}, {32*t}, v12")
    for t in range(4): e(f"v_xor_b32 v{16+t}, 0x1000, v{12+t}")
    e("v_bfe_u32 v23, v1, 2, 2")
    e("v_lshl_add_u32 v20, v22, 3, v23")
    e("v_lshlrev_b32 v20, 7, v20")
    e("v_bfe_u32 v23, v1, 3, 2")
    e("v_xor_b32 v23, s44, v23")
    e("v_lshl_add_u32 v20, v23, 5, v20")
    e("v_bfe_u32 v24, v1, 4, 1")
    e("v_lshl_add_u32 v20, v24, 13, v20")
    e("v_and_b32 v23, 3, v1")
    e("v_lshl_add_u32 v20, v23, 3, v20")
    e(f"v_add_u32 v20, {WB}, v20")
    e("v_and_b32 v23, 15, v1")
    e("v_lshlrev_b32 v23, 3, v23")
    e("v_lshl_add_u32 v25, v22, 7, v23")
    e("s_lshl_b32 s38, s44, 9")
    e(f"s_add_u32 s38, s38, {WPH}")
    e("v_add_u32 v25, s38, v25")
    e("v_lshl_add_u32 v26, v22, 8, v23")
    e("v_lshl_add_u32 v26, v24, 14, v26")
    e(f"v_add_u32 v26, {EXT}, v26")
    e("v_lshlrev_b32 v27, 4, v22")
    e(f"v_add_u32 v27, {XCH}, v27")
    e(f"s_mov_b32 s74, {fbits(LOG2E)}")
    e(f"s_mov_b32 s75, {fbits(-LOG2E)}")
    e(f"s_mov_b32 s76, {fbits(0.25*LOG2E)}")
    I0 = 148; WF = 144; ONE = 156
    e("v_lshlrev_b32 v22, 2, v22")
    e("v_sub_u32 v11, v11, v22")
    e("v_mov_b32 v22, 0x3f80")
    e("v_mov_b32 v23, 0x3f800000")
    for sgn in range(2):
        for q in range(4):
            f0 = 16 * sgn + (2 * q if q < 2 else 8 + 2 * (q - 2))
            e(f"v_cmp_eq_u32 vcc, {f0}, v11")
            e(f"v_cmp_eq_u32 s[38:39], {f0+1}, v11")
            e(f"v_cndmask_b32 v{I0+4*sgn+q}, 0, v22, vcc")
            e(f"v_cndmask_b32 v{I0+4*sgn+q}, v{I0+4*sgn+q}, v23, s[38:39]")
    e(f"v_mul_u32_u24 v{ONE}, 0x3f8, v24")
    e(f"v_lshlrev_b32 v{ONE}, 20, v{ONE}")
    e("s_waitcnt lgkmcnt(0)")
    srd(e, 24, 72, WS_SIZE)
    e("s_lshr_b32 s38, s44, 1")
    e("s_cmp_lg_u32 s38, s40")
    e("s_cbranch_scc1 K1_plain")
    e("s_cmp_eq_u32 s29, 8")
    e("s_cbranch_scc1 K1_x")
    e("s_cmp_eq_u32 s29, 9")
    e("s_cbranch_scc1 K1_g")

    ACC = 96; EACC = 128
    def reads(var, F, slot, tp):
        l = []
        so = slot * 16384
        for tt in range(2):
            t = 2 * tp + tt; b = F + 16 * tt
            l.append(f"ds_read_b128 {vr(b,4)}, v{12+t} offset:{so}")
            for u in range(2):
                l.append(f"ds_read_b64_tr_b16 {vr(b+8+2*u,2)}, v20 offset:{so+(16*t+4*u)*128}")
            l.append(f"ds_read_b128 {vr(b+4,4)}, v{16+t} offset:{so}")
            if var == "x":
                for u in range(2):
                    l.append(f"ds_read_b64_tr_b16 {vr(b+12+2*u,2)}, v21 offset:{t*512+u*128}")
            elif var == "g":
                l.append(f"ds_read_b128 {vr(b+12,4)}, v21 offset:{t*32}")
        return l
    def mfmas(var, F, first):
        l = []
        for tt in range(2):
            b = F + 16 * tt
            z = first and tt == 0
            c = lambda r: None if z else r
            l.append(mfma(ACC, b+8, b, c(ACC)))
            l.append(mfma(ACC+16, b+8, b+4, c(ACC+16)))
            if var != "p": l.append(mfma(EACC, b+12, b, c(EACC)))
        return l
    def extaddr(var):
        if var == "x":
            return ["s_lshl_b32 s38, s31, 11", "v_add_u32 v21, s38, v26", "s_add_u32 s31, s31, 1", "s_and_b32 s31, s31, 7"]
        if var == "g":
            return ["s_lshl_b32 s38, s31, 7", "v_add_u32 v21, s38, v27", "s_add_u32 s31, s31, 1", "s_and_b32 s31, s31, 7"]
        return []
    def mainloop(var):
        F0, F1 = 32, 64
        e.extend(extaddr(var))
        e("s_barrier")
        stamp_mid(e, 0)
        e.extend(reads(var, F0, 0, 0))
        for u in range(2):
            e(f"ds_read_b64_tr_b16 {vr(WF+2*u,2)}, v25 offset:{u*256}")
        for c in range(8):
            e("s_waitcnt lgkmcnt(0)")
            spread(e, mfmas(var, F0, c == 0), reads(var, F1, c % 3, 1))
            e("s_waitcnt lgkmcnt(0)")
            mm = mfmas(var, F1, False)
            if c < 7:
                e("s_barrier")
                e.extend(extaddr(var))
                spread(e, mm, reads(var, F0, (c + 1) % 3, 0))
            else:
                e.extend(mm)
                stamp_mid(e, 1)
    PU = [32, 48]; PH = [64, 72]; TM = [80, 84]; VFR = [88, 92]
    e.label("K1_plain")
    mainloop("p")
    e.label("K1_epi")
    e("s_nop 7"); e("s_nop 3")
    for u in range(2):
        for q in range(4): e(f"v_cvt_pk_bf16_f32 v{PH[u]+q}, v{ACC+16*u+2*q}, v{ACC+16*u+2*q+1}")
    for u in range(2): e(mfma(PU[u], WF, PH[u], None))
    e("s_lshl_b32 s41, s45, 6")
    e("s_add_u32 s41, s41, s47")
    e("s_cmp_lt_u32 s29, 8")
    e("s_cbranch_scc1 K1_kv")
    for u in range(2):
        a = ACC + 16 * u + 8
        for i in range(8): e(f"v_mul_f32 v{a+i}, s76, v{a+i}")
        for q in range(4): e(f"v_cvt_pk_bf16_f32 v{a+q}, v{a+2*q}, v{a+2*q+1}")
        e(f"s_xor_b32 s38, s41, {u}")
        e("s_lshl_b32 s38, s38, 10")
        if WS_QB: e(f"s_add_u32 s38, s38, {WS_QB}")
        e(f"buffer_store_dwordx4 {vr(a,4)}, v10, s[24:27], s38 offen{ST}")
    e.extend(interleave(*[phi_unit(PU[u], TM[u], PH[u], 74, 75) for u in range(2)]))
    for u in range(2):
        e(f"s_xor_b32 s38, s41, {u}")
        e("s_lshl_b32 s38, s38, 11")
        e(f"s_add_u32 s38, s38, {WS_PHIQ}")
        e(f"buffer_store_dwordx4 {vr(PH[u],4)}, v10, s[24:27], s38 offen{ST}")
        e(f"buffer_store_dwordx4 {vr(PH[u]+4,4)}, v10, s[24:27], s38 offen offset:1024{ST}")
    stamp_mid(e, 2)
    stamp_end(e, 0, 24, 32)
    e("s_endpgm")
    e.label("K1_kv")
    for u in range(2):
        a = ACC + 16 * u
        for q in range(4): e(f"v_cvt_pk_bf16_f32 v{VFR[u]+q}, v{a+8+2*q}, v{a+8+2*q+1}")
        for i in range(16): e(f"v_mov_b32 v{a+i}, v{ONE}")
    for u in range(2): e(mfma(ACC + 16 * u, VFR[u], I0, ACC + 16 * u))
    e.extend(interleave(*[phi_unit(PU[u], TM[u], PH[u], 74, 75) for u in range(2)]))
    for u in range(2): e(mfma(PU[u], PH[u], I0, None))
    for u in range(2): e(mfma(PU[u], PH[u] + 4, I0 + 4, PU[u]))
    for u in range(2):
        a = ACC + 16 * u
        for q in range(8): e(f"v_cvt_pk_bf16_f32 v{a+q}, v{a+2*q}, v{a+2*q+1}")
    for u in range(2):
        for q in range(8): e(f"v_cvt_pk_bf16_f32 v{PH[u]+q}, v{PU[u]+2*q}, v{PU[u]+2*q+1}")
    D3 = EACC
    for u in range(2):
        e(mfma(D3, PH[u], ACC + 16 * u, None if u == 0 else D3))
        e(mfma(D3, PH[u] + 4, ACC + 16 * u + 4, D3))
    e("s_lshl_b32 s38, s30, 11")
    e(f"s_add_u32 s38, s38, {XCH}")
    e("v_add_u32 v11, s38, v10")
    e("s_xor_b32 s38, s30, 4")
    e("s_lshl_b32 s38, s38, 11")
    e(f"s_add_u32 s38, s38, {XCH}")
    e("v_add_u32 v12, s38, v10")
    e("s_lshl_b32 s45, s45, 16")
    e("s_lshl_b32 s39, s28, 10")
    e("s_add_u32 s45, s45, s39")
    e("s_lshl_b32 s39, s40, 15")
    e("s_add_u32 s45, s45, s39")
    e(f"s_add_u32 s45, s45, {WS_PART}")
    e("s_add_u32 s46, s45, 16384")
    e("s_cmp_eq_u32 s40, 0")
    e("s_cbranch_scc0 K1_kv_odd")
    for par in range(2):
        if par: e.label("K1_kv_odd")
        keep, send = D3 + 8 * par, D3 + 8 * (par ^ 1)
        e("s_nop 3")
        for q in range(2): e(f"ds_write_b128 v11, {vr(send+4*q,4)} offset:{q*1024}")
        e("s_waitcnt lgkmcnt(0)")
        e("s_barrier")
        for q in range(2): e(f"ds_read_b128 {vr(32+4*q,4)}, v12 offset:{q*1024}")
        e("s_waitcnt lgkmcnt(0)")
        for i in range(8): e(f"v_add_f32 v{keep+i}, v{keep+i}, v{32+i}")
        e(f"buffer_store_dwordx4 {vr(keep,4)}, v10, s[24:27], s45 offen{ST}")
        e(f"buffer_store_dwordx4 {vr(keep+4,4)}, v10, s[24:27], s46 offen{ST}")
        stamp_mid(e, 2)
        stamp_end(e, 0, 24, 32)
        e("s_endpgm")
    e.label("K1_x")
    mainloop("x")
    for q in range(8): e(f"v_cvt_pk_bf16_f32 v{EACC+q}, v{EACC+2*q}, v{EACC+2*q+1}")
    e(mfma(32, EACC + 4, I0, None))
    e("s_lshl_b32 s38, s47, 11")
    e(f"s_add_u32 s38, s38, {WS_KVB}")
    e(f"buffer_store_dwordx4 {vr(EACC,4)}, v10, s[24:27], s38 offen{ST}")
    e("v_lshrrev_b32 v11, 5, v1")
    e("v_and_b32 v12, 15, v1")
    e("v_lshlrev_b32 v12, 4, v12")
    e("v_lshl_add_u32 v12, v11, 8, v12")
    for q in range(8): e(f"v_cvt_pk_bf16_f32 v{EACC+8+q}, v{32+2*q}, v{32+2*q+1}")
    e("s_mov_b32 exec_lo, 0xffff")
    e("s_mov_b32 exec_hi, 0xffff")
    e(f"buffer_store_dwordx4 {vr(EACC+8,4)}, v12, s[24:27], s38 offen offset:1024{ST}")
    e(f"buffer_store_dwordx4 {vr(EACC+12,4)}, v12, s[24:27], s38 offen offset:1536{ST}")
    e("s_mov_b64 exec, -1")
    e("s_branch K1_epi")
    e.label("K1_g")
    mainloop("g")
    e(f"v_cvt_pk_bf16_f32 v11, v{EACC}, v{EACC}")
    e("v_and_b32 v11, 0xffff0000, v11")
    e("v_mul_f32 v11, s75, v11")
    e("v_exp_f32 v11, v11")
    e("v_add_f32 v11, 1.0, v11")
    e("v_rcp_f32 v11, v11")
    e("v_cvt_pk_bf16_f32 v11, v11, v11")
    e("v_and_b32 v11, 0xffff0000, v11")
    e("v_lshlrev_b32 v12, 2, v1")
    e("s_lshl_b32 s38, s47, 7")
    e(f"s_add_u32 s38, s38, {WS_GATE}")
    e("s_mov_b32 exec_hi, 0")
    e(f"buffer_store_dword v11, v12, s[24:27], s38 offen{ST}")
    e("s_mov_b64 exec, -1")
    e("s_branch K1_epi")
    e.label("K1_done")
    e("s_endpgm")
    return fix_hazards(e.lines)

K2_LDS = 131072 + 4096
def gen_k2():
    e = Emitter()
    RED = 131072
    Q = 4; NM = 8; O = 24; S = [40, 56]; PK = 72; KF = [80, 84]; VF = [88, 96]
    G = 104; AK = 2; AV = 3; T = 106
    e("s_cmp_ge_u32 s2, 256")
    e("s_cbranch_scc1 K2_done")
    stamp_begin(e)
    e("s_load_dwordx2 s[8:9], s[0:1], 96")
    e("s_load_dwordx2 s[28:29], s[0:1], 24")
    e("s_load_dwordx2 s[30:31], s[0:1], 64")
    e("v_and_b32 v1, 63, v0")
    e("v_lshrrev_b32 v2, 6, v0")
    e("v_readfirstlane_b32 s12, v2")
    e("s_and_b32 s13, s2, 7")
    e("s_lshr_b32 s14, s2, 3")
    e(f"v_lshlrev_b32 v{AK}, 4, v1")
    e("s_cmp_lt_u32 s12, 8")
    e("s_cbranch_scc1 K2_compute")
    PP = 8; PHQ = 72; HG = 88; HT = 90; HD = 96
    e("s_setprio 3")
    e("s_sub_u32 s12, s12, 8")
    e("s_lshl_b32 s18, s12, 10")
    e(f"s_add_u32 s19, s18, {WS_KVB}")
    e("s_mov_b32 m0, s18")
    e("s_waitcnt lgkmcnt(0)")
    srd(e, 4, 8, WS_SIZE)
    for i in range(32):
        e(f"buffer_load_dwordx4 v{AK}, s[4:7], s19 offen lds")
        if i < 31:
            e("s_add_u32 m0, m0, 4096")
            e("s_add_u32 s19, s19, 4096")
        if i == 9:
            e("s_waitcnt vmcnt(4)")
            e("s_barrier")
    e("s_waitcnt vmcnt(0)")
    e("s_barrier")
    e("s_setprio 0")
    e("s_lshl_b32 s17, s14, 2")
    e("s_add_u32 s17, s17, s12")
    e("s_lshl_b32 s17, s17, 14")
    e(f"s_add_u32 s17, s17, {WS_PART}")
    for p in range(16):
        if p and p % 4 == 0: e("s_add_u32 s17, s17, 4096")
        e(f"buffer_load_dwordx4 {vr(PP+4*p,4)}, v{AK}, s[4:7], s17 offen offset:{(p&3)*1024}")
    e("s_lshl_b32 s15, s13, 3")
    e("s_lshl_b32 s17, s12, 1")
    e("s_add_u32 s15, s15, s17")
    e("s_lshl_b32 s16, s14, 6")
    e("s_add_u32 s16, s16, s15")
    e("s_lshl_b32 s17, s16, 11")
    e(f"s_add_u32 s17, s17, {WS_PHIQ}")
    for i in range(4):
        e(f"buffer_load_dwordx4 {vr(PHQ+4*i,4)}, v{AK}, s[4:7], s17 offen offset:{i*1024}")
    e(f"v_and_b32 v{HT}, 31, v1")
    e(f"v_lshlrev_b32 v{HT}, 2, v{HT}")
    e("s_lshl_b32 s17, s15, 7")
    e(f"s_add_u32 s17, s17, {WS_GATE}")
    e(f"buffer_load_dword v{HG}, v{HT}, s[4:7], s17 offen")
    e(f"buffer_load_dword v{HG+1}, v{HT}, s[4:7], s17 offen offset:128")
    e("s_lshr_b32 s17, s12, 1")
    e("s_lshl_b32 s17, s17, 10")
    e("s_and_b32 s18, s12, 1")
    e("s_lshl_b32 s18, s18, 3")
    e("s_add_u32 s17, s17, s18")
    e(f"s_add_u32 s17, s17, {RED}")
    e(f"v_add_u32 v{HT}, s17, v{AK}")
    e(f"v_add_u32 v{HT+1}, {RED}, v{AK}")
    e("s_waitcnt vmcnt(6)")
    for st in (32, 16, 8, 4):
        for i in range(0, st, 2): e(f"v_pk_add_f32 {vr(PP+i,2)}, {vr(PP+i,2)}, {vr(PP+st+i,2)}")
    e(f"v_cvt_pk_bf16_f32 v{PP}, v{PP}, v{PP+1}")
    e(f"v_cvt_pk_bf16_f32 v{PP+1}, v{PP+2}, v{PP+3}")
    e(f"ds_write_b64 v{HT}, {vr(PP,2)}")
    e("s_waitcnt lgkmcnt(0)")
    e("s_barrier")
    e(f"ds_read_b128 {vr(PP,4)}, v{HT+1}")
    e(f"ds_read_b128 {vr(PP+4,4)}, v{HT+1} offset:1024")
    e("s_waitcnt vmcnt(0) lgkmcnt(0)")
    for u in range(2):
        e(mfma(HD + 16 * u, PP, PHQ + 8 * u, None))
    for u in range(2):
        e(mfma(HD + 16 * u, PP + 4, PHQ + 8 * u + 4, HD + 16 * u))
    e("s_lshl_b32 s17, s15, 6")
    e("s_add_u32 s17, s17, s14")
    e("s_lshl_b32 s17, s17, 10")
    e(f"s_add_u32 s17, s17, {WS_OC}")
    for u in range(2):
        D = HD + 16 * u
        e(f"v_add_f32 v{HT}, {fbits(1e-6)}, v{D+8}")
        e(f"v_rcp_f32 v{HT}, v{HT}")
        e(f"v_mul_f32 v{HT}, v{HT}, v{HG+u}")
        for i in range(8): e(f"v_mul_f32 v{D+i}, v{D+i}, v{HT}")
        for q in range(4): e(f"v_cvt_pk_bf16_f32 v{D+q}, v{D+2*q}, v{D+2*q+1}")
        e(f"buffer_store_dwordx4 {vr(D,4)}, v{AK}, s[4:7], s17 offen")
        if u == 0: e("s_add_u32 s17, s17, 65536")
    if OPT.get("k2pf", 1):
        e("s_cmp_lt_u32 s12, 2")
        e("s_cselect_b32 s24, s28, s30")
        e("s_cselect_b32 s25, s29, s31")
        e(f"s_mov_b32 s26, {hex(512*512*2)}")
        e("s_mov_b32 s27, 0x00020000")
        e("s_lshl_b32 s17, s14, 14")
        e("s_and_b32 s18, s12, 1")
        e("s_lshl_b32 s18, s18, 13")
        e("s_add_u32 s17, s17, s18")
        for i in range(8):
            if i == 4: e("s_add_u32 s17, s17, 4096")
            e(f"buffer_load_dwordx4 {vr(PP+4*i,4)}, v{AK}, s[24:27], s17 offen offset:{(i&3)*1024}")
        e("s_waitcnt vmcnt(0)")
    e("s_endpgm")
    e.label("K2_compute")
    e("s_lshl_b32 s15, s13, 3")
    e("s_add_u32 s15, s15, s12")
    e("s_lshl_b32 s16, s14, 6")
    e("s_add_u32 s16, s16, s15")
    e("s_lshl_b32 s17, s16, 10")
    if WS_QB: e(f"s_add_u32 s17, s17, {WS_QB}")
    e(f"v_and_b32 v{T}, 31, v1")
    e(f"v_lshlrev_b32 v{T}, 2, v{T}")
    e("s_lshl_b32 s18, s15, 7")
    e(f"s_add_u32 s18, s18, {WS_GATE}")
    e("s_waitcnt lgkmcnt(0)")
    srd(e, 4, 8, WS_SIZE)
    e(f"buffer_load_dwordx4 {vr(Q,4)}, v{AK}, s[4:7], s17 offen")
    e(f"buffer_load_dword v{G}, v{T}, s[4:7], s18 offen")
    e(f"v_lshrrev_b32 v{T}, 5, v1")
    e(f"v_and_b32 v{AV}, 15, v1")
    e(f"v_lshlrev_b32 v{AV}, 4, v{AV}")
    e(f"v_lshl_add_u32 v{AV}, v{T}, 8, v{AV}")
    e(f"v_add_u32 v{AV}, 1024, v{AV}")
    e(f"v_and_b32 v{T}, 27, v1")
    e(f"v_mov_b32 v{T+1}, 0x3f803f80")
    e(f"v_cmp_eq_u32 vcc, 16, v{T}")
    e(f"v_cndmask_b32 v{VF[0]}, 0, v{T+1}, vcc")
    for i in range(1, 16): e(f"v_mov_b32 v{VF[0]+i}, v{VF[0]}")
    e("s_mov_b32 s20, 0xffff")
    e("s_mov_b32 s21, 0xffff")
    e("s_mov_b32 s22, 0")
    U = OPT.get("k2u", 4); NIT = 64 // U
    L1 = 8 // U; L2 = 20 // U if U <= 4 else 3
    e(f"s_mov_b32 s24, {L1}")
    e("s_waitcnt vmcnt(0)")
    e("s_barrier")
    stamp_mid(e, 0)
    e(f"ds_read_b128 {vr(KF[0],4)}, v{AK}")
    e(f"ds_read_b128 {vr(KF[1],4)}, v{AK} offset:2048")
    e("s_waitcnt lgkmcnt(0)")
    e(mfma(S[0], KF[0], Q, None))
    e(mfma(S[1], KF[1], Q, None))
    e(f"v_max3_f32 v{T}, v{S[0]}, v{S[0]+1}, v{S[0]+2}")
    rest = list(range(S[0] + 3, S[0] + 32))
    while len(rest) >= 2:
        e(f"v_max3_f32 v{T}, v{T}, v{rest[0]}, v{rest[1]}"); rest = rest[2:]
    if rest: e(f"v_max_f32 v{T}, v{T}, v{rest[0]}")
    e.label("K2_havemax")
    e("s_mov_b64 exec, s[20:21]")
    e(f"ds_read_b128 {vr(VF[0],4)}, v{AV}")
    e(f"ds_read_b128 {vr(VF[0]+4,4)}, v{AV} offset:512")
    e("s_mov_b64 exec, -1")
    e(f"v_mov_b32 v{T+1}, v{T}")
    e(f"v_permlane32_swap_b32 v{T}, v{T+1}")
    e(f"v_max_f32 v{T}, v{T}, v{T+1}")
    for i in range(16): e(f"v_sub_f32 v{NM+i}, 0, v{T}")
    e(mfma(S[0], KF[0], Q, NM))
    for i in range(16): e(f"v_mov_b32 v{O+i}, 0")
    for i in range(4): e(f"v_mov_b32 v{PK+4+i}, 0")
    e("s_mov_b32 s23, 0")
    stamp_mid(e, 1)
    e("s_waitcnt lgkmcnt(0)")
    body = Emitter()
    ex = lambda i: f"v_exp_f32 v{i}, v{i}"
    for j in range(U):
        a = j & 1; b = a ^ 1
        Sa = S[a]
        cv = lambda q: f"v_cvt_pk_bf16_f32 v{PK+q}, v{Sa+2*q}, v{Sa+2*q+1}"
        body(mfma(S[b], KF[b], Q, NM))
        body(f"ds_read_b128 {vr(KF[a],4)}, v{AK} offset:{(j+2)*2048}")
        for i in range(7): body(ex(Sa + i))
        body(mfma(O, VF[b] + 4, PK + 4, O))
        body("s_mov_b64 exec, s[20:21]")
        body(f"ds_read_b128 {vr(VF[b],4)}, v{AV} offset:{(j+1)*2048}")
        body(f"ds_read_b128 {vr(VF[b]+4,4)}, v{AV} offset:{(j+1)*2048+512}")
        body("s_mov_b64 exec, -1")
        body(ex(Sa + 7)); body(ex(Sa + 8))
        for q in range(4): body(cv(q))
        body(ex(Sa + 9)); body(ex(Sa + 10))
        body("s_waitcnt lgkmcnt(3)")
        body(mfma(O, VF[a], PK, O))
        for i in range(11, 16): body(ex(Sa + i))
        if j == U - 1:
            body(f"v_add_u32 v{AK}, {U*2048}, v{AK}")
            body(f"v_add_u32 v{AV}, {U*2048}, v{AV}")
            body("s_add_u32 s23, s23, 1")
            body("s_cmp_lt_u32 s23, s24")
        for q in range(4, 8): body(cv(q))
        body("s_waitcnt lgkmcnt(2)")
    rep = []
    fix_hazards(body.lines, pre=body.lines, report=rep)
    assert not rep, rep
    e(".p2align 6")
    e.label("K2_loop")
    e.extend(body.lines)
    e("s_cbranch_scc1 K2_loop")
    e(f"s_cmp_eq_u32 s24, {NIT}")
    e("s_cbranch_scc1 K2_loopend")
    e(f"s_cmp_eq_u32 s24, {L1}")
    e(f"s_cselect_b32 s24, {L2}, {NIT}")
    e("s_barrier")
    e("s_branch K2_loop")
    e.label("K2_loopend")
    e(mfma(O, VF[1] + 4, PK + 4, O))
    stamp_mid(e, 2)
    e(f"v_add_u32 v{AK}, {-64*2048 & 0xffffffff}, v{AK}")
    e(f"v_add_u32 v{AV}, {-64*2048 & 0xffffffff}, v{AV}")
    e(f"v_mov_b32 v{T+1}, 0x207")
    e(f"v_sub_f32 v{T+2}, 1.0, v{G}")
    e(f"v_cvt_pk_bf16_f32 v{T+2}, v{T+2}, v{T+2}")
    e(f"v_and_b32 v{T+2}, 0xffff0000, v{T+2}")
    e(f"s_mov_b32 s25, {fbits(2.0**120)}")
    e("s_lshl_b32 s17, s15, 6")
    e("s_add_u32 s17, s17, s14")
    e("s_lshl_b32 s17, s17, 10")
    e(f"s_add_u32 s17, s17, {WS_OC+32*1024}")
    e("s_waitcnt lgkmcnt(0)")
    e("s_nop 1")
    e("s_cmp_lg_u32 s22, 0")
    e("s_cbranch_scc1 K2_fin")
    e(f"v_cmp_ngt_f32 s[26:27], s25, v{O+8}")
    for i in range(8):
        e(f"v_cmp_class_f32 vcc, v{O+i}, v{T+1}")
        e("s_or_b64 s[26:27], s[26:27], vcc")
    e("s_cbranch_scc1 K2_fallback")
    e.label("K2_fin")
    e(f"v_rcp_f32 v{T}, v{O+8}")
    e(f"v_mul_f32 v{T}, v{T}, v{T+2}")
    for i in range(8): e(f"v_mul_f32 v{O+i}, v{O+i}, v{T}")
    for q in range(4): e(f"v_cvt_pk_bf16_f32 v{O+q}, v{O+2*q}, v{O+2*q+1}")
    e(f"buffer_store_dwordx4 {vr(O,4)}, v{AK}, s[4:7], s17 offen")
    stamp_end(e, 1, 4, 40)
    e.label("K2_done")
    e("s_endpgm")
    e.label("K2_fallback")
    e("s_mov_b32 s22, 1")
    e("s_mov_b32 s23, 0")
    e(f"v_mov_b32 v{T}, 0xff800000")
    e(f"v_mov_b32 v{T+2}, v{AK}")
    e.label("K2_fb_loop")
    e(f"ds_read_b128 {vr(KF[0],4)}, v{T+2}")
    e(f"v_add_u32 v{T+2}, 2048, v{T+2}")
    e("s_waitcnt lgkmcnt(0)")
    e(mfma(S[0], KF[0], Q, None))
    for i in range(8): e(f"v_max3_f32 v{T}, v{T}, v{S[0]+2*i}, v{S[0]+2*i+1}")
    e("s_add_u32 s23, s23, 1")
    e("s_cmp_lt_u32 s23, 64")
    e("s_cbranch_scc1 K2_fb_loop")
    e(f"ds_read_b128 {vr(KF[0],4)}, v{AK}")
    e(f"ds_read_b128 {vr(KF[1],4)}, v{AK} offset:2048")
    e("s_waitcnt lgkmcnt(0)")
    e("s_branch K2_havemax")
    return fix_hazards(e.lines)

K3_LDS = 131072 + 16384
def gen_k3():
    e = Emitter()
    XCH = 131072
    OF = 64; ACC = [32, 48]; WF = [8, 16]
    e("s_cmp_ge_u32 s2, 256")
    e("s_cbranch_scc1 K3_done")
    stamp_begin(e)
    e("s_load_dwordx2 s[20:21], s[0:1], 24")
    e("s_load_dwordx2 s[22:23], s[0:1], 64")
    e("s_load_dwordx2 s[24:25], s[0:1], 80")
    e("s_load_dwordx2 s[26:27], s[0:1], 96")
    e("v_and_b32 v1, 63, v0")
    e("v_lshrrev_b32 v2, 6, v0")
    e("v_readfirstlane_b32 s28, v2")
    e("s_and_b32 s36, s2, 7")
    e("s_lshr_b32 s37, s2, 3")
    e("s_lshl_b32 s29, s36, 2")
    e("s_lshr_b32 s38, s37, 3")
    e("s_add_u32 s29, s29, s38")
    e("s_and_b32 s30, s37, 7")
    e("s_and_b32 s31, s28, 1")
    e("s_lshr_b32 s32, s28, 1")
    if OPT["k3rot"]:
        e("s_add_u32 s33, s29, s30"); e("s_and_b32 s33, s33, 7")
    else:
        e("s_mov_b32 s33, 0")
    e("v_lshrrev_b32 v3, 3, v1")
    e("v_and_b32 v4, 7, v1")
    e("v_bfe_u32 v5, v1, 4, 1")
    e("v_lshlrev_b32 v5, 2, v5")
    e("v_xor_b32 v4, v4, v5")
    e("v_lshlrev_b32 v4, 4, v4")
    e("v_lshl_add_u32 v24, v3, 10, v4")
    for j in range(1, 4): e(f"v_add_u32 v{24+j}, {j*7168}, v24")
    e("v_lshlrev_b32 v2, 4, v1")
    e("s_lshl_b32 s34, s31, 15")
    e("s_lshl_b32 s38, s30, 7")
    e("s_add_u32 s34, s34, s38")
    e("s_lshl_b32 s35, s32, 16")
    e("s_lshl_b32 s38, s31, 12")
    e("s_add_u32 s39, s35, s38")
    e("s_lshl_b32 s40, s29, 1")
    e("s_add_u32 s40, s40, s31")
    e("s_lshl_b32 s41, s40, 16")
    e("s_lshl_b32 s38, s32, 15")
    e("s_add_u32 s41, s41, s38")
    e(f"s_add_u32 s41, s41, {WS_OC}")
    e("s_waitcnt lgkmcnt(0)")
    e("s_cmp_eq_u32 s32, 0")
    e("s_cselect_b32 s4, s20, s22")
    e("s_cselect_b32 s5, s21, s23")
    e(f"s_mov_b32 s6, {hex(512*512*2)}")
    e("s_mov_b32 s7, 0x00020000")
    srd(e, 8, 26, WS_SIZE)
    srd(e, 12, 24, 2048*512*2)
    def issue(p):
        l = []
        l.append("s_lshl_b32 s38, s33, 16")
        l.append("s_add_u32 s38, s38, s34")
        l.append(f"s_add_u32 m0, s39, {p*8192}")
        l.append("s_lshl_b32 s42, s33, 12")
        for j in range(4):
            l.append(f"buffer_load_dwordx4 v{24+j}, s[4:7], s38 offen offset:{j*1024} lds")
        l.append("s_add_u32 s42, s42, s41")
        l.append("s_add_u32 s33, s33, 1")
        for j in range(4):
            l.append(f"buffer_load_dwordx4 {vr(OF+16*p+4*j,4)}, v2, s[8:11], s42 offen offset:{j*1024}")
        l.append("s_and_b32 s33, s33, 7")
        return l
    DEP = OPT.get("k3dep", 2)
    for p in range(DEP): e.extend(issue(p))
    e("v_lshrrev_b32 v3, 5, v1")
    e("v_bfe_u32 v4, v1, 2, 2")
    e("v_lshl_add_u32 v5, v3, 2, v4")
    e("v_lshlrev_b32 v5, 7, v5")
    e("v_lshrrev_b32 v4, 1, v4")
    e("v_xor_b32 v4, s32, v4")
    e("v_lshl_add_u32 v5, v4, 6, v5")
    e("v_bfe_u32 v4, v1, 4, 1")
    e("v_lshl_add_u32 v5, v4, 5, v5")
    e("v_and_b32 v4, 3, v1")
    e("v_lshl_add_u32 v5, v4, 3, v5")
    e("v_add_u32 v5, s35, v5")
    e("v_xor_b32 v6, 64, v5")
    def rd(p, t, buf):
        l = []
        for nt in range(2):
            for u in range(2):
                l.append(f"ds_read_b64_tr_b16 {vr(WF[buf]+4*nt+2*u,2)}, v{5+nt} offset:{p*8192+(16*t+8*u)*128}")
        return l
    for p in range(8):
        e(f"s_waitcnt vmcnt({8*min(7-p, DEP-1)})")
        e("s_barrier")
        if p == 0: stamp_mid(e, 0)
        if p == 7: stamp_mid(e, 1)
        e.extend(rd(p, 0, 0))
        if p + DEP <= 7: e.extend(issue(p + DEP))
        for t in range(4):
            if t < 3:
                e.extend(rd(p, t + 1, (t + 1) & 1))
                e("s_waitcnt lgkmcnt(4)")
            else:
                e("s_waitcnt lgkmcnt(0)")
            for nt in range(2):
                e(mfma(ACC[nt], WF[t & 1] + 4 * nt, OF + 16 * p + 4 * t, None if (p == 0 and t == 0) else ACC[nt]))
    e("s_lshl_b32 s38, s28, 12")
    e(f"s_add_u32 s38, s38, {XCH}")
    e("v_add_u32 v3, s38, v2")
    e("v_xor_b32 v4, 0x2000, v3")
    e("v_and_b32 v5, 31, v1")
    e("v_lshlrev_b32 v5, 10, v5")
    e("v_lshrrev_b32 v6, 5, v1")
    e("v_lshl_add_u32 v5, v6, 4, v5")
    e("s_lshl_b32 s38, s40, 15")
    e("s_lshl_b32 s39, s30, 7")
    e("s_add_u32 s38, s38, s39")
    e("s_lshl_b32 s39, s32, 6")
    e("s_add_u32 s38, s38, s39")
    for q in range(4): e(f"ds_write_b128 v3, {vr(ACC[1]+4*q,4)} offset:{q*1024}")
    e("s_waitcnt lgkmcnt(0)")
    e("s_barrier")
    for q in range(4): e(f"ds_read_b128 {vr(OF+4*q,4)}, v4 offset:{q*1024}")
    e("s_waitcnt lgkmcnt(0)")
    A = ACC[0]
    for i in range(16): e(f"v_add_f32 v{A+i}, v{A+i}, v{OF+i}")
    for q in range(8): e(f"v_cvt_pk_bf16_f32 v{A+q}, v{A+2*q}, v{A+2*q+1}")
    for pr in range(2):
        e(f"v_permlane32_swap_b32 v{A+4*pr}, v{A+4*pr+2}")
        e(f"v_permlane32_swap_b32 v{A+4*pr+1}, v{A+4*pr+3}")
    for pr in range(2):
        e(f"buffer_store_dwordx4 {vr(A+4*pr,4)}, v5, s[12:15], s38 offen offset:{pr*32}")
    stamp_mid(e, 2)
    stamp_end(e, 2, 8, 64)
    e.label("K3_done")
    e("s_endpgm")
    return fix_hazards(e.lines)

def kd(name, nv, ns=102):
    return f""".p2align 6
.amdhsa_kernel {name}
  .amdhsa_next_free_vgpr {nv}
  .amdhsa_next_free_sgpr {ns}
  .amdhsa_accum_offset {(nv+3)//4*4}
  .amdhsa_group_segment_fixed_size 0
  .amdhsa_kernarg_size 104
  .amdhsa_user_sgpr_count 2
  .amdhsa_user_sgpr_kernarg_segment_ptr 1
  .amdhsa_system_sgpr_workgroup_id_x 1
.end_amdhsa_kernel
"""

def build():
    hdr = open("cdna_kernels/%s.s.ref" % NAME).read().split("\n")
    hdr = [l for l in hdr if l.startswith(";") and "@launch" not in l and "Override launch" not in l and "grid=ceil" not in l]
    out = list(hdr)
    out.append(f"; @launch kernel=gm_proj_kernel grid=(256,1,1) block=(768,1,1) lds={K1_LDS}")
    out.append(f"; @launch kernel=gm_attn_kernel grid=(256,1,1) block=(768,1,1) lds={K2_LDS}")
    out.append(f"; @launch kernel=gm_out_kernel grid=(256,1,1) block=(256,1,1) lds={K3_LDS}")
    out.append('.amdgcn_target "amdgcn-amd-amdhsa--gfx950"')
    out.append(".text")
    for name, g in (("gm_proj_kernel", gen_k1), ("gm_attn_kernel", gen_k2), ("gm_out_kernel", gen_k3)):
        out.append(f".globl {name}")
        out.append(".p2align 8")
        out.append(f".type {name},@function")
        out.append(f"{name}:")
        out += g()
    out.append('.section .rodata,"a"')
    st = OPT.get("stamp")
    out.append(kd("gm_proj_kernel", 160, 102 if st else 80))
    out.append(kd("gm_attn_kernel", 128, 102 if st else 32))
    out.append(kd("gm_out_kernel", 192, 102 if st else 48))
    return "\n".join(out) + "\n"

if __name__ == "__main__":
    dst = "cdna_kernels/%s.s" % NAME
    for a in sys.argv[1:]:
        if "=" in a:
            k, v = a.split("=");
            if k == "out": dst = v
            elif k == "st": ST = " " + v.replace("+", " ")
            else: OPT[k] = int(v)
    open(dst, "w").write(build())
    print("wrote", dst)
```

```python
import sys, math, struct
from asmlib import *

NAME = "gated_mix__linear_kernel_hedgehog__grouped_kv_mqa__prompt"
WS_KVB  = 0x000000
WS_GATE = 0x020000
WS_FL   = 0x024000
F1 = WS_FL; FG = WS_FL + 0x400; F3 = WS_FL + 0x1000; F3P = WS_FL + 0x3000; F4 = WS_FL + 0x4000
WS_KVF  = 0x030000
WS_PART = 0x100000
WS_OC   = 0x500000
WS_STAMP = 0x900000
WS_SIZE = 0xA00000
XT = 65536; EXT = 131072; PHQ = 131072; HND = 147456; WPH = 155648; MISC = 157696
LDS_BYTES = 158720
C_KVALL = MISC; C_PROG = MISC + 4; C_HS = MISC + 8; C_GOK = MISC + 12; C_NONCE = MISC + 16; C_GATE = MISC + 64

def fbits(x): return "0x%08x" % struct.unpack("<I", struct.pack("<f", x))[0]
LOG2E = math.log2(math.e)
OPT = dict(map=1, rot=1, round_pq=0, stamp=0, spin=1 << 16)

def srd(e, d, lo, nbytes):
    e(f"s_mov_b32 s{d}, s{lo}")
    e(f"s_mov_b32 s{d+1}, s{lo+1}")
    e(f"s_mov_b32 s{d+2}, {hex(nbytes)}")
    e(f"s_mov_b32 s{d+3}, 0x00020000")

def stamp_begin(e):
    if OPT["stamp"]:
        e("s_memrealtime s[92:93]")
        e("s_memtime s[94:95]")
        for k in range(6): e(f"s_mov_b32 s{80+2*k}, 0")
def stamp(k):
    return [f"s_memtime s[{80+2*k}:{81+2*k}]"] if OPT["stamp"] else []
def stamp_end(e, vt):
    if OPT["stamp"]:
        e("s_waitcnt vmcnt(0)")
        e("s_memrealtime s[96:97]")
        e("s_memtime s[98:99]")
        e("s_waitcnt lgkmcnt(0)")
        for r in (98, 80, 82, 84, 86, 88, 90): e(f"s_sub_u32 s{r}, s{r}, s94")
        e(f"v_lshrrev_b32 v{vt+12}, 6, v0")
        e(f"v_lshlrev_b32 v{vt+12}, 6, v{vt+12}")
        e("s_lshl_b32 s100, s2, 10")
        e(f"s_add_u32 s100, s100, {WS_STAMP}")
        for i, r in enumerate((92, 96, 98, 80, 82, 84, 86, 88, 90, 90, 90, 90)):
            e(f"v_mov_b32 v{vt+i}, s{r}")
        for q in range(3):
            e(f"buffer_store_dwordx4 v[{vt+4*q}:{vt+4*q+3}], v{vt+12}, s[24:27], s100 offen offset:{16*q}")

def phi_unit(P, T, O):
    l = []
    if OPT["round_pq"]:
        for q in range(4): l.append(f"v_cvt_pk_bf16_f32 v{P+8+q}, v{P+2*q}, v{P+2*q+1}")
        for q in range(4):
            l.append(f"v_lshlrev_b32 v{P+2*q}, 16, v{P+8+q}")
            l.append(f"v_and_b32 v{P+2*q+1}, 0xffff0000, v{P+8+q}")
    A = T; B = T + 2
    l += [f"v_max3_f32 v{A}, v{P}, v{P+1}, v{P+2}",
          f"v_max3_f32 v{B}, -v{P}, -v{P+1}, -v{P+2}",
          f"v_max3_f32 v{A}, v{A}, v{P+3}, v{P+4}",
          f"v_max3_f32 v{B}, v{B}, -v{P+3}, -v{P+4}",
          f"v_max3_f32 v{A}, v{A}, v{P+5}, v{P+6}",
          f"v_max3_f32 v{B}, v{B}, -v{P+5}, -v{P+6}",
          f"v_max_f32 v{A}, v{A}, v{P+7}",
          f"v_max_f32_e64 v{B}, v{B}, -v{P+7}",
          f"v_permlane32_swap_b32 v{A}, v{B}",
          f"v_max_f32 v{A}, v{A}, v{B}",
          f"v_mul_f32 v{A}, s75, v{A}",
          f"v_mov_b32 v{B}, v{A}",
          f"v_permlane32_swap_b32 v{A}, v{B}"]
    if OPT.get("pk", 1):
        for i in range(0, 8, 2):
            l.append(f"v_pk_fma_f32 {vr(P+8+i,2)}, {vr(P+i,2)}, s[74:75], {vr(B,2)} op_sel_hi:[1,0,0] neg_lo:[1,0,0] neg_hi:[1,0,0]")
            l.append(f"v_pk_fma_f32 {vr(P+i,2)}, {vr(P+i,2)}, s[74:75], {vr(A,2)} op_sel_hi:[1,0,0]")
    else:
        for i in range(8):
            l.append(f"v_fma_f32 v{P+8+i}, -v{P+i}, s74, v{B}")
            l.append(f"v_fma_f32 v{P+i}, v{P+i}, s74, v{A}")
    for i in range(16): l.append(f"v_exp_f32 v{P+i}, v{P+i}")
    for sg in range(2):
        l.append(f"v_pk_add_f32 {vr(O+4*sg,2)}, {vr(P+8*sg,2)}, {vr(P+8*sg+2,2)}")
        l.append(f"v_pk_add_f32 {vr(O+4*sg+2,2)}, {vr(P+8*sg+4,2)}, {vr(P+8*sg+6,2)}")
    for sg in range(2):
        l.append(f"v_pk_add_f32 {vr(O+4*sg,2)}, {vr(O+4*sg,2)}, {vr(O+4*sg+2,2)}")
    for sg in range(2):
        l.append(f"v_add_f32 v{T+2*sg}, v{O+4*sg}, v{O+4*sg+1}")
    l += [f"v_permlane32_swap_b32 v{A}, v{B}",
          f"v_add_f32 v{A}, v{A}, v{B}",
          f"v_rcp_f32 v{A}, v{A}",
          f"v_mov_b32 v{B}, v{A}",
          f"v_permlane32_swap_b32 v{A}, v{B}"]
    for i in range(0, 8, 2):
        l.append(f"v_pk_mul_f32 {vr(P+i,2)}, {vr(P+i,2)}, {vr(A,2)} op_sel_hi:[1,0]")
        l.append(f"v_pk_mul_f32 {vr(P+8+i,2)}, {vr(P+8+i,2)}, {vr(B,2)} op_sel_hi:[1,0]")
    for q in range(8): l.append(f"v_cvt_pk_bf16_f32 v{O+q}, v{P+2*q}, v{P+2*q+1}")
    return l

def spread(mm, r):
    out = []; n = len(mm); k = 0
    for i, x in enumerate(mm):
        out.append(x)
        hi = (len(r) * (i + 1) + n - 1) // n
        out += r[k:hi]; k = max(k, hi)
    return out + r[k:]

_uid = [0]
def uid(p):
    _uid[0] += 1
    return f"{p}_{_uid[0]}"

def flag_store(e, soff, vt):
    e(f"v_mov_b32 v{vt}, s78")
    e(f"v_mov_b32 v{vt+1}, s79")
    e(f"v_mov_b32 v{vt+2}, 0")
    e("s_mov_b64 exec, 1")
    e(f"buffer_store_dwordx2 {vr(vt,2)}, v{vt+2}, s[24:27], {soff} offen sc1")
    e("s_mov_b64 exec, -1")

def flag_poll(e, vaddr, vt, sleep=2):
    L = uid("FP"); D = uid("FD")
    e("s_mov_b32 s77, 0")
    e.label(L)
    e(f"buffer_load_dwordx2 {vr(vt,2)}, v{vaddr}, s[24:27], 0 offen sc1")
    e("s_add_u32 s77, s77, 1")
    e("s_waitcnt vmcnt(0)")
    e(f"v_cmp_ne_u64 vcc, s[78:79], {vr(vt,2)}")
    e(f"s_cbranch_vccz {D}")
    e(f"s_cmp_gt_u32 s77, {OPT['spin']}")
    e(f"s_cbranch_scc1 {D}")
    if sleep: e(f"s_sleep {sleep}")
    e(f"s_branch {L}")
    e.label(D)

def lds_add(e, addr, vt):
    e(f"v_mov_b32 v{vt}, {addr}")
    e(f"v_mov_b32 v{vt+1}, 1")
    e("s_mov_b64 exec, 1")
    e(f"ds_add_u32 v{vt}, v{vt+1}")
    e("s_mov_b64 exec, -1")

def lds_wait(e, addr, target, vt, sleep=4):
    L = uid("LW"); D = uid("LD")
    e(f"v_mov_b32 v{vt}, {addr}")
    e("s_mov_b32 s77, 0")
    e.label(L)
    e(f"ds_read_b32 v{vt+1}, v{vt}")
    e("s_add_u32 s77, s77, 1")
    e("s_waitcnt lgkmcnt(0)")
    e(f"v_cmp_gt_u32 vcc, {target}, v{vt+1}")
    e(f"s_cbranch_vccz {D}")
    e(f"s_cmp_gt_u32 s77, {OPT['spin']*8}")
    e(f"s_cbranch_scc1 {D}")
    e(f"s_sleep {sleep}")
    e(f"s_branch {L}")
    e.label(D)

def get_nonce(e, vt):
    e(f"v_mov_b32 v{vt}, {C_NONCE}")
    e(f"ds_read_b64 {vr(vt,2)}, v{vt}")
    e("s_waitcnt lgkmcnt(0)")
    e(f"v_readfirstlane_b32 s78, v{vt}")
    e(f"v_readfirstlane_b32 s79, v{vt+1}")

def gen():
    e = Emitter()
    e("s_cmp_ge_u32 s2, 256")
    e("s_cbranch_scc1 L_done")
    e("s_load_dwordx16 s[48:63], s[0:1], 0")
    e("s_load_dwordx8 s[64:71], s[0:1], 64")
    e("s_load_dwordx2 s[72:73], s[0:1], 96")
    stamp_begin(e)
    e("v_and_b32 v1, 63, v0")
    e("v_lshrrev_b32 v11, 6, v0")
    e("v_readfirstlane_b32 s30, v11")
    e("s_and_b32 s36, s2, 7")
    e("s_lshr_b32 s37, s2, 3")
    lc = {0: 1, 1: 2, 2: 3}[OPT["map"]]
    e(f"s_and_b32 s29, s36, {(8>>lc)-1}")
    e(f"s_lshl_b32 s29, s29, {lc}")
    e(f"s_and_b32 s38, s37, {(1<<lc)-1}")
    e("s_or_b32 s29, s29, s38")
    e(f"s_lshr_b32 s28, s36, {3-lc}")
    e(f"s_lshl_b32 s28, s28, {5-lc}")
    e(f"s_lshr_b32 s38, s37, {lc}")
    e("s_add_u32 s28, s28, s38")
    if OPT["rot"] == 1:
        e("s_add_u32 s31, s28, s29"); e("s_lshl_b32 s31, s31, 1"); e("s_and_b32 s31, s31, 6")
    elif OPT["rot"] == 2:
        e("s_add_u32 s31, s28, s29"); e("s_lshl_b32 s31, s31, 2"); e("s_and_b32 s31, s31, 4")
    else:
        e("s_mov_b32 s31, 0")
    e("v_lshlrev_b32 v10, 4, v1")
    e("s_cmp_lt_u32 s30, 8")
    e("s_cbranch_scc1 L_compute")
    e("s_setprio 3")
    e("s_sub_u32 s30, s30, 8")
    e("v_lshrrev_b32 v11, 3, v1")
    e("v_and_b32 v12, 7, v1")
    e("v_lshrrev_b32 v13, 4, v1")
    e("v_xor_b32 v14, v12, v13")
    e("v_lshlrev_b32 v14, 4, v14")
    e("v_lshl_add_u32 v2, v11, 10, v14")
    e("v_xor_b32 v3, 64, v2")
    e("v_add_u32 v3, 7168, v3")
    e("s_lshl_b32 s32, s28, 16")
    e("s_lshl_b32 s38, s30, 14")
    e("s_add_u32 s32, s32, s38")
    e("s_lshl_b32 s41, s30, 11")
    e("s_lshl_b32 s40, s30, 12")
    e("s_waitcnt lgkmcnt(0)")
    srd(e, 4, 48, 2048*512*2)
    e("s_cmp_gt_u32 s29, 2")
    e("s_cbranch_scc1 L_noext")
    e("s_cmp_eq_u32 s29, 0")
    e("s_cselect_b32 s16, s60, s62")
    e("s_cselect_b32 s17, s61, s63")
    e("s_cmp_eq_u32 s29, 2")
    e("s_cselect_b32 s16, s66, s16")
    e("s_cselect_b32 s17, s67, s17")
    e("s_mov_b32 s18, 16384")
    e("s_cselect_b32 s18, 1024, s18")
    e("s_mov_b32 s19, 0x00020000")
    e(f"s_add_u32 m0, s40, {EXT}")
    for i in range(4):
        e(f"buffer_load_dwordx4 v10, s[16:19], s40 offen offset:{i*1024} lds")
    e.label("L_noext")
    def item(i):
        l = []
        if i < 4:
            for q in range(2):
                l.append("s_lshl_b32 s38, s31, 7")
                l.append("s_add_u32 s38, s38, s32")
                l.append(f"s_add_u32 m0, s41, {XT + (2*i+q)*8192}")
                l.append("s_add_u32 s31, s31, 1")
                for k in range(2):
                    l.append(f"buffer_load_dwordx4 v{2+k}, s[4:7], s38 offen offset:{k*1024} lds")
                l.append("s_and_b32 s31, s31, 7")
        else:
            g = i - 4; slot = g % 4
            l.append("s_mul_i32 s39, s31, 196608")
            l.append("s_add_u32 s39, s39, s33")
            l.append(f"s_add_u32 m0, s41, {slot*16384}")
            if g < 8: l.append("s_add_u32 s39, s39, 1024")
            else: l.append("s_lshl_b32 s38, s31, 16")
            for k in range(2):
                l.append(f"buffer_load_dwordx4 v{6+k}, s[8:11], s39 offen offset:{k*1024} lds")
            l.append(f"s_add_u32 m0, s41, {slot*16384+8192}")
            if g < 8:
                l.append("s_add_u32 s39, s39, 1024")
                for k in range(2):
                    l.append(f"buffer_load_dwordx4 v{8+k}, s[8:11], s39 offen offset:{k*1024} lds")
            else:
                l.append("s_add_u32 s38, s38, s34")
                for k in range(2):
                    l.append(f"buffer_load_dwordx4 v{4+k}, s[12:15], s38 offen offset:{k*1024} lds")
            l.append("s_add_u32 s31, s31, 1")
            l.append("s_and_b32 s31, s31, 7")
        return l
    for i in range(3): e.extend(item(i))
    e("v_and_b32 v13, 1, v13")
    e("v_lshlrev_b32 v13, 1, v13")
    e("v_xor_b32 v14, v12, v13")
    e("v_lshlrev_b32 v14, 4, v14")
    e("v_mul_u32_u24 v6, 3072, v11")
    e("v_add_u32 v6, v6, v14")
    e(f"v_add_u32 v7, {8*3072-1024}, v6")
    e("v_xor_b32 v8, 64, v6")
    e(f"v_add_u32 v9, {8*3072-1024}, v8")
    e("v_xor_b32 v14, 64, v14")
    e("v_lshl_add_u32 v4, v11, 10, v14")
    e("v_add_u32 v5, 7168, v4")
    e("s_lshl_b32 s38, s29, 7")
    e("s_mul_i32 s33, s30, 49152")
    e("s_add_u32 s33, s33, s38")
    e("s_lshl_b32 s34, s30, 14")
    e("s_add_u32 s34, s34, s38")
    srd(e, 8, 50, 512*1536*2)
    srd(e, 12, 58, 512*512*2)
    srd(e, 20, 52, 32*16*16*2)
    srd(e, 24, 72, WS_SIZE)
    e("v_and_b32 v15, 31, v1")
    e("v_lshlrev_b32 v15, 3, v15")
    e("s_lshl_b32 s38, s30, 8")
    e(f"s_add_u32 s38, s38, {F1}")
    e("v_add_u32 v15, s38, v15")
    e("s_lshl_b32 s42, s30, 10")
    assert WS_KVB == 0
    def kvdma(n):
        l = []
        for _ in range(n):
            l.append("s_mov_b32 m0, s42")
            l.append("s_nop 0")
            l.append("buffer_load_dwordx4 v10, s[24:27], s42 offen sc1 lds")
            l.append("s_add_u32 s42, s42, 4096")
        return l
    out = []
    for i in range(3): out += [i] * 4
    def waitfor(tag):
        idx = max(k for k, t in enumerate(out) if t == tag)
        n = len(out) - 1 - idx
        del out[:idx + 1]
        return f"s_waitcnt vmcnt({n})"
    for i in range(18):
        e(waitfor(i))
        e("s_barrier")
        if i == 0:
            e.extend(stamp(0))
            e("s_and_b32 s38, s30, 1")
            e("s_lshl_b32 s38, s38, 10")
            e(f"s_add_u32 m0, s38, {WPH}")
            e("s_lshl_b32 s39, s29, 11")
            e("s_add_u32 s38, s38, s39")
            e("buffer_load_dwordx4 v10, s[20:23], s38 offen lds"); out.append("w")
        if i + 3 <= 19:
            e.extend(item(i + 3)); out += [i + 3] * 4
        if i == 6: get_nonce(e, 16)
        if i == 14:
            e("buffer_load_dwordx2 v[16:17], v15, s[24:27], 0 offen sc1"); out.append("p")
    e(waitfor("p"))
    e("v_cmp_ne_u64 vcc, s[78:79], v[16:17]")
    e("s_cbranch_vccnz L_kvlate")
    save = list(out)
    e.extend(kvdma(4)); out += ["k0"] * 4
    e(waitfor(18)); e("s_barrier")
    e.extend(kvdma(4)); out += ["k1"] * 4
    e(waitfor(19)); e("s_barrier")
    e.extend(kvdma(4)); out += ["k2"] * 4
    e("s_barrier")
    e.extend(kvdma(6)); out += ["k3"] * 6
    e(waitfor("k1"))
    e("s_branch L_kvjoin")
    e.label("L_kvlate")
    out[:] = save
    e(waitfor(18)); e("s_barrier")
    e(waitfor(19)); e("s_barrier")
    e("s_barrier")
    flag_poll(e, 15, 16, sleep=0)
    e.extend(kvdma(12))
    e("s_waitcnt vmcnt(4)")
    e("s_barrier")
    e.extend(kvdma(6))
    e("s_branch L_kvjoin2")
    e.label("L_kvjoin")
    e("s_barrier")
    e.label("L_kvjoin2")
    e.extend(stamp(1))
    e.extend(kvdma(14))
    HQ = 16; HK = 32; HG = 40; HT = 42; HD = 48; HP = 80
    e(f"v_add_u32 v{HT}, s40, v10")
    e(f"v_add_u32 v{HT}, {PHQ}, v{HT}")
    for q in range(4): e(f"ds_read_b128 {vr(HQ+4*q,4)}, v{HT} offset:{q*1024}")
    e("s_waitcnt vmcnt(0)")
    lds_add(e, C_KVALL, HT)
    e("s_lshl_b32 s45, s29, 2")
    e("s_and_b32 s38, s28, 3")
    e("s_cmp_lg_u32 s38, s30")
    e("s_cbranch_scc1 L_nored")
    e("s_lshr_b32 s38, s28, 3")
    e("s_add_u32 s43, s45, s38")
    e("v_and_b32 v15, 31, v1")
    e("v_lshlrev_b32 v15, 3, v15")
    e("s_lshl_b32 s38, s43, 8")
    e(f"s_add_u32 s38, s38, {F3}")
    e(f"v_add_u32 v{HT}, s38, v15")
    flag_poll(e, HT, HT + 2)
    e("s_lshl_b32 s43, s43, 3")
    e("s_and_b32 s38, s28, 7")
    e("s_add_u32 s43, s43, s38")
    e("s_lshl_b32 s38, s43, 14")
    e(f"s_add_u32 s38, s38, {WS_PART}")
    for p in range(16):
        if p and p % 4 == 0: e("s_add_u32 s38, s38, 4096")
        e(f"buffer_load_dwordx4 {vr(HP+4*p,4)}, v10, s[24:27], s38 offen offset:{(p&3)*1024} sc1")
    e("s_waitcnt vmcnt(0)")
    for st in (32, 16, 8, 4):
        for i in range(0, st, 2): e(f"v_pk_add_f32 {vr(HP+i,2)}, {vr(HP+i,2)}, {vr(HP+st+i,2)}")
    e(f"v_permlane32_swap_b32 v{HP}, v{HP+2}")
    e(f"v_permlane32_swap_b32 v{HP+1}, v{HP+3}")
    e(f"v_pk_add_f32 {vr(HP,2)}, {vr(HP,2)}, {vr(HP+2,2)}")
    e(f"v_cvt_pk_bf16_f32 v{HP}, v{HP}, v{HP+1}")
    e(f"v_lshrrev_b32 v{HT}, 5, v1")
    e(f"v_lshl_add_u32 v{HT}, v{HT}, 2, v15")
    e("s_lshl_b32 s38, s43, 8")
    e(f"s_add_u32 s38, s38, {WS_KVF}")
    e(f"buffer_store_dword v{HP}, v{HT}, s[24:27], s38 offen sc1")
    e("s_lshl_b32 s38, s43, 3")
    e(f"s_add_u32 s38, s38, {F3P}")
    e("s_waitcnt vmcnt(0)")
    flag_store(e, "s38", HT)
    e.label("L_nored")
    e.extend(stamp(2))
    e("s_add_u32 s45, s45, s30")
    e("s_lshl_b32 s38, s45, 6")
    e(f"s_add_u32 s38, s38, {F3P}")
    e(f"v_and_b32 v{HT}, 7, v1")
    e(f"v_lshlrev_b32 v{HT}, 3, v{HT}")
    e(f"v_add_u32 v{HT}, s38, v{HT}")
    e("s_lshl_b32 s38, s28, 4")
    e(f"s_add_u32 s38, s38, {FG}")
    e(f"v_and_b32 v{HT+1}, 1, v1")
    e(f"v_lshlrev_b32 v{HT+1}, 3, v{HT+1}")
    e(f"v_add_u32 v{HT+1}, s38, v{HT+1}")
    e("v_cmp_gt_u32 vcc, 32, v1")
    e(f"v_cndmask_b32 v{HT}, v{HT+1}, v{HT}, vcc")
    flag_poll(e, HT, HT + 2)
    e(f"v_lshlrev_b32 v{HT}, 3, v1")
    e("s_lshl_b32 s38, s45, 11")
    e(f"s_add_u32 s38, s38, {WS_KVF}")
    for q in range(4):
        e(f"buffer_load_dwordx2 {vr(HK+2*q,2)}, v{HT}, s[24:27], s38 offen offset:{q*512} sc1")
    e(f"v_and_b32 v{HT}, 31, v1")
    e(f"v_lshlrev_b32 v{HT}, 2, v{HT}")
    e("s_lshl_b32 s38, s28, 8")
    e(f"s_add_u32 s38, s38, {WS_GATE}")
    e(f"buffer_load_dword v{HG}, v{HT}, s[24:27], s38 offen sc1")
    e(f"buffer_load_dword v{HG+1}, v{HT}, s[24:27], s38 offen offset:128 sc1")
    e(f"v_add_u32 v{HT}, {C_GATE}, v{HT}")
    e("s_waitcnt vmcnt(0) lgkmcnt(0)")
    for u in range(2): e(mfma(HD + 16 * u, HK, HQ + 8 * u, None))
    for u in range(2): e(mfma(HD + 16 * u, HK + 4, HQ + 8 * u + 4, HD + 16 * u))
    e(f"ds_write_b32 v{HT}, v{HG}")
    e(f"ds_write_b32 v{HT}, v{HG+1} offset:128")
    e("s_waitcnt lgkmcnt(0)")
    lds_add(e, C_GOK, HT)
    e("s_lshl_b32 s38, s28, 7")
    e("s_add_u32 s38, s38, s45")
    e("s_lshl_b32 s38, s38, 10")
    e(f"s_add_u32 s38, s38, {WS_OC}")
    for u in range(2):
        D = HD + 16 * u
        e(f"v_add_f32 v{HT}, {fbits(1e-6)}, v{D+8}")
        e(f"v_rcp_f32 v{HT}, v{HT}")
        e(f"v_mul_f32 v{HT}, v{HT}, v{HG+u}")
        for i in range(0, 8, 2): e(f"v_pk_mul_f32 {vr(D+i,2)}, {vr(D+i,2)}, {vr(HT,2)} op_sel_hi:[1,0]")
        for q in range(4): e(f"v_cvt_pk_bf16_f32 v{D+q}, v{D+2*q}, v{D+2*q+1}")
        e(f"buffer_store_dwordx4 {vr(D,4)}, v10, s[24:27], s38 offen sc1")
        if u == 0: e("s_add_u32 s38, s38, 65536")
    e("s_lshl_b32 s38, s28, 5")
    e("s_add_u32 s38, s38, s45")
    e("s_lshl_b32 s38, s38, 3")
    e(f"s_add_u32 s38, s38, {F4}")
    e("s_waitcnt vmcnt(0)")
    flag_store(e, "s38", HT)
    e.extend(stamp(3))
    ACC = [16, 32]; WFR = [48, 56]; OF = 64; PT = 128
    e("s_and_b32 s46, s30, 1")
    e("s_lshr_b32 s47, s30, 1")
    srd(e, 4, 54, 512*512*2)
    srd(e, 8, 64, 512*512*2)
    srd(e, 12, 68, 2048*512*2)
    e("v_lshrrev_b32 v11, 3, v1")
    e("v_and_b32 v12, 7, v1")
    e("v_bfe_u32 v13, v1, 4, 1")
    e("v_lshlrev_b32 v13, 2, v13")
    e("v_xor_b32 v12, v12, v13")
    e("v_lshlrev_b32 v12, 4, v12")
    e("v_lshl_add_u32 v2, v11, 10, v12")
    for k in range(1, 4): e(f"v_add_u32 v{2+k}, {k*7168}, v2")
    e("v_lshrrev_b32 v11, 5, v1")
    e("v_bfe_u32 v12, v1, 2, 2")
    e("v_lshl_add_u32 v6, v11, 2, v12")
    e("v_lshlrev_b32 v6, 7, v6")
    e("v_lshrrev_b32 v12, 1, v12")
    e("v_xor_b32 v12, s47, v12")
    e("v_lshl_add_u32 v6, v12, 6, v6")
    e("v_bfe_u32 v12, v1, 4, 1")
    e("v_lshl_add_u32 v6, v12, 5, v6")
    e("v_and_b32 v12, 3, v1")
    e("v_lshl_add_u32 v6, v12, 3, v6")
    e("s_lshl_b32 s38, s47, 15")
    e("v_add_u32 v6, s38, v6")
    e("v_xor_b32 v7, 64, v6")
    e("s_lshl_b32 s44, s28, 1")
    e("s_add_u32 s44, s44, s46")
    e("s_lshl_b32 s43, s44, 16")
    e("s_lshl_b32 s38, s47, 14")
    e("s_add_u32 s43, s43, s38")
    e(f"s_add_u32 s43, s43, {WS_OC}")
    def wdma(sd):
        e("s_lshl_b32 s38, s30, 17")
        e("s_lshl_b32 s39, s29, 7")
        e("s_add_u32 s38, s38, s39")
        e("s_lshl_b32 s39, s30, 14")
        for g in range(4):
            e("s_mov_b32 m0, s39")
            for k in range(4):
                e(f"buffer_load_dwordx4 v{2+k}, s[{sd}:{sd+3}], s38 offen offset:{k*1024} lds")
            if g < 3:
                e("s_add_u32 s38, s38, 32768")
                e("s_add_u32 s39, s39, 4096")
    def oload(base_add):
        e(f"s_add_u32 s38, s43, {base_add}")
        for t in range(16):
            if t and t % 4 == 0: e("s_add_u32 s38, s38, 4096")
            e(f"buffer_load_dwordx4 {vr(OF+4*t,4)}, v10, s[24:27], s38 offen offset:{(t&3)*1024} sc1")
    def rd(t, buf):
        return [f"ds_read_b64_tr_b16 {vr(WFR[buf]+4*nt+2*u,2)}, v{6+nt} offset:{(16*t+8*u)*128}" for nt in range(2) for u in range(2)]
    def gemm(first):
        for t in range(16):
            if t < 15:
                e.extend(rd(t + 1, (t + 1) & 1)); e("s_waitcnt lgkmcnt(4)")
            else:
                e("s_waitcnt lgkmcnt(0)")
            for nt in range(2):
                e(mfma(ACC[nt], WFR[t & 1] + 4 * nt, OF + 4 * t, None if (first and t == 0) else ACC[nt]))
    lds_wait(e, C_PROG, 8, PT, sleep=16)
    wdma(4)
    e("s_waitcnt vmcnt(0)")
    lds_add(e, C_HS, PT)
    e("s_lshl_b32 s38, s28, 8")
    e("s_lshl_b32 s39, s47, 7")
    e("s_add_u32 s38, s38, s39")
    e(f"s_add_u32 s38, s38, {F4}")
    e(f"v_and_b32 v{PT}, 15, v1")
    e(f"v_lshlrev_b32 v{PT}, 3, v{PT}")
    e(f"v_add_u32 v{PT}, s38, v{PT}")
    flag_poll(e, PT, PT + 2)
    oload(0)
    lds_wait(e, C_HS, 4, PT)
    e.extend(rd(0, 0))
    e("s_waitcnt vmcnt(0)")
    gemm(True)
    lds_add(e, C_HS, PT)
    lds_wait(e, C_HS, 8, PT)
    wdma(8)
    e("s_waitcnt vmcnt(0)")
    e.extend(stamp(4))
    e("s_barrier")
    e.extend(stamp(5))
    e.extend(rd(0, 0))
    e("s_mov_b32 s77, 0")
    e.label("L_opoll")
    oload(32768)
    e("s_add_u32 s77, s77, 1")
    e("s_waitcnt vmcnt(0)")
    e(f"v_max3_u32 v{PT}, v{OF}, v{OF+1}, v{OF+2}")
    e(f"v_max3_u32 v{PT+1}, v{OF+3}, v{OF+4}, v{OF+5}")
    for i in range(6, 62, 4):
        e(f"v_max3_u32 v{PT}, v{PT}, v{OF+i}, v{OF+i+1}")
        e(f"v_max3_u32 v{PT+1}, v{PT+1}, v{OF+i+2}, v{OF+i+3}")
    e(f"v_max3_u32 v{PT}, v{PT}, v{OF+62}, v{OF+63}")
    e(f"v_max_u32 v{PT}, v{PT}, v{PT+1}")
    e(f"v_cmp_eq_u32 vcc, -1, v{PT}")
    e("s_cbranch_vccz L_oready")
    e(f"s_cmp_lt_u32 s77, {OPT['spin']}")
    e("s_cbranch_scc1 L_opoll")
    e.label("L_oready")
    gemm(False)
    e(f"v_add_u32 v2, s40, v10")
    e(f"v_add_u32 v2, {PHQ}, v2")
    e("v_xor_b32 v3, 0x2000, v2")
    e("v_and_b32 v4, 31, v1")
    e("v_lshlrev_b32 v4, 10, v4")
    e("v_lshrrev_b32 v5, 5, v1")
    e("v_lshl_add_u32 v4, v5, 4, v4")
    e("s_lshl_b32 s38, s44, 15")
    e("s_lshl_b32 s39, s29, 7")
    e("s_add_u32 s38, s38, s39")
    e("s_lshl_b32 s39, s47, 6")
    e("s_add_u32 s38, s38, s39")
    for q in range(4): e(f"ds_write_b128 v2, {vr(ACC[1]+4*q,4)} offset:{q*1024}")
    e("s_waitcnt lgkmcnt(0)")
    e("s_barrier")
    for q in range(4): e(f"ds_read_b128 {vr(OF+4*q,4)}, v3 offset:{q*1024}")
    e("s_waitcnt lgkmcnt(0)")
    A = ACC[0]
    for i in range(0, 16, 2): e(f"v_pk_add_f32 {vr(A+i,2)}, {vr(A+i,2)}, {vr(OF+i,2)}")
    for q in range(8): e(f"v_cvt_pk_bf16_f32 v{A+q}, v{A+2*q}, v{A+2*q+1}")
    for pr in range(2):
        e(f"v_permlane32_swap_b32 v{A+4*pr}, v{A+4*pr+2}")
        e(f"v_permlane32_swap_b32 v{A+4*pr+1}, v{A+4*pr+3}")
    for pr in range(2):
        e(f"buffer_store_dwordx4 {vr(A+4*pr,4)}, v4, s[12:15], s38 offen offset:{pr*32}")
    stamp_end(e, 64)
    e.label("L_done")
    e("s_endpgm")

    e.label("L_compute")
    ACC = 96; EACC = 128; WF = 144; I0 = 148; ONE = 156
    e("s_and_b32 s44, s30, 3")
    e("s_lshr_b32 s40, s30, 2")
    e("s_lshl_b32 s45, s29, 2")
    e("s_add_u32 s45, s45, s44")
    e("s_lshl_b32 s47, s28, 1")
    e("s_xor_b32 s46, s40, 1")
    e("s_add_u32 s47, s47, s46")
    e("s_lshl_b32 s43, s47, 6")
    e("s_add_u32 s43, s43, s45")
    e("s_lshl_b32 s43, s43, 10")
    e(f"s_add_u32 s43, s43, {WS_OC+32*1024}")
    e("v_and_b32 v11, 31, v1")
    e("v_lshrrev_b32 v22, 5, v1")
    e("v_bfe_u32 v23, v1, 1, 3")
    e("v_xor_b32 v23, v23, v22")
    e("v_lshlrev_b32 v23, 4, v23")
    e("v_lshl_add_u32 v12, v11, 7, v23")
    e(f"v_add_u32 v12, {XT}, v12")
    for t in range(1, 4): e(f"v_xor_b32 v{12+t}, {32*t}, v12")
    for i in range(4): e(f"v_mov_b32 v{4+i}, -1")
    e("s_waitcnt lgkmcnt(0)")
    srd(e, 24, 72, WS_SIZE)
    e("buffer_store_dwordx4 v[4:7], v10, s[24:27], s43 offen sc1")
    e("v_bfe_u32 v23, v1, 2, 2")
    e("v_lshl_add_u32 v20, v22, 3, v23")
    e("v_lshlrev_b32 v20, 7, v20")
    e("v_bfe_u32 v23, v1, 3, 2")
    e("v_xor_b32 v23, s44, v23")
    e("v_lshl_add_u32 v20, v23, 5, v20")
    e("v_bfe_u32 v24, v1, 4, 1")
    e("v_lshl_add_u32 v20, v24, 13, v20")
    e("v_and_b32 v23, 3, v1")
    e("v_lshl_add_u32 v20, v23, 3, v20")
    e("v_and_b32 v23, 15, v1")
    e("v_lshlrev_b32 v23, 3, v23")
    e("v_lshl_add_u32 v25, v22, 7, v23")
    e("s_lshl_b32 s38, s44, 9")
    e(f"s_add_u32 s38, s38, {WPH}")
    e("v_add_u32 v25, s38, v25")
    e("v_lshl_add_u32 v26, v22, 8, v23")
    e(f"v_add_u32 v26, {EXT}, v26")
    e("v_lshlrev_b32 v27, 4, v22")
    e(f"v_add_u32 v27, {EXT}, v27")
    e(f"s_mov_b32 s74, {fbits(LOG2E)}")
    e(f"s_mov_b32 s75, {fbits(-LOG2E)}")
    e(f"s_mov_b32 s76, {fbits(0.25*LOG2E)}")
    e("v_lshlrev_b32 v22, 2, v22")
    e("v_sub_u32 v11, v11, v22")
    e("v_mov_b32 v22, 0x3f80")
    e("v_mov_b32 v23, 0x3f800000")
    for sgn in range(2):
        for q in range(4):
            f0 = 16 * sgn + (2 * q if q < 2 else 8 + 2 * (q - 2))
            e(f"v_cmp_eq_u32 vcc, {f0}, v11")
            e(f"v_cmp_eq_u32 s[38:39], {f0+1}, v11")
            e(f"v_cndmask_b32 v{I0+4*sgn+q}, 0, v22, vcc")
            e(f"v_cndmask_b32 v{I0+4*sgn+q}, v{I0+4*sgn+q}, v23, s[38:39]")
    e(f"v_mul_u32_u24 v{ONE}, 0x3f8, v24")
    e(f"v_lshlrev_b32 v{ONE}, 20, v{ONE}")
    e("s_lshl_b32 s38, s44, 11")
    e(f"s_add_u32 s38, s38, {HND}")
    e("v_add_u32 v28, s38, v10")
    e("s_lshl_b32 s38, s44, 1")
    e("s_add_u32 s38, s38, s46")
    e("s_lshl_b32 s38, s38, 11")
    e(f"s_add_u32 s38, s38, {PHQ}")
    e("v_add_u32 v29, s38, v10")
    F0, F1r = 32, 56
    def reads(F, g, tp):
        l = []; p = g % 8; so = (g % 4) * 16384
        for tt in range(2):
            t = 2 * tp + tt; b = F + 12 * tt
            l.append(f"ds_read_b128 {vr(b,4)}, v{12+t} offset:{p*8192}")
            for u in range(2):
                l.append(f"ds_read_b64_tr_b16 {vr(b+8+2*u,2)}, v20 offset:{so+(16*t+4*u)*128}")
            l.append(f"ds_read_b128 {vr(b+4,4)}, v{12+t} offset:{p*8192+4096}")
        return l
    def mfmas(F, first):
        l = []
        for tt in range(2):
            b = F + 12 * tt; z = first and tt == 0
            l.append(mfma(ACC, b + 8, b, None if z else ACC))
            l.append(mfma(ACC + 16, b + 8, b + 4, None if z else ACC + 16))
        return l
    def gpass(g0, lastbar):
        e.extend(reads(F0, g0, 0))
        for u in range(2): e(f"ds_read_b64_tr_b16 {vr(WF+2*u,2)}, v25 offset:{u*256}")
        for c in range(8):
            e("s_waitcnt lgkmcnt(0)")
            e.extend(spread(mfmas(F0, c == 0), reads(F1r, g0 + c, 1)))
            e("s_waitcnt vmcnt(0) lgkmcnt(0)" if c == 6 else "s_waitcnt lgkmcnt(0)")
            if c < 7:
                e("s_barrier")
                e.extend(spread(mfmas(F1r, False), reads(F0, g0 + c + 1, 0)))
        if lastbar: e("s_barrier")
        e.extend(mfmas(F1r, False))
    PU = [32, 48]; PH = [64, 72]; TM = [80, 84]; VFR = [88, 92]
    e("s_cmp_lg_u32 s40, 0")
    e("s_cbranch_scc1 L_qwave")
    e("s_cmp_lg_u32 s30, 0")
    e("s_cbranch_scc1 L_noinit")
    e(f"v_mov_b32 v22, {MISC}")
    for i in range(4): e(f"v_mov_b32 v{32+i}, 0")
    e("ds_write_b128 v22, v[32:35]")
    e("s_waitcnt lgkmcnt(0)")
    e.label("L_noinit")
    for i in range(5): e("s_barrier")
    e.extend(stamp(0))
    gpass(0, True)
    e.extend(stamp(1))
    k = []
    for u in range(2):
        for q in range(4): k.append(f"v_cvt_pk_bf16_f32 v{PH[u]+q}, v{ACC+16*u+2*q}, v{ACC+16*u+2*q+1}")
    for u in range(2): k.append(mfma(PU[u], WF, PH[u], None))
    for u in range(2):
        a = ACC + 16 * u
        for q in range(4): k.append(f"v_cvt_pk_bf16_f32 v{VFR[u]+q}, v{a+8+2*q}, v{a+8+2*q+1}")
        for i in range(16): k.append(f"v_mov_b32 v{a+i}, v{ONE}")
    for u in range(2): k.append(mfma(ACC + 16 * u, VFR[u], I0, ACC + 16 * u))
    k += interleave(*[phi_unit(PU[u], TM[u], PH[u]) for u in range(2)])
    for u in range(2): k.append(mfma(PU[u], PH[u], I0, None))
    for u in range(2): k.append(mfma(PU[u], PH[u] + 4, I0 + 4, PU[u]))
    for u in range(2):
        a = ACC + 16 * u
        for q in range(8): k.append(f"v_cvt_pk_bf16_f32 v{a+q}, v{a+2*q}, v{a+2*q+1}")
    for u in range(2):
        for q in range(8): k.append(f"v_cvt_pk_bf16_f32 v{PH[u]+q}, v{PU[u]+2*q}, v{PU[u]+2*q+1}")
    D3 = EACC
    for u in range(2):
        k.append(mfma(D3, PH[u], ACC + 16 * u, None if u == 0 else D3))
        k.append(mfma(D3, PH[u] + 4, ACC + 16 * u + 4, D3))
    k += ["v_and_b32 v11, 31, v1", "v_lshlrev_b32 v11, 4, v11", "v_lshrrev_b32 v22, 5, v1", "v_lshl_add_u32 v11, v22, 14, v11",
          "s_lshl_b32 s38, s45, 17", "s_lshl_b32 s39, s28, 9", "s_add_u32 s38, s38, s39", f"s_add_u32 s38, s38, {WS_PART}"]
    for q in range(4):
        k.append(f"buffer_store_dwordx4 {vr(D3+4*q,4)}, v11, s[24:27], s38 offen sc1")
        if q < 3: k.append("s_add_u32 s38, s38, 32768")
    cost = lambda x: 32 if "mfma" in x else (8 if ("v_exp" in x or "v_rcp" in x) else 4)
    tot = sum(cost(x) for x in k); acc = 0; nb = 0
    NSEG = OPT.get("kseg", 7)
    for x in k:
        if nb < 7 and acc >= tot * (nb + 1) // NSEG:
            e("s_barrier"); nb += 1
        e(x); acc += cost(x)
    while nb < 7:
        e("s_barrier"); nb += 1
    get_nonce(e, 22)
    e.extend(stamp(2))
    e("s_barrier")
    e("ds_read_b128 v[64:67], v28")
    e("ds_read_b128 v[4:7], v28 offset:1024")
    e("s_waitcnt lgkmcnt(0)")
    e("s_branch L_phiq")
    e.label("L_qwave")
    e("s_mov_b32 s41, 0")
    e("s_cmp_eq_u32 s30, 7")
    e("s_cbranch_scc1 L_nonce")
    e("s_cmp_gt_u32 s30, 5")
    e("s_cbranch_scc1 L_qidle")
    e("s_cmp_gt_u32 s29, 2")
    e("s_cbranch_scc1 L_qidle")
    e("s_lshl_b32 s38, s44, 12")
    for t in range(4): e(f"v_add_u32 v{16+t}, s38, v{12+t}")
    e("s_lshl_b32 s42, s28, 1")
    e("s_add_u32 s42, s42, s44")
    e("s_cmp_eq_u32 s29, 2")
    e("s_cbranch_scc1 L_qgate")
    def extloop(gate):
        for p in range(8):
            if p % 2 == 0: e("s_barrier")
            e(f"s_lshl_b32 s38, s31, {7 if gate else 11}")
            e(f"v_add_u32 v21, s38, v{27 if gate else 26}")
            e("s_add_u32 s31, s31, 1")
            e("s_and_b32 s31, s31, 7")
            B = 32 + 32 * (p & 1)
            for t in range(4):
                e(f"ds_read_b128 {vr(B+8*t,4)}, v{16+t} offset:{p*8192}")
                if gate: e(f"ds_read_b128 {vr(B+8*t+4,4)}, v21 offset:{t*32}")
                else:
                    for u in range(2): e(f"ds_read_b64_tr_b16 {vr(B+8*t+4+2*u,2)}, v21 offset:{t*512+u*128}")
            if p % 2 == 1:
                n = 8 if gate else 12
                e(f"s_waitcnt lgkmcnt({n})")
                for t in range(4): e(mfma(EACC, 32 + 8 * t + 4, 32 + 8 * t, None if (p == 1 and t == 0) else EACC))
                e("s_waitcnt lgkmcnt(0)")
                for t in range(4): e(mfma(EACC, 64 + 8 * t + 4, 64 + 8 * t, EACC))
        e("s_barrier")
    extloop(False)
    for q in range(4): e(f"v_cvt_pk_bf16_f32 v{EACC+q}, v{EACC+2*q}, v{EACC+2*q+1}")
    e("s_lshl_b32 s38, s42, 11")
    e("s_lshl_b32 s41, s44, 1")
    e("s_add_u32 s41, s41, s29")
    e("s_lshl_b32 s41, s41, 5")
    e("s_add_u32 s41, s41, s28")
    e("s_lshl_b32 s41, s41, 3")
    e(f"s_add_u32 s41, s41, {F1}")
    e("s_cmp_eq_u32 s29, 1")
    e("s_cbranch_scc1 L_qv")
    e(f"buffer_store_dwordx4 {vr(EACC,4)}, v10, s[24:27], s38 offen sc1")
    e("s_branch L_q5")
    e.label("L_qv")
    e("s_nop 1")
    e(mfma(32, EACC, I0, None))
    e("v_lshrrev_b32 v11, 5, v1")
    e("v_and_b32 v22, 15, v1")
    e("v_lshlrev_b32 v22, 4, v22")
    e("v_lshl_add_u32 v22, v11, 8, v22")
    for q in range(8): e(f"v_cvt_pk_bf16_f32 v{EACC+8+q}, v{32+2*q}, v{32+2*q+1}")
    e("s_mov_b32 exec_lo, 0xffff")
    e("s_mov_b32 exec_hi, 0xffff")
    e(f"buffer_store_dwordx4 {vr(EACC+8,4)}, v22, s[24:27], s38 offen offset:1024 sc1")
    e(f"buffer_store_dwordx4 {vr(EACC+12,4)}, v22, s[24:27], s38 offen offset:1536 sc1")
    e("s_mov_b64 exec, -1")
    e("s_branch L_q5")
    e.label("L_qgate")
    extloop(True)
    e(f"v_cvt_pk_bf16_f32 v11, v{EACC}, v{EACC}")
    e("v_and_b32 v11, 0xffff0000, v11")
    e("v_mul_f32 v11, s75, v11")
    e("v_exp_f32 v11, v11")
    e("v_add_f32 v11, 1.0, v11")
    e("v_rcp_f32 v11, v11")
    e("v_cvt_pk_bf16_f32 v11, v11, v11")
    e("v_and_b32 v11, 0xffff0000, v11")
    e("v_lshlrev_b32 v22, 2, v1")
    e("s_lshl_b32 s38, s42, 7")
    e(f"s_add_u32 s38, s38, {WS_GATE}")
    e("s_lshl_b32 s41, s42, 3")
    e(f"s_add_u32 s41, s41, {FG}")
    e("s_mov_b32 exec_hi, 0")
    e("buffer_store_dword v11, v22, s[24:27], s38 offen sc1")
    e("s_mov_b64 exec, -1")
    e("s_branch L_q5")
    e.label("L_nonce")
    srd(e, 20, 70, 256)
    e("v_mov_b32 v22, 0")
    e("s_cmp_ge_u32 s2, 8")
    e("s_cbranch_scc1 L_nonce2")
    e("s_memrealtime s[38:39]")
    e("v_mov_b32 v34, 0")
    e("v_mov_b32 v35, 0")
    e("s_waitcnt lgkmcnt(0)")
    e("s_or_b32 s38, s38, 1")
    e("v_mov_b32 v32, s38")
    e("v_mov_b32 v33, s39")
    e("s_mov_b64 exec, 1")
    e("buffer_atomic_cmpswap_x2 v[32:35], v22, s[20:23], 0 offen sc1")
    e("s_mov_b64 exec, -1")
    e.label("L_nonce2")
    e("s_barrier")
    e("buffer_load_dwordx2 v[36:37], v22, s[20:23], 0 offen sc1")
    for i in range(3): e("s_barrier")
    e("s_mov_b32 s77, 0")
    e.label("L_nonce3")
    e("s_waitcnt vmcnt(0)")
    e("v_cmp_eq_u32 vcc, 0, v36")
    e("s_cbranch_vccz L_nonce4")
    e("buffer_load_dwordx2 v[36:37], v22, s[20:23], 0 offen sc1")
    e("s_add_u32 s77, s77, 1")
    e(f"s_cmp_lt_u32 s77, {OPT['spin']}")
    e("s_cbranch_scc1 L_nonce3")
    e("s_waitcnt vmcnt(0)")
    e.label("L_nonce4")
    e(f"v_mov_b32 v22, {C_NONCE}")
    e("ds_write_b64 v22, v[36:37]")
    e("s_waitcnt lgkmcnt(0)")
    e("s_barrier")
    e("s_branch L_q5")
    e.label("L_qidle")
    for i in range(5): e("s_barrier")
    e.label("L_q5")
    FLAT = OPT.get("flat", 9)
    for i in range(5, 13):
        e("s_barrier")
        if i == FLAT:
            e("s_cmp_eq_u32 s41, 0")
            e("s_cbranch_scc1 L_noflag")
            get_nonce(e, 22)
            e("s_waitcnt vmcnt(0)")
            flag_store(e, "s41", 22)
            e.label("L_noflag")
    e.extend(stamp(0))
    gpass(8, False)
    e.extend(stamp(1))
    for u in (1, 0):
        a = ACC + 16 * u
        for q in range(4): e(f"v_cvt_pk_bf16_f32 v{PH[u]+q}, v{a+2*q}, v{a+2*q+1}")
        for i in range(8, 16, 2): e(f"v_pk_mul_f32 {vr(a+i,2)}, {vr(a+i,2)}, s[76:77] op_sel_hi:[1,0]")
        d = 76 if u else 4
        for q in range(4): e(f"v_cvt_pk_bf16_f32 v{d+q}, v{a+8+2*q}, v{a+8+2*q+1}")
        if u:
            e("ds_write_b128 v28, v[72:75]")
            e("ds_write_b128 v28, v[76:79] offset:1024")
    e("s_waitcnt lgkmcnt(0)")
    e.extend(stamp(2))
    e("s_barrier")
    e.label("L_phiq")
    Q = 4; NM = 8; O = 24; S = [40, 56]; PK = 72; KF = [80, 84]; VF = [88, 96]; AK = 2; AV = 3; T = 106
    e("s_nop 1")
    e(mfma(32, WF, 64, None))
    e(f"v_mov_b32 v{AK}, v10")
    e(f"v_lshrrev_b32 v{T}, 5, v1")
    e(f"v_and_b32 v{AV}, 15, v1")
    e(f"v_lshlrev_b32 v{AV}, 4, v{AV}")
    e(f"v_lshl_add_u32 v{AV}, v{T}, 8, v{AV}")
    e(f"v_add_u32 v{AV}, 1024, v{AV}")
    e(f"v_and_b32 v{T}, 27, v1")
    e(f"v_mov_b32 v{T+1}, 0x3f803f80")
    e(f"v_cmp_eq_u32 vcc, 16, v{T}")
    e(f"v_cndmask_b32 v{VF[0]}, 0, v{T+1}, vcc")
    for i in range(1, 16): e(f"v_mov_b32 v{VF[0]+i}, v{VF[0]}")
    e.extend(phi_unit(32, 80, 64))
    e("ds_write_b128 v29, v[64:67]")
    e("ds_write_b128 v29, v[68:71] offset:1024")
    e("s_mov_b32 s20, 0xffff")
    e("s_mov_b32 s21, 0xffff")
    U = 4; NIT = 16
    SEG = OPT.get("seg", (2, 8, 14, 16))
    e(f"s_mov_b32 s22, {SEG[0]}")
    e("s_mov_b32 s23, 0")
    e("s_waitcnt lgkmcnt(0)")
    e("s_barrier")
    e.extend(stamp(3))
    e("s_setprio 2")
    e(f"ds_read_b128 {vr(KF[0],4)}, v{AK}")
    e(f"ds_read_b128 {vr(KF[1],4)}, v{AK} offset:2048")
    e("s_mov_b64 exec, s[20:21]")
    e(f"ds_read_b128 {vr(VF[0],4)}, v{AV}")
    e(f"ds_read_b128 {vr(VF[0]+4,4)}, v{AV} offset:512")
    e("s_mov_b64 exec, -1")
    for i in range(16): e(f"v_mov_b32 v{O+i}, 0")
    for i in range(4): e(f"v_mov_b32 v{PK+4+i}, 0")
    e("s_waitcnt lgkmcnt(0)")
    e(mfma(S[0], KF[0], Q, None))
    e(mfma(S[1], KF[1], Q, None))
    e(f"v_max3_f32 v{T}, v{S[0]}, v{S[0]+1}, v{S[0]+2}")
    rest = list(range(S[0] + 3, S[0] + 32))
    while len(rest) >= 2:
        e(f"v_max3_f32 v{T}, v{T}, v{rest[0]}, v{rest[1]}"); rest = rest[2:]
    if rest: e(f"v_max_f32 v{T}, v{T}, v{rest[0]}")
    def setnm():
        e(f"v_mov_b32 v{T+1}, v{T}")
        e(f"v_permlane32_swap_b32 v{T}, v{T+1}")
        e(f"v_max_f32 v{T}, v{T}, v{T+1}")
        for i in range(16): e(f"v_sub_f32 v{NM+i}, 0, v{T}")
    setnm()
    e(mfma(S[0], KF[0], Q, NM))
    e("s_nop 7"); e("s_nop 1")
    body = Emitter()
    ex = lambda i: f"v_exp_f32 v{i}, v{i}"
    for j in range(U):
        a = j & 1; b = a ^ 1; Sa = S[a]
        cv = lambda q: f"v_cvt_pk_bf16_f32 v{PK+q}, v{Sa+2*q}, v{Sa+2*q+1}"
        body(mfma(S[b], KF[b], Q, NM))
        body(f"ds_read_b128 {vr(KF[a],4)}, v{AK} offset:{(j+2)*2048}")
        for i in range(7): body(ex(Sa + i))
        body(mfma(O, VF[b] + 4, PK + 4, O))
        body("s_mov_b64 exec, s[20:21]")
        body(f"ds_read_b128 {vr(VF[b],4)}, v{AV} offset:{(j+1)*2048}")
        body(f"ds_read_b128 {vr(VF[b]+4,4)}, v{AV} offset:{(j+1)*2048+512}")
        body("s_mov_b64 exec, -1")
        body(ex(Sa + 7)); body(ex(Sa + 8))
        for q in range(4): body(cv(q))
        body(ex(Sa + 9)); body(ex(Sa + 10))
        body("s_waitcnt lgkmcnt(3)")
        body(mfma(O, VF[a], PK, O))
        for i in range(11, 16): body(ex(Sa + i))
        if j == U - 1:
            body(f"v_add_u32 v{AK}, {U*2048}, v{AK}")
            body(f"v_add_u32 v{AV}, {U*2048}, v{AV}")
            body("s_add_u32 s23, s23, 1")
            body("s_cmp_lt_u32 s23, s22")
        for q in range(4, 8): body(cv(q))
        body("s_waitcnt lgkmcnt(2)")
    rep = []
    fix_hazards(body.lines, pre=body.lines, report=rep)
    assert not rep, rep
    e(".p2align 6")
    e.label("L_loop")
    e.extend(body.lines)
    e("s_cbranch_scc1 L_loop")
    e(f"s_cmp_eq_u32 s22, {SEG[1]}")
    e("s_cbranch_scc1 L_seg1")
    e(f"s_cmp_eq_u32 s22, {SEG[2]}")
    e("s_cbranch_scc1 L_seg2")
    e(f"s_cmp_eq_u32 s22, {SEG[0]}")
    e("s_cbranch_scc1 L_seg0")
    e(mfma(O, VF[1] + 4, PK + 4, O))
    e.extend(stamp(4))
    lds_wait(e, C_GOK, 1, T)
    e("s_lshl_b32 s38, s46, 7")
    e(f"s_add_u32 s38, s38, {C_GATE}")
    e(f"v_and_b32 v{T}, 31, v1")
    e(f"v_lshl_add_u32 v{T}, v{T}, 2, s38")
    e(f"ds_read_b32 v{T+2}, v{T}")
    e(f"v_mov_b32 v{T+1}, 0x207")
    e(f"s_mov_b32 s38, {fbits(2.0**120)}")
    e(f"v_cmp_ngt_f32 s[36:37], s38, v{O+8}")
    for i in range(8):
        e(f"v_cmp_class_f32 vcc, v{O+i}, v{T+1}")
        e("s_or_b64 s[36:37], s[36:37], vcc")
    e("s_cbranch_scc1 L_fallback")
    e.label("L_fin")
    e(f"v_rcp_f32 v{T}, v{O+8}")
    e("s_waitcnt lgkmcnt(0)")
    e(f"v_sub_f32 v{T+2}, 1.0, v{T+2}")
    e(f"v_cvt_pk_bf16_f32 v{T+2}, v{T+2}, v{T+2}")
    e(f"v_and_b32 v{T+2}, 0xffff0000, v{T+2}")
    e(f"v_mul_f32 v{T}, v{T}, v{T+2}")
    for i in range(0, 8, 2): e(f"v_pk_mul_f32 {vr(O+i,2)}, {vr(O+i,2)}, {vr(T,2)} op_sel_hi:[1,0]")
    for q in range(4): e(f"v_cvt_pk_bf16_f32 v{O+q}, v{O+2*q}, v{O+2*q+1}")
    e(f"v_lshlrev_b32 v{AK}, 4, v1")
    e(f"buffer_store_dwordx4 {vr(O,4)}, v{AK}, s[24:27], s43 offen sc1")
    e.extend(stamp(5))
    stamp_end(e, 40)
    e("s_endpgm")
    e.label("L_seg0")
    e(f"s_mov_b32 s22, {SEG[1]}")
    e("s_cmp_lg_u32 s40, 0")
    e("s_cbranch_scc1 L_seg0b")
    e("s_lshl_b32 s38, s45, 5")
    e("s_add_u32 s38, s38, s28")
    e("s_lshl_b32 s38, s38, 3")
    e(f"s_add_u32 s38, s38, {F3}")
    e("s_waitcnt vmcnt(0)")
    flag_store(e, "s38", T)
    e.label("L_seg0b")
    lds_wait(e, C_KVALL, 4, T, sleep=1)
    e("s_branch L_loop")
    e.label("L_seg1")
    e(f"s_mov_b32 s22, {SEG[2]}")
    e("s_setprio 1")
    lds_add(e, C_PROG, T)
    e("s_waitcnt lgkmcnt(0)")
    e("s_branch L_loop")
    e.label("L_seg2")
    e(f"s_mov_b32 s22, {SEG[3]}")
    e("s_setprio 0")
    e("s_branch L_loop")
    e.label("L_fallback")
    e(f"v_lshlrev_b32 v{AK}, 4, v1")
    e(f"v_add_u32 v{AV}, {-64*2048 & 0xffffffff}, v{AV}")
    e(f"v_mov_b32 v{T}, 0xff800000")
    e("s_mov_b32 s38, 0")
    e.label("L_fb1")
    e(f"buffer_load_dwordx4 {vr(KF[0],4)}, v{AK}, s[24:27], s38 offen sc1")
    e("s_add_u32 s38, s38, 2048")
    e("s_waitcnt vmcnt(0)")
    e(mfma(S[0], KF[0], Q, None))
    for i in range(8): e(f"v_max3_f32 v{T}, v{T}, v{S[0]+2*i}, v{S[0]+2*i+1}")
    e("s_cmp_lt_u32 s38, 0x20000")
    e("s_cbranch_scc1 L_fb1")
    setnm()
    for i in range(16): e(f"v_mov_b32 v{O+i}, 0")
    e("s_mov_b32 s38, 0")
    e.label("L_fb2")
    e(f"buffer_load_dwordx4 {vr(KF[0],4)}, v{AK}, s[24:27], s38 offen sc1")
    e("s_mov_b64 exec, s[20:21]")
    e(f"buffer_load_dwordx4 {vr(VF[0],4)}, v{AV}, s[24:27], s38 offen sc1")
    e(f"buffer_load_dwordx4 {vr(VF[0]+4,4)}, v{AV}, s[24:27], s38 offen offset:512 sc1")
    e("s_mov_b64 exec, -1")
    e("s_add_u32 s38, s38, 2048")
    e("s_waitcnt vmcnt(0)")
    e(mfma(S[0], KF[0], Q, NM))
    for i in range(16): e(ex(S[0] + i))
    for q in range(8): e(f"v_cvt_pk_bf16_f32 v{PK+q}, v{S[0]+2*q}, v{S[0]+2*q+1}")
    e(mfma(O, VF[0], PK, O))
    e(mfma(O, VF[0] + 4, PK + 4, O))
    e("s_nop 7")
    e("s_cmp_lt_u32 s38, 0x20000")
    e("s_cbranch_scc1 L_fb2")
    e("s_nop 7"); e("s_nop 7")
    e("s_branch L_fin")
    return fix_hazards(e.lines)

def build():
    hdr = open("cdna_kernels/%s.s.ref" % NAME).read().split("\n")
    hdr = [l for l in hdr if l.startswith(";") and "@launch" not in l]
    out = list(hdr)
    out.append(f"; @launch grid=(256,1,1) block=(768,1,1) lds={LDS_BYTES}")
    out.append('.amdgcn_target "amdgcn-amd-amdhsa--gfx950"')
    out.append(".text")
    k = NAME + "_kernel"
    out += [f".globl {k}", ".p2align 8", f".type {k},@function", f"{k}:"]
    out += gen()
    out.append('.section .rodata,"a"')
    out.append(f""".p2align 6
.amdhsa_kernel {k}
  .amdhsa_next_free_vgpr 160
  .amdhsa_next_free_sgpr {102 if OPT['stamp'] else 80}
  .amdhsa_accum_offset 160
  .amdhsa_group_segment_fixed_size 0
  .amdhsa_kernarg_size 104
  .amdhsa_user_sgpr_count 2
  .amdhsa_user_sgpr_kernarg_segment_ptr 1
  .amdhsa_system_sgpr_workgroup_id_x 1
.end_amdhsa_kernel
""")
    return "\n".join(out) + "\n"

if __name__ == "__main__":
    dst = "f.s"
    for a in sys.argv[1:]:
        k, v = a.split("=")
        if k == "out": dst = v
        elif "," in v: OPT[k] = tuple(int(x) for x in v.split(","))
        else: OPT[k] = int(v)
    open(dst, "w").write(build())
    print("wrote", dst)
```

```python
import sys, math, struct
from asmlib import *

NAME = "gated_mix__linear_kernel_hedgehog__grouped_kv_mqa__prompt"
WS_KVB  = 0x000000
WS_GATE = 0x020000
WS_FL   = 0x024000
F1 = WS_FL; FG = WS_FL + 0x400; F3 = WS_FL + 0x1000; F3P = WS_FL + 0x3000; F4 = WS_FL + 0x4000
WS_EPOCH = WS_FL + 0x800
FP = WS_FL + 0x4000
WS_KVF  = 0x030000
WS_PART = 0x100000
WS_OC   = 0x500000
WS_STAMP = 0x900000
WS_SIZE = 0xB00000
XT = 65536; EXT = 131072; PHQ = 131072; HND = 147456; WPH = 155648; MISC = 157696
LDS_BYTES = 158720
C_KVALL = MISC; C_PROG = MISC + 4; C_HS = MISC + 8; C_GOK = MISC + 12; C_LOC = MISC + 16; C_GATE = MISC + 64

def fbits(x): return "0x%08x" % struct.unpack("<I", struct.pack("<f", x))[0]
LOG2E = math.log2(math.e)
OPT = dict(map=2, rot=1, round_pq=0, stamp=0, spin=1 << 16)

def srd(e, d, lo, nbytes):
    e(f"s_mov_b32 s{d}, s{lo}")
    e(f"s_mov_b32 s{d+1}, s{lo+1}")
    e(f"s_mov_b32 s{d+2}, {hex(nbytes)}")
    e(f"s_mov_b32 s{d+3}, 0x00020000")

def stamp_begin(e):
    if OPT["stamp"]:
        e("s_memrealtime s[92:93]")
        e("s_memtime s[94:95]")
        for k in range(6): e(f"s_mov_b32 s{80+2*k}, 0")
def stamp(k):
    return [f"s_memtime s[{80+2*k}:{81+2*k}]"] if OPT["stamp"] else []
def trace(idx):
    if not OPT.get("trace"): return []
    return ["s_memtime s[96:97]", "s_waitcnt lgkmcnt(0)", "s_sub_u32 s96, s96, s94", f"v_writelane_b32 v159, s96, {idx}"]
def stamp_end(e, vt):
    if OPT.get("trace"):
        e(f"v_lshlrev_b32 v{vt}, 2, v0")
        e("s_mul_i32 s100, s2, 3072")
        e(f"s_add_u32 s100, s100, {WS_STAMP + 0x40000}")
        e(f"buffer_store_dword v159, v{vt}, s[24:27], s100 offen")
    if OPT["stamp"]:
        e("s_waitcnt vmcnt(0)")
        e("s_memrealtime s[96:97]")
        e("s_memtime s[98:99]")
        e("s_waitcnt lgkmcnt(0)")
        for r in (98, 80, 82, 84, 86, 88, 90): e(f"s_sub_u32 s{r}, s{r}, s94")
        e(f"v_lshrrev_b32 v{vt+12}, 6, v0")
        e(f"v_lshlrev_b32 v{vt+12}, 6, v{vt+12}")
        e("s_lshl_b32 s100, s2, 10")
        e(f"s_add_u32 s100, s100, {WS_STAMP}")
        for i, r in enumerate((92, 96, 98, 80, 82, 84, 86, 88, 90, 90, 90, 90)):
            e(f"v_mov_b32 v{vt+i}, s{r}")
        for q in range(3):
            e(f"buffer_store_dwordx4 v[{vt+4*q}:{vt+4*q+3}], v{vt+12}, s[24:27], s100 offen offset:{16*q}")

def phi_unit(P, T, O):
    l = []
    if OPT["round_pq"]:
        for q in range(4): l.append(f"v_cvt_pk_bf16_f32 v{P+8+q}, v{P+2*q}, v{P+2*q+1}")
        for q in range(4):
            l.append(f"v_lshlrev_b32 v{P+2*q}, 16, v{P+8+q}")
            l.append(f"v_and_b32 v{P+2*q+1}, 0xffff0000, v{P+8+q}")
    A = T; B = T + 2
    l += [f"v_max3_f32 v{A}, v{P}, v{P+1}, v{P+2}",
          f"v_max3_f32 v{B}, -v{P}, -v{P+1}, -v{P+2}",
          f"v_max3_f32 v{A}, v{A}, v{P+3}, v{P+4}",
          f"v_max3_f32 v{B}, v{B}, -v{P+3}, -v{P+4}",
          f"v_max3_f32 v{A}, v{A}, v{P+5}, v{P+6}",
          f"v_max3_f32 v{B}, v{B}, -v{P+5}, -v{P+6}",
          f"v_max_f32 v{A}, v{A}, v{P+7}",
          f"v_max_f32_e64 v{B}, v{B}, -v{P+7}",
          f"v_permlane32_swap_b32 v{A}, v{B}",
          f"v_max_f32 v{A}, v{A}, v{B}",
          f"v_mul_f32 v{A}, s75, v{A}",
          f"v_mov_b32 v{B}, v{A}",
          f"v_permlane32_swap_b32 v{A}, v{B}"]
    if OPT.get("pk", 1):
        for i in range(0, 8, 2):
            l.append(f"v_pk_fma_f32 {vr(P+8+i,2)}, {vr(P+i,2)}, s[74:75], {vr(B,2)} op_sel_hi:[1,0,0] neg_lo:[1,0,0] neg_hi:[1,0,0]")
            l.append(f"v_pk_fma_f32 {vr(P+i,2)}, {vr(P+i,2)}, s[74:75], {vr(A,2)} op_sel_hi:[1,0,0]")
    else:
        for i in range(8):
            l.append(f"v_fma_f32 v{P+8+i}, -v{P+i}, s74, v{B}")
            l.append(f"v_fma_f32 v{P+i}, v{P+i}, s74, v{A}")
    for i in range(16): l.append(f"v_exp_f32 v{P+i}, v{P+i}")
    for sg in range(2):
        l.append(f"v_pk_add_f32 {vr(O+4*sg,2)}, {vr(P+8*sg,2)}, {vr(P+8*sg+2,2)}")
        l.append(f"v_pk_add_f32 {vr(O+4*sg+2,2)}, {vr(P+8*sg+4,2)}, {vr(P+8*sg+6,2)}")
    for sg in range(2):
        l.append(f"v_pk_add_f32 {vr(O+4*sg,2)}, {vr(O+4*sg,2)}, {vr(O+4*sg+2,2)}")
    for sg in range(2):
        l.append(f"v_add_f32 v{T+2*sg}, v{O+4*sg}, v{O+4*sg+1}")
    l += [f"v_permlane32_swap_b32 v{A}, v{B}",
          f"v_add_f32 v{A}, v{A}, v{B}",
          f"v_rcp_f32 v{A}, v{A}",
          f"v_mov_b32 v{B}, v{A}",
          f"v_permlane32_swap_b32 v{A}, v{B}"]
    for i in range(0, 8, 2):
        l.append(f"v_pk_mul_f32 {vr(P+i,2)}, {vr(P+i,2)}, {vr(A,2)} op_sel_hi:[1,0]")
        l.append(f"v_pk_mul_f32 {vr(P+8+i,2)}, {vr(P+8+i,2)}, {vr(B,2)} op_sel_hi:[1,0]")
    for q in range(8): l.append(f"v_cvt_pk_bf16_f32 v{O+q}, v{P+2*q}, v{P+2*q+1}")
    return l

import re as _re
def unpk(lines):
    out = []
    for l in lines:
        m = _re.match(r"\s*v_pk_(add|mul)_f32 v\[(\d+):\d+\], v\[(\d+):\d+\], ([vs])\[(\d+):\d+\](.*)", l)
        if not m: out.append(l); continue
        op, d, a, k, b, mods = m.group(1), int(m.group(2)), int(m.group(3)), m.group(4), int(m.group(5)), m.group(6)
        bc = "op_sel_hi:[1,0]" in mods
        assert mods.strip() in ("", "op_sel_hi:[1,0]"), l
        for i in range(2):
            out.append(f"    v_{op}_f32 v{d+i}, {k}{b if bc else b+i}, v{a+i}")
    return out

def spread(mm, r):
    out = []; n = len(mm); k = 0
    for i, x in enumerate(mm):
        out.append(x)
        hi = (len(r) * (i + 1) + n - 1) // n
        out += r[k:hi]; k = max(k, hi)
    return out + r[k:]

_uid = [0]
def uid(p):
    _uid[0] += 1
    return f"{p}_{_uid[0]}"

def flag_store(e, soff, vt):
    e(f"v_mov_b32 v{vt}, s78")
    e(f"v_mov_b32 v{vt+1}, s79")
    e(f"v_mov_b32 v{vt+2}, 0")
    e("s_mov_b64 exec, 1")
    e(f"buffer_store_dwordx2 {vr(vt,2)}, v{vt+2}, s[24:27], {soff} offen sc1")
    e("s_mov_b64 exec, -1")

def flag_poll(e, vaddr, vt, sleep=4):
    L = uid("FP"); D = uid("FD")
    e("s_mov_b32 s77, 0")
    e.label(L)
    e(f"buffer_load_dwordx2 {vr(vt,2)}, v{vaddr}, s[24:27], 0 offen sc1")
    e("s_add_u32 s77, s77, 1")
    e("s_waitcnt vmcnt(0)")
    e(f"v_cmp_ne_u64 vcc, s[78:79], {vr(vt,2)}")
    e(f"s_cbranch_vccz {D}")
    e(f"s_cmp_gt_u32 s77, {OPT['spin']}")
    e(f"s_cbranch_scc1 {D}")
    if sleep: e(f"s_sleep {sleep}")
    e(f"s_branch {L}")
    e.label(D)

def lds_add(e, addr, vt):
    e(f"v_mov_b32 v{vt}, {addr}")
    e(f"v_mov_b32 v{vt+1}, 1")
    e("s_mov_b64 exec, 1")
    e(f"ds_add_u32 v{vt}, v{vt+1}")
    e("s_mov_b64 exec, -1")

def lds_wait(e, addr, target, vt, sleep=4):
    L = uid("LW"); D = uid("LD")
    e(f"v_mov_b32 v{vt}, {addr}")
    e("s_mov_b32 s77, 0")
    e.label(L)
    e(f"ds_read_b32 v{vt+1}, v{vt}")
    e("s_add_u32 s77, s77, 1")
    e("s_waitcnt lgkmcnt(0)")
    e(f"v_cmp_gt_u32 vcc, {target}, v{vt+1}")
    e(f"s_cbranch_vccz {D}")
    e(f"s_cmp_gt_u32 s77, {OPT['spin']*8}")
    e(f"s_cbranch_scc1 {D}")
    e(f"s_sleep {sleep}")
    e(f"s_branch {L}")
    e.label(D)

def gen():
    e = Emitter()
    ORD = {0: "x0 x1 x2 x3 w0 w1", 1: "x0 w0 x1 w1 x2 x3", 2: "x0 x1 w0 x2 w1 x3", 3: "w0 x0 w1 x1 x2 x3"}[OPT.get("ord", 0)].split()
    ORD += [f"w{g}" for g in range(2, 16)]
    POS = {n: i for i, n in enumerate(ORD)}
    e("s_cmp_ge_u32 s2, 256")
    e("s_cbranch_scc1 L_done")
    e("s_load_dwordx16 s[48:63], s[0:1], 0")
    e("s_load_dwordx8 s[64:71], s[0:1], 64")
    e("s_load_dwordx2 s[72:73], s[0:1], 96")
    stamp_begin(e)
    if OPT.get("trace"): e("v_mov_b32 v159, 0")
    e("v_and_b32 v1, 63, v0")
    e("v_lshrrev_b32 v11, 6, v0")
    e("v_readfirstlane_b32 s30, v11")
    e("s_and_b32 s36, s2, 7")
    e("s_lshr_b32 s37, s2, 3")
    lc = {0: 1, 1: 2, 2: 3}[OPT["map"]]
    e(f"s_and_b32 s29, s36, {(8>>lc)-1}")
    e(f"s_lshl_b32 s29, s29, {lc}")
    e(f"s_lshr_b32 s38, s37, {5-lc}")
    e("s_or_b32 s29, s29, s38")
    e(f"s_lshr_b32 s28, s36, {3-lc}")
    e(f"s_lshl_b32 s28, s28, {5-lc}")
    e(f"s_and_b32 s38, s37, {(32>>lc)-1}")
    e("s_add_u32 s28, s28, s38")
    if OPT["rot"] == 1:
        e("s_add_u32 s31, s28, s29"); e("s_lshl_b32 s31, s31, 1"); e("s_and_b32 s31, s31, 6")
    elif OPT["rot"] == 2:
        e("s_add_u32 s31, s28, s29"); e("s_lshl_b32 s31, s31, 2"); e("s_and_b32 s31, s31, 4")
    else:
        e("s_mov_b32 s31, 0")
    e("v_lshlrev_b32 v10, 4, v1")
    e("s_cmp_lt_u32 s30, 8")
    e("s_cbranch_scc1 L_compute")
    e("s_setprio 3")
    e("s_sub_u32 s30, s30, 8")
    e("v_lshrrev_b32 v11, 3, v1")
    e("v_and_b32 v12, 7, v1")
    e("v_lshrrev_b32 v13, 4, v1")
    e("v_xor_b32 v14, v12, v13")
    e("v_lshlrev_b32 v14, 4, v14")
    e("v_lshl_add_u32 v2, v11, 10, v14")
    e("v_xor_b32 v3, 64, v2")
    e("v_add_u32 v3, 7168, v3")
    e("s_lshl_b32 s32, s28, 16")
    e("s_lshl_b32 s38, s30, 14")
    e("s_add_u32 s32, s32, s38")
    e("s_lshl_b32 s41, s30, 11")
    e("s_lshl_b32 s40, s30, 12")
    e("s_mov_b32 s35, s31")
    e("v_and_b32 v13, 1, v13")
    e("v_lshlrev_b32 v13, 1, v13")
    e("v_xor_b32 v14, v12, v13")
    e("v_lshlrev_b32 v14, 4, v14")
    e("v_mul_u32_u24 v6, 3072, v11")
    e("v_add_u32 v6, v6, v14")
    e(f"v_add_u32 v7, {8*3072-1024}, v6")
    e("v_xor_b32 v8, 64, v6")
    e(f"v_add_u32 v9, {8*3072-1024}, v8")
    e("s_lshl_b32 s38, s29, 7")
    e("s_mul_i32 s33, s30, 49152")
    e("s_add_u32 s33, s33, s38")
    e("s_waitcnt lgkmcnt(0)")
    e.extend(trace(60))
    srd(e, 4, 48, 2048*512*2)
    srd(e, 8, 50, 512*1536*2)
    e("s_cmp_gt_u32 s29, 2")
    e("s_cbranch_scc1 L_noext")
    e("s_cmp_eq_u32 s29, 0")
    e("s_cselect_b32 s16, s60, s62")
    e("s_cselect_b32 s17, s61, s63")
    e("s_cmp_eq_u32 s29, 2")
    e("s_cselect_b32 s16, s66, s16")
    e("s_cselect_b32 s17, s67, s17")
    e("s_mov_b32 s18, 16384")
    e("s_cselect_b32 s18, 1024, s18")
    e("s_mov_b32 s19, 0x00020000")
    e(f"s_add_u32 m0, s40, {EXT}")
    for i in range(4):
        e(f"buffer_load_dwordx4 v10, s[16:19], s40 offen offset:{i*1024} lds")
    e.label("L_noext")
    def item(i):
        l = []; nm = ORD[i]; idx = int(nm[1:])
        if nm[0] == "x":
            for q in range(2):
                l.append("s_lshl_b32 s38, s31, 7")
                l.append("s_add_u32 s38, s38, s32")
                l.append(f"s_add_u32 m0, s41, {XT + (2*idx+q)*8192}")
                l.append("s_add_u32 s31, s31, 1")
                for k in range(2):
                    l.append(f"buffer_load_dwordx4 v{2+k}, s[4:7], s38 offen offset:{k*1024} lds")
                l.append("s_and_b32 s31, s31, 7")
        else:
            g = idx; slot = g % 4
            l.append("s_mul_i32 s39, s35, 196608")
            l.append("s_add_u32 s39, s39, s33")
            l.append(f"s_add_u32 m0, s41, {slot*16384}")
            if g < 8: l.append("s_add_u32 s39, s39, 1024")
            else: l.append("s_lshl_b32 s38, s35, 16")
            for k in range(2):
                l.append(f"buffer_load_dwordx4 v{6+k}, s[8:11], s39 offen offset:{k*1024} lds")
            l.append(f"s_add_u32 m0, s41, {slot*16384+8192}")
            if g < 8:
                l.append("s_add_u32 s39, s39, 1024")
                for k in range(2):
                    l.append(f"buffer_load_dwordx4 v{8+k}, s[8:11], s39 offen offset:{k*1024} lds")
            else:
                l.append("s_add_u32 s38, s38, s34")
                for k in range(2):
                    l.append(f"buffer_load_dwordx4 v{4+k}, s[12:15], s38 offen offset:{k*1024} lds")
            l.append("s_add_u32 s35, s35, 1")
            l.append("s_and_b32 s35, s35, 7")
        return l
    def earliest(i):
        nm = ORD[i]; idx = int(nm[1:])
        if nm[0] == "x" or idx < 4: return -1
        return max(POS[f"w{idx-4}"], POS["x0"]) + 1
    DEP = OPT.get("dep", 3)
    for i in range(DEP): e.extend(item(i))
    e.extend(trace(61))
    e(f"s_load_dwordx2 s[78:79], s[72:73], {hex(WS_EPOCH)}")
    e("v_xor_b32 v14, 64, v14")
    e("v_lshl_add_u32 v4, v11, 10, v14")
    e("v_add_u32 v5, 7168, v4")
    e("s_lshl_b32 s38, s29, 7")
    e("s_lshl_b32 s34, s30, 14")
    e("s_add_u32 s34, s34, s38")
    srd(e, 12, 58, 512*512*2)
    srd(e, 20, 52, 32*16*16*2)
    srd(e, 24, 72, WS_SIZE)
    e("s_and_b32 s46, s30, 1")
    e("s_lshr_b32 s47, s30, 1")
    e("v_bfe_u32 v13, v1, 4, 1")
    e("v_lshlrev_b32 v15, 2, v13")
    e("v_xor_b32 v15, v12, v15")
    e("v_lshlrev_b32 v15, 4, v15")
    e("v_lshl_add_u32 v144, v11, 10, v15")
    for k in range(1, 4): e(f"v_add_u32 v{144+k}, {k*7168}, v144")
    e("v_lshrrev_b32 v16, 5, v1")
    e("v_bfe_u32 v15, v1, 2, 2")
    e("v_lshl_add_u32 v148, v16, 2, v15")
    e("v_lshlrev_b32 v148, 7, v148")
    e("v_lshrrev_b32 v15, 1, v15")
    e("v_xor_b32 v15, s47, v15")
    e("v_lshl_add_u32 v148, v15, 6, v148")
    e("v_lshl_add_u32 v148, v13, 5, v148")
    e("v_and_b32 v15, 3, v1")
    e("v_lshl_add_u32 v148, v15, 3, v148")
    e("s_lshl_b32 s38, s47, 15")
    e("v_add_u32 v148, s38, v148")
    e("v_xor_b32 v149, 64, v148")
    e(f"s_add_u32 s38, s40, {PHQ}")
    e("v_add_u32 v150, s38, v10")
    e("v_xor_b32 v151, 0x2000, v150")
    e("v_and_b32 v155, 31, v1")
    e("v_lshlrev_b32 v152, 10, v155")
    e("v_lshl_add_u32 v152, v16, 4, v152")
    e("v_lshlrev_b32 v155, 2, v155")
    e("v_and_b32 v153, 15, v1")
    e("v_lshlrev_b32 v153, 3, v153")
    e("v_lshl_add_u32 v153, v16, 7, v153")
    e("s_lshl_b32 s38, s30, 9")
    e(f"s_add_u32 s38, s38, {WPH}")
    e("v_add_u32 v153, s38, v153")
    e(f"s_add_u32 s38, s41, {PHQ}")
    e("v_add_u32 v154, s38, v10")
    e("v_lshlrev_b32 v156, 3, v1")
    e("s_getreg_b32 s37, hwreg(HW_REG_XCC_ID, 0, 4)")
    e(f"s_mov_b32 s74, {fbits(LOG2E)}")
    e(f"s_mov_b32 s75, {fbits(-LOG2E)}")
    e("v_and_b32 v15, 31, v1")
    e("v_lshlrev_b32 v15, 3, v15")
    e("s_lshl_b32 s38, s30, 8")
    e(f"s_add_u32 s38, s38, {F1}")
    e("v_add_u32 v15, s38, v15")
    e("s_lshl_b32 s42, s30, 10")
    assert WS_KVB == 0
    def kvdma(n):
        l = []
        for _ in range(n):
            l.append("s_mov_b32 m0, s42")
            l.append("s_nop 0")
            l.append("buffer_load_dwordx4 v10, s[24:27], s42 offen sc1 lds")
            l.append("s_add_u32 s42, s42, 4096")
        return l
    out = []
    e("s_and_b32 s38, s30, 1")
    e("s_lshl_b32 s38, s38, 10")
    e(f"s_add_u32 m0, s38, {WPH}")
    e("s_lshl_b32 s39, s29, 11")
    e("s_add_u32 s38, s38, s39")
    e("buffer_load_dwordx4 v10, s[20:23], s38 offen lds")
    for i in range(DEP): out += [i] * 4
    out.append("w")
    nxt = DEP
    def waitfor(tag):
        idx = max(k for k, t in enumerate(out) if t == tag)
        n = len(out) - 1 - idx
        del out[:idx + 1]
        return f"s_waitcnt vmcnt({n})"
    PA = OPT.get("pa", 15)
    poll = "buffer_load_dwordx2 v[16:17], v15, s[24:27], 0 offen sc1"
    e.extend(trace(62))
    for i in range(18):
        e(waitfor(i))
        e.extend(trace(2 * i))
        e("s_barrier")
        e.extend(trace(2 * i + 1))
        if i == 0:
            e.extend(stamp(0))
        if i == 8:
            e("s_waitcnt lgkmcnt(0)")
            e("s_add_u32 s78, s78, 1")
        if i == PA:
            e(poll); out.append("p")
        while nxt <= min(19, i + DEP) and earliest(nxt) <= i:
            e.extend(item(nxt)); out += [nxt] * 4; nxt += 1
    if "p" in out: e(waitfor("p"))
    e("v_cmp_ne_u64 vcc, s[78:79], v[16:17]")
    e("s_cbranch_vccnz L_kvlate")
    save = list(out)
    e.extend(kvdma(4)); out += ["k0"] * 4
    e(waitfor(18)); e("s_barrier")
    e.extend(kvdma(4)); out += ["k1"] * 4
    e(waitfor(19)); e("s_barrier")
    e.extend(kvdma(4)); out += ["k2"] * 4
    e.label("L_kv20")
    e("s_waitcnt vmcnt(4)")
    e("s_barrier")
    e("s_branch L_kvjoin")
    e.label("L_kvlate")
    out[:] = save
    e(poll); out.append("p")
    e(waitfor(18)); e("s_barrier")
    e(waitfor(19)); e("s_barrier")
    e("s_waitcnt vmcnt(0)")
    e("v_cmp_ne_u64 vcc, s[78:79], v[16:17]")
    e("s_cbranch_vccz L_kvlate2")
    flag_poll(e, 15, 16, sleep=0)
    e.label("L_kvlate2")
    e.extend(kvdma(12))
    e("s_branch L_kv20")
    e.label("L_kvjoin")
    e.extend(stamp(1))
    e.extend(kvdma(20))
    HQ = 16; HK = 32; HG = 40; HT = 42; HD = 48; HP = 80
    for u in range(2): e(f"ds_read_b128 {vr(HQ+8*u,4)}, v154 offset:{u*1024}")
    for u in range(2): e(f"ds_read_b64_tr_b16 {vr(HK+2*u,2)}, v153 offset:{u*256}")
    e("s_lshl_b32 s38, s28, 4")
    e(f"s_add_u32 s38, s38, {FG}")
    e(f"v_and_b32 v{HT+4}, 8, v156")
    e(f"v_add_u32 v{HT+4}, s38, v{HT+4}")
    e("s_waitcnt vmcnt(0)")
    e.extend(trace(44))
    lds_add(e, C_KVALL, HT)
    e("s_lshl_b32 s45, s29, 2")
    e("s_lshl_b32 s36, s28, 7")
    e("s_add_u32 s36, s36, s45")
    e("s_add_u32 s36, s36, s30")
    e("s_lshl_b32 s36, s36, 10")
    e(f"s_add_u32 s36, s36, {WS_OC}")
    e(f"v_mov_b64 {vr(HD,2)}, -1")
    e(f"v_mov_b64 {vr(HD+2,2)}, -1")
    for i in range(4):
        e(f"s_add_u32 s38, s36, {i*32768}")
        e(f"buffer_store_dwordx4 {vr(HD,4)}, v10, s[24:27], s38 offen sc1")
    flag_poll(e, HT + 4, HT + 2)
    e("s_lshl_b32 s38, s28, 5")
    e("s_add_u32 s38, s38, s45")
    e("s_add_u32 s38, s38, s30")
    e("s_lshl_b32 s38, s38, 4")
    e(f"s_add_u32 s38, s38, {FP}")
    e(f"v_mov_b32 v{HD+4}, s78")
    e(f"v_mov_b32 v{HD+5}, s79")
    e(f"v_mov_b32 v{HD+6}, s37")
    e(f"v_mov_b32 v{HD+7}, 0")
    e("s_mov_b64 exec, 1")
    e(f"buffer_store_dwordx4 {vr(HD+4,4)}, v{HD+7}, s[24:27], s38 offen sc1")
    e("s_mov_b64 exec, -1")
    e("s_lshl_b32 s38, s28, 8")
    e(f"s_add_u32 s38, s38, {WS_GATE}")
    e(f"buffer_load_dword v{HG}, v155, s[24:27], s38 offen sc1")
    e(f"buffer_load_dword v{HG+1}, v155, s[24:27], s38 offen offset:128 sc1")
    e("s_waitcnt lgkmcnt(0)")
    for u in range(2): e(mfma(HD + 16 * u, HK, HQ + 8 * u, None))
    e.extend(interleave(*[phi_unit(HD + 16 * u, HP + 4 * u, HQ + 8 * u) for u in range(2)]))
    e(f"v_add_u32 v{HT}, {C_GATE}, v155")
    e("s_waitcnt vmcnt(0)")
    e(f"ds_write_b32 v{HT}, v{HG}")
    e(f"ds_write_b32 v{HT}, v{HG+1} offset:128")
    e("s_waitcnt lgkmcnt(0)")
    lds_add(e, C_GOK, HT)
    e.extend(trace(45))
    e("s_and_b32 s38, s28, 3")
    e("s_cmp_lg_u32 s38, s30")
    e("s_cbranch_scc1 L_nored")
    e("s_lshr_b32 s38, s28, 3")
    e("s_add_u32 s43, s45, s38")
    e("v_lshlrev_b32 v15, 1, v155")
    e("s_lshl_b32 s38, s43, 8")
    e(f"s_add_u32 s38, s38, {F3}")
    e(f"v_add_u32 v{HT}, s38, v15")
    flag_poll(e, HT, HT + 2)
    e.extend(trace(46))
    e("s_lshl_b32 s43, s43, 3")
    e("s_and_b32 s38, s28, 7")
    e("s_add_u32 s43, s43, s38")
    e("s_lshl_b32 s38, s43, 14")
    e(f"s_add_u32 s38, s38, {WS_PART}")
    for p in range(16):
        if p and p % 4 == 0: e("s_add_u32 s38, s38, 4096")
        e(f"buffer_load_dwordx4 {vr(HP+4*p,4)}, v10, s[24:27], s38 offen offset:{(p&3)*1024} sc1")
    e("s_waitcnt vmcnt(0)")
    e.extend(trace(47))
    for st in (32, 16, 8, 4):
        for i in range(0, st, 2): e(f"v_pk_add_f32 {vr(HP+i,2)}, {vr(HP+i,2)}, {vr(HP+st+i,2)}")
    e(f"v_permlane32_swap_b32 v{HP}, v{HP+2}")
    e(f"v_permlane32_swap_b32 v{HP+1}, v{HP+3}")
    e(f"v_pk_add_f32 {vr(HP,2)}, {vr(HP,2)}, {vr(HP+2,2)}")
    e(f"v_cvt_pk_bf16_f32 v{HP}, v{HP}, v{HP+1}")
    e(f"v_lshrrev_b32 v{HT}, 5, v1")
    e(f"v_lshl_add_u32 v{HT}, v{HT}, 2, v15")
    e("s_lshl_b32 s38, s43, 8")
    e(f"s_add_u32 s38, s38, {WS_KVF}")
    e(f"buffer_store_dword v{HP}, v{HT}, s[24:27], s38 offen sc1")
    e("s_lshl_b32 s38, s43, 3")
    e(f"s_add_u32 s38, s38, {F3P}")
    e("s_waitcnt vmcnt(0)")
    e.extend(trace(48))
    flag_store(e, "s38", HT)
    e.label("L_nored")
    e.extend(stamp(2))
    e("s_lshl_b32 s38, s28, 9")
    e(f"s_add_u32 s38, s38, {FP}")
    e("v_lshlrev_b32 v2, 2, v155")
    e("v_add_u32 v2, s38, v2")
    e("s_mov_b32 s77, 0")
    e("s_mov_b32 s35, 0")
    e.label("L_fpp")
    e(f"buffer_load_dwordx4 {vr(HD,4)}, v2, s[24:27], 0 offen sc1")
    e("s_add_u32 s77, s77, 1")
    e("s_waitcnt vmcnt(0)")
    e(f"v_cmp_ne_u64 vcc, s[78:79], {vr(HD,2)}")
    e("s_cbranch_vccz L_fpd")
    e("s_sleep 8")
    e(f"s_cmp_lt_u32 s77, {OPT['spin']}")
    e("s_cbranch_scc1 L_fpp")
    e("s_branch L_fpx")
    e.label("L_fpd")
    e(f"v_cmp_ne_u32 vcc, s37, v{HD+2}")
    e("s_cbranch_vccnz L_fpx")
    if OPT.get("loc", 1):
        lds_add(e, C_LOC, HT)
        e("s_mov_b32 s35, 1")
    e.label("L_fpx")
    e.extend(trace(57))
    e("s_add_u32 s45, s45, s30")
    e("s_lshl_b32 s38, s45, 6")
    e(f"s_add_u32 s38, s38, {F3P}")
    e(f"v_and_b32 v{HT}, 56, v156")
    e(f"v_add_u32 v{HT}, s38, v{HT}")
    flag_poll(e, HT, HT + 2)
    e.extend(trace(49))
    e("s_lshl_b32 s38, s45, 11")
    e(f"s_add_u32 s38, s38, {WS_KVF}")
    for q in range(4):
        e(f"buffer_load_dwordx2 {vr(HK+2*q,2)}, v156, s[24:27], s38 offen offset:{q*512} sc1")
    e("s_waitcnt vmcnt(0)")
    e.extend(trace(50))
    for u in range(2): e(mfma(HD + 16 * u, HK, HQ + 8 * u, None))
    for u in range(2): e(mfma(HD + 16 * u, HK + 4, HQ + 8 * u + 4, HD + 16 * u))
    for u in range(2):
        D = HD + 16 * u
        e(f"v_add_f32 v{HT}, {fbits(1e-6)}, v{D+8}")
        e(f"v_rcp_f32 v{HT}, v{HT}")
        e(f"v_mul_f32 v{HT}, v{HT}, v{HG+u}")
        for i in range(0, 8, 2): e(f"v_pk_mul_f32 {vr(D+i,2)}, {vr(D+i,2)}, {vr(HT,2)} op_sel_hi:[1,0]")
        for q in range(4): e(f"v_cvt_pk_bf16_f32 v{D+q}, v{D+2*q}, v{D+2*q+1}")
    e("s_add_u32 s38, s36, 65536")
    e(f"buffer_store_dwordx4 {vr(HD,4)}, v10, s[24:27], s36 offen sc1")
    e(f"buffer_store_dwordx4 {vr(HD+16,4)}, v10, s[24:27], s38 offen sc1")
    e.extend(trace(51))
    e.extend(stamp(3))
    ACC = [16, 32]; WFR = [48, 56, 132]; OF = 64; PT = 128
    srd(e, 4, 54, 512*512*2)
    srd(e, 8, 64, 512*512*2)
    srd(e, 12, 68, 2048*512*2)
    e("s_lshl_b32 s44, s28, 1")
    e("s_add_u32 s44, s44, s46")
    e("s_lshl_b32 s43, s44, 16")
    e("s_lshl_b32 s38, s47, 14")
    e("s_add_u32 s43, s43, s38")
    e(f"s_add_u32 s43, s43, {WS_OC}")
    def wdma(sd):
        e("s_lshl_b32 s38, s30, 17")
        e("s_lshl_b32 s39, s29, 7")
        e("s_add_u32 s38, s38, s39")
        e("s_lshl_b32 s39, s30, 14")
        for g in range(4):
            e("s_mov_b32 m0, s39")
            for k in range(4):
                e(f"buffer_load_dwordx4 v{144+k}, s[{sd}:{sd+3}], s38 offen offset:{k*1024} lds")
            if g < 3:
                e("s_add_u32 s38, s38, 32768")
                e("s_add_u32 s39, s39, 4096")
    def oload(base_add, g0=0):
        for g in range(g0, 4):
            e(f"s_add_u32 s38, s43, {base_add + g*4096}")
            for t in range(4 * g, 4 * g + 4):
                e(f"buffer_load_dwordx4 {vr(OF+4*t,4)}, v10, s[24:27], s38 offen offset:{(t&3)*1024} sc1")
    def rd(t):
        return [f"ds_read_b64_tr_b16 {vr(WFR[t%3]+4*nt+2*u,2)}, v{148+nt} offset:{(16*t+8*u)*128}" for nt in range(2) for u in range(2)]
    def step(t, first, fill=[]):
        if t < 14: e.extend(rd(t + 2))
        e(f"s_waitcnt lgkmcnt({4*min(2, 15-t)})")
        for nt in range(2):
            e(mfma(ACC[nt], WFR[t % 3] + 4 * nt, OF + 4 * t, None if (first and t == 0) else ACC[nt]))
            e.extend(fill[nt * 5:nt * 5 + 5])
    def check(g):
        b = OF + 16 * g
        l = [f"v_max3_u32 v{PT}, v{b}, v{b+1}, v{b+2}", f"v_max3_u32 v{PT+1}, v{b+3}, v{b+4}, v{b+5}"]
        for i in (6, 10):
            l += [f"v_max3_u32 v{PT}, v{PT}, v{b+i}, v{b+i+1}", f"v_max3_u32 v{PT+1}, v{PT+1}, v{b+i+2}, v{b+i+3}"]
        l += [f"v_max3_u32 v{PT}, v{PT}, v{b+14}, v{b+15}", f"v_max_u32 v{PT}, v{PT}, v{PT+1}", f"v_cmp_eq_u32 vcc, -1, v{PT}"]
        return l
    def pgemm(tag, first, pace):
        e("s_waitcnt vmcnt(12)")
        e.extend(check(0))
        for g in range(4):
            e(f"s_cbranch_vccnz L_retry{tag}{g}")
            e.label(f"L_go{tag}{g}")
            if g == 0 and not first: e.extend(trace(40))
            for t in range(4 * g, 4 * g + 4):
                if t % 4 == 3 and g < 3: step(t, first, [f"s_waitcnt vmcnt({8-4*g})"] + check(g + 1))
                else: step(t, first)
                if pace: e(f"s_sleep {pace}")
    lds_wait(e, C_PROG, 8, PT, sleep=8)
    e.extend(trace(54))
    wdma(4)
    oload(0)
    e("s_waitcnt vmcnt(16)")
    lds_add(e, C_HS, PT)
    lds_wait(e, C_HS, 4, PT)
    e.extend(trace(55))
    e.extend(rd(0) + rd(1))
    e("s_mov_b32 s77, 0")
    pgemm("A", True, OPT.get("pace", 2))
    e.extend(trace(56))
    lds_add(e, C_HS, PT)
    lds_wait(e, C_HS, 8, PT)
    e.extend(trace(58))
    wdma(8)
    e("s_lshl_b32 s36, s44, 15")
    e("s_lshl_b32 s39, s29, 7")
    e("s_add_u32 s36, s36, s39")
    e("s_lshl_b32 s39, s47, 6")
    e("s_add_u32 s36, s36, s39")
    e("s_mov_b32 s77, 0")
    e("s_waitcnt vmcnt(0)")
    e.extend(stamp(4))
    e("s_barrier")
    e.extend(stamp(5))
    oload(32768)
    e.extend(rd(0) + rd(1))
    pgemm("B", False, 0)
    e.extend(trace(42))
    if OPT.get("trace"): e("v_writelane_b32 v159, s77, 41")
    for q in range(4): e(f"ds_write_b128 v150, {vr(ACC[1]+4*q,4)} offset:{q*1024}")
    e("s_waitcnt lgkmcnt(0)")
    e("s_barrier")
    for q in range(4): e(f"ds_read_b128 {vr(OF+4*q,4)}, v151 offset:{q*1024}")
    A = ACC[0]
    for pr in range(2):
        e(f"s_waitcnt lgkmcnt({2-2*pr})")
        for i in range(8 * pr, 8 * pr + 8, 2): e(f"v_pk_add_f32 {vr(A+i,2)}, {vr(A+i,2)}, {vr(OF+i,2)}")
        for q in range(4): e(f"v_cvt_pk_bf16_f32 v{A+8*pr+q}, v{A+8*pr+2*q}, v{A+8*pr+2*q+1}")
    for pr in range(2):
        e(f"v_permlane32_swap_b32 v{A+8*pr}, v{A+8*pr+2}")
        e(f"v_permlane32_swap_b32 v{A+8*pr+1}, v{A+8*pr+3}")
    for pr in range(2):
        e(f"buffer_store_dwordx4 {vr(A+8*pr,4)}, v152, s[12:15], s36 offen offset:{pr*32}" + ["", " sc1", " nt", " sc0 sc1"][OPT.get("ost", 0)])
    e.extend(trace(43))
    e("s_or_b32 s38, s2, s30")
    e("s_cbranch_scc1 L_noepoch")
    e(f"s_mov_b32 s38, {WS_EPOCH}")
    flag_store(e, "s38", PT)
    e.label("L_noepoch")
    stamp_end(e, 64)
    e.label("L_done")
    e("s_endpgm")
    for tag, base in (("A", 0), ("B", 32768)):
        for g in range(4):
            e.label(f"L_retry{tag}{g}")
            if tag == "A": e("s_sleep 8")
            oload(base, g)
            e("s_add_u32 s77, s77, 1")
            e(f"s_waitcnt vmcnt({12-4*g})")
            e.extend(check(g))
            e(f"s_cbranch_vccz L_go{tag}{g}")
            e(f"s_cmp_lt_u32 s77, {OPT['spin']}")
            e(f"s_cbranch_scc1 L_retry{tag}{g}")
            e(f"s_branch L_go{tag}{g}")

    e.label("L_compute")
    ACC = 96; EACC = 128; WF = 144; I0 = 148; ONE = 156
    e("s_and_b32 s44, s30, 3")
    e("s_lshr_b32 s40, s30, 2")
    e("v_and_b32 v11, 31, v1")
    e("v_lshrrev_b32 v22, 5, v1")
    e("v_bfe_u32 v23, v1, 1, 3")
    e("v_xor_b32 v23, v23, v22")
    e("v_lshlrev_b32 v23, 4, v23")
    e("v_lshl_add_u32 v12, v11, 7, v23")
    e(f"v_add_u32 v12, {XT}, v12")
    for t in range(1, 4): e(f"v_xor_b32 v{12+t}, {32*t}, v12")
    su_w = ["v_lshrrev_b32 v22, 5, v1", "v_bfe_u32 v23, v1, 2, 2", "v_lshl_add_u32 v20, v22, 3, v23", "v_lshlrev_b32 v20, 7, v20",
            "v_bfe_u32 v23, v1, 3, 2", "v_xor_b32 v23, s44, v23", "v_lshl_add_u32 v20, v23, 5, v20", "v_bfe_u32 v24, v1, 4, 1",
            "v_lshl_add_u32 v20, v24, 13, v20", "v_and_b32 v23, 3, v1", "v_lshl_add_u32 v20, v23, 3, v20"]
    su_s = ["s_lshl_b32 s45, s29, 2", "s_add_u32 s45, s45, s44", "s_lshl_b32 s47, s28, 1", "s_xor_b32 s46, s40, 1",
            "s_add_u32 s47, s47, s46", "s_lshl_b32 s43, s47, 6", "s_add_u32 s43, s43, s45", "s_lshl_b32 s43, s43, 10",
            f"s_add_u32 s43, s43, {WS_OC+32*1024}",
            f"s_mov_b32 s74, {fbits(LOG2E)}", f"s_mov_b32 s75, {fbits(-LOG2E)}", f"s_mov_b32 s76, {fbits(0.25*LOG2E)}",
            "s_lshl_b32 s38, s44, 10", f"s_add_u32 s38, s38, {HND}", "v_add_u32 v28, s38, v10"]
    su_ws = ["s_waitcnt lgkmcnt(0)", f"s_load_dwordx2 s[78:79], s[72:73], {hex(WS_EPOCH)}",
             "s_mov_b32 s24, s72", "s_mov_b32 s25, s73", f"s_mov_b32 s26, {hex(WS_SIZE)}", "s_mov_b32 s27, 0x00020000"]
    su_ep = ["s_waitcnt lgkmcnt(0)", "s_add_u32 s78, s78, 1"]
    def su_id(n):
        l = ["v_and_b32 v11, 31, v1", "v_lshrrev_b32 v22, 5, v1", "v_lshlrev_b32 v22, 2, v22", "v_sub_u32 v11, v11, v22",
             "v_mov_b32 v22, 0x3f80", "v_mov_b32 v23, 0x3f800000"]
        for sgn in range(n):
            for q in range(4):
                f0 = 16 * sgn + (2 * q if q < 2 else 8 + 2 * (q - 2))
                l += [f"v_cmp_eq_u32 vcc, {f0}, v11", f"v_cmp_eq_u32 s[38:39], {f0+1}, v11",
                      f"v_cndmask_b32 v{I0+4*sgn+q}, 0, v22, vcc", f"v_cndmask_b32 v{I0+4*sgn+q}, v{I0+4*sgn+q}, v23, s[38:39]"]
        return l
    Q = 4; NM = 8; O = 24; S = [40, 56]; PK = 72; KF = [80, 84]; VF = [144, 152]; AK = 2; AV = 3; T = 106
    U = 4; NIT = 16
    SEG = OPT.get("seg", (3, 8, 15, 16))
    ATT_SETUP = [f"v_mov_b32 v{AK}, v10", f"v_lshrrev_b32 v{T}, 5, v1", f"v_and_b32 v{AV}, 15, v1", f"v_lshlrev_b32 v{AV}, 4, v{AV}",
                 f"v_lshl_add_u32 v{AV}, v{T}, 8, v{AV}", f"v_add_u32 v{AV}, 1024, v{AV}", f"v_and_b32 v{T}, 27, v1",
                 f"v_mov_b32 v{T+1}, 0x3f803f80", f"v_cmp_eq_u32 vcc, 16, v{T}", "s_mov_b32 s20, 0xffff", "s_mov_b32 s21, 0xffff",
                 f"v_cndmask_b32 v{VF[0]}, 0, v{T+1}, vcc"] + [f"v_mov_b32 v{VF[0]+1}, v{VF[0]}"] + [f"v_mov_b64 {vr(VF[0]+i,2)}, {vr(VF[0],2)}" for i in range(2, 16, 2)] + \
                [f"s_mov_b32 s22, {SEG[0]}", "s_mov_b32 s23, 0"]
    def fr(buf, t):
        if buf == 0:
            b = 32 + 12 * t; return (b, b + 4, b + 8)
        return [(80, 84, 88), (128, 132, 136), (92, 140, 16), (4, 160, 164)][t]
    def reads(buf, g):
        l = []; p = g % 8; so = (g % 4) * 16384
        for t in range(4):
            xa, xb, w = fr(buf, t)
            l.append(f"ds_read_b128 {vr(xa,4)}, v{12+t} offset:{p*8192}")
            for u in range(2):
                l.append(f"ds_read_b64_tr_b16 {vr(w+2*u,2)}, v20 offset:{so+(16*t+4*u)*128}")
            l.append(f"ds_read_b128 {vr(xb,4)}, v{12+t} offset:{p*8192+4096}")
        return l
    def mfmas(buf, first):
        l = []
        for t in range(4):
            xa, xb, w = fr(buf, t); z = first and t == 0
            l.append(mfma(ACC, w, xa, None if z else ACC))
            l.append(mfma(ACC + 16, w, xb, None if z else ACC + 16))
        return l
    def gpass(g0, first, last, extra={}):
        pend = None; NS = OPT.get("gspread", 5)
        for i in range(first, last + 1):
            e("s_barrier")
            nm = ORD[i] if i < 20 else "--"
            mm = mfmas(pend & 1, pend == 0) if pend is not None else []
            todo = None
            for c in range(8):
                if max(POS[f"w{g0+c}"], POS["x0"]) == i and (nm[0] == "w" or POS[f"w{g0+c}"] < i): todo = c
            if todo is not None:
                r = reads(todo & 1, g0 + todo)
                e.extend(spread(mm[:NS], r) + mm[NS:] if mm else r)
                e.extend(extra.get(i, []))
                e("s_waitcnt lgkmcnt(0)")
            else:
                e.extend(mm)
                e.extend(extra.get(i, []))
            pend = todo
        if pend is not None: e.extend(mfmas(pend & 1, False))
    PU = [32, 48]; PH = [64, 72]; TM = [80, 84]; VFR = [88, 92]
    e("s_cmp_lg_u32 s40, 0")
    e("s_cbranch_scc1 L_qwave")
    e(f"v_mov_b32 v26, {MISC}")
    for i in range(4): e(f"v_mov_b32 v{32+i}, 0")
    e("ds_write_b128 v26, v[32:35]")
    e("ds_write_b128 v26, v[32:35] offset:16")
    e.extend(su_w)
    e.extend(su_ws)
    wph = ["v_and_b32 v23, 15, v1", "v_lshlrev_b32 v23, 3, v23", "v_lshrrev_b32 v22, 5, v1", "v_lshl_add_u32 v25, v22, 7, v23",
           "s_lshl_b32 s38, s44, 9", f"s_add_u32 s38, s38, {WPH}", "v_add_u32 v25, s38, v25"]
    wpr = [f"ds_read_b64_tr_b16 {vr(WF+2*u,2)}, v25 offset:{u*256}" for u in range(2)]
    one = ["v_bfe_u32 v24, v1, 4, 1", f"v_mul_u32_u24 v{ONE}, 0x3f80, v24", f"v_lshl_or_b32 v{ONE}, v{ONE}, 16, v{ONE}"]
    xs = [i for i in range(6) if ORD[i][0] == "x"]
    idl = su_id(2)
    gpass(0, 0, 12, {xs[0]: su_s + wph, xs[2]: idl[:22], xs[3]: idl[22:] + one + su_ep + stamp(0), 9: wpr})
    e.extend(stamp(1))
    k = []
    for u in range(2):
        for q in range(4): k.append(f"v_cvt_pk_bf16_f32 v{PH[u]+q}, v{ACC+16*u+2*q}, v{ACC+16*u+2*q+1}")
    for u in range(2): k.append(mfma(PU[u], WF, PH[u], None))
    for u in range(2):
        a = ACC + 16 * u
        for q in range(4): k.append(f"v_cvt_pk_bf16_f32 v{VFR[u]+q}, v{a+8+2*q}, v{a+8+2*q+1}")
    for u in range(2): k.append(mfma(ACC + 16 * u, VFR[u], I0, None))
    k += interleave(*[phi_unit(PU[u], TM[u], PH[u]) for u in range(2)])
    for u in range(2): k.append(mfma(PU[u], PH[u], I0, None))
    for u in range(2): k.append(mfma(PU[u], PH[u] + 4, I0 + 4, PU[u]))
    for u in range(2):
        a = ACC + 16 * u
        for q in range(8): k.append(f"v_cvt_pk_bf16_f32 v{a+q}, v{a+2*q}, v{a+2*q+1}")
        for q in range(8): k.append(f"v_or_b32 v{a+q}, v{a+q}, v{ONE}")
    for u in range(2):
        for q in range(8): k.append(f"v_cvt_pk_bf16_f32 v{PH[u]+q}, v{PU[u]+2*q}, v{PU[u]+2*q+1}")
    D3 = EACC
    for u in range(2):
        k.append(mfma(D3, PH[u], ACC + 16 * u, None if u == 0 else D3))
        k.append(mfma(D3, PH[u] + 4, ACC + 16 * u + 4, D3))
    k += ["v_and_b32 v11, 31, v1", "v_lshlrev_b32 v11, 4, v11", "v_lshrrev_b32 v22, 5, v1", "v_lshl_add_u32 v11, v22, 14, v11",
          "s_lshl_b32 s38, s45, 17", "s_lshl_b32 s39, s28, 9", "s_add_u32 s38, s38, s39", f"s_add_u32 s38, s38, {WS_PART}"]
    for q in range(4):
        k.append(f"buffer_store_dwordx4 {vr(D3+4*q,4)}, v11, s[24:27], s38 offen sc1")
        if q < 3: k.append("s_add_u32 s38, s38, 32768")
    if not OPT.get("pk", 1): k = unpk(k)
    k = [x.strip() for x in fix_hazards(k, pre=mfmas(1, False))]
    def cost(x):
        if "mfma" in x: return 48
        if "v_exp" in x or "v_rcp" in x: return 8
        if "s_nop" in x: return 4 * (int(x.split()[1]) + 1)
        return 4
    acc = 260; nb = 0; LIM = OPT.get("klim", 140)
    for x in k:
        if nb < 8 and acc + cost(x) > (LIM if nb < 7 else OPT.get("klast", 300)):
            e("s_barrier"); nb += 1; acc = 0
            if nb == 8:
                e.extend(stamp(2)); e("s_setprio 2")
        e(x); acc += cost(x)
    while nb < 8:
        e("s_barrier"); nb += 1
    e("ds_read_b128 v[4:7], v28")
    e.extend(ATT_SETUP)
    e("s_branch L_attn")
    e.label("L_qwave")
    e.extend([x for x in su_ws if "s_load" not in x])
    e("s_cmp_eq_u32 s30, 6")
    e("s_cbranch_scc1 L_touch")
    e("s_cmp_eq_u32 s30, 7")
    e("s_cbranch_scc1 L_qidle")
    e("s_cmp_gt_u32 s29, 2")
    e("s_cbranch_scc1 L_qidle")
    e("s_lshl_b32 s38, s44, 12")
    for t in range(4): e(f"v_add_u32 v{16+t}, s38, v{12+t}")
    e("v_and_b32 v23, 15, v1")
    e("v_lshlrev_b32 v23, 3, v23")
    e("v_lshl_add_u32 v26, v22, 8, v23")
    e(f"v_add_u32 v26, {EXT}, v26")
    e("v_lshlrev_b32 v27, 4, v22")
    e(f"v_add_u32 v27, {EXT}, v27")
    e(f"s_mov_b32 s75, {fbits(-LOG2E)}")
    e("s_lshl_b32 s42, s28, 1")
    e("s_add_u32 s42, s42, s44")
    e("s_cmp_eq_u32 s29, 2")
    e("s_cbranch_scc1 L_qgate")
    def extloop(gate):
        nbar = 0
        if not gate: e.extend(su_id(1))
        for p in range(8):
            while p % 2 == 0 and nbar <= POS[f"x{p//2}"]:
                e("s_barrier"); nbar += 1
            e(f"s_lshl_b32 s38, s31, {7 if gate else 11}")
            e(f"v_add_u32 v21, s38, v{27 if gate else 26}")
            e("s_add_u32 s31, s31, 1")
            e("s_and_b32 s31, s31, 7")
            B = 32 + 32 * (p & 1)
            for t in range(4):
                e(f"ds_read_b128 {vr(B+8*t,4)}, v{16+t} offset:{p*8192}")
                if gate: e(f"ds_read_b128 {vr(B+8*t+4,4)}, v21 offset:{t*32}")
                else:
                    for u in range(2): e(f"ds_read_b64_tr_b16 {vr(B+8*t+4+2*u,2)}, v21 offset:{t*512+u*128}")
            if p % 2 == 1:
                n = 8 if gate else 12
                e(f"s_waitcnt lgkmcnt({n})")
                for t in range(4): e(mfma(EACC, 32 + 8 * t + 4, 32 + 8 * t, None if (p == 1 and t == 0) else EACC))
                e("s_waitcnt lgkmcnt(0)")
                for t in range(4): e(mfma(EACC, 64 + 8 * t + 4, 64 + 8 * t, EACC))
        while nbar <= XL + 1:
            e("s_barrier"); nbar += 1
    XL = POS["x3"]
    extloop(False)
    for q in range(4): e(f"v_cvt_pk_bf16_f32 v{EACC+q}, v{EACC+2*q}, v{EACC+2*q+1}")
    e("s_lshl_b32 s38, s42, 11")
    e("s_lshl_b32 s41, s44, 1")
    e("s_add_u32 s41, s41, s29")
    e("s_lshl_b32 s41, s41, 5")
    e("s_add_u32 s41, s41, s28")
    e("s_lshl_b32 s41, s41, 3")
    e(f"s_add_u32 s41, s41, {F1}")
    e("s_cmp_eq_u32 s29, 1")
    e("s_cbranch_scc1 L_qv")
    e(f"buffer_store_dwordx4 {vr(EACC,4)}, v10, s[24:27], s38 offen sc1")
    e("s_branch L_q5")
    e.label("L_qv")
    e("s_nop 1")
    e(mfma(32, EACC, I0, None))
    e("v_lshrrev_b32 v11, 5, v1")
    e("v_and_b32 v22, 15, v1")
    e("v_lshlrev_b32 v22, 4, v22")
    e("v_lshl_add_u32 v22, v11, 8, v22")
    for q in range(8): e(f"v_cvt_pk_bf16_f32 v{EACC+8+q}, v{32+2*q}, v{32+2*q+1}")
    e("s_mov_b32 exec_lo, 0xffff")
    e("s_mov_b32 exec_hi, 0xffff")
    e(f"buffer_store_dwordx4 {vr(EACC+8,4)}, v22, s[24:27], s38 offen offset:1024 sc1")
    e(f"buffer_store_dwordx4 {vr(EACC+12,4)}, v22, s[24:27], s38 offen offset:1536 sc1")
    e("s_mov_b64 exec, -1")
    e("s_branch L_q5")
    e.label("L_qgate")
    extloop(True)
    e(f"v_cvt_pk_bf16_f32 v11, v{EACC}, v{EACC}")
    e("v_and_b32 v11, 0xffff0000, v11")
    e("v_mul_f32 v11, s75, v11")
    e("v_exp_f32 v11, v11")
    e("v_add_f32 v11, 1.0, v11")
    e("v_rcp_f32 v11, v11")
    e("v_cvt_pk_bf16_f32 v11, v11, v11")
    e("v_and_b32 v11, 0xffff0000, v11")
    e("v_lshlrev_b32 v22, 2, v1")
    e("s_lshl_b32 s38, s42, 7")
    e(f"s_add_u32 s38, s38, {WS_GATE}")
    e("s_lshl_b32 s41, s42, 3")
    e(f"s_add_u32 s41, s41, {FG}")
    e("s_mov_b32 exec_hi, 0")
    e("buffer_store_dword v11, v22, s[24:27], s38 offen sc1")
    e("s_mov_b64 exec, -1")
    e("s_branch L_q5")
    e.label("L_touch")
    if OPT.get("touch", 1):
        e("v_mov_b32 v22, 0")
        e("v_min_u32 v23, 4, v1")
        e("v_lshlrev_b32 v23, 21, v23")
        for n, p in enumerate((50, 58, 52)):
            e(f"global_load_dword v{40+n}, v22, s[{p}:{p+1}]")
        e("global_load_dword v44, v23, s[72:73]")
        for n, p in enumerate((54, 64, 68)):
            e(f"global_load_dword v{45+n}, v22, s[{p}:{p+1}]")
    e.label("L_qidle")
    for i in range(10): e("s_barrier")
    e("s_branch L_q11")
    e.label("L_q5")
    e(su_ws[1])
    for i in range(XL + 2, 10):
        e("s_barrier")
        if i == min(9, XL + OPT.get("flat", 5)):
            e.extend(su_ep)
            e("s_waitcnt vmcnt(0)")
            flag_store(e, "s41", 22)
    e.label("L_q11")
    e("s_barrier")
    e.extend(su_w)
    e.extend(ATT_SETUP)
    e("s_barrier")
    e.extend(su_s)
    e("s_lshl_b32 s38, s44, 11")
    e(f"s_add_u32 s38, s38, {PHQ}")
    e("v_add_u32 v29, s38, v10")
    e.extend(stamp(0))
    e("s_setprio 1")
    gpass(8, 12, 19)
    e.extend(stamp(1))
    for u in (1, 0):
        a = ACC + 16 * u
        for i in range(8, 16, 2): e(f"v_pk_mul_f32 {vr(a+i,2)}, {vr(a+i,2)}, s[76:77] op_sel_hi:[1,0]")
        d = 76 if u else 4
        for q in range(4): e(f"v_cvt_pk_bf16_f32 v{d+q}, v{a+8+2*q}, v{a+8+2*q+1}")
        if u: e("ds_write_b128 v28, v[76:79]")
        for q in range(4): e(f"v_cvt_pk_bf16_f32 v{PH[u]+q}, v{a+2*q}, v{a+2*q+1}")
        e(f"ds_write_b128 v29, {vr(PH[u],4)} offset:{u*1024}")
    e("s_waitcnt lgkmcnt(0)")
    e.extend(stamp(2))
    e("s_barrier")
    e.label("L_attn")
    e.extend(stamp(3))
    e("s_setprio 2")
    e(f"ds_read_b128 {vr(KF[0],4)}, v{AK}")
    e(f"ds_read_b128 {vr(KF[1],4)}, v{AK} offset:2048")
    e("s_mov_b64 exec, s[20:21]")
    e(f"ds_read_b128 {vr(VF[0],4)}, v{AV}")
    e(f"ds_read_b128 {vr(VF[0]+4,4)}, v{AV} offset:512")
    e("s_mov_b64 exec, -1")
    for i in range(0, 16, 2): e(f"v_mov_b64 {vr(O+i,2)}, 0")
    for i in range(0, 4, 2): e(f"v_mov_b64 {vr(PK+4+i,2)}, 0")
    e("s_waitcnt lgkmcnt(0)")
    e(mfma(S[0], KF[0], Q, None))
    e(mfma(S[1], KF[1], Q, None))
    e(f"v_max3_f32 v{T}, v{S[0]}, v{S[0]+1}, v{S[0]+2}")
    rest = list(range(S[0] + 3, S[0] + 32))
    while len(rest) >= 2:
        e(f"v_max3_f32 v{T}, v{T}, v{rest[0]}, v{rest[1]}"); rest = rest[2:]
    if rest: e(f"v_max_f32 v{T}, v{T}, v{rest[0]}")
    def setnm():
        e(f"v_mov_b32 v{T+1}, v{T}")
        e(f"v_permlane32_swap_b32 v{T}, v{T+1}")
        e(f"v_max_f32 v{T}, v{T}, v{T+1}")
        for i in range(2): e(f"v_sub_f32 v{NM+i}, 0, v{T}")
        for i in range(2, 16, 2): e(f"v_mov_b64 {vr(NM+i,2)}, {vr(NM,2)}")
    setnm()
    e(mfma(S[0], KF[0], Q, NM))
    e("s_nop 7"); e("s_nop 1")
    body = Emitter()
    ex = lambda i: f"v_exp_f32 v{i}, v{i}"
    for j in range(U):
        a = j & 1; b = a ^ 1; Sa = S[a]
        cv = lambda q: f"v_cvt_pk_bf16_f32 v{PK+q}, v{Sa+2*q}, v{Sa+2*q+1}"
        body(mfma(S[b], KF[b], Q, NM))
        body(f"ds_read_b128 {vr(KF[a],4)}, v{AK} offset:{(j+2)*2048}")
        for i in range(7): body(ex(Sa + i))
        body(mfma(O, VF[b] + 4, PK + 4, O))
        body("s_mov_b64 exec, s[20:21]")
        body(f"ds_read_b128 {vr(VF[b],4)}, v{AV} offset:{(j+1)*2048}")
        body(f"ds_read_b128 {vr(VF[b]+4,4)}, v{AV} offset:{(j+1)*2048+512}")
        body("s_mov_b64 exec, -1")
        body(ex(Sa + 7)); body(ex(Sa + 8))
        for q in range(4): body(cv(q))
        body(ex(Sa + 9)); body(ex(Sa + 10))
        body("s_waitcnt lgkmcnt(3)")
        body(mfma(O, VF[a], PK, O))
        for i in range(11, 16): body(ex(Sa + i))
        if j == U - 1:
            body(f"v_add_u32 v{AK}, {U*2048}, v{AK}")
            body(f"v_add_u32 v{AV}, {U*2048}, v{AV}")
            body("s_add_u32 s23, s23, 1")
            body("s_cmp_lt_u32 s23, s22")
        for q in range(4, 8): body(cv(q))
        body("s_waitcnt lgkmcnt(2)")
    rep = []
    fix_hazards(body.lines, pre=body.lines, report=rep)
    assert not rep, rep
    e(".p2align 6")
    e.label("L_loop")
    if OPT.get("trace") == 3:
        e.extend(["s_memtime s[96:97]", "s_waitcnt lgkmcnt(0)", "s_sub_u32 s96, s96, s94", "s_lshl_b32 s97, s23, 1", "s_add_u32 m0, s97, 1", "v_writelane_b32 v111, s96, m0"])
    e.extend(body.lines)
    e("s_cbranch_scc1 L_loop")
    e(f"s_cmp_lg_u32 s22, {SEG[3]}")
    e("s_cbranch_scc1 L_seg")
    e(mfma(O, VF[1] + 4, PK + 4, O))
    e.extend(stamp(4))
    e(f"ds_read_b32 v{T+4}, v{T+4}")
    e(f"v_lshlrev_b32 v{AK}, 4, v1")
    e(f"v_cmp_ngt_f32 s[36:37], s39, v{O+8}")
    e(f"v_rcp_f32 v{T}, v{O+8}")
    for i in range(8):
        e(f"v_cmp_class_f32 vcc, v{O+i}, v{T+3}")
        e("s_or_b64 s[36:37], s[36:37], vcc")
    e("s_cbranch_scc1 L_fallback")
    e.label("L_fin")
    e(f"v_mul_f32 v{T}, v{T}, v{T+2}")
    for i in range(0, 8, 2): e(f"v_pk_mul_f32 {vr(O+i,2)}, {vr(O+i,2)}, {vr(T,2)} op_sel_hi:[1,0]")
    for q in range(4): e(f"v_cvt_pk_bf16_f32 v{O+q}, v{O+2*q}, v{O+2*q+1}")
    e("s_waitcnt lgkmcnt(0)")
    e(f"v_cmp_eq_u32 vcc, 0, v{T+4}")
    e("s_cbranch_vccnz L_far")
    e(f"buffer_store_dwordx4 {vr(O,4)}, v{AK}, s[24:27], s43 offen")
    if OPT["stamp"] == 1: e("s_branch L_cend")
    else: e("s_endpgm")
    e.label("L_far")
    e(f"buffer_store_dwordx4 {vr(O,4)}, v{AK}, s[24:27], s43 offen sc1")
    e.label("L_cend")
    e.extend(stamp(5))
    if OPT.get("trace") == 3: e("v_mov_b32 v159, v111")
    if OPT["stamp"] == 1: stamp_end(e, 40)
    e("s_endpgm")
    e.label("L_seg")
    e(f"s_cmp_eq_u32 s22, {SEG[1]}")
    e("s_cbranch_scc1 L_seg1")
    e(f"s_cmp_gt_u32 s22, {SEG[1]}")
    e("s_cbranch_scc1 L_seg2")
    e(f"s_mov_b32 s22, {SEG[1]}")
    e("s_cmp_lg_u32 s40, 0")
    e("s_cbranch_scc1 L_seg0b")
    e("s_lshl_b32 s38, s45, 5")
    e("s_add_u32 s38, s38, s28")
    e("s_lshl_b32 s38, s38, 3")
    e(f"s_add_u32 s38, s38, {F3}")
    e("s_waitcnt vmcnt(0)")
    flag_store(e, "s38", T)
    e.label("L_seg0b")
    lds_wait(e, C_KVALL, 4, T, sleep=1)
    e("s_branch L_loop")
    e.label("L_seg1")
    e(f"s_mov_b32 s22, {SEG[2]}")
    lds_add(e, C_PROG, T)
    lds_wait(e, C_GOK, 4, T)
    e("s_lshl_b32 s38, s46, 7")
    e(f"s_add_u32 s38, s38, {C_GATE}")
    e(f"v_and_b32 v{T}, 31, v1")
    e(f"v_lshl_add_u32 v{T}, v{T}, 2, s38")
    e(f"ds_read_b32 v{T+2}, v{T}")
    e(f"v_mov_b32 v{T+3}, 0x207")
    e(f"v_mov_b32 v{T+4}, {C_LOC}")
    e(f"s_mov_b32 s39, {fbits(2.0**120)}")
    e("s_waitcnt lgkmcnt(0)")
    e(f"v_sub_f32 v{T+2}, 1.0, v{T+2}")
    e(f"v_cvt_pk_bf16_f32 v{T+2}, v{T+2}, v{T+2}")
    e(f"v_and_b32 v{T+2}, 0xffff0000, v{T+2}")
    e("s_cmp_lg_u32 s40, 0")
    e("s_cbranch_scc1 L_loop")
    e("s_setprio 1")
    e(f"s_mov_b32 s22, {OPT.get('kdrop', SEG[2])}")
    e("s_branch L_loop")
    e.label("L_seg2")
    e(f"s_mov_b32 s22, {SEG[3]}")
    e("s_setprio 1")
    e("s_cmp_lg_u32 s40, 0")
    e("s_cbranch_scc1 L_loop")
    e("s_setprio 0")
    e("s_branch L_loop")
    e.label("L_fallback")
    e("s_waitcnt lgkmcnt(0)")
    e(f"v_add_u32 v{AV}, {-64*2048 & 0xffffffff}, v{AV}")
    e(f"v_mov_b32 v{T}, 0xff800000")
    e("s_mov_b32 s38, 0")
    e.label("L_fb1")
    e(f"buffer_load_dwordx4 {vr(KF[0],4)}, v{AK}, s[24:27], s38 offen sc1")
    e("s_add_u32 s38, s38, 2048")
    e("s_waitcnt vmcnt(0)")
    e(mfma(S[0], KF[0], Q, None))
    for i in range(8): e(f"v_max3_f32 v{T}, v{T}, v{S[0]+2*i}, v{S[0]+2*i+1}")
    e("s_cmp_lt_u32 s38, 0x20000")
    e("s_cbranch_scc1 L_fb1")
    setnm()
    for i in range(16): e(f"v_mov_b32 v{O+i}, 0")
    e("s_mov_b32 s38, 0")
    e.label("L_fb2")
    e(f"buffer_load_dwordx4 {vr(KF[0],4)}, v{AK}, s[24:27], s38 offen sc1")
    e("s_mov_b64 exec, s[20:21]")
    e(f"buffer_load_dwordx4 {vr(VF[0],4)}, v{AV}, s[24:27], s38 offen sc1")
    e(f"buffer_load_dwordx4 {vr(VF[0]+4,4)}, v{AV}, s[24:27], s38 offen offset:512 sc1")
    e("s_mov_b64 exec, -1")
    e("s_add_u32 s38, s38, 2048")
    e("s_waitcnt vmcnt(0)")
    e(mfma(S[0], KF[0], Q, NM))
    for i in range(16): e(ex(S[0] + i))
    for q in range(8): e(f"v_cvt_pk_bf16_f32 v{PK+q}, v{S[0]+2*q}, v{S[0]+2*q+1}")
    e(mfma(O, VF[0], PK, O))
    e(mfma(O, VF[0] + 4, PK + 4, O))
    e("s_nop 7")
    e("s_cmp_lt_u32 s38, 0x20000")
    e("s_cbranch_scc1 L_fb2")
    e("s_nop 7"); e("s_nop 7")
    e(f"v_rcp_f32 v{T}, v{O+8}")
    e("s_branch L_fin")
    return fix_hazards(e.lines if OPT.get("pk", 1) else unpk(e.lines))

def build():
    hdr = open("cdna_kernels/%s.s.ref" % NAME).read().split("\n")
    hdr = [l for l in hdr if l.startswith(";") and "@launch" not in l]
    out = list(hdr)
    out.append(f"; @launch grid=(256,1,1) block=(768,1,1) lds={LDS_BYTES}")
    out.append('.amdgcn_target "amdgcn-amd-amdhsa--gfx950"')
    out.append(".text")
    k = NAME + "_kernel"
    out += [f".globl {k}", ".p2align 8", f".type {k},@function", f"{k}:"]
    out += gen()
    out.append('.section .rodata,"a"')
    out.append(f""".p2align 6
.amdhsa_kernel {k}
  .amdhsa_next_free_vgpr 168
  .amdhsa_next_free_sgpr {102 if OPT['stamp'] else 80}
  .amdhsa_accum_offset 168
  .amdhsa_group_segment_fixed_size 0
  .amdhsa_kernarg_size 104
  .amdhsa_user_sgpr_count 2
  .amdhsa_user_sgpr_kernarg_segment_ptr 1
  .amdhsa_system_sgpr_workgroup_id_x 1
.end_amdhsa_kernel
""")
    return "\n".join(out) + "\n"

if __name__ == "__main__":
    dst = "f.s"
    for a in sys.argv[1:]:
        k, v = a.split("=")
        if k == "out": dst = v
        elif "," in v: OPT[k] = tuple(int(x) for x in v.split(","))
        else: OPT[k] = int(v)
    open(dst, "w").write(build())
    print("wrote", dst)
```

```python
import sys, math, struct
from asmlib import *

NAME = "gated_mix__linear_kernel_hedgehog__grouped_kv_mqa__prompt"
WS_KVB  = 0x000000
WS_GATE = 0x020000
WS_FL   = 0x024000
F1 = WS_FL; FG = WS_FL + 0x400; F3 = WS_FL + 0x1000; F3P = WS_FL + 0x3000; F4 = WS_FL + 0x4000
WS_EPOCH = WS_FL + 0x800
FP = WS_FL + 0x4000
WS_KVF  = 0x030000
WS_PART = 0x100000
WS_OC   = 0x500000
WS_STAMP = 0x900000
WS_SIZE = 0xB00000
XT = 65536; EXT = 0; S5 = 131072; PHQ = 131072; HND = 147456; WPH = 155648; MISC = 157696
LDS_BYTES = 158720
C_KVALL = MISC; C_PROG = MISC + 4; C_HS = MISC + 8; C_GOK = MISC + 12; C_LOC = MISC + 16; C_GATE = MISC + 64

def fbits(x): return "0x%08x" % struct.unpack("<I", struct.pack("<f", x))[0]
LOG2E = math.log2(math.e)
OPT = dict(map=2, rot=1, round_pq=0, stamp=0, spin=1 << 16)

def srd(e, d, lo, nbytes):
    e(f"s_mov_b32 s{d}, s{lo}")
    e(f"s_mov_b32 s{d+1}, s{lo+1}")
    e(f"s_mov_b32 s{d+2}, {hex(nbytes)}")
    e(f"s_mov_b32 s{d+3}, 0x00020000")

def stamp_begin(e):
    if OPT["stamp"]:
        e("s_memrealtime s[92:93]")
        e("s_memtime s[94:95]")
        for k in range(6): e(f"s_mov_b32 s{80+2*k}, 0")
def stamp(k):
    return [f"s_memtime s[{80+2*k}:{81+2*k}]"] if OPT["stamp"] else []
def trace(idx):
    if not OPT.get("trace"): return []
    return ["s_memtime s[96:97]", "s_waitcnt lgkmcnt(0)", "s_sub_u32 s96, s96, s94", f"v_writelane_b32 v159, s96, {idx}"]
def stamp_end(e, vt):
    if OPT.get("trace"):
        e(f"v_lshlrev_b32 v{vt}, 2, v0")
        e("s_mul_i32 s100, s2, 3072")
        e(f"s_add_u32 s100, s100, {WS_STAMP + 0x40000}")
        e(f"buffer_store_dword v159, v{vt}, s[24:27], s100 offen")
    if OPT["stamp"]:
        e("s_waitcnt vmcnt(0)")
        e("s_memrealtime s[96:97]")
        e("s_memtime s[98:99]")
        e("s_waitcnt lgkmcnt(0)")
        for r in (98, 80, 82, 84, 86, 88, 90): e(f"s_sub_u32 s{r}, s{r}, s94")
        e(f"v_lshrrev_b32 v{vt+12}, 6, v0")
        e(f"v_lshlrev_b32 v{vt+12}, 6, v{vt+12}")
        e("s_lshl_b32 s100, s2, 10")
        e(f"s_add_u32 s100, s100, {WS_STAMP}")
        for i, r in enumerate((92, 96, 98, 80, 82, 84, 86, 88, 90, 90, 90, 90)):
            e(f"v_mov_b32 v{vt+i}, s{r}")
        for q in range(3):
            e(f"buffer_store_dwordx4 v[{vt+4*q}:{vt+4*q+3}], v{vt+12}, s[24:27], s100 offen offset:{16*q}")

def phi_unit(P, T, O):
    l = []
    if OPT["round_pq"]:
        for q in range(4): l.append(f"v_cvt_pk_bf16_f32 v{P+8+q}, v{P+2*q}, v{P+2*q+1}")
        for q in range(4):
            l.append(f"v_lshlrev_b32 v{P+2*q}, 16, v{P+8+q}")
            l.append(f"v_and_b32 v{P+2*q+1}, 0xffff0000, v{P+8+q}")
    A = T; B = T + 2
    l += [f"v_max3_f32 v{A}, v{P}, v{P+1}, v{P+2}",
          f"v_max3_f32 v{B}, -v{P}, -v{P+1}, -v{P+2}",
          f"v_max3_f32 v{A}, v{A}, v{P+3}, v{P+4}",
          f"v_max3_f32 v{B}, v{B}, -v{P+3}, -v{P+4}",
          f"v_max3_f32 v{A}, v{A}, v{P+5}, v{P+6}",
          f"v_max3_f32 v{B}, v{B}, -v{P+5}, -v{P+6}",
          f"v_max_f32 v{A}, v{A}, v{P+7}",
          f"v_max_f32_e64 v{B}, v{B}, -v{P+7}",
          f"v_permlane32_swap_b32 v{A}, v{B}",
          f"v_max_f32 v{A}, v{A}, v{B}",
          f"v_mul_f32 v{A}, s75, v{A}",
          f"v_mov_b32 v{B}, v{A}",
          f"v_permlane32_swap_b32 v{A}, v{B}"]
    if OPT.get("pk", 1):
        for i in range(0, 8, 2):
            l.append(f"v_pk_fma_f32 {vr(P+8+i,2)}, {vr(P+i,2)}, s[74:75], {vr(B,2)} op_sel_hi:[1,0,0] neg_lo:[1,0,0] neg_hi:[1,0,0]")
            l.append(f"v_pk_fma_f32 {vr(P+i,2)}, {vr(P+i,2)}, s[74:75], {vr(A,2)} op_sel_hi:[1,0,0]")
    else:
        for i in range(8):
            l.append(f"v_fma_f32 v{P+8+i}, -v{P+i}, s74, v{B}")
            l.append(f"v_fma_f32 v{P+i}, v{P+i}, s74, v{A}")
    for i in range(16): l.append(f"v_exp_f32 v{P+i}, v{P+i}")
    for sg in range(2):
        l.append(f"v_pk_add_f32 {vr(O+4*sg,2)}, {vr(P+8*sg,2)}, {vr(P+8*sg+2,2)}")
        l.append(f"v_pk_add_f32 {vr(O+4*sg+2,2)}, {vr(P+8*sg+4,2)}, {vr(P+8*sg+6,2)}")
    for sg in range(2):
        l.append(f"v_pk_add_f32 {vr(O+4*sg,2)}, {vr(O+4*sg,2)}, {vr(O+4*sg+2,2)}")
    for sg in range(2):
        l.append(f"v_add_f32 v{T+2*sg}, v{O+4*sg}, v{O+4*sg+1}")
    l += [f"v_permlane32_swap_b32 v{A}, v{B}",
          f"v_add_f32 v{A}, v{A}, v{B}",
          f"v_rcp_f32 v{A}, v{A}",
          f"v_mov_b32 v{B}, v{A}",
          f"v_permlane32_swap_b32 v{A}, v{B}"]
    for i in range(0, 8, 2):
        l.append(f"v_pk_mul_f32 {vr(P+i,2)}, {vr(P+i,2)}, {vr(A,2)} op_sel_hi:[1,0]")
        l.append(f"v_pk_mul_f32 {vr(P+8+i,2)}, {vr(P+8+i,2)}, {vr(B,2)} op_sel_hi:[1,0]")
    for q in range(8): l.append(f"v_cvt_pk_bf16_f32 v{O+q}, v{P+2*q}, v{P+2*q+1}")
    return l

import re as _re
def unpk(lines):
    out = []
    for l in lines:
        m = _re.match(r"\s*v_pk_(add|mul)_f32 v\[(\d+):\d+\], v\[(\d+):\d+\], ([vs])\[(\d+):\d+\](.*)", l)
        if not m: out.append(l); continue
        op, d, a, k, b, mods = m.group(1), int(m.group(2)), int(m.group(3)), m.group(4), int(m.group(5)), m.group(6)
        bc = "op_sel_hi:[1,0]" in mods
        assert mods.strip() in ("", "op_sel_hi:[1,0]"), l
        for i in range(2):
            out.append(f"    v_{op}_f32 v{d+i}, {k}{b if bc else b+i}, v{a+i}")
    return out

def spread(mm, r):
    out = []; n = len(mm); k = 0
    for i, x in enumerate(mm):
        out.append(x)
        hi = (len(r) * (i + 1) + n - 1) // n
        out += r[k:hi]; k = max(k, hi)
    return out + r[k:]

_uid = [0]
def uid(p):
    _uid[0] += 1
    return f"{p}_{_uid[0]}"

def flag_store(e, soff, vt):
    e(f"v_mov_b32 v{vt}, s78")
    e(f"v_mov_b32 v{vt+1}, s79")
    e(f"v_mov_b32 v{vt+2}, 0")
    e("s_mov_b64 exec, 1")
    e(f"buffer_store_dwordx2 {vr(vt,2)}, v{vt+2}, s[24:27], {soff} offen sc1")
    e("s_mov_b64 exec, -1")

def flag_poll(e, vaddr, vt, sleep=4):
    L = uid("FP"); D = uid("FD")
    e("s_mov_b32 s77, 0")
    e.label(L)
    e(f"buffer_load_dwordx2 {vr(vt,2)}, v{vaddr}, s[24:27], 0 offen sc1")
    e("s_add_u32 s77, s77, 1")
    e("s_waitcnt vmcnt(0)")
    e(f"v_cmp_ne_u64 vcc, s[78:79], {vr(vt,2)}")
    e(f"s_cbranch_vccz {D}")
    e(f"s_cmp_gt_u32 s77, {OPT['spin']}")
    e(f"s_cbranch_scc1 {D}")
    if sleep: e(f"s_sleep {sleep}")
    e(f"s_branch {L}")
    e.label(D)

def lds_add(e, addr, vt):
    e(f"v_mov_b32 v{vt}, {addr}")
    e(f"v_mov_b32 v{vt+1}, 1")
    e("s_mov_b64 exec, 1")
    e(f"ds_add_u32 v{vt}, v{vt+1}")
    e("s_mov_b64 exec, -1")

def lds_wait(e, addr, target, vt, sleep=4):
    L = uid("LW"); D = uid("LD")
    e(f"v_mov_b32 v{vt}, {addr}")
    e("s_mov_b32 s77, 0")
    e.label(L)
    e(f"ds_read_b32 v{vt+1}, v{vt}")
    e("s_add_u32 s77, s77, 1")
    e("s_waitcnt lgkmcnt(0)")
    e(f"v_cmp_gt_u32 vcc, {target}, v{vt+1}")
    e(f"s_cbranch_vccz {D}")
    e(f"s_cmp_gt_u32 s77, {OPT['spin']*8}")
    e(f"s_cbranch_scc1 {D}")
    e(f"s_sleep {sleep}")
    e(f"s_branch {L}")
    e.label(D)

def gen():
    e = Emitter()
    ORD = {0: "x0 x1 x2 x3 w0 w1 w2 w3 w4 w5 w6 w7 w8",
           1: "x0 x1 x2 x3 w0 w8",
           2: "x0 w0 w8 x1 x2 x3",
           3: "x0 w0 x1 x2 x3 w8",
           4: "x0 x1 w0 x2 x3 w8",
           5: "x0 x1 x2 w0 x3 w8",
           6: "x0 w0 x1 w8 x2 x3"}[OPT.get("ord", 1)].split()
    ORD += [f"w{g}" for g in range(16) if f"w{g}" not in ORD]
    POS = {n: i for i, n in enumerate(ORD)}
    XL = POS["x3"]
    ring = [n for n in ORD if n[0] == "w" and n != "w8"]
    SLOT = {int(n[1:]): ((r + 1) % 4) * 16384 for r, n in enumerate(ring)}
    SLOT[8] = S5
    USE = {}; last = -1
    for c in range(8):
        last = max(POS[f"w{c}"], POS[f"x{c//2}"], last + 1); USE[c] = last
    last = XL + 1
    for c in range(8, 16):
        last = max(POS[f"w{c}"], last + 1); USE[c] = last
    assert USE[15] == 19
    e("s_cmp_ge_u32 s2, 256")
    e("s_cbranch_scc1 L_done")
    e("s_load_dwordx16 s[48:63], s[0:1], 0")
    e("s_load_dwordx8 s[64:71], s[0:1], 64")
    e("s_load_dwordx2 s[72:73], s[0:1], 96")
    stamp_begin(e)
    if OPT.get("trace"): e("v_mov_b32 v159, 0")
    e("v_and_b32 v1, 63, v0")
    e("v_lshrrev_b32 v11, 6, v0")
    e("v_readfirstlane_b32 s30, v11")
    e("s_and_b32 s36, s2, 7")
    e("s_lshr_b32 s37, s2, 3")
    lc = {0: 1, 1: 2, 2: 3}[OPT["map"]]
    e(f"s_and_b32 s29, s36, {(8>>lc)-1}")
    e(f"s_lshl_b32 s29, s29, {lc}")
    e(f"s_lshr_b32 s38, s37, {5-lc}")
    e("s_or_b32 s29, s29, s38")
    e(f"s_lshr_b32 s28, s36, {3-lc}")
    e(f"s_lshl_b32 s28, s28, {5-lc}")
    e(f"s_and_b32 s38, s37, {(32>>lc)-1}")
    e("s_add_u32 s28, s28, s38")
    if OPT["rot"] == 1:
        e("s_add_u32 s31, s28, s29"); e("s_lshl_b32 s31, s31, 1"); e("s_and_b32 s31, s31, 6")
    elif OPT["rot"] == 3:
        e("s_lshl_b32 s31, s29, 1"); e("s_add_u32 s31, s31, s28"); e("s_and_b32 s31, s31, 7")
    elif OPT["rot"] == 4:
        e("s_add_u32 s31, s28, s29"); e("s_and_b32 s31, s31, 7")
    elif OPT["rot"] == 5:
        e("s_lshl_b32 s31, s28, 1"); e("s_add_u32 s31, s31, s29"); e("s_and_b32 s31, s31, 7")
    elif OPT["rot"] == 2:
        e("s_add_u32 s31, s28, s29"); e("s_lshl_b32 s31, s31, 2"); e("s_and_b32 s31, s31, 4")
    else:
        e("s_mov_b32 s31, 0")
    e("v_lshlrev_b32 v10, 4, v1")
    e("s_cmp_lt_u32 s30, 8")
    e("s_cbranch_scc1 L_compute")
    e("s_setprio 3")
    e("s_sub_u32 s30, s30, 8")
    e("v_lshrrev_b32 v11, 3, v1")
    e("v_and_b32 v12, 7, v1")
    e("v_lshrrev_b32 v13, 4, v1")
    e("v_xor_b32 v14, v12, v13")
    e("v_lshlrev_b32 v14, 4, v14")
    e("v_lshl_add_u32 v2, v11, 10, v14")
    e("v_xor_b32 v3, 64, v2")
    e("v_add_u32 v3, 7168, v3")
    e("s_lshl_b32 s32, s28, 16")
    e("s_lshl_b32 s38, s30, 14")
    e("s_add_u32 s32, s32, s38")
    e("s_lshl_b32 s41, s30, 11")
    e("s_lshl_b32 s40, s30, 12")
    e("s_mov_b32 s36, s31")
    e("v_and_b32 v13, 1, v13")
    e("v_lshlrev_b32 v13, 1, v13")
    e("v_xor_b32 v14, v12, v13")
    e("v_lshlrev_b32 v14, 4, v14")
    e("v_mul_u32_u24 v6, 3072, v11")
    e("v_add_u32 v6, v6, v14")
    e(f"v_add_u32 v7, {8*3072-1024}, v6")
    e("v_xor_b32 v8, 64, v6")
    e(f"v_add_u32 v9, {8*3072-1024}, v8")
    e("s_lshl_b32 s38, s29, 7")
    e("s_mul_i32 s33, s30, 49152")
    e("s_add_u32 s33, s33, s38")
    e("v_xor_b32 v14, 64, v14")
    e("v_lshl_add_u32 v4, v11, 10, v14")
    e("v_add_u32 v5, 7168, v4")
    e("s_lshl_b32 s34, s30, 14")
    e("s_add_u32 s34, s34, s38")
    e("s_waitcnt lgkmcnt(0)")
    e.extend(trace(60))
    srd(e, 4, 48, 2048*512*2)
    srd(e, 8, 50, 512*1536*2)
    srd(e, 12, 58, 512*512*2)
    e("s_cmp_gt_u32 s29, 2")
    e("s_cbranch_scc1 L_noext")
    e("s_cmp_eq_u32 s29, 0")
    e("s_cselect_b32 s16, s60, s62")
    e("s_cselect_b32 s17, s61, s63")
    e("s_cmp_eq_u32 s29, 2")
    e("s_cselect_b32 s16, s66, s16")
    e("s_cselect_b32 s17, s67, s17")
    e("s_mov_b32 s18, 16384")
    e("s_cselect_b32 s18, 1024, s18")
    e("s_mov_b32 s19, 0x00020000")
    e("s_mov_b32 m0, s40")
    for i in range(4):
        e(f"buffer_load_dwordx4 v10, s[16:19], s40 offen offset:{i*1024} lds")
    e.label("L_noext")
    def item(i):
        l = []; nm = ORD[i]; idx = int(nm[1:])
        if nm[0] == "x":
            for q in range(2):
                l.append("s_lshl_b32 s38, s31, 7")
                l.append("s_add_u32 s38, s38, s32")
                l.append(f"s_add_u32 m0, s41, {XT + (2*idx+q)*8192}")
                l.append("s_add_u32 s31, s31, 1")
                for k in range(2):
                    l.append(f"buffer_load_dwordx4 v{2+k}, s[4:7], s38 offen offset:{k*1024} lds")
                l.append("s_and_b32 s31, s31, 7")
        else:
            g = idx
            l.append(f"s_add_u32 s35, s36, {g % 8}")
            l.append("s_and_b32 s35, s35, 7")
            l.append("s_mul_i32 s39, s35, 196608")
            l.append("s_add_u32 s39, s39, s33")
            l.append(f"s_add_u32 m0, s41, {SLOT[g]}")
            if g < 8: l.append("s_add_u32 s39, s39, 1024")
            else: l.append("s_lshl_b32 s38, s35, 16")
            for k in range(2):
                l.append(f"buffer_load_dwordx4 v{6+k}, s[8:11], s39 offen offset:{k*1024} lds")
            l.append(f"s_add_u32 m0, s41, {SLOT[g]+8192}")
            if g < 8:
                l.append("s_add_u32 s39, s39, 1024")
                for k in range(2):
                    l.append(f"buffer_load_dwordx4 v{8+k}, s[8:11], s39 offen offset:{k*1024} lds")
            else:
                l.append("s_add_u32 s38, s38, s34")
                for k in range(2):
                    l.append(f"buffer_load_dwordx4 v{4+k}, s[12:15], s38 offen offset:{k*1024} lds")
        return l
    def earliest(i):
        nm = ORD[i]; idx = int(nm[1:])
        if nm[0] == "x" or idx == 8: return -1
        r = ring.index(nm)
        if r < 3: return -1
        if r == 3: return XL + 1
        return USE[int(ring[r - 4][1:])] + 1
    DEP = OPT.get("dep", 3)
    for i in range(DEP): e.extend(item(i))
    e.extend(trace(61))
    e(f"s_load_dwordx2 s[78:79], s[72:73], {hex(WS_EPOCH)}")
    srd(e, 20, 52, 32*16*16*2)
    srd(e, 24, 72, WS_SIZE)
    e("s_and_b32 s46, s30, 1")
    e("s_lshr_b32 s47, s30, 1")
    e("v_bfe_u32 v13, v1, 4, 1")
    e("v_lshlrev_b32 v15, 2, v13")
    e("v_xor_b32 v15, v12, v15")
    e("v_lshlrev_b32 v15, 4, v15")
    e("v_lshl_add_u32 v144, v11, 10, v15")
    for k in range(1, 4): e(f"v_add_u32 v{144+k}, {k*7168}, v144")
    e("v_lshrrev_b32 v16, 5, v1")
    e("v_bfe_u32 v15, v1, 2, 2")
    e("v_lshl_add_u32 v148, v16, 2, v15")
    e("v_lshlrev_b32 v148, 7, v148")
    e("v_lshrrev_b32 v15, 1, v15")
    e("v_xor_b32 v15, s47, v15")
    e("v_lshl_add_u32 v148, v15, 6, v148")
    e("v_lshl_add_u32 v148, v13, 5, v148")
    e("v_and_b32 v15, 3, v1")
    e("v_lshl_add_u32 v148, v15, 3, v148")
    e("s_lshl_b32 s38, s47, 15")
    e("v_add_u32 v148, s38, v148")
    e("v_xor_b32 v149, 64, v148")
    e(f"s_add_u32 s38, s40, {PHQ}")
    e("v_add_u32 v150, s38, v10")
    e("v_xor_b32 v151, 0x2000, v150")
    e("v_and_b32 v155, 31, v1")
    e("v_lshlrev_b32 v152, 10, v155")
    e("v_lshl_add_u32 v152, v16, 4, v152")
    e("v_lshlrev_b32 v155, 2, v155")
    e("v_and_b32 v153, 15, v1")
    e("v_lshlrev_b32 v153, 3, v153")
    e("v_lshl_add_u32 v153, v16, 7, v153")
    e("s_lshl_b32 s38, s30, 9")
    e(f"s_add_u32 s38, s38, {WPH}")
    e("v_add_u32 v153, s38, v153")
    e(f"s_add_u32 s38, s41, {PHQ}")
    e("v_add_u32 v154, s38, v10")
    e("v_lshlrev_b32 v156, 3, v1")
    e("s_getreg_b32 s37, hwreg(HW_REG_XCC_ID, 0, 4)")
    e(f"s_mov_b32 s74, {fbits(LOG2E)}")
    e(f"s_mov_b32 s75, {fbits(-LOG2E)}")
    e("v_and_b32 v15, 31, v1")
    e("v_lshlrev_b32 v15, 3, v15")
    e("s_lshl_b32 s38, s30, 8")
    e(f"s_add_u32 s38, s38, {F1}")
    e("v_add_u32 v15, s38, v15")
    e("s_lshl_b32 s42, s30, 10")
    assert WS_KVB == 0
    def kvdma(n):
        l = []
        for _ in range(n):
            l.append("s_mov_b32 m0, s42")
            l.append("s_nop 0")
            l.append("buffer_load_dwordx4 v10, s[24:27], s42 offen sc1 lds")
            l.append("s_add_u32 s42, s42, 4096")
        return l
    out = []
    e("s_and_b32 s38, s30, 1")
    e("s_lshl_b32 s38, s38, 10")
    e(f"s_add_u32 m0, s38, {WPH}")
    e("s_lshl_b32 s39, s29, 11")
    e("s_add_u32 s38, s38, s39")
    e("buffer_load_dwordx4 v10, s[20:23], s38 offen lds")
    for i in range(DEP): out += [i] * 4
    out.append("w")
    nxt = DEP
    def waitfor(tag):
        idx = max(k for k, t in enumerate(out) if t == tag)
        n = len(out) - 1 - idx
        del out[:idx + 1]
        return f"s_waitcnt vmcnt({n})"
    PA = OPT.get("pa", 14)
    poll = "buffer_load_dwordx2 v[16:17], v15, s[24:27], 0 offen sc1"
    e.extend(trace(62))
    for i in range(18):
        e(waitfor(i))
        e.extend(trace(2 * i))
        e("s_barrier")
        e.extend(trace(2 * i + 1))
        if i == 0:
            e.extend(stamp(0))
        if i == 8:
            e("s_waitcnt lgkmcnt(0)")
            e("s_add_u32 s78, s78, 1")
        while nxt <= min(19, i + DEP) and earliest(nxt) <= i:
            e.extend(item(nxt)); out += [nxt] * 4; nxt += 1
        assert nxt > i + 1
        if i == PA:
            e(poll); out.append("p")
    if "p" in out: e(waitfor("p"))
    e("v_cmp_ne_u64 vcc, s[78:79], v[16:17]")
    e("s_cbranch_vccnz L_kvlate")
    save = list(out)
    e.extend(kvdma(4)); out += ["k0"] * 4
    if 18 in out: e(waitfor(18))
    e("s_barrier")
    e.extend(kvdma(4)); out += ["k1"] * 4
    if 19 in out: e(waitfor(19))
    e("s_barrier")
    e.extend(kvdma(4)); out += ["k2"] * 4
    e.label("L_kv20")
    e("s_waitcnt vmcnt(4)")
    e("s_barrier")
    e("s_branch L_kvjoin")
    e.label("L_kvlate")
    out[:] = save
    e(poll); out.append("p")
    if 18 in out: e(waitfor(18))
    e("s_barrier")
    if 19 in out: e(waitfor(19))
    e("s_barrier")
    e("s_waitcnt vmcnt(0)")
    e("v_cmp_ne_u64 vcc, s[78:79], v[16:17]")
    e("s_cbranch_vccz L_kvlate2")
    flag_poll(e, 15, 16, sleep=0)
    e.label("L_kvlate2")
    e.extend(kvdma(12))
    e("s_branch L_kv20")
    e.label("L_kvjoin")
    e.extend(stamp(1))
    e.extend(kvdma(20))
    HQ = 16; HK = 32; HG = 40; HT = 42; HD = 48; HP = 80
    for u in range(2): e(f"ds_read_b128 {vr(HQ+8*u,4)}, v154 offset:{u*1024}")
    for u in range(2): e(f"ds_read_b64_tr_b16 {vr(HK+2*u,2)}, v153 offset:{u*256}")
    e("s_lshl_b32 s38, s28, 4")
    e(f"s_add_u32 s38, s38, {FG}")
    e(f"v_and_b32 v{HT+4}, 8, v156")
    e(f"v_add_u32 v{HT+4}, s38, v{HT+4}")
    e("s_waitcnt vmcnt(0)")
    e.extend(trace(44))
    lds_add(e, C_KVALL, HT)
    e("s_lshl_b32 s45, s29, 2")
    e("s_lshl_b32 s36, s28, 7")
    e("s_add_u32 s36, s36, s45")
    e("s_add_u32 s36, s36, s30")
    e("s_lshl_b32 s36, s36, 10")
    e(f"s_add_u32 s36, s36, {WS_OC}")
    e(f"v_mov_b64 {vr(HD,2)}, -1")
    e(f"v_mov_b64 {vr(HD+2,2)}, -1")
    for i in range(4):
        e(f"s_add_u32 s38, s36, {i*32768}")
        e(f"buffer_store_dwordx4 {vr(HD,4)}, v10, s[24:27], s38 offen sc1")
    flag_poll(e, HT + 4, HT + 2)
    e("s_lshl_b32 s38, s28, 5")
    e("s_add_u32 s38, s38, s45")
    e("s_add_u32 s38, s38, s30")
    e("s_lshl_b32 s38, s38, 4")
    e(f"s_add_u32 s38, s38, {FP}")
    e(f"v_mov_b32 v{HD+4}, s78")
    e(f"v_mov_b32 v{HD+5}, s79")
    e(f"v_mov_b32 v{HD+6}, s37")
    e(f"v_mov_b32 v{HD+7}, 0")
    e("s_mov_b64 exec, 1")
    e(f"buffer_store_dwordx4 {vr(HD+4,4)}, v{HD+7}, s[24:27], s38 offen sc1")
    e("s_mov_b64 exec, -1")
    e("s_lshl_b32 s38, s28, 8")
    e(f"s_add_u32 s38, s38, {WS_GATE}")
    e(f"buffer_load_dword v{HG}, v155, s[24:27], s38 offen sc1")
    e(f"buffer_load_dword v{HG+1}, v155, s[24:27], s38 offen offset:128 sc1")
    e("s_waitcnt lgkmcnt(0)")
    for u in range(2): e(mfma(HD + 16 * u, HK, HQ + 8 * u, None))
    e.extend(interleave(*[phi_unit(HD + 16 * u, HP + 4 * u, HQ + 8 * u) for u in range(2)]))
    e(f"v_add_u32 v{HT}, {C_GATE}, v155")
    e("s_waitcnt vmcnt(0)")
    e(f"ds_write_b32 v{HT}, v{HG}")
    e(f"ds_write_b32 v{HT}, v{HG+1} offset:128")
    e("s_waitcnt lgkmcnt(0)")
    lds_add(e, C_GOK, HT)
    e.extend(trace(45))
    e("s_and_b32 s38, s28, 3")
    e("s_cmp_lg_u32 s38, s30")
    e("s_cbranch_scc1 L_nored")
    e("s_lshr_b32 s38, s28, 3")
    e("s_add_u32 s43, s45, s38")
    e("v_lshlrev_b32 v15, 1, v155")
    e("s_lshl_b32 s38, s43, 8")
    e(f"s_add_u32 s38, s38, {F3}")
    e(f"v_add_u32 v{HT}, s38, v15")
    flag_poll(e, HT, HT + 2)
    e.extend(trace(46))
    e("s_lshl_b32 s43, s43, 3")
    e("s_and_b32 s38, s28, 7")
    e("s_add_u32 s43, s43, s38")
    e("s_lshl_b32 s38, s43, 14")
    e(f"s_add_u32 s38, s38, {WS_PART}")
    for p in range(16):
        if p and p % 4 == 0: e("s_add_u32 s38, s38, 4096")
        e(f"buffer_load_dwordx4 {vr(HP+4*p,4)}, v10, s[24:27], s38 offen offset:{(p&3)*1024} sc1")
    e("s_waitcnt vmcnt(0)")
    e.extend(trace(47))
    for st in (32, 16, 8, 4):
        for i in range(0, st, 2): e(f"v_pk_add_f32 {vr(HP+i,2)}, {vr(HP+i,2)}, {vr(HP+st+i,2)}")
    e(f"v_permlane32_swap_b32 v{HP}, v{HP+2}")
    e(f"v_permlane32_swap_b32 v{HP+1}, v{HP+3}")
    e(f"v_pk_add_f32 {vr(HP,2)}, {vr(HP,2)}, {vr(HP+2,2)}")
    e(f"v_cvt_pk_bf16_f32 v{HP}, v{HP}, v{HP+1}")
    e(f"v_lshrrev_b32 v{HT}, 5, v1")
    e(f"v_lshl_add_u32 v{HT}, v{HT}, 2, v15")
    e("s_lshl_b32 s38, s43, 8")
    e(f"s_add_u32 s38, s38, {WS_KVF}")
    e(f"buffer_store_dword v{HP}, v{HT}, s[24:27], s38 offen sc1")
    e("s_lshl_b32 s38, s43, 3")
    e(f"s_add_u32 s38, s38, {F3P}")
    e("s_waitcnt vmcnt(0)")
    e.extend(trace(48))
    flag_store(e, "s38", HT)
    e.label("L_nored")
    e.extend(stamp(2))
    e("s_lshl_b32 s38, s28, 9")
    e(f"s_add_u32 s38, s38, {FP}")
    e("v_lshlrev_b32 v2, 2, v155")
    e("v_add_u32 v2, s38, v2")
    e("s_mov_b32 s77, 0")
    e("s_mov_b32 s35, 0")
    e.label("L_fpp")
    e(f"buffer_load_dwordx4 {vr(HD,4)}, v2, s[24:27], 0 offen sc1")
    e("s_add_u32 s77, s77, 1")
    e("s_waitcnt vmcnt(0)")
    e(f"v_cmp_ne_u64 vcc, s[78:79], {vr(HD,2)}")
    e("s_cbranch_vccz L_fpd")
    e("s_sleep 8")
    e(f"s_cmp_lt_u32 s77, {OPT['spin']}")
    e("s_cbranch_scc1 L_fpp")
    e("s_branch L_fpx")
    e.label("L_fpd")
    e(f"v_cmp_ne_u32 vcc, s37, v{HD+2}")
    e("s_cbranch_vccnz L_fpx")
    if OPT.get("loc", 1):
        lds_add(e, C_LOC, HT)
        e("s_mov_b32 s35, 1")
    e.label("L_fpx")
    e.extend(trace(57))
    e("s_add_u32 s45, s45, s30")
    e("s_lshl_b32 s38, s45, 6")
    e(f"s_add_u32 s38, s38, {F3P}")
    e(f"v_and_b32 v{HT}, 56, v156")
    e(f"v_add_u32 v{HT}, s38, v{HT}")
    flag_poll(e, HT, HT + 2)
    e.extend(trace(49))
    e("s_lshl_b32 s38, s45, 11")
    e(f"s_add_u32 s38, s38, {WS_KVF}")
    for q in range(4):
        e(f"buffer_load_dwordx2 {vr(HK+2*q,2)}, v156, s[24:27], s38 offen offset:{q*512} sc1")
    e("s_waitcnt vmcnt(0)")
    e.extend(trace(50))
    for u in range(2): e(mfma(HD + 16 * u, HK, HQ + 8 * u, None))
    for u in range(2): e(mfma(HD + 16 * u, HK + 4, HQ + 8 * u + 4, HD + 16 * u))
    for u in range(2):
        D = HD + 16 * u
        e(f"v_add_f32 v{HT}, {fbits(1e-6)}, v{D+8}")
        e(f"v_rcp_f32 v{HT}, v{HT}")
        e(f"v_mul_f32 v{HT}, v{HT}, v{HG+u}")
        for i in range(0, 8, 2): e(f"v_pk_mul_f32 {vr(D+i,2)}, {vr(D+i,2)}, {vr(HT,2)} op_sel_hi:[1,0]")
        for q in range(4): e(f"v_cvt_pk_bf16_f32 v{D+q}, v{D+2*q}, v{D+2*q+1}")
    e("s_add_u32 s38, s36, 65536")
    e(f"buffer_store_dwordx4 {vr(HD,4)}, v10, s[24:27], s36 offen sc1")
    e(f"buffer_store_dwordx4 {vr(HD+16,4)}, v10, s[24:27], s38 offen sc1")
    e.extend(trace(51))
    e.extend(stamp(3))
    ACC = [16, 32]; WFR = [48, 56, 132]; OF = 64; PT = 128
    srd(e, 4, 54, 512*512*2)
    srd(e, 8, 64, 512*512*2)
    srd(e, 12, 68, 2048*512*2)
    e("s_lshl_b32 s44, s28, 1")
    e("s_add_u32 s44, s44, s46")
    e("s_lshl_b32 s43, s44, 16")
    e("s_lshl_b32 s38, s47, 14")
    e("s_add_u32 s43, s43, s38")
    e(f"s_add_u32 s43, s43, {WS_OC}")
    def wdma(sd):
        e("s_lshl_b32 s38, s30, 17")
        e("s_lshl_b32 s39, s29, 7")
        e("s_add_u32 s38, s38, s39")
        e("s_lshl_b32 s39, s30, 14")
        for g in range(4):
            e("s_mov_b32 m0, s39")
            for k in range(4):
                e(f"buffer_load_dwordx4 v{144+k}, s[{sd}:{sd+3}], s38 offen offset:{k*1024} lds")
            if g < 3:
                e("s_add_u32 s38, s38, 32768")
                e("s_add_u32 s39, s39, 4096")
    def oload(base_add, g0=0):
        for g in range(g0, 4):
            e(f"s_add_u32 s38, s43, {base_add + g*4096}")
            for t in range(4 * g, 4 * g + 4):
                e(f"buffer_load_dwordx4 {vr(OF+4*t,4)}, v10, s[24:27], s38 offen offset:{(t&3)*1024} sc1")
    def rd(t):
        return [f"ds_read_b64_tr_b16 {vr(WFR[t%3]+4*nt+2*u,2)}, v{148+nt} offset:{(16*t+8*u)*128}" for nt in range(2) for u in range(2)]
    def step(t, first, fill=[]):
        if t < 14: e.extend(rd(t + 2))
        e(f"s_waitcnt lgkmcnt({4*min(2, 15-t)})")
        for nt in range(2):
            e(mfma(ACC[nt], WFR[t % 3] + 4 * nt, OF + 4 * t, None if (first and t == 0) else ACC[nt]))
            e.extend(fill[nt * 5:nt * 5 + 5])
    def check(g):
        b = OF + 16 * g
        l = [f"v_max3_u32 v{PT}, v{b}, v{b+1}, v{b+2}", f"v_max3_u32 v{PT+1}, v{b+3}, v{b+4}, v{b+5}"]
        for i in (6, 10):
            l += [f"v_max3_u32 v{PT}, v{PT}, v{b+i}, v{b+i+1}", f"v_max3_u32 v{PT+1}, v{PT+1}, v{b+i+2}, v{b+i+3}"]
        l += [f"v_max3_u32 v{PT}, v{PT}, v{b+14}, v{b+15}", f"v_max_u32 v{PT}, v{PT}, v{PT+1}", f"v_cmp_eq_u32 vcc, -1, v{PT}"]
        return l
    def pgemm(tag, first, pace):
        e("s_waitcnt vmcnt(12)")
        e.extend(check(0))
        for g in range(4):
            e(f"s_cbranch_vccnz L_retry{tag}{g}")
            e.label(f"L_go{tag}{g}")
            if g == 0 and not first: e.extend(trace(40))
            for t in range(4 * g, 4 * g + 4):
                if t % 4 == 3 and g < 3: step(t, first, [f"s_waitcnt vmcnt({8-4*g})"] + check(g + 1))
                else: step(t, first)
                if pace: e(f"s_sleep {pace}")
    lds_wait(e, C_PROG, 8, PT, sleep=8)
    e.extend(trace(54))
    wdma(4)
    oload(0)
    e("s_waitcnt vmcnt(16)")
    lds_add(e, C_HS, PT)
    lds_wait(e, C_HS, 4, PT)
    e.extend(trace(55))
    e.extend(rd(0) + rd(1))
    e("s_mov_b32 s77, 0")
    pgemm("A", True, OPT.get("pace", 2))
    e.extend(trace(56))
    lds_add(e, C_HS, PT)
    lds_wait(e, C_HS, 8, PT)
    e.extend(trace(58))
    wdma(8)
    e("s_lshl_b32 s36, s44, 15")
    e("s_lshl_b32 s39, s29, 7")
    e("s_add_u32 s36, s36, s39")
    e("s_lshl_b32 s39, s47, 6")
    e("s_add_u32 s36, s36, s39")
    e("s_mov_b32 s77, 0")
    e("s_waitcnt vmcnt(0)")
    e.extend(stamp(4))
    e("s_barrier")
    e.extend(stamp(5))
    oload(32768)
    e.extend(rd(0) + rd(1))
    pgemm("B", False, 0)
    e.extend(trace(42))
    if OPT.get("trace"): e("v_writelane_b32 v159, s77, 41")
    for q in range(4): e(f"ds_write_b128 v150, {vr(ACC[1]+4*q,4)} offset:{q*1024}")
    e("s_waitcnt lgkmcnt(0)")
    e("s_barrier")
    for q in range(4): e(f"ds_read_b128 {vr(OF+4*q,4)}, v151 offset:{q*1024}")
    A = ACC[0]
    for pr in range(2):
        e(f"s_waitcnt lgkmcnt({2-2*pr})")
        for i in range(8 * pr, 8 * pr + 8, 2): e(f"v_pk_add_f32 {vr(A+i,2)}, {vr(A+i,2)}, {vr(OF+i,2)}")
        for q in range(4): e(f"v_cvt_pk_bf16_f32 v{A+8*pr+q}, v{A+8*pr+2*q}, v{A+8*pr+2*q+1}")
    for pr in range(2):
        e(f"v_permlane32_swap_b32 v{A+8*pr}, v{A+8*pr+2}")
        e(f"v_permlane32_swap_b32 v{A+8*pr+1}, v{A+8*pr+3}")
    for pr in range(2):
        e(f"buffer_store_dwordx4 {vr(A+8*pr,4)}, v152, s[12:15], s36 offen offset:{pr*32}" + ["", " sc1", " nt", " sc0 sc1"][OPT.get("ost", 0)])
    e.extend(trace(43))
    e("s_or_b32 s38, s2, s30")
    e("s_cbranch_scc1 L_noepoch")
    e(f"s_mov_b32 s38, {WS_EPOCH}")
    flag_store(e, "s38", PT)
    e.label("L_noepoch")
    stamp_end(e, 64)
    e.label("L_done")
    e("s_endpgm")
    for tag, base in (("A", 0), ("B", 32768)):
        for g in range(4):
            e.label(f"L_retry{tag}{g}")
            if tag == "A": e("s_sleep 8")
            oload(base, g)
            e("s_add_u32 s77, s77, 1")
            e(f"s_waitcnt vmcnt({12-4*g})")
            e.extend(check(g))
            e(f"s_cbranch_vccz L_go{tag}{g}")
            e(f"s_cmp_lt_u32 s77, {OPT['spin']}")
            e(f"s_cbranch_scc1 L_retry{tag}{g}")
            e(f"s_branch L_go{tag}{g}")

    e.label("L_compute")
    ACC = 96; EACC = 128; WF = 144; I0 = 148; ONE = 156
    e("s_and_b32 s44, s30, 3")
    e("s_lshr_b32 s40, s30, 2")
    e("v_and_b32 v11, 31, v1")
    e("v_lshrrev_b32 v22, 5, v1")
    e("v_bfe_u32 v23, v1, 1, 3")
    e("v_xor_b32 v23, v23, v22")
    e("v_lshlrev_b32 v23, 4, v23")
    e("v_lshl_add_u32 v12, v11, 7, v23")
    e(f"v_add_u32 v12, {XT}, v12")
    for t in range(1, 4): e(f"v_xor_b32 v{12+t}, {32*t}, v12")
    su_w = ["v_lshrrev_b32 v22, 5, v1", "v_bfe_u32 v23, v1, 2, 2", "v_lshl_add_u32 v20, v22, 3, v23", "v_lshlrev_b32 v20, 7, v20",
            "v_bfe_u32 v23, v1, 3, 2", "v_xor_b32 v23, s44, v23", "v_lshl_add_u32 v20, v23, 5, v20", "v_bfe_u32 v24, v1, 4, 1",
            "v_lshl_add_u32 v20, v24, 13, v20", "v_and_b32 v23, 3, v1", "v_lshl_add_u32 v20, v23, 3, v20"]
    su_s = ["s_lshl_b32 s45, s29, 2", "s_add_u32 s45, s45, s44", "s_lshl_b32 s47, s28, 1", "s_xor_b32 s46, s40, 1",
            "s_add_u32 s47, s47, s46", "s_lshl_b32 s43, s47, 6", "s_add_u32 s43, s43, s45", "s_lshl_b32 s43, s43, 10",
            f"s_add_u32 s43, s43, {WS_OC+32*1024}",
            f"s_mov_b32 s74, {fbits(LOG2E)}", f"s_mov_b32 s75, {fbits(-LOG2E)}", f"s_mov_b32 s76, {fbits(0.25*LOG2E)}",
            "s_lshl_b32 s38, s44, 10", f"s_add_u32 s38, s38, {HND}", "v_add_u32 v28, s38, v10"]
    su_ws = ["s_waitcnt lgkmcnt(0)", f"s_load_dwordx2 s[78:79], s[72:73], {hex(WS_EPOCH)}",
             "s_mov_b32 s24, s72", "s_mov_b32 s25, s73", f"s_mov_b32 s26, {hex(WS_SIZE)}", "s_mov_b32 s27, 0x00020000"]
    su_ep = ["s_waitcnt lgkmcnt(0)", "s_add_u32 s78, s78, 1"]
    def su_id(n, I0):
        l = ["v_and_b32 v11, 31, v1", "v_lshrrev_b32 v22, 5, v1", "v_lshlrev_b32 v22, 2, v22", "v_sub_u32 v11, v11, v22",
             "v_mov_b32 v22, 0x3f80", "v_mov_b32 v23, 0x3f800000"]
        for sgn in range(n):
            for q in range(4):
                f0 = 16 * sgn + (2 * q if q < 2 else 8 + 2 * (q - 2))
                l += [f"v_cmp_eq_u32 vcc, {f0}, v11", f"v_cmp_eq_u32 s[38:39], {f0+1}, v11",
                      f"v_cndmask_b32 v{I0+4*sgn+q}, 0, v22, vcc", f"v_cndmask_b32 v{I0+4*sgn+q}, v{I0+4*sgn+q}, v23, s[38:39]"]
        return l
    Q = 4; NM = 8; O = 24; S = [40, 56]; PK = 72; KF = [80, 84]; VF = [144, 152]; AK = 2; AV = 3; T = 106
    U = 4; NIT = 16
    SEG = OPT.get("seg", (3, 8, 15, 16))
    ATT_SETUP = [f"v_mov_b32 v{AK}, v10", f"v_lshrrev_b32 v{T}, 5, v1", f"v_and_b32 v{AV}, 15, v1", f"v_lshlrev_b32 v{AV}, 4, v{AV}",
                 f"v_lshl_add_u32 v{AV}, v{T}, 8, v{AV}", f"v_add_u32 v{AV}, 1024, v{AV}", f"v_and_b32 v{T}, 27, v1",
                 f"v_mov_b32 v{T+1}, 0x3f803f80", f"v_cmp_eq_u32 vcc, 16, v{T}", "s_mov_b32 s20, 0xffff", "s_mov_b32 s21, 0xffff",
                 f"v_cndmask_b32 v{VF[0]}, 0, v{T+1}, vcc"] + [f"v_mov_b32 v{VF[0]+1}, v{VF[0]}"] + [f"v_mov_b64 {vr(VF[0]+i,2)}, {vr(VF[0],2)}" for i in range(2, 16, 2)] + \
                [f"s_mov_b32 s22, {SEG[0]}", "s_mov_b32 s23, 0"]
    def fr(buf, t):
        if buf == 0:
            b = 32 + 12 * t; return (b, b + 4, b + 8)
        return [(80, 84, 88), (128, 132, 136), (92, 140, 16), (4, 160, 164)][t]
    def reads(buf, g):
        l = []; p = g % 8; so = SLOT[g] & 0xffff; wa = 21 if g == 8 else 20
        for t in range(4):
            xa, xb, w = fr(buf, t)
            l.append(f"ds_read_b128 {vr(xa,4)}, v{12+t} offset:{p*8192}")
            for u in range(2):
                l.append(f"ds_read_b64_tr_b16 {vr(w+2*u,2)}, v{wa} offset:{so+(16*t+4*u)*128}")
            l.append(f"ds_read_b128 {vr(xb,4)}, v{12+t} offset:{p*8192+4096}")
        return l
    def mfmas(buf, first):
        l = []
        for t in range(4):
            xa, xb, w = fr(buf, t); z = first and t == 0
            l.append(mfma(ACC, w, xa, None if z else ACC))
            l.append(mfma(ACC + 16, w, xb, None if z else ACC + 16))
        return l
    def gpass(g0, first, last, extra={}):
        pend = None; NS = OPT.get("gspread", 5)
        for i in range(first, last + 1):
            e("s_barrier")
            mm = mfmas(pend & 1, pend == 0) if pend is not None else []
            todo = None
            for c in range(8):
                if USE[g0 + c] == i: todo = c
            if todo is not None:
                r = reads(todo & 1, g0 + todo)
                e.extend(spread(mm[:NS], r) + mm[NS:] if mm else r)
                e.extend(extra.get(i, []))
                e("s_waitcnt lgkmcnt(0)")
            else:
                e.extend(mm)
                e.extend(extra.get(i, []))
            pend = todo
        if pend is not None: e.extend(mfmas(pend & 1, False))
    PU = [32, 48]; PH = [64, 72]; TM = [80, 84]; VFR = [88, 92]
    e("s_cmp_lg_u32 s40, 0")
    e("s_cbranch_scc1 L_qwave")
    e(f"v_mov_b32 v26, {MISC}")
    for i in range(4): e(f"v_mov_b32 v{32+i}, 0")
    e("ds_write_b128 v26, v[32:35]")
    e("ds_write_b128 v26, v[32:35] offset:16")
    e.extend(su_w)
    e.extend(su_ws)
    wph = ["v_and_b32 v23, 15, v1", "v_lshlrev_b32 v23, 3, v23", "v_lshrrev_b32 v22, 5, v1", "v_lshl_add_u32 v25, v22, 7, v23",
           "s_lshl_b32 s38, s44, 9", f"s_add_u32 s38, s38, {WPH}", "v_add_u32 v25, s38, v25"]
    wpr = [f"ds_read_b64_tr_b16 {vr(WF+2*u,2)}, v25 offset:{u*256}" for u in range(2)]
    one = ["v_bfe_u32 v24, v1, 4, 1", f"v_mul_u32_u24 v{ONE}, 0x3f80, v24", f"v_lshl_or_b32 v{ONE}, v{ONE}, 16, v{ONE}"]
    xs = [i for i in range(8) if i not in USE.values() or i == USE[8] and i not in [USE[c] for c in range(8)]]
    idl = su_id(2, I0)
    KEND = USE[7] + 1
    gpass(0, 0, KEND, {xs[0]: su_s + wph, xs[1]: idl[:22], xs[2]: idl[22:] + one, xs[3]: su_ep + stamp(0), 9: wpr})
    e.extend(stamp(1))
    k = []
    for u in range(2):
        for q in range(4): k.append(f"v_cvt_pk_bf16_f32 v{PH[u]+q}, v{ACC+16*u+2*q}, v{ACC+16*u+2*q+1}")
    for u in range(2): k.append(mfma(PU[u], WF, PH[u], None))
    for u in range(2):
        a = ACC + 16 * u
        for q in range(4): k.append(f"v_cvt_pk_bf16_f32 v{VFR[u]+q}, v{a+8+2*q}, v{a+8+2*q+1}")
    for u in range(2): k.append(mfma(ACC + 16 * u, VFR[u], I0, None))
    k += interleave(*[phi_unit(PU[u], TM[u], PH[u]) for u in range(2)])
    for u in range(2): k.append(mfma(PU[u], PH[u], I0, None))
    for u in range(2): k.append(mfma(PU[u], PH[u] + 4, I0 + 4, PU[u]))
    for u in range(2):
        a = ACC + 16 * u
        for q in range(8): k.append(f"v_cvt_pk_bf16_f32 v{a+q}, v{a+2*q}, v{a+2*q+1}")
        for q in range(8): k.append(f"v_or_b32 v{a+q}, v{a+q}, v{ONE}")
    for u in range(2):
        for q in range(8): k.append(f"v_cvt_pk_bf16_f32 v{PH[u]+q}, v{PU[u]+2*q}, v{PU[u]+2*q+1}")
    D3 = EACC
    for u in range(2):
        k.append(mfma(D3, PH[u], ACC + 16 * u, None if u == 0 else D3))
        k.append(mfma(D3, PH[u] + 4, ACC + 16 * u + 4, D3))
    k += ["v_and_b32 v11, 31, v1", "v_lshlrev_b32 v11, 4, v11", "v_lshrrev_b32 v22, 5, v1", "v_lshl_add_u32 v11, v22, 14, v11",
          "s_lshl_b32 s38, s45, 17", "s_lshl_b32 s39, s28, 9", "s_add_u32 s38, s38, s39", f"s_add_u32 s38, s38, {WS_PART}"]
    for q in range(4):
        k.append(f"buffer_store_dwordx4 {vr(D3+4*q,4)}, v11, s[24:27], s38 offen sc1")
        if q < 3: k.append("s_add_u32 s38, s38, 32768")
    if not OPT.get("pk", 1): k = unpk(k)
    k = [x.strip() for x in fix_hazards(k, pre=mfmas(1, False))]
    def cost(x):
        if "mfma" in x: return 48
        if "v_exp" in x or "v_rcp" in x: return 8
        if "s_nop" in x: return 4 * (int(x.split()[1]) + 1)
        return 4
    NB = 20 - KEND
    acc = 260; nb = 0; LIM = OPT.get("klim", 140)
    for x in k:
        if nb < NB and acc + cost(x) > (LIM if nb < NB - 1 else OPT.get("klast", 300)):
            e("s_barrier"); nb += 1; acc = 0
            if nb == NB:
                e.extend(stamp(2)); e("s_setprio 2")
        e(x); acc += cost(x)
    while nb < NB:
        e("s_barrier"); nb += 1
    e("ds_read_b128 v[4:7], v28")
    e.extend(ATT_SETUP)
    e("s_branch L_attn")
    e.label("L_qwave")
    e.extend(su_w)
    e.extend(su_s)
    e.extend(ATT_SETUP)
    e("s_lshl_b32 s38, s44, 11")
    e(f"s_add_u32 s38, s38, {PHQ}")
    e("v_add_u32 v29, s38, v10")
    e("s_mov_b32 s41, 0")
    e.extend([x for x in su_ws if "s_load" not in x])
    e("s_cmp_eq_u32 s30, 6")
    e("s_cbranch_scc1 L_touch")
    e("s_cmp_eq_u32 s30, 7")
    e("s_cbranch_scc1 L_qidle")
    e("s_cmp_gt_u32 s29, 2")
    e("s_cbranch_scc1 L_qidle")
    e("s_lshl_b32 s38, s44, 12")
    for t in range(4): e(f"v_add_u32 v{16+t}, s38, v{12+t}")
    e("v_and_b32 v23, 15, v1")
    e("v_lshlrev_b32 v23, 3, v23")
    e("v_lshl_add_u32 v26, v22, 8, v23")
    e("v_lshlrev_b32 v27, 4, v22")
    e("s_lshl_b32 s42, s28, 1")
    e("s_add_u32 s42, s42, s44")
    e("s_cmp_eq_u32 s29, 2")
    e("s_cbranch_scc1 L_qgate")
    def extloop(gate):
        nbar = 0
        if not gate: e.extend(su_id(1, 160))
        for p in range(8):
            while p % 2 == 0 and nbar <= POS[f"x{p//2}"]:
                e("s_barrier"); nbar += 1
            e(f"s_lshl_b32 s38, s31, {7 if gate else 11}")
            e(f"v_add_u32 v21, s38, v{27 if gate else 26}")
            e("s_add_u32 s31, s31, 1")
            e("s_and_b32 s31, s31, 7")
            B = 32 + 32 * (p & 1)
            for t in range(4):
                e(f"ds_read_b128 {vr(B+8*t,4)}, v{16+t} offset:{p*8192}")
                if gate: e(f"ds_read_b128 {vr(B+8*t+4,4)}, v21 offset:{t*32}")
                else:
                    for u in range(2): e(f"ds_read_b64_tr_b16 {vr(B+8*t+4+2*u,2)}, v21 offset:{t*512+u*128}")
            if p % 2 == 1:
                n = 8 if gate else 12
                e(f"s_waitcnt lgkmcnt({n})")
                for t in range(4): e(mfma(EACC, 32 + 8 * t + 4, 32 + 8 * t, None if (p == 1 and t == 0) else EACC))
                e("s_waitcnt lgkmcnt(0)")
                for t in range(4): e(mfma(EACC, 64 + 8 * t + 4, 64 + 8 * t, EACC))
        while nbar <= XL + 1:
            e("s_barrier"); nbar += 1
    extloop(False)
    for q in range(4): e(f"v_cvt_pk_bf16_f32 v{EACC+q}, v{EACC+2*q}, v{EACC+2*q+1}")
    e("s_lshl_b32 s38, s42, 11")
    e("s_lshl_b32 s41, s44, 1")
    e("s_add_u32 s41, s41, s29")
    e("s_lshl_b32 s41, s41, 5")
    e("s_add_u32 s41, s41, s28")
    e("s_lshl_b32 s41, s41, 3")
    e(f"s_add_u32 s41, s41, {F1}")
    e("s_cmp_eq_u32 s29, 1")
    e("s_cbranch_scc1 L_qv")
    e(f"buffer_store_dwordx4 {vr(EACC,4)}, v10, s[24:27], s38 offen sc1")
    e("s_branch L_q5")
    e.label("L_qv")
    e("s_nop 1")
    e(mfma(32, EACC, 160, None))
    e("v_lshrrev_b32 v11, 5, v1")
    e("v_and_b32 v22, 15, v1")
    e("v_lshlrev_b32 v22, 4, v22")
    e("v_lshl_add_u32 v22, v11, 8, v22")
    for q in range(8): e(f"v_cvt_pk_bf16_f32 v{EACC+8+q}, v{32+2*q}, v{32+2*q+1}")
    e("s_mov_b32 exec_lo, 0xffff")
    e("s_mov_b32 exec_hi, 0xffff")
    e(f"buffer_store_dwordx4 {vr(EACC+8,4)}, v22, s[24:27], s38 offen offset:1024 sc1")
    e(f"buffer_store_dwordx4 {vr(EACC+12,4)}, v22, s[24:27], s38 offen offset:1536 sc1")
    e("s_mov_b64 exec, -1")
    e("s_branch L_q5")
    e.label("L_qgate")
    extloop(True)
    e(f"v_cvt_pk_bf16_f32 v11, v{EACC}, v{EACC}")
    e("v_and_b32 v11, 0xffff0000, v11")
    e("v_mul_f32 v11, s75, v11")
    e("v_exp_f32 v11, v11")
    e("v_add_f32 v11, 1.0, v11")
    e("v_rcp_f32 v11, v11")
    e("v_cvt_pk_bf16_f32 v11, v11, v11")
    e("v_and_b32 v11, 0xffff0000, v11")
    e("v_lshlrev_b32 v22, 2, v1")
    e("s_lshl_b32 s38, s42, 7")
    e(f"s_add_u32 s38, s38, {WS_GATE}")
    e("s_lshl_b32 s41, s42, 3")
    e(f"s_add_u32 s41, s41, {FG}")
    e("s_mov_b32 exec_hi, 0")
    e("buffer_store_dword v11, v22, s[24:27], s38 offen sc1")
    e("s_mov_b64 exec, -1")
    e("s_branch L_q5")
    e.label("L_touch")
    if OPT.get("touch", 1):
        e("v_mov_b32 v22, 0")
        e("v_min_u32 v23, 4, v1")
        e("v_lshlrev_b32 v23, 21, v23")
        for n, p in enumerate((50, 58, 52)):
            e(f"global_load_dword v{40+n}, v22, s[{p}:{p+1}]")
        e("global_load_dword v44, v23, s[72:73]")
        for n, p in enumerate((54, 64, 68)):
            e(f"global_load_dword v{45+n}, v22, s[{p}:{p+1}]")
    e.label("L_qidle")
    for i in range(XL + 2): e("s_barrier")
    e.label("L_q5")
    e(su_ws[1])
    e(f"v_add_u32 v21, {S5}, v20")
    fl = Emitter()
    fl("s_cmp_eq_u32 s41, 0")
    fl("s_cbranch_scc1 L_noflag")
    fl.extend(su_ep)
    fl("s_waitcnt vmcnt(0)")
    flag_store(fl, "s41", 22)
    fl.label("L_noflag")
    gpass(8, XL + 2, 19, {XL + OPT.get("flat", 5): fl.lines, USE[9] - 1: stamp(0) + ["s_setprio 1"]})
    e.extend(stamp(1))
    for u in (1, 0):
        a = ACC + 16 * u
        for i in range(8, 16, 2): e(f"v_pk_mul_f32 {vr(a+i,2)}, {vr(a+i,2)}, s[76:77] op_sel_hi:[1,0]")
        d = 76 if u else 4
        for q in range(4): e(f"v_cvt_pk_bf16_f32 v{d+q}, v{a+8+2*q}, v{a+8+2*q+1}")
        if u: e("ds_write_b128 v28, v[76:79]")
        for q in range(4): e(f"v_cvt_pk_bf16_f32 v{PH[u]+q}, v{a+2*q}, v{a+2*q+1}")
        e(f"ds_write_b128 v29, {vr(PH[u],4)} offset:{u*1024}")
    e("s_waitcnt lgkmcnt(0)")
    e.extend(stamp(2))
    e("s_barrier")
    e.label("L_attn")
    e.extend(stamp(3))
    e("s_setprio 2")
    e(f"ds_read_b128 {vr(KF[0],4)}, v{AK}")
    e(f"ds_read_b128 {vr(KF[1],4)}, v{AK} offset:2048")
    e("s_mov_b64 exec, s[20:21]")
    e(f"ds_read_b128 {vr(VF[0],4)}, v{AV}")
    e(f"ds_read_b128 {vr(VF[0]+4,4)}, v{AV} offset:512")
    e("s_mov_b64 exec, -1")
    for i in range(0, 16, 2): e(f"v_mov_b64 {vr(O+i,2)}, 0")
    for i in range(0, 4, 2): e(f"v_mov_b64 {vr(PK+4+i,2)}, 0")
    e("s_waitcnt lgkmcnt(0)")
    e(mfma(S[0], KF[0], Q, None))
    e(mfma(S[1], KF[1], Q, None))
    e(f"v_max3_f32 v{T}, v{S[0]}, v{S[0]+1}, v{S[0]+2}")
    rest = list(range(S[0] + 3, S[0] + 32))
    while len(rest) >= 2:
        e(f"v_max3_f32 v{T}, v{T}, v{rest[0]}, v{rest[1]}"); rest = rest[2:]
    if rest: e(f"v_max_f32 v{T}, v{T}, v{rest[0]}")
    def setnm():
        e(f"v_mov_b32 v{T+1}, v{T}")
        e(f"v_permlane32_swap_b32 v{T}, v{T+1}")
        e(f"v_max_f32 v{T}, v{T}, v{T+1}")
        for i in range(2): e(f"v_sub_f32 v{NM+i}, 0, v{T}")
        for i in range(2, 16, 2): e(f"v_mov_b64 {vr(NM+i,2)}, {vr(NM,2)}")
    setnm()
    e(mfma(S[0], KF[0], Q, NM))
    e("s_nop 7"); e("s_nop 1")
    body = Emitter()
    ex = lambda i: f"v_exp_f32 v{i}, v{i}"
    for j in range(U):
        a = j & 1; b = a ^ 1; Sa = S[a]
        cv = lambda q: f"v_cvt_pk_bf16_f32 v{PK+q}, v{Sa+2*q}, v{Sa+2*q+1}"
        body(mfma(S[b], KF[b], Q, NM))
        body(f"ds_read_b128 {vr(KF[a],4)}, v{AK} offset:{(j+2)*2048}")
        for i in range(7): body(ex(Sa + i))
        body(mfma(O, VF[b] + 4, PK + 4, O))
        body("s_mov_b64 exec, s[20:21]")
        body(f"ds_read_b128 {vr(VF[b],4)}, v{AV} offset:{(j+1)*2048}")
        body(f"ds_read_b128 {vr(VF[b]+4,4)}, v{AV} offset:{(j+1)*2048+512}")
        body("s_mov_b64 exec, -1")
        body(ex(Sa + 7)); body(ex(Sa + 8))
        for q in range(4): body(cv(q))
        body(ex(Sa + 9)); body(ex(Sa + 10))
        body("s_waitcnt lgkmcnt(3)")
        body(mfma(O, VF[a], PK, O))
        for i in range(11, 16): body(ex(Sa + i))
        if j == U - 1:
            body(f"v_add_u32 v{AK}, {U*2048}, v{AK}")
            body(f"v_add_u32 v{AV}, {U*2048}, v{AV}")
            body("s_add_u32 s23, s23, 1")
            body("s_cmp_lt_u32 s23, s22")
        for q in range(4, 8): body(cv(q))
        body("s_waitcnt lgkmcnt(2)")
    rep = []
    fix_hazards(body.lines, pre=body.lines, report=rep)
    assert not rep, rep
    e(".p2align 6")
    e.label("L_loop")
    if OPT.get("trace") == 3:
        e.extend(["s_memtime s[96:97]", "s_waitcnt lgkmcnt(0)", "s_sub_u32 s96, s96, s94", "s_lshl_b32 s97, s23, 1", "s_add_u32 m0, s97, 1", "v_writelane_b32 v111, s96, m0"])
    e.extend(body.lines)
    e("s_cbranch_scc1 L_loop")
    e(f"s_cmp_lg_u32 s22, {SEG[3]}")
    e("s_cbranch_scc1 L_seg")
    e(mfma(O, VF[1] + 4, PK + 4, O))
    e.extend(stamp(4))
    e(f"ds_read_b32 v{T+4}, v{T+4}")
    e(f"v_lshlrev_b32 v{AK}, 4, v1")
    e(f"v_cmp_ngt_f32 s[36:37], s39, v{O+8}")
    e(f"v_rcp_f32 v{T}, v{O+8}")
    for i in range(8):
        e(f"v_cmp_class_f32 vcc, v{O+i}, v{T+3}")
        e("s_or_b64 s[36:37], s[36:37], vcc")
    e("s_cbranch_scc1 L_fallback")
    e.label("L_fin")
    e(f"v_mul_f32 v{T}, v{T}, v{T+2}")
    for i in range(0, 8, 2): e(f"v_pk_mul_f32 {vr(O+i,2)}, {vr(O+i,2)}, {vr(T,2)} op_sel_hi:[1,0]")
    for q in range(4): e(f"v_cvt_pk_bf16_f32 v{O+q}, v{O+2*q}, v{O+2*q+1}")
    e("s_waitcnt lgkmcnt(0)")
    e(f"v_cmp_eq_u32 vcc, 0, v{T+4}")
    e("s_cbranch_vccnz L_far")
    e(f"buffer_store_dwordx4 {vr(O,4)}, v{AK}, s[24:27], s43 offen")
    if OPT["stamp"] == 1: e("s_branch L_cend")
    else: e("s_endpgm")
    e.label("L_far")
    e(f"buffer_store_dwordx4 {vr(O,4)}, v{AK}, s[24:27], s43 offen sc1")
    e.label("L_cend")
    e.extend(stamp(5))
    if OPT.get("trace") == 3: e("v_mov_b32 v159, v111")
    if OPT["stamp"] == 1: stamp_end(e, 40)
    e("s_endpgm")
    e.label("L_seg")
    e(f"s_cmp_eq_u32 s22, {SEG[1]}")
    e("s_cbranch_scc1 L_seg1")
    e(f"s_cmp_gt_u32 s22, {SEG[1]}")
    e("s_cbranch_scc1 L_seg2")
    e(f"s_mov_b32 s22, {SEG[1]}")
    e("s_cmp_lg_u32 s40, 0")
    e("s_cbranch_scc1 L_seg0b")
    e("s_lshl_b32 s38, s45, 5")
    e("s_add_u32 s38, s38, s28")
    e("s_lshl_b32 s38, s38, 3")
    e(f"s_add_u32 s38, s38, {F3}")
    e("s_waitcnt vmcnt(0)")
    flag_store(e, "s38", T)
    e.label("L_seg0b")
    lds_wait(e, C_KVALL, 4, T, sleep=1)
    e("s_branch L_loop")
    e.label("L_seg1")
    e(f"s_mov_b32 s22, {SEG[2]}")
    lds_add(e, C_PROG, T)
    lds_wait(e, C_GOK, 4, T)
    e("s_lshl_b32 s38, s46, 7")
    e(f"s_add_u32 s38, s38, {C_GATE}")
    e(f"v_and_b32 v{T}, 31, v1")
    e(f"v_lshl_add_u32 v{T}, v{T}, 2, s38")
    e(f"ds_read_b32 v{T+2}, v{T}")
    e(f"v_mov_b32 v{T+3}, 0x207")
    e(f"v_mov_b32 v{T+4}, {C_LOC}")
    e(f"s_mov_b32 s39, {fbits(2.0**120)}")
    e("s_waitcnt lgkmcnt(0)")
    e(f"v_sub_f32 v{T+2}, 1.0, v{T+2}")
    e(f"v_cvt_pk_bf16_f32 v{T+2}, v{T+2}, v{T+2}")
    e(f"v_and_b32 v{T+2}, 0xffff0000, v{T+2}")
    e("s_cmp_lg_u32 s40, 0")
    e("s_cbranch_scc1 L_loop")
    e("s_setprio 1")
    e(f"s_mov_b32 s22, {OPT.get('kdrop', SEG[2])}")
    e("s_branch L_loop")
    e.label("L_seg2")
    e(f"s_mov_b32 s22, {SEG[3]}")
    e("s_setprio 1")
    e("s_cmp_lg_u32 s40, 0")
    e("s_cbranch_scc1 L_loop")
    e("s_setprio 0")
    e("s_branch L_loop")
    e.label("L_fallback")
    e("s_waitcnt lgkmcnt(0)")
    e(f"v_add_u32 v{AV}, {-64*2048 & 0xffffffff}, v{AV}")
    e(f"v_mov_b32 v{T}, 0xff800000")
    e("s_mov_b32 s38, 0")
    e.label("L_fb1")
    e(f"buffer_load_dwordx4 {vr(KF[0],4)}, v{AK}, s[24:27], s38 offen sc1")
    e("s_add_u32 s38, s38, 2048")
    e("s_waitcnt vmcnt(0)")
    e(mfma(S[0], KF[0], Q, None))
    for i in range(8): e(f"v_max3_f32 v{T}, v{T}, v{S[0]+2*i}, v{S[0]+2*i+1}")
    e("s_cmp_lt_u32 s38, 0x20000")
    e("s_cbranch_scc1 L_fb1")
    setnm()
    for i in range(16): e(f"v_mov_b32 v{O+i}, 0")
    e("s_mov_b32 s38, 0")
    e.label("L_fb2")
    e(f"buffer_load_dwordx4 {vr(KF[0],4)}, v{AK}, s[24:27], s38 offen sc1")
    e("s_mov_b64 exec, s[20:21]")
    e(f"buffer_load_dwordx4 {vr(VF[0],4)}, v{AV}, s[24:27], s38 offen sc1")
    e(f"buffer_load_dwordx4 {vr(VF[0]+4,4)}, v{AV}, s[24:27], s38 offen offset:512 sc1")
    e("s_mov_b64 exec, -1")
    e("s_add_u32 s38, s38, 2048")
    e("s_waitcnt vmcnt(0)")
    e(mfma(S[0], KF[0], Q, NM))
    for i in range(16): e(ex(S[0] + i))
    for q in range(8): e(f"v_cvt_pk_bf16_f32 v{PK+q}, v{S[0]+2*q}, v{S[0]+2*q+1}")
    e(mfma(O, VF[0], PK, O))
    e(mfma(O, VF[0] + 4, PK + 4, O))
    e("s_nop 7")
    e("s_cmp_lt_u32 s38, 0x20000")
    e("s_cbranch_scc1 L_fb2")
    e("s_nop 7"); e("s_nop 7")
    e(f"v_rcp_f32 v{T}, v{O+8}")
    e("s_branch L_fin")
    return fix_hazards(e.lines if OPT.get("pk", 1) else unpk(e.lines))

def build():
    hdr = open("cdna_kernels/%s.s.ref" % NAME).read().split("\n")
    hdr = [l for l in hdr if l.startswith(";") and "@launch" not in l]
    out = list(hdr)
    out.append(f"; @launch grid=(256,1,1) block=(768,1,1) lds={LDS_BYTES}")
    out.append('.amdgcn_target "amdgcn-amd-amdhsa--gfx950"')
    out.append(".text")
    k = NAME + "_kernel"
    out += [f".globl {k}", ".p2align 8", f".type {k},@function", f"{k}:"]
    out += gen()
    out.append('.section .rodata,"a"')
    out.append(f""".p2align 6
.amdhsa_kernel {k}
  .amdhsa_next_free_vgpr 168
  .amdhsa_next_free_sgpr {102 if OPT['stamp'] else 80}
  .amdhsa_accum_offset 168
  .amdhsa_group_segment_fixed_size 0
  .amdhsa_kernarg_size 104
  .amdhsa_user_sgpr_count 2
  .amdhsa_user_sgpr_kernarg_segment_ptr 1
  .amdhsa_system_sgpr_workgroup_id_x 1
.end_amdhsa_kernel
""")
    return "\n".join(out) + "\n"

if __name__ == "__main__":
    dst = "f.s"
    for a in sys.argv[1:]:
        k, v = a.split("=")
        if k == "out": dst = v
        elif "," in v: OPT[k] = tuple(int(x) for x in v.split(","))
        else: OPT[k] = int(v)
    open(dst, "w").write(build())
    print("wrote", dst)
```

```python
import sys
s = open(sys.argv[1]).read()
wave = int(sys.argv[3]); fa = int(sys.argv[4]); fb = int(sys.argv[5]); mode = sys.argv[6]
k = "gated_mix__linear_kernel_hedgehog__grouped_kv_mqa__prompt_kernel"
line = [l for l in s.split("\n") if "@launch" in l][0]
new = line.replace("@launch ", f"@launch kernel={k} ") + "\n; @launch kernel=diag_kernel grid=(1,1,1) block=(64,1,1) lds=0"
s = s.replace(line, new)
off = 0x900000 + wave * 64
rt = fa < 2
clk = "s_memrealtime"
sub = f"s_sub_u32 s30, s{8+fa}, s{8+fb}" if fb >= 0 else f"s_mov_b32 s30, s{8+fa}"
acc = "s_add_u32 s31, s31, s30" if mode == "avg" else ("s_max_u32 s31, s31, s30" if mode == "max" else "s_min_u32 s31, s31, s30")
fin = "s_lshr_b32 s31, s31, 8" if mode == "avg" else "s_nop 0"
init = "s_mov_b32 s31, -1" if mode == "min" else "s_mov_b32 s31, 0"
scale = "s_mul_i32 s31, s31, 10" if rt else "s_nop 0"
body = f""".globl diag_kernel
.p2align 8
.type diag_kernel,@function
diag_kernel:
    s_cmp_ge_u32 s2, 1
    s_cbranch_scc1 D_done
    s_load_dwordx2 s[4:5], s[0:1], 96
    {clk} s[24:25]
    s_waitcnt lgkmcnt(0)
    s_add_u32 s4, s4, {off}
    s_addc_u32 s5, s5, 0
    {init}
    s_mov_b32 s29, 0
D_a:
    s_load_dwordx16 s[8:23], s[4:5], s29
    s_waitcnt lgkmcnt(0)
    {sub}
    {acc}
    s_add_u32 s29, s29, 1024
    s_cmp_lt_u32 s29, 0x40000
    s_cbranch_scc1 D_a
    {fin}
    s_min_u32 s31, s31, 100000
    {scale}
    s_add_u32 s31, s31, 20000
D_l:
    {clk} s[26:27]
    s_waitcnt lgkmcnt(0)
    s_sub_u32 s26, s26, s24
    s_cmp_lt_u32 s26, s31
    s_cbranch_scc1 D_l
D_done:
    s_endpgm
"""
kd = """.p2align 6
.amdhsa_kernel diag_kernel
  .amdhsa_next_free_vgpr 8
  .amdhsa_next_free_sgpr 40
  .amdhsa_accum_offset 8
  .amdhsa_group_segment_fixed_size 0
  .amdhsa_kernarg_size 104
  .amdhsa_user_sgpr_count 2
  .amdhsa_user_sgpr_kernarg_segment_ptr 1
  .amdhsa_system_sgpr_workgroup_id_x 1
.end_amdhsa_kernel
"""
s = s.replace('.section .rodata,"a"\n', body + '.section .rodata,"a"\n' + kd, 1)
open(sys.argv[2], "w").write(s)
```

```python
import sys, math, struct
from asmlib import *

NAME = "gated_mix__linear_kernel_hedgehog__grouped_kv_mqa__prompt"
WS_KVB  = 0x000000
WS_GATE = 0x020000
WS_FL   = 0x024000
F1 = WS_FL; FG = WS_FL + 0x400; F3 = WS_FL + 0x1000; F3P = WS_FL + 0x3000; F4 = WS_FL + 0x4000
WS_EPOCH = WS_FL + 0x800
FP = WS_FL + 0x4000
WS_KVF  = 0x030000
WS_PART = 0x100000
WS_OC   = 0x500000
WS_STAMP = 0x900000
WS_SIZE = 0xB00000
XT = 65536; EXT = 0; S5 = 131072; PHQ = 131072; HND = 147456; WPH = 155648; MISC = 157696
LDS_BYTES = 158720
C_KVALL = MISC; C_PROG = MISC + 4; C_HS = MISC + 8; C_GOK = MISC + 12; C_LOC = MISC + 16; C_GATE = MISC + 64

def fbits(x): return "0x%08x" % struct.unpack("<I", struct.pack("<f", x))[0]
LOG2E = math.log2(math.e)
OPT = dict(map=2, rot=1, round_pq=0, stamp=0, spin=1 << 16)

def srd(e, d, lo, nbytes):
    e(f"s_mov_b32 s{d}, s{lo}")
    e(f"s_mov_b32 s{d+1}, s{lo+1}")
    e(f"s_mov_b32 s{d+2}, {hex(nbytes)}")
    e(f"s_mov_b32 s{d+3}, 0x00020000")

def stamp_begin(e):
    if OPT["stamp"]:
        e("s_memrealtime s[92:93]")
        e("s_memtime s[94:95]")
        for k in range(6): e(f"s_mov_b32 s{80+2*k}, 0")
def stamp(k):
    return [f"s_memtime s[{80+2*k}:{81+2*k}]"] if OPT["stamp"] else []
def trace(idx):
    if not OPT.get("trace"): return []
    return ["s_memtime s[96:97]", "s_waitcnt lgkmcnt(0)", "s_sub_u32 s96, s96, s94", f"v_writelane_b32 v159, s96, {idx}"]
def stamp_end(e, vt):
    if OPT.get("trace"):
        e(f"v_lshlrev_b32 v{vt}, 2, v0")
        e("s_mul_i32 s100, s2, 3072")
        e(f"s_add_u32 s100, s100, {WS_STAMP + 0x40000}")
        e(f"buffer_store_dword v159, v{vt}, s[24:27], s100 offen")
    if OPT["stamp"]:
        e("s_waitcnt vmcnt(0)")
        e("s_memrealtime s[96:97]")
        e("s_memtime s[98:99]")
        e("s_waitcnt lgkmcnt(0)")
        for r in (98, 80, 82, 84, 86, 88, 90): e(f"s_sub_u32 s{r}, s{r}, s94")
        e(f"v_lshrrev_b32 v{vt+12}, 6, v0")
        e(f"v_lshlrev_b32 v{vt+12}, 6, v{vt+12}")
        e("s_lshl_b32 s100, s2, 10")
        e(f"s_add_u32 s100, s100, {WS_STAMP}")
        for i, r in enumerate((92, 96, 98, 80, 82, 84, 86, 88, 90, 90, 90, 90)):
            e(f"v_mov_b32 v{vt+i}, s{r}")
        for q in range(3):
            e(f"buffer_store_dwordx4 v[{vt+4*q}:{vt+4*q+3}], v{vt+12}, s[24:27], s100 offen offset:{16*q}")

def phi_unit(P, T, O):
    l = []
    if OPT["round_pq"]:
        for q in range(4): l.append(f"v_cvt_pk_bf16_f32 v{P+8+q}, v{P+2*q}, v{P+2*q+1}")
        for q in range(4):
            l.append(f"v_lshlrev_b32 v{P+2*q}, 16, v{P+8+q}")
            l.append(f"v_and_b32 v{P+2*q+1}, 0xffff0000, v{P+8+q}")
    A = T; B = T + 2
    l += [f"v_max3_f32 v{A}, v{P}, v{P+1}, v{P+2}",
          f"v_max3_f32 v{B}, -v{P}, -v{P+1}, -v{P+2}",
          f"v_max3_f32 v{A}, v{A}, v{P+3}, v{P+4}",
          f"v_max3_f32 v{B}, v{B}, -v{P+3}, -v{P+4}",
          f"v_max3_f32 v{A}, v{A}, v{P+5}, v{P+6}",
          f"v_max3_f32 v{B}, v{B}, -v{P+5}, -v{P+6}",
          f"v_max_f32 v{A}, v{A}, v{P+7}",
          f"v_max_f32_e64 v{B}, v{B}, -v{P+7}",
          f"v_permlane32_swap_b32 v{A}, v{B}",
          f"v_max_f32 v{A}, v{A}, v{B}",
          f"v_mul_f32 v{A}, s75, v{A}",
          f"v_mov_b32 v{B}, v{A}",
          f"v_permlane32_swap_b32 v{A}, v{B}"]
    if OPT.get("pk", 1):
        for i in range(0, 8, 2):
            l.append(f"v_pk_fma_f32 {vr(P+8+i,2)}, {vr(P+i,2)}, s[74:75], {vr(B,2)} op_sel_hi:[1,0,0] neg_lo:[1,0,0] neg_hi:[1,0,0]")
            l.append(f"v_pk_fma_f32 {vr(P+i,2)}, {vr(P+i,2)}, s[74:75], {vr(A,2)} op_sel_hi:[1,0,0]")
    else:
        for i in range(8):
            l.append(f"v_fma_f32 v{P+8+i}, -v{P+i}, s74, v{B}")
            l.append(f"v_fma_f32 v{P+i}, v{P+i}, s74, v{A}")
    for i in range(16): l.append(f"v_exp_f32 v{P+i}, v{P+i}")
    for sg in range(2):
        l.append(f"v_pk_add_f32 {vr(O+4*sg,2)}, {vr(P+8*sg,2)}, {vr(P+8*sg+2,2)}")
        l.append(f"v_pk_add_f32 {vr(O+4*sg+2,2)}, {vr(P+8*sg+4,2)}, {vr(P+8*sg+6,2)}")
    for sg in range(2):
        l.append(f"v_pk_add_f32 {vr(O+4*sg,2)}, {vr(O+4*sg,2)}, {vr(O+4*sg+2,2)}")
    for sg in range(2):
        l.append(f"v_add_f32 v{T+2*sg}, v{O+4*sg}, v{O+4*sg+1}")
    l += [f"v_permlane32_swap_b32 v{A}, v{B}",
          f"v_add_f32 v{A}, v{A}, v{B}",
          f"v_rcp_f32 v{A}, v{A}",
          f"v_mov_b32 v{B}, v{A}",
          f"v_permlane32_swap_b32 v{A}, v{B}"]
    for i in range(0, 8, 2):
        l.append(f"v_pk_mul_f32 {vr(P+i,2)}, {vr(P+i,2)}, {vr(A,2)} op_sel_hi:[1,0]")
        l.append(f"v_pk_mul_f32 {vr(P+8+i,2)}, {vr(P+8+i,2)}, {vr(B,2)} op_sel_hi:[1,0]")
    for q in range(8): l.append(f"v_cvt_pk_bf16_f32 v{O+q}, v{P+2*q}, v{P+2*q+1}")
    return l

import re as _re
def unpk(lines):
    out = []
    for l in lines:
        m = _re.match(r"\s*v_pk_(add|mul)_f32 v\[(\d+):\d+\], v\[(\d+):\d+\], ([vs])\[(\d+):\d+\](.*)", l)
        if not m: out.append(l); continue
        op, d, a, k, b, mods = m.group(1), int(m.group(2)), int(m.group(3)), m.group(4), int(m.group(5)), m.group(6)
        bc = "op_sel_hi:[1,0]" in mods
        assert mods.strip() in ("", "op_sel_hi:[1,0]"), l
        for i in range(2):
            out.append(f"    v_{op}_f32 v{d+i}, {k}{b if bc else b+i}, v{a+i}")
    return out

def spread(mm, r):
    out = []; n = len(mm); k = 0
    for i, x in enumerate(mm):
        out.append(x)
        hi = (len(r) * (i + 1) + n - 1) // n
        out += r[k:hi]; k = max(k, hi)
    return out + r[k:]

_uid = [0]
def uid(p):
    _uid[0] += 1
    return f"{p}_{_uid[0]}"

def flag_store(e, soff, vt):
    e(f"v_mov_b32 v{vt}, s78")
    e(f"v_mov_b32 v{vt+1}, s79")
    e(f"v_mov_b32 v{vt+2}, 0")
    e("s_mov_b64 exec, 1")
    e(f"buffer_store_dwordx2 {vr(vt,2)}, v{vt+2}, s[24:27], {soff} offen sc1")
    e("s_mov_b64 exec, -1")

def flag_poll(e, vaddr, vt, sleep=4):
    L = uid("FP"); D = uid("FD")
    e("s_mov_b32 s77, 0")
    e.label(L)
    e(f"buffer_load_dwordx2 {vr(vt,2)}, v{vaddr}, s[24:27], 0 offen sc1")
    e("s_add_u32 s77, s77, 1")
    e("s_waitcnt vmcnt(0)")
    e(f"v_cmp_ne_u64 vcc, s[78:79], {vr(vt,2)}")
    e(f"s_cbranch_vccz {D}")
    e(f"s_cmp_gt_u32 s77, {OPT['spin']}")
    e(f"s_cbranch_scc1 {D}")
    if sleep: e(f"s_sleep {sleep}")
    e(f"s_branch {L}")
    e.label(D)

def lds_add(e, addr, vt):
    e(f"v_mov_b32 v{vt}, {addr}")
    e(f"v_mov_b32 v{vt+1}, 1")
    e("s_mov_b64 exec, 1")
    e(f"ds_add_u32 v{vt}, v{vt+1}")
    e("s_mov_b64 exec, -1")

def lds_wait(e, addr, target, vt, sleep=4):
    L = uid("LW"); D = uid("LD")
    e(f"v_mov_b32 v{vt}, {addr}")
    e("s_mov_b32 s77, 0")
    e.label(L)
    e(f"ds_read_b32 v{vt+1}, v{vt}")
    e("s_add_u32 s77, s77, 1")
    e("s_waitcnt lgkmcnt(0)")
    e(f"v_cmp_gt_u32 vcc, {target}, v{vt+1}")
    e(f"s_cbranch_vccz {D}")
    e(f"s_cmp_gt_u32 s77, {OPT['spin']*8}")
    e(f"s_cbranch_scc1 {D}")
    e(f"s_sleep {sleep}")
    e(f"s_branch {L}")
    e.label(D)

def gen():
    e = Emitter()
    ORD = {0: "x0 x1 x2 x3 w0 w1 w2 w3 w4 w5 w6 w7 w8",
           1: "x0 x1 x2 x3 w0 w8",
           2: "x0 w0 w8 x1 x2 x3",
           3: "x0 w0 x1 x2 x3 w8",
           4: "x0 x1 w0 x2 x3 w8",
           5: "x0 x1 x2 w0 x3 w8",
           6: "x0 w0 x1 w8 x2 x3"}[OPT.get("ord", 1)].split()
    ORD += [f"w{g}" for g in range(16) if f"w{g}" not in ORD]
    POS = {n: i for i, n in enumerate(ORD)}
    XL = POS["x3"]
    ring = [n for n in ORD if n[0] == "w" and n != "w8"]
    SLOT = {int(n[1:]): ((r + 1) % 4) * 16384 for r, n in enumerate(ring)}
    SLOT[8] = S5
    USE = {}; last = -1
    for c in range(8):
        last = max(POS[f"w{c}"], POS[f"x{c//2}"], last + 1); USE[c] = last
    last = XL + 1
    for c in range(8, 16):
        last = max(POS[f"w{c}"], last + 1); USE[c] = last
    assert USE[15] == 19
    e("s_cmp_ge_u32 s2, 256")
    e("s_cbranch_scc1 L_done")
    e("s_load_dwordx16 s[48:63], s[0:1], 0")
    e("s_load_dwordx8 s[64:71], s[0:1], 64")
    e("s_load_dwordx2 s[72:73], s[0:1], 96")
    stamp_begin(e)
    if OPT.get("trace"): e("v_mov_b32 v159, 0")
    e("v_and_b32 v1, 63, v0")
    e("v_lshrrev_b32 v11, 6, v0")
    e("v_readfirstlane_b32 s30, v11")
    e("s_and_b32 s36, s2, 7")
    e("s_lshr_b32 s37, s2, 3")
    lc = {0: 1, 1: 2, 2: 3}[OPT["map"]]
    e(f"s_and_b32 s29, s36, {(8>>lc)-1}")
    e(f"s_lshl_b32 s29, s29, {lc}")
    e(f"s_lshr_b32 s38, s37, {5-lc}")
    e("s_or_b32 s29, s29, s38")
    e(f"s_lshr_b32 s28, s36, {3-lc}")
    e(f"s_lshl_b32 s28, s28, {5-lc}")
    e(f"s_and_b32 s38, s37, {(32>>lc)-1}")
    e("s_add_u32 s28, s28, s38")
    if OPT["rot"] == 1:
        e("s_add_u32 s31, s28, s29"); e("s_lshl_b32 s31, s31, 1"); e("s_and_b32 s31, s31, 6")
    elif OPT["rot"] == 3:
        e("s_lshl_b32 s31, s29, 1"); e("s_add_u32 s31, s31, s28"); e("s_and_b32 s31, s31, 7")
    elif OPT["rot"] == 4:
        e("s_add_u32 s31, s28, s29"); e("s_and_b32 s31, s31, 7")
    elif OPT["rot"] == 5:
        e("s_lshl_b32 s31, s28, 1"); e("s_add_u32 s31, s31, s29"); e("s_and_b32 s31, s31, 7")
    elif OPT["rot"] == 2:
        e("s_add_u32 s31, s28, s29"); e("s_lshl_b32 s31, s31, 2"); e("s_and_b32 s31, s31, 4")
    else:
        e("s_mov_b32 s31, 0")
    e("v_lshlrev_b32 v10, 4, v1")
    e("s_cmp_lt_u32 s30, 8")
    e("s_cbranch_scc1 L_compute")
    e("s_setprio 3")
    e("s_sub_u32 s30, s30, 8")
    e("v_lshrrev_b32 v11, 3, v1")
    e("v_and_b32 v12, 7, v1")
    e("v_lshrrev_b32 v13, 4, v1")
    e("v_xor_b32 v14, v12, v13")
    e("v_lshlrev_b32 v14, 4, v14")
    e("v_lshl_add_u32 v2, v11, 10, v14")
    e("v_xor_b32 v3, 64, v2")
    e("v_add_u32 v3, 7168, v3")
    e("s_lshl_b32 s32, s28, 16")
    e("s_lshl_b32 s38, s30, 14")
    e("s_add_u32 s32, s32, s38")
    e("s_lshl_b32 s41, s30, 11")
    e("s_lshl_b32 s40, s30, 12")
    e("s_mov_b32 s36, s31")
    e("v_and_b32 v13, 1, v13")
    e("v_lshlrev_b32 v13, 1, v13")
    e("v_xor_b32 v14, v12, v13")
    e("v_lshlrev_b32 v14, 4, v14")
    e("v_mul_u32_u24 v6, 3072, v11")
    e("v_add_u32 v6, v6, v14")
    e(f"v_add_u32 v7, {8*3072-1024}, v6")
    e("v_xor_b32 v8, 64, v6")
    e(f"v_add_u32 v9, {8*3072-1024}, v8")
    e("s_lshl_b32 s38, s29, 7")
    e("s_mul_i32 s33, s30, 49152")
    e("s_add_u32 s33, s33, s38")
    e("v_xor_b32 v14, 64, v14")
    e("v_lshl_add_u32 v4, v11, 10, v14")
    e("v_add_u32 v5, 7168, v4")
    e("s_lshl_b32 s34, s30, 14")
    e("s_add_u32 s34, s34, s38")
    e("s_waitcnt lgkmcnt(0)")
    e.extend(trace(60))
    srd(e, 4, 48, 2048*512*2)
    srd(e, 8, 50, 512*1536*2)
    srd(e, 12, 58, 512*512*2)
    e("s_cmp_gt_u32 s29, 2")
    e("s_cbranch_scc1 L_noext")
    e("s_cmp_eq_u32 s29, 0")
    e("s_cselect_b32 s16, s60, s62")
    e("s_cselect_b32 s17, s61, s63")
    e("s_cmp_eq_u32 s29, 2")
    e("s_cselect_b32 s16, s66, s16")
    e("s_cselect_b32 s17, s67, s17")
    e("s_mov_b32 s18, 16384")
    e("s_cselect_b32 s18, 1024, s18")
    e("s_mov_b32 s19, 0x00020000")
    e("s_mov_b32 m0, s40")
    for i in range(4):
        e(f"buffer_load_dwordx4 v10, s[16:19], s40 offen offset:{i*1024} lds")
    e.label("L_noext")
    def item(i):
        l = []; nm = ORD[i]; idx = int(nm[1:])
        if nm[0] == "x":
            for q in range(2):
                l.append("s_lshl_b32 s38, s31, 7")
                l.append("s_add_u32 s38, s38, s32")
                l.append(f"s_add_u32 m0, s41, {XT + (2*idx+q)*8192}")
                l.append("s_add_u32 s31, s31, 1")
                for k in range(2):
                    l.append(f"buffer_load_dwordx4 v{2+k}, s[4:7], s38 offen offset:{k*1024} lds")
                l.append("s_and_b32 s31, s31, 7")
        else:
            g = idx
            l.append(f"s_add_u32 s35, s36, {g % 8}")
            l.append("s_and_b32 s35, s35, 7")
            l.append("s_mul_i32 s39, s35, 196608")
            l.append("s_add_u32 s39, s39, s33")
            l.append(f"s_add_u32 m0, s41, {SLOT[g]}")
            if g < 8: l.append("s_add_u32 s39, s39, 1024")
            else: l.append("s_lshl_b32 s38, s35, 16")
            for k in range(2):
                l.append(f"buffer_load_dwordx4 v{6+k}, s[8:11], s39 offen offset:{k*1024} lds")
            l.append(f"s_add_u32 m0, s41, {SLOT[g]+8192}")
            if g < 8:
                l.append("s_add_u32 s39, s39, 1024")
                for k in range(2):
                    l.append(f"buffer_load_dwordx4 v{8+k}, s[8:11], s39 offen offset:{k*1024} lds")
            else:
                l.append("s_add_u32 s38, s38, s34")
                for k in range(2):
                    l.append(f"buffer_load_dwordx4 v{4+k}, s[12:15], s38 offen offset:{k*1024} lds")
        return l
    def earliest(i):
        nm = ORD[i]; idx = int(nm[1:])
        if nm[0] == "x" or idx == 8: return -1
        r = ring.index(nm)
        if r < 3: return -1
        if r == 3: return XL + 1
        return USE[int(ring[r - 4][1:])] + 1
    DEP = OPT.get("dep", 3)
    for i in range(DEP): e.extend(item(i))
    e.extend(trace(61))
    e(f"s_load_dwordx2 s[78:79], s[72:73], {hex(WS_EPOCH)}")
    srd(e, 20, 52, 32*16*16*2)
    srd(e, 24, 72, WS_SIZE)
    e("s_and_b32 s46, s30, 1")
    e("s_lshr_b32 s47, s30, 1")
    e("v_bfe_u32 v13, v1, 4, 1")
    e("v_lshlrev_b32 v15, 2, v13")
    e("v_xor_b32 v15, v12, v15")
    e("v_lshlrev_b32 v15, 4, v15")
    e("v_lshl_add_u32 v144, v11, 10, v15")
    for k in range(1, 4): e(f"v_add_u32 v{144+k}, {k*7168}, v144")
    e("v_lshrrev_b32 v16, 5, v1")
    e("v_bfe_u32 v15, v1, 2, 2")
    e("v_lshl_add_u32 v148, v16, 2, v15")
    e("v_lshlrev_b32 v148, 7, v148")
    e("v_lshrrev_b32 v15, 1, v15")
    e("v_xor_b32 v15, s47, v15")
    e("v_lshl_add_u32 v148, v15, 6, v148")
    e("v_lshl_add_u32 v148, v13, 5, v148")
    e("v_and_b32 v15, 3, v1")
    e("v_lshl_add_u32 v148, v15, 3, v148")
    e("s_lshl_b32 s38, s47, 15")
    e("v_add_u32 v148, s38, v148")
    e("v_xor_b32 v149, 64, v148")
    e(f"s_add_u32 s38, s40, {PHQ}")
    e("v_add_u32 v150, s38, v10")
    e("v_xor_b32 v151, 0x2000, v150")
    e("v_and_b32 v155, 31, v1")
    e("v_lshlrev_b32 v152, 10, v155")
    e("v_lshl_add_u32 v152, v16, 4, v152")
    e("v_lshlrev_b32 v155, 2, v155")
    e("v_and_b32 v153, 15, v1")
    e("v_lshlrev_b32 v153, 3, v153")
    e("v_lshl_add_u32 v153, v16, 7, v153")
    e("s_lshl_b32 s38, s30, 9")
    e(f"s_add_u32 s38, s38, {WPH}")
    e("v_add_u32 v153, s38, v153")
    e(f"s_add_u32 s38, s41, {PHQ}")
    e("v_add_u32 v154, s38, v10")
    e("v_lshlrev_b32 v156, 3, v1")
    e("s_getreg_b32 s37, hwreg(HW_REG_XCC_ID, 0, 4)")
    e(f"s_mov_b32 s74, {fbits(LOG2E)}")
    e(f"s_mov_b32 s75, {fbits(-LOG2E)}")
    e("v_and_b32 v15, 31, v1")
    e("v_lshlrev_b32 v15, 3, v15")
    e("s_lshl_b32 s38, s30, 8")
    e(f"s_add_u32 s38, s38, {F1}")
    e("v_add_u32 v15, s38, v15")
    e("s_lshl_b32 s42, s30, 10")
    assert WS_KVB == 0
    def kvdma(n):
        l = []
        for _ in range(n):
            l.append("s_mov_b32 m0, s42")
            l.append("s_nop 0")
            l.append("buffer_load_dwordx4 v10, s[24:27], s42 offen sc1 lds")
            l.append("s_add_u32 s42, s42, 4096")
        return l
    out = []
    e("s_and_b32 s38, s30, 1")
    e("s_lshl_b32 s38, s38, 10")
    e(f"s_add_u32 m0, s38, {WPH}")
    e("s_lshl_b32 s39, s29, 11")
    e("s_add_u32 s38, s38, s39")
    e("buffer_load_dwordx4 v10, s[20:23], s38 offen lds")
    for i in range(DEP): out += [i] * 4
    out.append("w")
    nxt = DEP
    def waitfor(tag):
        idx = max(k for k, t in enumerate(out) if t == tag)
        n = len(out) - 1 - idx
        del out[:idx + 1]
        return f"s_waitcnt vmcnt({n})"
    PA = OPT.get("pa", 14)
    poll = "buffer_load_dwordx2 v[16:17], v15, s[24:27], 0 offen sc1"
    e.extend(trace(62))
    for i in range(18):
        e(waitfor(i))
        e.extend(trace(2 * i))
        e("s_barrier")
        e.extend(trace(2 * i + 1))
        if i == 0:
            e.extend(stamp(0))
        if i == 8:
            e("s_waitcnt lgkmcnt(0)")
            e("s_add_u32 s78, s78, 1")
        while nxt <= min(19, i + DEP) and earliest(nxt) <= i:
            e.extend(item(nxt)); out += [nxt] * 4; nxt += 1
        assert nxt > i + 1
        if i == PA:
            e(poll); out.append("p")
    if "p" in out: e(waitfor("p"))
    e("v_cmp_ne_u64 vcc, s[78:79], v[16:17]")
    e("s_cbranch_vccnz L_kvlate")
    save = list(out)
    e.extend(kvdma(4)); out += ["k0"] * 4
    if 18 in out: e(waitfor(18))
    e("s_barrier")
    e.extend(kvdma(4)); out += ["k1"] * 4
    if 19 in out: e(waitfor(19))
    e("s_barrier")
    e.extend(kvdma(4)); out += ["k2"] * 4
    e.label("L_kv20")
    e("s_waitcnt vmcnt(4)")
    e("s_barrier")
    e("s_branch L_kvjoin")
    e.label("L_kvlate")
    out[:] = save
    e(poll); out.append("p")
    if 18 in out: e(waitfor(18))
    e("s_barrier")
    if 19 in out: e(waitfor(19))
    e("s_barrier")
    e("s_waitcnt vmcnt(0)")
    e("v_cmp_ne_u64 vcc, s[78:79], v[16:17]")
    e("s_cbranch_vccz L_kvlate2")
    flag_poll(e, 15, 16, sleep=0)
    e.label("L_kvlate2")
    e.extend(kvdma(12))
    e("s_branch L_kv20")
    e.label("L_kvjoin")
    e.extend(stamp(1))
    e.extend(kvdma(20))
    HQ = 16; HK = 32; HG = 40; HT = 42; HD = 48; HP = 80
    for u in range(2): e(f"ds_read_b128 {vr(HQ+8*u,4)}, v154 offset:{u*1024}")
    for u in range(2): e(f"ds_read_b64_tr_b16 {vr(HK+2*u,2)}, v153 offset:{u*256}")
    e("s_lshl_b32 s38, s28, 4")
    e(f"s_add_u32 s38, s38, {FG}")
    e(f"v_and_b32 v{HT+4}, 8, v156")
    e(f"v_add_u32 v{HT+4}, s38, v{HT+4}")
    e("s_waitcnt vmcnt(0)")
    e.extend(trace(44))
    lds_add(e, C_KVALL, HT)
    e("s_lshl_b32 s45, s29, 2")
    e("s_lshl_b32 s36, s28, 7")
    e("s_add_u32 s36, s36, s45")
    e("s_add_u32 s36, s36, s30")
    e("s_lshl_b32 s36, s36, 10")
    e(f"s_add_u32 s36, s36, {WS_OC}")
    e(f"v_mov_b64 {vr(HD,2)}, -1")
    e(f"v_mov_b64 {vr(HD+2,2)}, -1")
    for i in range(4):
        e(f"s_add_u32 s38, s36, {i*32768}")
        e(f"buffer_store_dwordx4 {vr(HD,4)}, v10, s[24:27], s38 offen sc1")
    flag_poll(e, HT + 4, HT + 2)
    e("s_lshl_b32 s38, s28, 5")
    e("s_add_u32 s38, s38, s45")
    e("s_add_u32 s38, s38, s30")
    e("s_lshl_b32 s38, s38, 4")
    e(f"s_add_u32 s38, s38, {FP}")
    e(f"v_mov_b32 v{HD+4}, s78")
    e(f"v_mov_b32 v{HD+5}, s79")
    e(f"v_mov_b32 v{HD+6}, s37")
    e(f"v_mov_b32 v{HD+7}, 0")
    e("s_mov_b64 exec, 1")
    e(f"buffer_store_dwordx4 {vr(HD+4,4)}, v{HD+7}, s[24:27], s38 offen sc1")
    e("s_mov_b64 exec, -1")
    e("s_lshl_b32 s38, s28, 8")
    e(f"s_add_u32 s38, s38, {WS_GATE}")
    e(f"buffer_load_dword v{HG}, v155, s[24:27], s38 offen sc1")
    e(f"buffer_load_dword v{HG+1}, v155, s[24:27], s38 offen offset:128 sc1")
    e("s_waitcnt lgkmcnt(0)")
    for u in range(2): e(mfma(HD + 16 * u, HK, HQ + 8 * u, None))
    e.extend(interleave(*[phi_unit(HD + 16 * u, HP + 4 * u, HQ + 8 * u) for u in range(2)]))
    e(f"v_add_u32 v{HT}, {C_GATE}, v155")
    e("s_waitcnt vmcnt(0)")
    e(f"ds_write_b32 v{HT}, v{HG}")
    e(f"ds_write_b32 v{HT}, v{HG+1} offset:128")
    e("s_waitcnt lgkmcnt(0)")
    lds_add(e, C_GOK, HT)
    e.extend(trace(45))
    e("s_and_b32 s38, s28, 3")
    e("s_cmp_lg_u32 s38, s30")
    e("s_cbranch_scc1 L_nored")
    e("s_lshr_b32 s38, s28, 3")
    e("s_add_u32 s43, s45, s38")
    e("v_lshlrev_b32 v15, 1, v155")
    e("s_lshl_b32 s38, s43, 8")
    e(f"s_add_u32 s38, s38, {F3}")
    e(f"v_add_u32 v{HT}, s38, v15")
    flag_poll(e, HT, HT + 2)
    e.extend(trace(46))
    e("s_lshl_b32 s43, s43, 3")
    e("s_and_b32 s38, s28, 7")
    e("s_add_u32 s43, s43, s38")
    e("s_lshl_b32 s38, s43, 14")
    e(f"s_add_u32 s38, s38, {WS_PART}")
    for p in range(16):
        if p and p % 4 == 0: e("s_add_u32 s38, s38, 4096")
        e(f"buffer_load_dwordx4 {vr(HP+4*p,4)}, v10, s[24:27], s38 offen offset:{(p&3)*1024} sc1")
    e("s_waitcnt vmcnt(0)")
    e.extend(trace(47))
    for st in (32, 16, 8, 4):
        for i in range(0, st, 2): e(f"v_pk_add_f32 {vr(HP+i,2)}, {vr(HP+i,2)}, {vr(HP+st+i,2)}")
    e(f"v_permlane32_swap_b32 v{HP}, v{HP+2}")
    e(f"v_permlane32_swap_b32 v{HP+1}, v{HP+3}")
    e(f"v_pk_add_f32 {vr(HP,2)}, {vr(HP,2)}, {vr(HP+2,2)}")
    e(f"v_cvt_pk_bf16_f32 v{HP}, v{HP}, v{HP+1}")
    e(f"v_lshrrev_b32 v{HT}, 5, v1")
    e(f"v_lshl_add_u32 v{HT}, v{HT}, 2, v15")
    e("s_lshl_b32 s38, s43, 8")
    e(f"s_add_u32 s38, s38, {WS_KVF}")
    e(f"buffer_store_dword v{HP}, v{HT}, s[24:27], s38 offen sc1")
    e("s_lshl_b32 s38, s43, 3")
    e(f"s_add_u32 s38, s38, {F3P}")
    e("s_waitcnt vmcnt(0)")
    e.extend(trace(48))
    flag_store(e, "s38", HT)
    e.label("L_nored")
    e.extend(stamp(2))
    e("s_lshl_b32 s38, s28, 9")
    e(f"s_add_u32 s38, s38, {FP}")
    e("v_lshlrev_b32 v2, 2, v155")
    e("v_add_u32 v2, s38, v2")
    e("s_mov_b32 s77, 0")
    e("s_mov_b32 s35, 0")
    e.label("L_fpp")
    e(f"buffer_load_dwordx4 {vr(HD,4)}, v2, s[24:27], 0 offen sc1")
    e("s_add_u32 s77, s77, 1")
    e("s_waitcnt vmcnt(0)")
    e(f"v_cmp_ne_u64 vcc, s[78:79], {vr(HD,2)}")
    e("s_cbranch_vccz L_fpd")
    e("s_sleep 8")
    e(f"s_cmp_lt_u32 s77, {OPT['spin']}")
    e("s_cbranch_scc1 L_fpp")
    e("s_branch L_fpx")
    e.label("L_fpd")
    e(f"v_cmp_ne_u32 vcc, s37, v{HD+2}")
    e("s_cbranch_vccnz L_fpx")
    if OPT.get("loc", 1):
        lds_add(e, C_LOC, HT)
        e("s_mov_b32 s35, 1")
    e.label("L_fpx")
    e.extend(trace(57))
    e("s_add_u32 s45, s45, s30")
    e("s_lshl_b32 s38, s45, 6")
    e(f"s_add_u32 s38, s38, {F3P}")
    e(f"v_and_b32 v{HT}, 56, v156")
    e(f"v_add_u32 v{HT}, s38, v{HT}")
    flag_poll(e, HT, HT + 2)
    e.extend(trace(49))
    e("s_lshl_b32 s38, s45, 11")
    e(f"s_add_u32 s38, s38, {WS_KVF}")
    for q in range(4):
        e(f"buffer_load_dwordx2 {vr(HK+2*q,2)}, v156, s[24:27], s38 offen offset:{q*512} sc1")
    e("s_waitcnt vmcnt(0)")
    e.extend(trace(50))
    for u in range(2): e(mfma(HD + 16 * u, HK, HQ + 8 * u, None))
    for u in range(2): e(mfma(HD + 16 * u, HK + 4, HQ + 8 * u + 4, HD + 16 * u))
    for u in range(2):
        D = HD + 16 * u
        e(f"v_add_f32 v{HT}, {fbits(1e-6)}, v{D+8}")
        e(f"v_rcp_f32 v{HT}, v{HT}")
        e(f"v_mul_f32 v{HT}, v{HT}, v{HG+u}")
        for i in range(0, 8, 2): e(f"v_pk_mul_f32 {vr(D+i,2)}, {vr(D+i,2)}, {vr(HT,2)} op_sel_hi:[1,0]")
        for q in range(4): e(f"v_cvt_pk_bf16_f32 v{D+q}, v{D+2*q}, v{D+2*q+1}")
    e("s_add_u32 s38, s36, 65536")
    e(f"buffer_store_dwordx4 {vr(HD,4)}, v10, s[24:27], s36 offen sc1")
    e(f"buffer_store_dwordx4 {vr(HD+16,4)}, v10, s[24:27], s38 offen sc1")
    e.extend(trace(51))
    e.extend(stamp(3))
    ACC = [16, 32]; WFR = [48, 56, 132]; OF = 64; PT = 128
    srd(e, 4, 54, 512*512*2)
    srd(e, 8, 64, 512*512*2)
    srd(e, 12, 68, 2048*512*2)
    e("s_lshl_b32 s44, s28, 1")
    e("s_add_u32 s44, s44, s46")
    e("s_lshl_b32 s43, s44, 16")
    e("s_lshl_b32 s38, s47, 14")
    e("s_add_u32 s43, s43, s38")
    e(f"s_add_u32 s43, s43, {WS_OC}")
    def wdma(sd):
        e("s_lshl_b32 s38, s30, 17")
        e("s_lshl_b32 s39, s29, 7")
        e("s_add_u32 s38, s38, s39")
        e("s_lshl_b32 s39, s30, 14")
        for g in range(4):
            e("s_mov_b32 m0, s39")
            for k in range(4):
                e(f"buffer_load_dwordx4 v{144+k}, s[{sd}:{sd+3}], s38 offen offset:{k*1024} lds")
            if g < 3:
                e("s_add_u32 s38, s38, 32768")
                e("s_add_u32 s39, s39, 4096")
    def oload(base_add, g0=0):
        for g in range(g0, 4):
            e(f"s_add_u32 s38, s43, {base_add + g*4096}")
            for t in range(4 * g, 4 * g + 4):
                e(f"buffer_load_dwordx4 {vr(OF+4*t,4)}, v10, s[24:27], s38 offen offset:{(t&3)*1024} sc1")
    def rd(t):
        return [f"ds_read_b64_tr_b16 {vr(WFR[t%3]+4*nt+2*u,2)}, v{148+nt} offset:{(16*t+8*u)*128}" for nt in range(2) for u in range(2)]
    def step(t, first, fill=[]):
        if t < 14: e.extend(rd(t + 2))
        e(f"s_waitcnt lgkmcnt({4*min(2, 15-t)})")
        for nt in range(2):
            e(mfma(ACC[nt], WFR[t % 3] + 4 * nt, OF + 4 * t, None if (first and t == 0) else ACC[nt]))
            e.extend(fill[nt * 5:nt * 5 + 5])
    def check(g):
        b = OF + 16 * g
        l = [f"v_max3_u32 v{PT}, v{b}, v{b+1}, v{b+2}", f"v_max3_u32 v{PT+1}, v{b+3}, v{b+4}, v{b+5}"]
        for i in (6, 10):
            l += [f"v_max3_u32 v{PT}, v{PT}, v{b+i}, v{b+i+1}", f"v_max3_u32 v{PT+1}, v{PT+1}, v{b+i+2}, v{b+i+3}"]
        l += [f"v_max3_u32 v{PT}, v{PT}, v{b+14}, v{b+15}", f"v_max_u32 v{PT}, v{PT}, v{PT+1}", f"v_cmp_eq_u32 vcc, -1, v{PT}"]
        return l
    def pgemm(tag, first, pace):
        e("s_waitcnt vmcnt(12)")
        e.extend(check(0))
        for g in range(4):
            e(f"s_cbranch_vccnz L_retry{tag}{g}")
            e.label(f"L_go{tag}{g}")
            if g == 0 and not first: e.extend(trace(40))
            for t in range(4 * g, 4 * g + 4):
                if t % 4 == 3 and g < 3: step(t, first, [f"s_waitcnt vmcnt({8-4*g})"] + check(g + 1))
                else: step(t, first)
                if pace: e(f"s_sleep {pace}")
    lds_wait(e, C_PROG, 8, PT, sleep=8)
    e.extend(trace(54))
    wdma(4)
    oload(0)
    e("s_waitcnt vmcnt(16)")
    lds_add(e, C_HS, PT)
    lds_wait(e, C_HS, 4, PT)
    e.extend(trace(55))
    e.extend(rd(0) + rd(1))
    e("s_mov_b32 s77, 0")
    pgemm("A", True, OPT.get("pace", 2))
    e.extend(trace(56))
    lds_add(e, C_HS, PT)
    lds_wait(e, C_HS, 8, PT)
    e.extend(trace(58))
    wdma(8)
    e("s_lshl_b32 s36, s44, 15")
    e("s_lshl_b32 s39, s29, 7")
    e("s_add_u32 s36, s36, s39")
    e("s_lshl_b32 s39, s47, 6")
    e("s_add_u32 s36, s36, s39")
    e("s_mov_b32 s77, 0")
    e("s_waitcnt vmcnt(0)")
    e.extend(stamp(4))
    e("s_barrier")
    e.extend(stamp(5))
    oload(32768)
    e.extend(rd(0) + rd(1))
    pgemm("B", False, 0)
    e.extend(trace(42))
    if OPT.get("trace"): e("v_writelane_b32 v159, s77, 41")
    for q in range(4): e(f"ds_write_b128 v150, {vr(ACC[1]+4*q,4)} offset:{q*1024}")
    e("s_waitcnt lgkmcnt(0)")
    e("s_barrier")
    for q in range(4): e(f"ds_read_b128 {vr(OF+4*q,4)}, v151 offset:{q*1024}")
    A = ACC[0]
    for pr in range(2):
        e(f"s_waitcnt lgkmcnt({2-2*pr})")
        for i in range(8 * pr, 8 * pr + 8, 2): e(f"v_pk_add_f32 {vr(A+i,2)}, {vr(A+i,2)}, {vr(OF+i,2)}")
        for q in range(4): e(f"v_cvt_pk_bf16_f32 v{A+8*pr+q}, v{A+8*pr+2*q}, v{A+8*pr+2*q+1}")
    for pr in range(2):
        e(f"v_permlane32_swap_b32 v{A+8*pr}, v{A+8*pr+2}")
        e(f"v_permlane32_swap_b32 v{A+8*pr+1}, v{A+8*pr+3}")
    for pr in range(2):
        e(f"buffer_store_dwordx4 {vr(A+8*pr,4)}, v152, s[12:15], s36 offen offset:{pr*32}" + ["", " sc1", " nt", " sc0 sc1"][OPT.get("ost", 0)])
    e.extend(trace(43))
    e("s_or_b32 s38, s2, s30")
    e("s_cbranch_scc1 L_noepoch")
    e(f"s_mov_b32 s38, {WS_EPOCH}")
    flag_store(e, "s38", PT)
    e.label("L_noepoch")
    stamp_end(e, 64)
    e.label("L_done")
    e("s_endpgm")
    for tag, base in (("A", 0), ("B", 32768)):
        for g in range(4):
            e.label(f"L_retry{tag}{g}")
            if tag == "A": e("s_sleep 8")
            oload(base, g)
            e("s_add_u32 s77, s77, 1")
            e(f"s_waitcnt vmcnt({12-4*g})")
            e.extend(check(g))
            e(f"s_cbranch_vccz L_go{tag}{g}")
            e(f"s_cmp_lt_u32 s77, {OPT['spin']}")
            e(f"s_cbranch_scc1 L_retry{tag}{g}")
            e(f"s_branch L_go{tag}{g}")

    e.label("L_compute")
    ACC = 96; EACC = 128; WF = 144; I0 = 148; ONE = 156
    e("s_and_b32 s44, s30, 3")
    e("s_lshr_b32 s40, s30, 2")
    if OPT.get("pf", 1):
        e("s_cmp_lt_u32 s30, 3")
        e("s_movk_i32 s38, 1024")
        e("s_cselect_b32 s38, 3072, s38")
        e("v_mul_lo_u32 v30, v1, s38")
        e("s_mul_i32 s38, s38, s31")
        e("s_lshl_b32 s38, s38, 6")
        e("s_add_u32 s39, s30, 1")
        e("s_cmp_lt_u32 s30, 2")
        e("s_cselect_b32 s39, s39, 0")
        e("s_lshl_b32 s39, s39, 10")
        e("s_add_u32 s38, s38, s39")
        e("s_lshl_b32 s39, s29, 7")
        e("s_add_u32 s38, s38, s39")
        e("s_add_u32 s39, s31, s30")
        e("s_and_b32 s39, s39, 7")
        e("s_lshl_b32 s39, s39, 7")
        e("s_lshl_b32 s42, s28, 16")
        e("s_add_u32 s39, s39, s42")
        e("s_cmp_lt_u32 s30, 4")
        e("s_cselect_b32 s38, s38, s39")
        e("v_add_u32 v30, s38, v30")
        e("s_waitcnt lgkmcnt(0)")
        e("s_cselect_b32 s20, s58, s48")
        e("s_cselect_b32 s21, s59, s49")
        e("s_cmp_lt_u32 s30, 3")
        e("s_cselect_b32 s20, s50, s20")
        e("s_cselect_b32 s21, s51, s21")
        lo = OPT.get("pfx", 6)
        if lo > 4:
            e("s_sub_u32 s38, s30, 4")
            e(f"s_cmp_lt_u32 s38, {lo-4}")
            e("s_cbranch_scc1 L_nopf")
        e("global_load_dword v31, v30, s[20:21]" + ["", " sc1", " nt"][OPT.get("pfm", 0)])
        e.label("L_nopf")
    e("v_and_b32 v11, 31, v1")
    e("v_lshrrev_b32 v22, 5, v1")
    e("v_bfe_u32 v23, v1, 1, 3")
    e("v_xor_b32 v23, v23, v22")
    e("v_lshlrev_b32 v23, 4, v23")
    e("v_lshl_add_u32 v12, v11, 7, v23")
    e(f"v_add_u32 v12, {XT}, v12")
    for t in range(1, 4): e(f"v_xor_b32 v{12+t}, {32*t}, v12")
    su_w = ["v_lshrrev_b32 v22, 5, v1", "v_bfe_u32 v23, v1, 2, 2", "v_lshl_add_u32 v20, v22, 3, v23", "v_lshlrev_b32 v20, 7, v20",
            "v_bfe_u32 v23, v1, 3, 2", "v_xor_b32 v23, s44, v23", "v_lshl_add_u32 v20, v23, 5, v20", "v_bfe_u32 v24, v1, 4, 1",
            "v_lshl_add_u32 v20, v24, 13, v20", "v_and_b32 v23, 3, v1", "v_lshl_add_u32 v20, v23, 3, v20"]
    su_s = ["s_lshl_b32 s45, s29, 2", "s_add_u32 s45, s45, s44", "s_lshl_b32 s47, s28, 1", "s_xor_b32 s46, s40, 1",
            "s_add_u32 s47, s47, s46", "s_lshl_b32 s43, s47, 6", "s_add_u32 s43, s43, s45", "s_lshl_b32 s43, s43, 10",
            f"s_add_u32 s43, s43, {WS_OC+32*1024}",
            f"s_mov_b32 s74, {fbits(LOG2E)}", f"s_mov_b32 s75, {fbits(-LOG2E)}", f"s_mov_b32 s76, {fbits(0.25*LOG2E)}",
            "s_lshl_b32 s38, s44, 10", f"s_add_u32 s38, s38, {HND}", "v_add_u32 v28, s38, v10"]
    su_ws = ["s_waitcnt lgkmcnt(0)", f"s_load_dwordx2 s[78:79], s[72:73], {hex(WS_EPOCH)}",
             "s_mov_b32 s24, s72", "s_mov_b32 s25, s73", f"s_mov_b32 s26, {hex(WS_SIZE)}", "s_mov_b32 s27, 0x00020000"]
    su_ep = ["s_waitcnt lgkmcnt(0)", "s_add_u32 s78, s78, 1"]
    def su_id(n, I0):
        l = ["v_and_b32 v11, 31, v1", "v_lshrrev_b32 v22, 5, v1", "v_lshlrev_b32 v22, 2, v22", "v_sub_u32 v11, v11, v22",
             "v_mov_b32 v22, 0x3f80", "v_mov_b32 v23, 0x3f800000"]
        for sgn in range(n):
            for q in range(4):
                f0 = 16 * sgn + (2 * q if q < 2 else 8 + 2 * (q - 2))
                l += [f"v_cmp_eq_u32 vcc, {f0}, v11", f"v_cmp_eq_u32 s[38:39], {f0+1}, v11",
                      f"v_cndmask_b32 v{I0+4*sgn+q}, 0, v22, vcc", f"v_cndmask_b32 v{I0+4*sgn+q}, v{I0+4*sgn+q}, v23, s[38:39]"]
        return l
    Q = 4; NM = 8; O = 24; S = [40, 56]; PK = 72; KF = [80, 84]; VF = [144, 152]; AK = 2; AV = 3; T = 106
    U = 4; NIT = 16
    SEG = OPT.get("seg", (3, 8, 15, 16))
    ATT_SETUP = [f"v_mov_b32 v{AK}, v10", f"v_lshrrev_b32 v{T}, 5, v1", f"v_and_b32 v{AV}, 15, v1", f"v_lshlrev_b32 v{AV}, 4, v{AV}",
                 f"v_lshl_add_u32 v{AV}, v{T}, 8, v{AV}", f"v_add_u32 v{AV}, 1024, v{AV}", f"v_and_b32 v{T}, 27, v1",
                 f"v_mov_b32 v{T+1}, 0x3f803f80", f"v_cmp_eq_u32 vcc, 16, v{T}", "s_mov_b32 s20, 0xffff", "s_mov_b32 s21, 0xffff",
                 f"v_cndmask_b32 v{VF[0]}, 0, v{T+1}, vcc"] + [f"v_mov_b32 v{VF[0]+1}, v{VF[0]}"] + [f"v_mov_b64 {vr(VF[0]+i,2)}, {vr(VF[0],2)}" for i in range(2, 16, 2)] + \
                [f"s_mov_b32 s22, {SEG[0]}", "s_mov_b32 s23, 0"]
    def fr(buf, t):
        if buf == 0:
            b = 32 + 12 * t; return (b, b + 4, b + 8)
        return [(80, 84, 88), (128, 132, 136), (92, 140, 16), (4, 160, 164)][t]
    def reads(buf, g):
        l = []; p = g % 8; so = SLOT[g] & 0xffff; wa = 21 if g == 8 else 20
        for t in range(4):
            xa, xb, w = fr(buf, t)
            l.append(f"ds_read_b128 {vr(xa,4)}, v{12+t} offset:{p*8192}")
            for u in range(2):
                l.append(f"ds_read_b64_tr_b16 {vr(w+2*u,2)}, v{wa} offset:{so+(16*t+4*u)*128}")
            l.append(f"ds_read_b128 {vr(xb,4)}, v{12+t} offset:{p*8192+4096}")
        return l
    def mfmas(buf, first):
        l = []
        for t in range(4):
            xa, xb, w = fr(buf, t); z = first and t == 0
            l.append(mfma(ACC, w, xa, None if z else ACC))
            l.append(mfma(ACC + 16, w, xb, None if z else ACC + 16))
        return l
    def gpass(g0, first, last, extra={}):
        pend = None; NS = OPT.get("gspread", 5)
        for i in range(first, last + 1):
            e("s_barrier")
            mm = mfmas(pend & 1, pend == 0) if pend is not None else []
            todo = None
            for c in range(8):
                if USE[g0 + c] == i: todo = c
            if todo is not None:
                r = reads(todo & 1, g0 + todo)
                e.extend(spread(mm[:NS], r) + mm[NS:] if mm else r)
                e.extend(extra.get(i, []))
                e("s_waitcnt lgkmcnt(0)")
            else:
                e.extend(mm)
                e.extend(extra.get(i, []))
            pend = todo
        if pend is not None: e.extend(mfmas(pend & 1, False))
    PU = [32, 48]; PH = [64, 72]; TM = [80, 84]; VFR = [88, 92]
    e("s_cmp_lg_u32 s40, 0")
    e("s_cbranch_scc1 L_qwave")
    e(f"v_mov_b32 v26, {MISC}")
    for i in range(4): e(f"v_mov_b32 v{32+i}, 0")
    e("ds_write_b128 v26, v[32:35]")
    e("ds_write_b128 v26, v[32:35] offset:16")
    e.extend(su_w)
    e.extend(su_ws)
    wph = ["v_and_b32 v23, 15, v1", "v_lshlrev_b32 v23, 3, v23", "v_lshrrev_b32 v22, 5, v1", "v_lshl_add_u32 v25, v22, 7, v23",
           "s_lshl_b32 s38, s44, 9", f"s_add_u32 s38, s38, {WPH}", "v_add_u32 v25, s38, v25"]
    wpr = [f"ds_read_b64_tr_b16 {vr(WF+2*u,2)}, v25 offset:{u*256}" for u in range(2)]
    one = ["v_bfe_u32 v24, v1, 4, 1", f"v_mul_u32_u24 v{ONE}, 0x3f80, v24", f"v_lshl_or_b32 v{ONE}, v{ONE}, 16, v{ONE}"]
    xs = [i for i in range(8) if i not in USE.values() or i == USE[8] and i not in [USE[c] for c in range(8)]]
    idl = su_id(2, I0)
    KEND = USE[7] + 1
    gpass(0, 0, KEND, {xs[0]: su_s + wph, xs[1]: idl[:22], xs[2]: idl[22:] + one, xs[3]: su_ep + stamp(0), 9: wpr})
    e.extend(stamp(1))
    k = []
    for u in range(2):
        for q in range(4): k.append(f"v_cvt_pk_bf16_f32 v{PH[u]+q}, v{ACC+16*u+2*q}, v{ACC+16*u+2*q+1}")
    for u in range(2): k.append(mfma(PU[u], WF, PH[u], None))
    for u in range(2):
        a = ACC + 16 * u
        for q in range(4): k.append(f"v_cvt_pk_bf16_f32 v{VFR[u]+q}, v{a+8+2*q}, v{a+8+2*q+1}")
    for u in range(2): k.append(mfma(ACC + 16 * u, VFR[u], I0, None))
    k += interleave(*[phi_unit(PU[u], TM[u], PH[u]) for u in range(2)])
    for u in range(2): k.append(mfma(PU[u], PH[u], I0, None))
    for u in range(2): k.append(mfma(PU[u], PH[u] + 4, I0 + 4, PU[u]))
    for u in range(2):
        a = ACC + 16 * u
        for q in range(8): k.append(f"v_cvt_pk_bf16_f32 v{a+q}, v{a+2*q}, v{a+2*q+1}")
        for q in range(8): k.append(f"v_or_b32 v{a+q}, v{a+q}, v{ONE}")
    for u in range(2):
        for q in range(8): k.append(f"v_cvt_pk_bf16_f32 v{PH[u]+q}, v{PU[u]+2*q}, v{PU[u]+2*q+1}")
    D3 = EACC
    for u in range(2):
        k.append(mfma(D3, PH[u], ACC + 16 * u, None if u == 0 else D3))
        k.append(mfma(D3, PH[u] + 4, ACC + 16 * u + 4, D3))
    k += ["v_and_b32 v11, 31, v1", "v_lshlrev_b32 v11, 4, v11", "v_lshrrev_b32 v22, 5, v1", "v_lshl_add_u32 v11, v22, 14, v11",
          "s_lshl_b32 s38, s45, 17", "s_lshl_b32 s39, s28, 9", "s_add_u32 s38, s38, s39", f"s_add_u32 s38, s38, {WS_PART}"]
    for q in range(4):
        k.append(f"buffer_store_dwordx4 {vr(D3+4*q,4)}, v11, s[24:27], s38 offen sc1")
        if q < 3: k.append("s_add_u32 s38, s38, 32768")
    if not OPT.get("pk", 1): k = unpk(k)
    k = [x.strip() for x in fix_hazards(k, pre=mfmas(1, False))]
    def cost(x):
        if "mfma" in x: return 48
        if "v_exp" in x or "v_rcp" in x: return 8
        if "s_nop" in x: return 4 * (int(x.split()[1]) + 1)
        return 4
    NB = 20 - KEND
    acc = 260; nb = 0; LIM = OPT.get("klim", 140)
    for x in k:
        if nb < NB and acc + cost(x) > (LIM if nb < NB - 1 else OPT.get("klast", 300)):
            e("s_barrier"); nb += 1; acc = 0
            if nb == NB:
                e.extend(stamp(2)); e("s_setprio 2")
        e(x); acc += cost(x)
    while nb < NB:
        e("s_barrier"); nb += 1
    e("ds_read_b128 v[4:7], v28")
    e.extend(ATT_SETUP)
    e("s_branch L_attn")
    e.label("L_qwave")
    e.extend(su_w)
    e.extend(su_s)
    e.extend(ATT_SETUP)
    e("s_lshl_b32 s38, s44, 11")
    e(f"s_add_u32 s38, s38, {PHQ}")
    e("v_add_u32 v29, s38, v10")
    e("s_mov_b32 s41, 0")
    e.extend([x for x in su_ws if "s_load" not in x])
    e("s_cmp_eq_u32 s30, 6")
    e("s_cbranch_scc1 L_touch")
    e("s_cmp_eq_u32 s30, 7")
    e("s_cbranch_scc1 L_qidle")
    e("s_cmp_gt_u32 s29, 2")
    e("s_cbranch_scc1 L_qidle")
    e("s_lshl_b32 s38, s44, 12")
    for t in range(4): e(f"v_add_u32 v{16+t}, s38, v{12+t}")
    e("v_and_b32 v23, 15, v1")
    e("v_lshlrev_b32 v23, 3, v23")
    e("v_lshl_add_u32 v26, v22, 8, v23")
    e("v_lshlrev_b32 v27, 4, v22")
    e("s_lshl_b32 s42, s28, 1")
    e("s_add_u32 s42, s42, s44")
    e("s_cmp_eq_u32 s29, 2")
    e("s_cbranch_scc1 L_qgate")
    def extloop(gate):
        nbar = 0
        if not gate: e.extend(su_id(1, 160))
        for p in range(8):
            while p % 2 == 0 and nbar <= POS[f"x{p//2}"]:
                e("s_barrier"); nbar += 1
            e(f"s_lshl_b32 s38, s31, {7 if gate else 11}")
            e(f"v_add_u32 v21, s38, v{27 if gate else 26}")
            e("s_add_u32 s31, s31, 1")
            e("s_and_b32 s31, s31, 7")
            B = 32 + 32 * (p & 1)
            for t in range(4):
                e(f"ds_read_b128 {vr(B+8*t,4)}, v{16+t} offset:{p*8192}")
                if gate: e(f"ds_read_b128 {vr(B+8*t+4,4)}, v21 offset:{t*32}")
                else:
                    for u in range(2): e(f"ds_read_b64_tr_b16 {vr(B+8*t+4+2*u,2)}, v21 offset:{t*512+u*128}")
            if p % 2 == 1:
                n = 8 if gate else 12
                e(f"s_waitcnt lgkmcnt({n})")
                for t in range(4): e(mfma(EACC, 32 + 8 * t + 4, 32 + 8 * t, None if (p == 1 and t == 0) else EACC))
                e("s_waitcnt lgkmcnt(0)")
                for t in range(4): e(mfma(EACC, 64 + 8 * t + 4, 64 + 8 * t, EACC))
        while nbar <= XL + 1:
            e("s_barrier"); nbar += 1
    extloop(False)
    for q in range(4): e(f"v_cvt_pk_bf16_f32 v{EACC+q}, v{EACC+2*q}, v{EACC+2*q+1}")
    e("s_lshl_b32 s38, s42, 11")
    e("s_lshl_b32 s41, s44, 1")
    e("s_add_u32 s41, s41, s29")
    e("s_lshl_b32 s41, s41, 5")
    e("s_add_u32 s41, s41, s28")
    e("s_lshl_b32 s41, s41, 3")
    e(f"s_add_u32 s41, s41, {F1}")
    e("s_cmp_eq_u32 s29, 1")
    e("s_cbranch_scc1 L_qv")
    e(f"buffer_store_dwordx4 {vr(EACC,4)}, v10, s[24:27], s38 offen sc1")
    e("s_branch L_q5")
    e.label("L_qv")
    e("s_nop 1")
    e(mfma(32, EACC, 160, None))
    e("v_lshrrev_b32 v11, 5, v1")
    e("v_and_b32 v22, 15, v1")
    e("v_lshlrev_b32 v22, 4, v22")
    e("v_lshl_add_u32 v22, v11, 8, v22")
    for q in range(8): e(f"v_cvt_pk_bf16_f32 v{EACC+8+q}, v{32+2*q}, v{32+2*q+1}")
    e("s_mov_b32 exec_lo, 0xffff")
    e("s_mov_b32 exec_hi, 0xffff")
    e(f"buffer_store_dwordx4 {vr(EACC+8,4)}, v22, s[24:27], s38 offen offset:1024 sc1")
    e(f"buffer_store_dwordx4 {vr(EACC+12,4)}, v22, s[24:27], s38 offen offset:1536 sc1")
    e("s_mov_b64 exec, -1")
    e("s_branch L_q5")
    e.label("L_qgate")
    extloop(True)
    e(f"v_cvt_pk_bf16_f32 v11, v{EACC}, v{EACC}")
    e("v_and_b32 v11, 0xffff0000, v11")
    e("v_mul_f32 v11, s75, v11")
    e("v_exp_f32 v11, v11")
    e("v_add_f32 v11, 1.0, v11")
    e("v_rcp_f32 v11, v11")
    e("v_cvt_pk_bf16_f32 v11, v11, v11")
    e("v_and_b32 v11, 0xffff0000, v11")
    e("v_lshlrev_b32 v22, 2, v1")
    e("s_lshl_b32 s38, s42, 7")
    e(f"s_add_u32 s38, s38, {WS_GATE}")
    e("s_lshl_b32 s41, s42, 3")
    e(f"s_add_u32 s41, s41, {FG}")
    e("s_mov_b32 exec_hi, 0")
    e("buffer_store_dword v11, v22, s[24:27], s38 offen sc1")
    e("s_mov_b64 exec, -1")
    e("s_branch L_q5")
    e.label("L_touch")
    if OPT.get("touch", 0):
        e("v_mov_b32 v22, 0")
        e("v_min_u32 v23, 4, v1")
        e("v_lshlrev_b32 v23, 21, v23")
        for n, p in enumerate((50, 58, 52)):
            e(f"global_load_dword v{40+n}, v22, s[{p}:{p+1}]")
        e("global_load_dword v44, v23, s[72:73]")
        for n, p in enumerate((54, 64, 68)):
            e(f"global_load_dword v{45+n}, v22, s[{p}:{p+1}]")
    e.label("L_qidle")
    for i in range(XL + 2): e("s_barrier")
    e.label("L_q5")
    e(su_ws[1])
    e(f"v_add_u32 v21, {S5}, v20")
    fl = Emitter()
    fl("s_cmp_eq_u32 s41, 0")
    fl("s_cbranch_scc1 L_noflag")
    fl.extend(su_ep)
    fl("s_waitcnt vmcnt(0)")
    flag_store(fl, "s41", 22)
    fl.label("L_noflag")
    gpass(8, XL + 2, 19, {XL + OPT.get("flat", 5): fl.lines, USE[9] - 1: stamp(0) + ["s_setprio 1"]})
    e.extend(stamp(1))
    for u in (1, 0):
        a = ACC + 16 * u
        for i in range(8, 16, 2): e(f"v_pk_mul_f32 {vr(a+i,2)}, {vr(a+i,2)}, s[76:77] op_sel_hi:[1,0]")
        d = 76 if u else 4
        for q in range(4): e(f"v_cvt_pk_bf16_f32 v{d+q}, v{a+8+2*q}, v{a+8+2*q+1}")
        if u: e("ds_write_b128 v28, v[76:79]")
        for q in range(4): e(f"v_cvt_pk_bf16_f32 v{PH[u]+q}, v{a+2*q}, v{a+2*q+1}")
        e(f"ds_write_b128 v29, {vr(PH[u],4)} offset:{u*1024}")
    e("s_waitcnt lgkmcnt(0)")
    e.extend(stamp(2))
    e("s_barrier")
    e.label("L_attn")
    e.extend(stamp(3))
    e("s_setprio 2")
    e(f"ds_read_b128 {vr(KF[0],4)}, v{AK}")
    e(f"ds_read_b128 {vr(KF[1],4)}, v{AK} offset:2048")
    e("s_mov_b64 exec, s[20:21]")
    e(f"ds_read_b128 {vr(VF[0],4)}, v{AV}")
    e(f"ds_read_b128 {vr(VF[0]+4,4)}, v{AV} offset:512")
    e("s_mov_b64 exec, -1")
    for i in range(0, 16, 2): e(f"v_mov_b64 {vr(O+i,2)}, 0")
    for i in range(0, 4, 2): e(f"v_mov_b64 {vr(PK+4+i,2)}, 0")
    e("s_waitcnt lgkmcnt(0)")
    e(mfma(S[0], KF[0], Q, None))
    e(mfma(S[1], KF[1], Q, None))
    e(f"v_max3_f32 v{T}, v{S[0]}, v{S[0]+1}, v{S[0]+2}")
    rest = list(range(S[0] + 3, S[0] + 32))
    while len(rest) >= 2:
        e(f"v_max3_f32 v{T}, v{T}, v{rest[0]}, v{rest[1]}"); rest = rest[2:]
    if rest: e(f"v_max_f32 v{T}, v{T}, v{rest[0]}")
    def setnm():
        e(f"v_mov_b32 v{T+1}, v{T}")
        e(f"v_permlane32_swap_b32 v{T}, v{T+1}")
        e(f"v_max_f32 v{T}, v{T}, v{T+1}")
        for i in range(2): e(f"v_sub_f32 v{NM+i}, 0, v{T}")
        for i in range(2, 16, 2): e(f"v_mov_b64 {vr(NM+i,2)}, {vr(NM,2)}")
    setnm()
    e(mfma(S[0], KF[0], Q, NM))
    e("s_nop 7"); e("s_nop 1")
    body = Emitter()
    ex = lambda i: f"v_exp_f32 v{i}, v{i}"
    for j in range(U):
        a = j & 1; b = a ^ 1; Sa = S[a]
        cv = lambda q: f"v_cvt_pk_bf16_f32 v{PK+q}, v{Sa+2*q}, v{Sa+2*q+1}"
        body(mfma(S[b], KF[b], Q, NM))
        body(f"ds_read_b128 {vr(KF[a],4)}, v{AK} offset:{(j+2)*2048}")
        for i in range(7): body(ex(Sa + i))
        body(mfma(O, VF[b] + 4, PK + 4, O))
        body("s_mov_b64 exec, s[20:21]")
        body(f"ds_read_b128 {vr(VF[b],4)}, v{AV} offset:{(j+1)*2048}")
        body(f"ds_read_b128 {vr(VF[b]+4,4)}, v{AV} offset:{(j+1)*2048+512}")
        body("s_mov_b64 exec, -1")
        body(ex(Sa + 7)); body(ex(Sa + 8))
        for q in range(4): body(cv(q))
        body(ex(Sa + 9)); body(ex(Sa + 10))
        body("s_waitcnt lgkmcnt(3)")
        body(mfma(O, VF[a], PK, O))
        for i in range(11, 16): body(ex(Sa + i))
        if j == U - 1:
            body(f"v_add_u32 v{AK}, {U*2048}, v{AK}")
            body(f"v_add_u32 v{AV}, {U*2048}, v{AV}")
            body("s_add_u32 s23, s23, 1")
            body("s_cmp_lt_u32 s23, s22")
        for q in range(4, 8): body(cv(q))
        body("s_waitcnt lgkmcnt(2)")
    rep = []
    fix_hazards(body.lines, pre=body.lines, report=rep)
    assert not rep, rep
    e(".p2align 6")
    e.label("L_loop")
    if OPT.get("trace") == 3:
        e.extend(["s_memtime s[96:97]", "s_waitcnt lgkmcnt(0)", "s_sub_u32 s96, s96, s94", "s_lshl_b32 s97, s23, 1", "s_add_u32 m0, s97, 1", "v_writelane_b32 v111, s96, m0"])
    e.extend(body.lines)
    e("s_cbranch_scc1 L_loop")
    e(f"s_cmp_lg_u32 s22, {SEG[3]}")
    e("s_cbranch_scc1 L_seg")
    e(mfma(O, VF[1] + 4, PK + 4, O))
    e.extend(stamp(4))
    e(f"ds_read_b32 v{T+4}, v{T+4}")
    e(f"v_lshlrev_b32 v{AK}, 4, v1")
    e(f"v_cmp_ngt_f32 s[36:37], s39, v{O+8}")
    e(f"v_rcp_f32 v{T}, v{O+8}")
    for i in range(8):
        e(f"v_cmp_class_f32 vcc, v{O+i}, v{T+3}")
        e("s_or_b64 s[36:37], s[36:37], vcc")
    e("s_cbranch_scc1 L_fallback")
    e.label("L_fin")
    e(f"v_mul_f32 v{T}, v{T}, v{T+2}")
    for i in range(0, 8, 2): e(f"v_pk_mul_f32 {vr(O+i,2)}, {vr(O+i,2)}, {vr(T,2)} op_sel_hi:[1,0]")
    for q in range(4): e(f"v_cvt_pk_bf16_f32 v{O+q}, v{O+2*q}, v{O+2*q+1}")
    e("s_waitcnt lgkmcnt(0)")
    e(f"v_cmp_eq_u32 vcc, 0, v{T+4}")
    e("s_cbranch_vccnz L_far")
    e(f"buffer_store_dwordx4 {vr(O,4)}, v{AK}, s[24:27], s43 offen")
    if OPT["stamp"] == 1: e("s_branch L_cend")
    else: e("s_endpgm")
    e.label("L_far")
    e(f"buffer_store_dwordx4 {vr(O,4)}, v{AK}, s[24:27], s43 offen sc1")
    e.label("L_cend")
    e.extend(stamp(5))
    if OPT.get("trace") == 3: e("v_mov_b32 v159, v111")
    if OPT["stamp"] == 1: stamp_end(e, 40)
    e("s_endpgm")
    e.label("L_seg")
    e(f"s_cmp_eq_u32 s22, {SEG[1]}")
    e("s_cbranch_scc1 L_seg1")
    e(f"s_cmp_gt_u32 s22, {SEG[1]}")
    e("s_cbranch_scc1 L_seg2")
    e(f"s_mov_b32 s22, {SEG[1]}")
    e("s_cmp_lg_u32 s40, 0")
    e("s_cbranch_scc1 L_seg0b")
    e("s_lshl_b32 s38, s45, 5")
    e("s_add_u32 s38, s38, s28")
    e("s_lshl_b32 s38, s38, 3")
    e(f"s_add_u32 s38, s38, {F3}")
    e("s_waitcnt vmcnt(0)")
    flag_store(e, "s38", T)
    e.label("L_seg0b")
    lds_wait(e, C_KVALL, 4, T, sleep=1)
    e("s_branch L_loop")
    e.label("L_seg1")
    e(f"s_mov_b32 s22, {SEG[2]}")
    lds_add(e, C_PROG, T)
    lds_wait(e, C_GOK, 4, T)
    e("s_lshl_b32 s38, s46, 7")
    e(f"s_add_u32 s38, s38, {C_GATE}")
    e(f"v_and_b32 v{T}, 31, v1")
    e(f"v_lshl_add_u32 v{T}, v{T}, 2, s38")
    e(f"ds_read_b32 v{T+2}, v{T}")
    e(f"v_mov_b32 v{T+3}, 0x207")
    e(f"v_mov_b32 v{T+4}, {C_LOC}")
    e(f"s_mov_b32 s39, {fbits(2.0**120)}")
    e("s_waitcnt lgkmcnt(0)")
    e(f"v_sub_f32 v{T+2}, 1.0, v{T+2}")
    e(f"v_cvt_pk_bf16_f32 v{T+2}, v{T+2}, v{T+2}")
    e(f"v_and_b32 v{T+2}, 0xffff0000, v{T+2}")
    e("s_cmp_lg_u32 s40, 0")
    e("s_cbranch_scc1 L_loop")
    e("s_setprio 1")
    e(f"s_mov_b32 s22, {OPT.get('kdrop', SEG[2])}")
    e("s_branch L_loop")
    e.label("L_seg2")
    e(f"s_mov_b32 s22, {SEG[3]}")
    e("s_setprio 1")
    e("s_cmp_lg_u32 s40, 0")
    e("s_cbranch_scc1 L_loop")
    e("s_setprio 0")
    e("s_branch L_loop")
    e.label("L_fallback")
    e("s_waitcnt lgkmcnt(0)")
    e(f"v_add_u32 v{AV}, {-64*2048 & 0xffffffff}, v{AV}")
    e(f"v_mov_b32 v{T}, 0xff800000")
    e("s_mov_b32 s38, 0")
    e.label("L_fb1")
    e(f"buffer_load_dwordx4 {vr(KF[0],4)}, v{AK}, s[24:27], s38 offen sc1")
    e("s_add_u32 s38, s38, 2048")
    e("s_waitcnt vmcnt(0)")
    e(mfma(S[0], KF[0], Q, None))
    for i in range(8): e(f"v_max3_f32 v{T}, v{T}, v{S[0]+2*i}, v{S[0]+2*i+1}")
    e("s_cmp_lt_u32 s38, 0x20000")
    e("s_cbranch_scc1 L_fb1")
    setnm()
    for i in range(16): e(f"v_mov_b32 v{O+i}, 0")
    e("s_mov_b32 s38, 0")
    e.label("L_fb2")
    e(f"buffer_load_dwordx4 {vr(KF[0],4)}, v{AK}, s[24:27], s38 offen sc1")
    e("s_mov_b64 exec, s[20:21]")
    e(f"buffer_load_dwordx4 {vr(VF[0],4)}, v{AV}, s[24:27], s38 offen sc1")
    e(f"buffer_load_dwordx4 {vr(VF[0]+4,4)}, v{AV}, s[24:27], s38 offen offset:512 sc1")
    e("s_mov_b64 exec, -1")
    e("s_add_u32 s38, s38, 2048")
    e("s_waitcnt vmcnt(0)")
    e(mfma(S[0], KF[0], Q, NM))
    for i in range(16): e(ex(S[0] + i))
    for q in range(8): e(f"v_cvt_pk_bf16_f32 v{PK+q}, v{S[0]+2*q}, v{S[0]+2*q+1}")
    e(mfma(O, VF[0], PK, O))
    e(mfma(O, VF[0] + 4, PK + 4, O))
    e("s_nop 7")
    e("s_cmp_lt_u32 s38, 0x20000")
    e("s_cbranch_scc1 L_fb2")
    e("s_nop 7"); e("s_nop 7")
    e(f"v_rcp_f32 v{T}, v{O+8}")
    e("s_branch L_fin")
    return fix_hazards(e.lines if OPT.get("pk", 1) else unpk(e.lines))

def build():
    hdr = open("cdna_kernels/%s.s.ref" % NAME).read().split("\n")
    hdr = [l for l in hdr if l.startswith(";") and "@launch" not in l]
    out = list(hdr)
    out.append(f"; @launch grid=(256,1,1) block=(768,1,1) lds={LDS_BYTES}")
    out.append('.amdgcn_target "amdgcn-amd-amdhsa--gfx950"')
    out.append(".text")
    k = NAME + "_kernel"
    out += [f".globl {k}", ".p2align 8", f".type {k},@function", f"{k}:"]
    out += gen()
    out.append('.section .rodata,"a"')
    out.append(f""".p2align 6
.amdhsa_kernel {k}
  .amdhsa_next_free_vgpr 168
  .amdhsa_next_free_sgpr {102 if OPT['stamp'] else 80}
  .amdhsa_accum_offset 168
  .amdhsa_group_segment_fixed_size 0
  .amdhsa_kernarg_size 104
  .amdhsa_user_sgpr_count 2
  .amdhsa_user_sgpr_kernarg_segment_ptr 1
  .amdhsa_system_sgpr_workgroup_id_x 1
.end_amdhsa_kernel
""")
    return "\n".join(out) + "\n"

if __name__ == "__main__":
    dst = "f.s"
    for a in sys.argv[1:]:
        k, v = a.split("=")
        if k == "out": dst = v
        elif "," in v: OPT[k] = tuple(int(x) for x in v.split(","))
        else: OPT[k] = int(v)
    open(dst, "w").write(build())
    print("wrote", dst)
```

```python
import sys
s = open(sys.argv[1]).read()
wave = int(sys.argv[3]); fa = int(sys.argv[4]); fb = int(sys.argv[5]); mode = sys.argv[6]
k = "gated_mix__linear_kernel_hedgehog__grouped_kv_mqa__prompt_kernel"
line = [l for l in s.split("\n") if "@launch" in l][0]
new = line.replace("@launch ", f"@launch kernel={k} ") + "\n; @launch kernel=diag_kernel grid=(1,1,1) block=(64,1,1) lds=0"
s = s.replace(line, new)
off = 0x900000 + wave * 64
rt = fa < 2
clk = "s_memrealtime"
sub = f"s_sub_u32 s30, s{8+fa}, s{8+fb}" if fb >= 0 else f"s_mov_b32 s30, s{8+fa}"
acc = "s_add_u32 s31, s31, s30" if mode == "avg" else ("s_max_u32 s31, s31, s30" if mode == "max" else "s_min_u32 s31, s31, s30")
fin = "s_lshr_b32 s31, s31, 8" if mode == "avg" else "s_nop 0"
init = "s_mov_b32 s31, -1" if mode == "min" else "s_mov_b32 s31, 0"
if mode == "gap":
    sub = "s_sub_u32 s30, s24, s9"; acc = "s_min_u32 s31, s31, s30"; init = "s_mov_b32 s31, -1"; fin = "s_nop 0"; rt = True
if mode == "gap0":
    sub = "s_sub_u32 s30, s24, s8"; acc = "s_max_u32 s31, s31, s30"; init = "s_mov_b32 s31, 0"; fin = "s_nop 0"; rt = True
stride = 1024
if mode == "tr":
    off = 0x940000 + wave * 256 + (fa & ~15) * 4; stride = 3072
    sub = f"s_mov_b32 s30, s{8 + (fa & 15)}"; acc = "s_add_u32 s31, s31, s30"; fin = "s_lshr_b32 s31, s31, 8"; init = "s_mov_b32 s31, 0"; rt = False
scale = "s_mul_i32 s31, s31, 10" if rt else "s_nop 0"
body = f""".globl diag_kernel
.p2align 8
.type diag_kernel,@function
diag_kernel:
    s_cmp_ge_u32 s2, 1
    s_cbranch_scc1 D_done
    s_load_dwordx2 s[4:5], s[0:1], 96
    {clk} s[24:25]
    s_waitcnt lgkmcnt(0)
    s_add_u32 s4, s4, {off}
    s_addc_u32 s5, s5, 0
    {init}
    s_mov_b32 s29, 0
D_a:
    s_load_dwordx16 s[8:23], s[4:5], s29
    s_waitcnt lgkmcnt(0)
    {sub}
    {acc}
    s_add_u32 s29, s29, {stride}
    s_cmp_lt_u32 s29, {stride*256}
    s_cbranch_scc1 D_a
    {fin}
    s_min_u32 s31, s31, 100000
    {scale}
    s_add_u32 s31, s31, 20000
D_l:
    {clk} s[26:27]
    s_waitcnt lgkmcnt(0)
    s_sub_u32 s26, s26, s24
    s_cmp_lt_u32 s26, s31
    s_cbranch_scc1 D_l
D_done:
    s_endpgm
"""
kd = """.p2align 6
.amdhsa_kernel diag_kernel
  .amdhsa_next_free_vgpr 8
  .amdhsa_next_free_sgpr 40
  .amdhsa_accum_offset 8
  .amdhsa_group_segment_fixed_size 0
  .amdhsa_kernarg_size 104
  .amdhsa_user_sgpr_count 2
  .amdhsa_user_sgpr_kernarg_segment_ptr 1
  .amdhsa_system_sgpr_workgroup_id_x 1
.end_amdhsa_kernel
"""
s = s.replace('.section .rodata,"a"\n', body + '.section .rodata,"a"\n' + kd, 1)
open(sys.argv[2], "w").write(s)
```

```python
import sys, math, struct
from asmlib import *

NAME = "gated_mix__linear_kernel_hedgehog__grouped_kv_mqa__prompt"
WS_KVB  = 0x000000
WS_GATE = 0x020000
WS_FL   = 0x024000
F1 = WS_FL; FG = WS_FL + 0x400; F3 = WS_FL + 0x1000; F3P = WS_FL + 0x3000; F4 = WS_FL + 0x4000
WS_EPOCH = WS_FL + 0x800
FP = WS_FL + 0x4000
WS_KVF  = 0x030000
WS_PART = 0x100000
WS_OC   = 0x500000
WS_STAMP = 0x900000
WS_SIZE = 0xB00000
XT = 65536; EXT = 0; S5 = 131072; PHQ = 131072; HND = 147456; WPH = 155648; MISC = 157696
LDS_BYTES = 158720
C_KVALL = MISC; C_PROG = MISC + 4; C_HS = MISC + 8; C_GOK = MISC + 12; C_LOC = MISC + 16; C_GATE = MISC + 64

def fbits(x): return "0x%08x" % struct.unpack("<I", struct.pack("<f", x))[0]
LOG2E = math.log2(math.e)
OPT = dict(map=1, rot=3, round_pq=0, stamp=0, spin=1 << 16)

def srd(e, d, lo, nbytes):
    e(f"s_mov_b32 s{d}, s{lo}")
    e(f"s_mov_b32 s{d+1}, s{lo+1}")
    e(f"s_mov_b32 s{d+2}, {hex(nbytes)}")
    e(f"s_mov_b32 s{d+3}, 0x00020000")

def stamp_begin(e):
    if OPT["stamp"]:
        e("s_memrealtime s[92:93]")
        e("s_memtime s[94:95]")
        for k in range(6): e(f"s_mov_b32 s{80+2*k}, 0")
def stamp(k):
    return [f"s_memtime s[{80+2*k}:{81+2*k}]"] if OPT["stamp"] else []
def trace(idx):
    if not OPT.get("trace"): return []
    return ["s_memtime s[96:97]", "s_waitcnt lgkmcnt(0)", "s_sub_u32 s96, s96, s94", f"v_writelane_b32 v159, s96, {idx}"]
def stamp_end(e, vt):
    if OPT.get("trace"):
        e(f"v_lshlrev_b32 v{vt}, 2, v0")
        e("s_mul_i32 s100, s2, 3072")
        e(f"s_add_u32 s100, s100, {WS_STAMP + 0x40000}")
        e(f"buffer_store_dword v159, v{vt}, s[24:27], s100 offen")
    if OPT["stamp"]:
        e("s_waitcnt vmcnt(0)")
        e("s_memrealtime s[96:97]")
        e("s_memtime s[98:99]")
        e("s_waitcnt lgkmcnt(0)")
        for r in (98, 80, 82, 84, 86, 88, 90): e(f"s_sub_u32 s{r}, s{r}, s94")
        e(f"v_lshrrev_b32 v{vt+12}, 6, v0")
        e(f"v_lshlrev_b32 v{vt+12}, 6, v{vt+12}")
        e("s_lshl_b32 s100, s2, 10")
        e(f"s_add_u32 s100, s100, {WS_STAMP}")
        for i, r in enumerate((92, 96, 98, 80, 82, 84, 86, 88, 90, 90, 90, 90)):
            e(f"v_mov_b32 v{vt+i}, s{r}")
        for q in range(3):
            e(f"buffer_store_dwordx4 v[{vt+4*q}:{vt+4*q+3}], v{vt+12}, s[24:27], s100 offen offset:{16*q}")

def phi_unit(P, T, O):
    l = []
    if OPT["round_pq"]:
        for q in range(4): l.append(f"v_cvt_pk_bf16_f32 v{P+8+q}, v{P+2*q}, v{P+2*q+1}")
        for q in range(4):
            l.append(f"v_lshlrev_b32 v{P+2*q}, 16, v{P+8+q}")
            l.append(f"v_and_b32 v{P+2*q+1}, 0xffff0000, v{P+8+q}")
    A = T; B = T + 2
    l += [f"v_max3_f32 v{A}, v{P}, v{P+1}, v{P+2}",
          f"v_max3_f32 v{B}, -v{P}, -v{P+1}, -v{P+2}",
          f"v_max3_f32 v{A}, v{A}, v{P+3}, v{P+4}",
          f"v_max3_f32 v{B}, v{B}, -v{P+3}, -v{P+4}",
          f"v_max3_f32 v{A}, v{A}, v{P+5}, v{P+6}",
          f"v_max3_f32 v{B}, v{B}, -v{P+5}, -v{P+6}",
          f"v_max_f32 v{A}, v{A}, v{P+7}",
          f"v_max_f32_e64 v{B}, v{B}, -v{P+7}",
          f"v_permlane32_swap_b32 v{A}, v{B}",
          f"v_max_f32 v{A}, v{A}, v{B}",
          f"v_mul_f32 v{A}, s75, v{A}",
          f"v_mov_b32 v{B}, v{A}",
          f"v_permlane32_swap_b32 v{A}, v{B}"]
    if OPT.get("pk", 1):
        for i in range(0, 8, 2):
            l.append(f"v_pk_fma_f32 {vr(P+8+i,2)}, {vr(P+i,2)}, s[74:75], {vr(B,2)} op_sel_hi:[1,0,0] neg_lo:[1,0,0] neg_hi:[1,0,0]")
            l.append(f"v_pk_fma_f32 {vr(P+i,2)}, {vr(P+i,2)}, s[74:75], {vr(A,2)} op_sel_hi:[1,0,0]")
    else:
        for i in range(8):
            l.append(f"v_fma_f32 v{P+8+i}, -v{P+i}, s74, v{B}")
            l.append(f"v_fma_f32 v{P+i}, v{P+i}, s74, v{A}")
    for i in range(16): l.append(f"v_exp_f32 v{P+i}, v{P+i}")
    for sg in range(2):
        l.append(f"v_pk_add_f32 {vr(O+4*sg,2)}, {vr(P+8*sg,2)}, {vr(P+8*sg+2,2)}")
        l.append(f"v_pk_add_f32 {vr(O+4*sg+2,2)}, {vr(P+8*sg+4,2)}, {vr(P+8*sg+6,2)}")
    for sg in range(2):
        l.append(f"v_pk_add_f32 {vr(O+4*sg,2)}, {vr(O+4*sg,2)}, {vr(O+4*sg+2,2)}")
    for sg in range(2):
        l.append(f"v_add_f32 v{T+2*sg}, v{O+4*sg}, v{O+4*sg+1}")
    l += [f"v_permlane32_swap_b32 v{A}, v{B}",
          f"v_add_f32 v{A}, v{A}, v{B}",
          f"v_rcp_f32 v{A}, v{A}",
          f"v_mov_b32 v{B}, v{A}",
          f"v_permlane32_swap_b32 v{A}, v{B}"]
    for i in range(0, 8, 2):
        l.append(f"v_pk_mul_f32 {vr(P+i,2)}, {vr(P+i,2)}, {vr(A,2)} op_sel_hi:[1,0]")
        l.append(f"v_pk_mul_f32 {vr(P+8+i,2)}, {vr(P+8+i,2)}, {vr(B,2)} op_sel_hi:[1,0]")
    for q in range(8): l.append(f"v_cvt_pk_bf16_f32 v{O+q}, v{P+2*q}, v{P+2*q+1}")
    return l

import re as _re
def unpk(lines):
    out = []
    for l in lines:
        m = _re.match(r"\s*v_pk_(add|mul)_f32 v\[(\d+):\d+\], v\[(\d+):\d+\], ([vs])\[(\d+):\d+\](.*)", l)
        if not m: out.append(l); continue
        op, d, a, k, b, mods = m.group(1), int(m.group(2)), int(m.group(3)), m.group(4), int(m.group(5)), m.group(6)
        bc = "op_sel_hi:[1,0]" in mods
        assert mods.strip() in ("", "op_sel_hi:[1,0]"), l
        for i in range(2):
            out.append(f"    v_{op}_f32 v{d+i}, {k}{b if bc else b+i}, v{a+i}")
    return out

def spread(mm, r):
    out = []; n = len(mm); k = 0
    for i, x in enumerate(mm):
        out.append(x)
        hi = (len(r) * (i + 1) + n - 1) // n
        out += r[k:hi]; k = max(k, hi)
    return out + r[k:]

_uid = [0]
def uid(p):
    _uid[0] += 1
    return f"{p}_{_uid[0]}"

def flag_store(e, soff, vt):
    e(f"v_mov_b32 v{vt}, s78")
    e(f"v_mov_b32 v{vt+1}, s79")
    e(f"v_mov_b32 v{vt+2}, 0")
    e("s_mov_b64 exec, 1")
    e(f"buffer_store_dwordx2 {vr(vt,2)}, v{vt+2}, s[24:27], {soff} offen sc1")
    e("s_mov_b64 exec, -1")

def flag_poll(e, vaddr, vt, sleep=4):
    L = uid("FP"); D = uid("FD")
    e("s_mov_b32 s77, 0")
    e.label(L)
    e(f"buffer_load_dwordx2 {vr(vt,2)}, v{vaddr}, s[24:27], 0 offen sc1")
    e("s_add_u32 s77, s77, 1")
    e("s_waitcnt vmcnt(0)")
    e(f"v_cmp_ne_u64 vcc, s[78:79], {vr(vt,2)}")
    e(f"s_cbranch_vccz {D}")
    e(f"s_cmp_gt_u32 s77, {OPT['spin']}")
    e(f"s_cbranch_scc1 {D}")
    if sleep: e(f"s_sleep {sleep}")
    e(f"s_branch {L}")
    e.label(D)

def lds_add(e, addr, vt):
    e(f"v_mov_b32 v{vt}, {addr}")
    e(f"v_mov_b32 v{vt+1}, 1")
    e("s_mov_b64 exec, 1")
    e(f"ds_add_u32 v{vt}, v{vt+1}")
    e("s_mov_b64 exec, -1")

def lds_wait(e, addr, target, vt, sleep=4):
    L = uid("LW"); D = uid("LD")
    e(f"v_mov_b32 v{vt}, {addr}")
    e("s_mov_b32 s77, 0")
    e.label(L)
    e(f"ds_read_b32 v{vt+1}, v{vt}")
    e("s_add_u32 s77, s77, 1")
    e("s_waitcnt lgkmcnt(0)")
    e(f"v_cmp_gt_u32 vcc, {target}, v{vt+1}")
    e(f"s_cbranch_vccz {D}")
    e(f"s_cmp_gt_u32 s77, {OPT['spin']*8}")
    e(f"s_cbranch_scc1 {D}")
    e(f"s_sleep {sleep}")
    e(f"s_branch {L}")
    e.label(D)

def gen():
    e = Emitter()
    ORD = {0: "x0 x1 x2 x3 w0 w1 w2 w3 w4 w5 w6 w7 w8",
           1: "x0 x1 x2 x3 w0 w8",
           2: "x0 w0 w8 x1 x2 x3",
           3: "x0 w0 x1 x2 x3 w8",
           4: "x0 x1 w0 x2 x3 w8",
           5: "x0 x1 x2 w0 x3 w8",
           6: "x0 w0 x1 w8 x2 x3"}[OPT.get("ord", 0)].split()
    ORD += [f"w{g}" for g in range(16) if f"w{g}" not in ORD]
    POS = {n: i for i, n in enumerate(ORD)}
    XL = POS["x3"]
    ring = [n for n in ORD if n[0] == "w" and n != "w8"]
    SLOT = {int(n[1:]): ((r + 1) % 4) * 16384 for r, n in enumerate(ring)}
    SLOT[8] = S5
    USE = {}; last = -1
    for c in range(8):
        last = max(POS[f"w{c}"], POS[f"x{c//2}"], last + 1); USE[c] = last
    last = XL + 1
    for c in range(8, 16):
        last = max(POS[f"w{c}"], last + 1); USE[c] = last
    assert USE[15] == 19
    e("s_cmp_ge_u32 s2, 256")
    e("s_cbranch_scc1 L_done")
    e("s_load_dwordx16 s[48:63], s[0:1], 0")
    e("s_load_dwordx8 s[64:71], s[0:1], 64")
    e("s_load_dwordx2 s[72:73], s[0:1], 96")
    stamp_begin(e)
    if OPT.get("trace"): e("v_mov_b32 v159, 0")
    e("v_and_b32 v1, 63, v0")
    e("v_lshrrev_b32 v11, 6, v0")
    e("v_readfirstlane_b32 s30, v11")
    e("s_and_b32 s36, s2, 7")
    e("s_lshr_b32 s37, s2, 3")
    lc = {0: 1, 1: 2, 2: 3}[OPT["map"]]
    e(f"s_and_b32 s29, s36, {(8>>lc)-1}")
    e(f"s_lshl_b32 s29, s29, {lc}")
    e(f"s_lshr_b32 s38, s37, {5-lc}")
    e("s_or_b32 s29, s29, s38")
    e(f"s_lshr_b32 s28, s36, {3-lc}")
    e(f"s_lshl_b32 s28, s28, {5-lc}")
    e(f"s_and_b32 s38, s37, {(32>>lc)-1}")
    e("s_add_u32 s28, s28, s38")
    if OPT["rot"] == 1:
        e("s_add_u32 s31, s28, s29"); e("s_lshl_b32 s31, s31, 1"); e("s_and_b32 s31, s31, 6")
    elif OPT["rot"] == 3:
        e("s_lshl_b32 s31, s29, 1"); e("s_add_u32 s31, s31, s28"); e("s_and_b32 s31, s31, 7")
    elif OPT["rot"] == 4:
        e("s_add_u32 s31, s28, s29"); e("s_and_b32 s31, s31, 7")
    elif OPT["rot"] == 5:
        e("s_lshl_b32 s31, s28, 1"); e("s_add_u32 s31, s31, s29"); e("s_and_b32 s31, s31, 7")
    elif OPT["rot"] == 2:
        e("s_add_u32 s31, s28, s29"); e("s_lshl_b32 s31, s31, 2"); e("s_and_b32 s31, s31, 4")
    else:
        e("s_mov_b32 s31, 0")
    e("v_lshlrev_b32 v10, 4, v1")
    e("s_cmp_lt_u32 s30, 8")
    e("s_cbranch_scc1 L_compute")
    e("s_setprio 3")
    e("s_sub_u32 s30, s30, 8")
    e("v_lshrrev_b32 v11, 3, v1")
    e("v_and_b32 v12, 7, v1")
    e("v_lshrrev_b32 v13, 4, v1")
    e("v_xor_b32 v14, v12, v13")
    e("v_lshlrev_b32 v14, 4, v14")
    e("v_lshl_add_u32 v2, v11, 10, v14")
    e("v_xor_b32 v3, 64, v2")
    e("v_add_u32 v3, 7168, v3")
    e("s_lshl_b32 s32, s28, 16")
    e("s_lshl_b32 s38, s30, 14")
    e("s_add_u32 s32, s32, s38")
    e("s_lshl_b32 s41, s30, 11")
    e("s_lshl_b32 s40, s30, 12")
    e("s_mov_b32 s36, s31")
    e("v_and_b32 v13, 1, v13")
    e("v_lshlrev_b32 v13, 1, v13")
    e("v_xor_b32 v14, v12, v13")
    e("v_lshlrev_b32 v14, 4, v14")
    e("v_mul_u32_u24 v6, 3072, v11")
    e("v_add_u32 v6, v6, v14")
    e(f"v_add_u32 v7, {8*3072-1024}, v6")
    e("v_xor_b32 v8, 64, v6")
    e(f"v_add_u32 v9, {8*3072-1024}, v8")
    e("s_lshl_b32 s38, s29, 7")
    e("s_mul_i32 s33, s30, 49152")
    e("s_add_u32 s33, s33, s38")
    e("v_xor_b32 v14, 64, v14")
    e("v_lshl_add_u32 v4, v11, 10, v14")
    e("v_add_u32 v5, 7168, v4")
    e("s_lshl_b32 s34, s30, 14")
    e("s_add_u32 s34, s34, s38")
    e("s_waitcnt lgkmcnt(0)")
    e.extend(trace(60))
    srd(e, 4, 48, 2048*512*2)
    srd(e, 8, 50, 512*1536*2)
    srd(e, 12, 58, 512*512*2)
    e("s_cmp_gt_u32 s29, 2")
    e("s_cbranch_scc1 L_noext")
    e("s_cmp_eq_u32 s29, 0")
    e("s_cselect_b32 s16, s60, s62")
    e("s_cselect_b32 s17, s61, s63")
    e("s_cmp_eq_u32 s29, 2")
    e("s_cselect_b32 s16, s66, s16")
    e("s_cselect_b32 s17, s67, s17")
    e("s_mov_b32 s18, 16384")
    e("s_cselect_b32 s18, 1024, s18")
    e("s_mov_b32 s19, 0x00020000")
    e("s_mov_b32 m0, s40")
    for i in range(4):
        e(f"buffer_load_dwordx4 v10, s[16:19], s40 offen offset:{i*1024} lds")
    e.label("L_noext")
    def item(i):
        l = []; nm = ORD[i]; idx = int(nm[1:])
        if nm[0] == "x":
            for q in range(2):
                l.append("s_lshl_b32 s38, s31, 7")
                l.append("s_add_u32 s38, s38, s32")
                l.append(f"s_add_u32 m0, s41, {XT + (2*idx+q)*8192}")
                l.append("s_add_u32 s31, s31, 1")
                for k in range(2):
                    l.append(f"buffer_load_dwordx4 v{2+k}, s[4:7], s38 offen offset:{k*1024} lds")
                l.append("s_and_b32 s31, s31, 7")
        else:
            g = idx
            l.append(f"s_add_u32 s35, s36, {g % 8}")
            l.append("s_and_b32 s35, s35, 7")
            l.append("s_mul_i32 s39, s35, 196608")
            l.append("s_add_u32 s39, s39, s33")
            l.append(f"s_add_u32 m0, s41, {SLOT[g]}")
            if g < 8: l.append("s_add_u32 s39, s39, 1024")
            else: l.append("s_lshl_b32 s38, s35, 16")
            for k in range(2):
                l.append(f"buffer_load_dwordx4 v{6+k}, s[8:11], s39 offen offset:{k*1024} lds")
            l.append(f"s_add_u32 m0, s41, {SLOT[g]+8192}")
            if g < 8:
                l.append("s_add_u32 s39, s39, 1024")
                for k in range(2):
                    l.append(f"buffer_load_dwordx4 v{8+k}, s[8:11], s39 offen offset:{k*1024} lds")
            else:
                l.append("s_add_u32 s38, s38, s34")
                for k in range(2):
                    l.append(f"buffer_load_dwordx4 v{4+k}, s[12:15], s38 offen offset:{k*1024} lds")
        return l
    def earliest(i):
        nm = ORD[i]; idx = int(nm[1:])
        if nm[0] == "x" or idx == 8: return -1
        r = ring.index(nm)
        if r < 3: return -1
        if r == 3: return XL + 1
        return USE[int(ring[r - 4][1:])] + 1
    DEP = OPT.get("dep", 3)
    for i in range(DEP): e.extend(item(i))
    e.extend(trace(61))
    e(f"s_load_dwordx2 s[78:79], s[72:73], {hex(WS_EPOCH)}")
    srd(e, 20, 52, 32*16*16*2)
    srd(e, 24, 72, WS_SIZE)
    e("s_and_b32 s46, s30, 1")
    e("s_lshr_b32 s47, s30, 1")
    e("v_bfe_u32 v13, v1, 4, 1")
    e("v_lshlrev_b32 v15, 2, v13")
    e("v_xor_b32 v15, v12, v15")
    e("v_lshlrev_b32 v15, 4, v15")
    e("v_lshl_add_u32 v144, v11, 10, v15")
    for k in range(1, 4): e(f"v_add_u32 v{144+k}, {k*7168}, v144")
    e("v_lshrrev_b32 v16, 5, v1")
    e("v_bfe_u32 v15, v1, 2, 2")
    e("v_lshl_add_u32 v148, v16, 2, v15")
    e("v_lshlrev_b32 v148, 7, v148")
    e("v_lshrrev_b32 v15, 1, v15")
    e("v_xor_b32 v15, s47, v15")
    e("v_lshl_add_u32 v148, v15, 6, v148")
    e("v_lshl_add_u32 v148, v13, 5, v148")
    e("v_and_b32 v15, 3, v1")
    e("v_lshl_add_u32 v148, v15, 3, v148")
    e("s_lshl_b32 s38, s47, 15")
    e("v_add_u32 v148, s38, v148")
    e("v_xor_b32 v149, 64, v148")
    e(f"s_add_u32 s38, s40, {PHQ}")
    e("v_add_u32 v150, s38, v10")
    e("v_xor_b32 v151, 0x2000, v150")
    e("v_and_b32 v155, 31, v1")
    e("v_lshlrev_b32 v152, 10, v155")
    e("v_lshl_add_u32 v152, v16, 4, v152")
    e("v_lshlrev_b32 v155, 2, v155")
    e("v_and_b32 v153, 15, v1")
    e("v_lshlrev_b32 v153, 3, v153")
    e("v_lshl_add_u32 v153, v16, 7, v153")
    e("s_lshl_b32 s38, s30, 9")
    e(f"s_add_u32 s38, s38, {WPH}")
    e("v_add_u32 v153, s38, v153")
    e(f"s_add_u32 s38, s41, {PHQ}")
    e("v_add_u32 v154, s38, v10")
    e("v_lshlrev_b32 v156, 3, v1")
    e("s_getreg_b32 s37, hwreg(HW_REG_XCC_ID, 0, 4)")
    e(f"s_mov_b32 s74, {fbits(LOG2E)}")
    e(f"s_mov_b32 s75, {fbits(-LOG2E)}")
    e("v_and_b32 v15, 31, v1")
    e("v_lshlrev_b32 v15, 3, v15")
    e("s_lshl_b32 s38, s30, 8")
    e(f"s_add_u32 s38, s38, {F1}")
    e("v_add_u32 v15, s38, v15")
    e("s_lshl_b32 s42, s30, 10")
    assert WS_KVB == 0
    def kvdma(n):
        l = []
        for _ in range(n):
            l.append("s_mov_b32 m0, s42")
            l.append("s_nop 0")
            l.append("buffer_load_dwordx4 v10, s[24:27], s42 offen sc1 lds")
            l.append("s_add_u32 s42, s42, 4096")
        return l
    out = []
    e("s_and_b32 s38, s30, 1")
    e("s_lshl_b32 s38, s38, 10")
    e(f"s_add_u32 m0, s38, {WPH}")
    e("s_lshl_b32 s39, s29, 11")
    e("s_add_u32 s38, s38, s39")
    e("buffer_load_dwordx4 v10, s[20:23], s38 offen lds")
    for i in range(DEP): out += [i] * 4
    out.append("w")
    nxt = DEP
    def waitfor(tag):
        idx = max(k for k, t in enumerate(out) if t == tag)
        n = len(out) - 1 - idx
        del out[:idx + 1]
        return f"s_waitcnt vmcnt({n})"
    PA = OPT.get("pa", 14)
    poll = "buffer_load_dwordx2 v[16:17], v15, s[24:27], 0 offen sc1"
    e.extend(trace(62))
    for i in range(18):
        e(waitfor(i))
        e.extend(trace(2 * i))
        e("s_barrier")
        e.extend(trace(2 * i + 1))
        if i == 0:
            e.extend(stamp(0))
        if i == 8:
            e("s_waitcnt lgkmcnt(0)")
            e("s_add_u32 s78, s78, 1")
        while nxt <= min(19, i + DEP) and earliest(nxt) <= i:
            e.extend(item(nxt)); out += [nxt] * 4; nxt += 1
        assert nxt > i + 1
        if i == PA:
            e(poll); out.append("p")
    if "p" in out: e(waitfor("p"))
    e("v_cmp_ne_u64 vcc, s[78:79], v[16:17]")
    e("s_cbranch_vccnz L_kvlate")
    save = list(out)
    e.extend(kvdma(4)); out += ["k0"] * 4
    if 18 in out: e(waitfor(18))
    e("s_barrier")
    e.extend(kvdma(4)); out += ["k1"] * 4
    if 19 in out: e(waitfor(19))
    e("s_barrier")
    e.extend(kvdma(4)); out += ["k2"] * 4
    e.label("L_kv20")
    e("s_waitcnt vmcnt(4)")
    e("s_barrier")
    e("s_branch L_kvjoin")
    e.label("L_kvlate")
    out[:] = save
    e(poll); out.append("p")
    if 18 in out: e(waitfor(18))
    e("s_barrier")
    if 19 in out: e(waitfor(19))
    e("s_barrier")
    e("s_waitcnt vmcnt(0)")
    e("v_cmp_ne_u64 vcc, s[78:79], v[16:17]")
    e("s_cbranch_vccz L_kvlate2")
    flag_poll(e, 15, 16, sleep=0)
    e.label("L_kvlate2")
    e.extend(kvdma(12))
    e("s_branch L_kv20")
    e.label("L_kvjoin")
    e.extend(stamp(1))
    e.extend(kvdma(20))
    HQ = 16; HK = 32; HG = 40; HT = 42; HD = 48; HP = 80
    for u in range(2): e(f"ds_read_b128 {vr(HQ+8*u,4)}, v154 offset:{u*1024}")
    for u in range(2): e(f"ds_read_b64_tr_b16 {vr(HK+2*u,2)}, v153 offset:{u*256}")
    e("s_lshl_b32 s38, s28, 4")
    e(f"s_add_u32 s38, s38, {FG}")
    e(f"v_and_b32 v{HT+4}, 8, v156")
    e(f"v_add_u32 v{HT+4}, s38, v{HT+4}")
    e("s_waitcnt vmcnt(0)")
    e.extend(trace(44))
    lds_add(e, C_KVALL, HT)
    e("s_lshl_b32 s45, s29, 2")
    e("s_lshl_b32 s36, s28, 7")
    e("s_add_u32 s36, s36, s45")
    e("s_add_u32 s36, s36, s30")
    e("s_lshl_b32 s36, s36, 10")
    e(f"s_add_u32 s36, s36, {WS_OC}")
    e(f"v_mov_b64 {vr(HD,2)}, -1")
    e(f"v_mov_b64 {vr(HD+2,2)}, -1")
    for i in range(4):
        e(f"s_add_u32 s38, s36, {i*32768}")
        e(f"buffer_store_dwordx4 {vr(HD,4)}, v10, s[24:27], s38 offen sc1")
    flag_poll(e, HT + 4, HT + 2)
    e("s_lshl_b32 s38, s28, 5")
    e("s_add_u32 s38, s38, s45")
    e("s_add_u32 s38, s38, s30")
    e("s_lshl_b32 s38, s38, 4")
    e(f"s_add_u32 s38, s38, {FP}")
    e(f"v_mov_b32 v{HD+4}, s78")
    e(f"v_mov_b32 v{HD+5}, s79")
    e(f"v_mov_b32 v{HD+6}, s37")
    e(f"v_mov_b32 v{HD+7}, 0")
    e("s_mov_b64 exec, 1")
    e(f"buffer_store_dwordx4 {vr(HD+4,4)}, v{HD+7}, s[24:27], s38 offen sc1")
    e("s_mov_b64 exec, -1")
    e("s_lshl_b32 s38, s28, 8")
    e(f"s_add_u32 s38, s38, {WS_GATE}")
    e(f"buffer_load_dword v{HG}, v155, s[24:27], s38 offen sc1")
    e(f"buffer_load_dword v{HG+1}, v155, s[24:27], s38 offen offset:128 sc1")
    e("s_waitcnt lgkmcnt(0)")
    for u in range(2): e(mfma(HD + 16 * u, HK, HQ + 8 * u, None))
    e.extend(interleave(*[phi_unit(HD + 16 * u, HP + 4 * u, HQ + 8 * u) for u in range(2)]))
    e(f"v_add_u32 v{HT}, {C_GATE}, v155")
    e("s_waitcnt vmcnt(0)")
    e(f"ds_write_b32 v{HT}, v{HG}")
    e(f"ds_write_b32 v{HT}, v{HG+1} offset:128")
    e("s_waitcnt lgkmcnt(0)")
    lds_add(e, C_GOK, HT)
    e.extend(trace(45))
    e("s_and_b32 s38, s28, 3")
    e("s_cmp_lg_u32 s38, s30")
    e("s_cbranch_scc1 L_nored")
    e("s_lshr_b32 s38, s28, 3")
    e("s_add_u32 s43, s45, s38")
    e("v_lshlrev_b32 v15, 1, v155")
    e("s_lshl_b32 s38, s43, 8")
    e(f"s_add_u32 s38, s38, {F3}")
    e(f"v_add_u32 v{HT}, s38, v15")
    flag_poll(e, HT, HT + 2)
    e.extend(trace(46))
    e("s_lshl_b32 s43, s43, 3")
    e("s_and_b32 s38, s28, 7")
    e("s_add_u32 s43, s43, s38")
    e("s_lshl_b32 s38, s43, 14")
    e(f"s_add_u32 s38, s38, {WS_PART}")
    for p in range(16):
        if p and p % 4 == 0: e("s_add_u32 s38, s38, 4096")
        e(f"buffer_load_dwordx4 {vr(HP+4*p,4)}, v10, s[24:27], s38 offen offset:{(p&3)*1024} sc1")
    e("s_waitcnt vmcnt(0)")
    e.extend(trace(47))
    for st in (32, 16, 8, 4):
        for i in range(0, st, 2): e(f"v_pk_add_f32 {vr(HP+i,2)}, {vr(HP+i,2)}, {vr(HP+st+i,2)}")
    e(f"v_permlane32_swap_b32 v{HP}, v{HP+2}")
    e(f"v_permlane32_swap_b32 v{HP+1}, v{HP+3}")
    e(f"v_pk_add_f32 {vr(HP,2)}, {vr(HP,2)}, {vr(HP+2,2)}")
    e(f"v_cvt_pk_bf16_f32 v{HP}, v{HP}, v{HP+1}")
    e(f"v_lshrrev_b32 v{HT}, 5, v1")
    e(f"v_lshl_add_u32 v{HT}, v{HT}, 2, v15")
    e("s_lshl_b32 s38, s43, 8")
    e(f"s_add_u32 s38, s38, {WS_KVF}")
    e(f"buffer_store_dword v{HP}, v{HT}, s[24:27], s38 offen sc1")
    e("s_lshl_b32 s38, s43, 3")
    e(f"s_add_u32 s38, s38, {F3P}")
    e("s_waitcnt vmcnt(0)")
    e.extend(trace(48))
    flag_store(e, "s38", HT)
    e.label("L_nored")
    e.extend(stamp(2))
    e("s_lshl_b32 s38, s28, 9")
    e(f"s_add_u32 s38, s38, {FP}")
    e("v_lshlrev_b32 v2, 2, v155")
    e("v_add_u32 v2, s38, v2")
    e("s_mov_b32 s77, 0")
    e("s_mov_b32 s35, 0")
    e.label("L_fpp")
    e(f"buffer_load_dwordx4 {vr(HD,4)}, v2, s[24:27], 0 offen sc1")
    e("s_add_u32 s77, s77, 1")
    e("s_waitcnt vmcnt(0)")
    e(f"v_cmp_ne_u64 vcc, s[78:79], {vr(HD,2)}")
    e("s_cbranch_vccz L_fpd")
    e("s_sleep 8")
    e(f"s_cmp_lt_u32 s77, {OPT['spin']}")
    e("s_cbranch_scc1 L_fpp")
    e("s_branch L_fpx")
    e.label("L_fpd")
    e(f"v_cmp_ne_u32 vcc, s37, v{HD+2}")
    e("s_cbranch_vccnz L_fpx")
    if OPT.get("loc", 1):
        lds_add(e, C_LOC, HT)
        e("s_mov_b32 s35, 1")
    e.label("L_fpx")
    e.extend(trace(57))
    e("s_add_u32 s45, s45, s30")
    e("s_lshl_b32 s38, s45, 6")
    e(f"s_add_u32 s38, s38, {F3P}")
    e(f"v_and_b32 v{HT}, 56, v156")
    e(f"v_add_u32 v{HT}, s38, v{HT}")
    flag_poll(e, HT, HT + 2)
    e.extend(trace(49))
    e("s_lshl_b32 s38, s45, 11")
    e(f"s_add_u32 s38, s38, {WS_KVF}")
    for q in range(4):
        e(f"buffer_load_dwordx2 {vr(HK+2*q,2)}, v156, s[24:27], s38 offen offset:{q*512} sc1")
    e("s_waitcnt vmcnt(0)")
    e.extend(trace(50))
    for u in range(2): e(mfma(HD + 16 * u, HK, HQ + 8 * u, None))
    for u in range(2): e(mfma(HD + 16 * u, HK + 4, HQ + 8 * u + 4, HD + 16 * u))
    for u in range(2):
        D = HD + 16 * u
        e(f"v_add_f32 v{HT}, {fbits(1e-6)}, v{D+8}")
        e(f"v_rcp_f32 v{HT}, v{HT}")
        e(f"v_mul_f32 v{HT}, v{HT}, v{HG+u}")
        for i in range(0, 8, 2): e(f"v_pk_mul_f32 {vr(D+i,2)}, {vr(D+i,2)}, {vr(HT,2)} op_sel_hi:[1,0]")
        for q in range(4): e(f"v_cvt_pk_bf16_f32 v{D+q}, v{D+2*q}, v{D+2*q+1}")
    e("s_add_u32 s38, s36, 65536")
    e(f"buffer_store_dwordx4 {vr(HD,4)}, v10, s[24:27], s36 offen sc1")
    e(f"buffer_store_dwordx4 {vr(HD+16,4)}, v10, s[24:27], s38 offen sc1")
    e.extend(trace(51))
    e.extend(stamp(3))
    ACC = [16, 32]; WFR = [48, 56, 132]; OF = 64; PT = 128
    srd(e, 4, 54, 512*512*2)
    srd(e, 8, 64, 512*512*2)
    srd(e, 12, 68, 2048*512*2)
    e("s_lshl_b32 s44, s28, 1")
    e("s_add_u32 s44, s44, s46")
    e("s_lshl_b32 s43, s44, 16")
    e("s_lshl_b32 s38, s47, 14")
    e("s_add_u32 s43, s43, s38")
    e(f"s_add_u32 s43, s43, {WS_OC}")
    def wdma(sd):
        e("s_lshl_b32 s38, s30, 17")
        e("s_lshl_b32 s39, s29, 7")
        e("s_add_u32 s38, s38, s39")
        e("s_lshl_b32 s39, s30, 14")
        for g in range(4):
            e("s_mov_b32 m0, s39")
            for k in range(4):
                e(f"buffer_load_dwordx4 v{144+k}, s[{sd}:{sd+3}], s38 offen offset:{k*1024} lds")
            if g < 3:
                e("s_add_u32 s38, s38, 32768")
                e("s_add_u32 s39, s39, 4096")
    def oload(base_add, g0=0, g1=4):
        for g in range(g0, g1):
            e(f"s_add_u32 s38, s43, {base_add + g*4096}")
            for t in range(4 * g, 4 * g + 4):
                e(f"buffer_load_dwordx4 {vr(OF+4*t,4)}, v10, s[24:27], s38 offen offset:{(t&3)*1024} sc1")
    def rd(t):
        return [f"ds_read_b64_tr_b16 {vr(WFR[t%3]+4*nt+2*u,2)}, v{148+nt} offset:{(16*t+8*u)*128}" for nt in range(2) for u in range(2)]
    def step(t, first, fill=[]):
        if t < 14: e.extend(rd(t + 2))
        e(f"s_waitcnt lgkmcnt({4*min(2, 15-t)})")
        for nt in range(2):
            e(mfma(ACC[nt], WFR[t % 3] + 4 * nt, OF + 4 * t, None if (first and t == 0) else ACC[nt]))
            e.extend(fill[nt * 5:nt * 5 + 5])
    def check(g):
        b = OF + 16 * g
        l = [f"v_max3_u32 v{PT}, v{b}, v{b+1}, v{b+2}", f"v_max3_u32 v{PT+1}, v{b+3}, v{b+4}, v{b+5}"]
        for i in (6, 10):
            l += [f"v_max3_u32 v{PT}, v{PT}, v{b+i}, v{b+i+1}", f"v_max3_u32 v{PT+1}, v{PT+1}, v{b+i+2}, v{b+i+3}"]
        l += [f"v_max3_u32 v{PT}, v{PT}, v{b+14}, v{b+15}", f"v_max_u32 v{PT}, v{PT}, v{PT+1}", f"v_cmp_eq_u32 vcc, -1, v{PT}"]
        return l
    def pgemm(tag, first, pace, base):
        e("s_waitcnt vmcnt(4)")
        e.extend(check(0))
        for g in range(4):
            e(f"s_cbranch_vccnz L_retry{tag}{g}")
            e.label(f"L_go{tag}{g}")
            if g == 0 and not first: e.extend(trace(40))
            for t in range(4 * g, 4 * g + 4):
                if t % 4 == 3 and g < 3: step(t, first, [f"s_waitcnt vmcnt({4 if g < 2 else 0})"] + check(g + 1))
                else: step(t, first)
                if t % 4 == 0 and g < 2: oload(base, g + 2, g + 3)
                if pace: e(f"s_sleep {pace}")
    lds_wait(e, C_PROG, 8, PT, sleep=8)
    e.extend(trace(54))
    wdma(4)
    oload(0, 0, 2)
    e("s_waitcnt vmcnt(8)")
    lds_add(e, C_HS, PT)
    lds_wait(e, C_HS, 4, PT)
    e.extend(trace(55))
    e.extend(rd(0) + rd(1))
    e("s_mov_b32 s77, 0")
    pgemm("A", True, OPT.get("pace", 2), 0)
    e.extend(trace(56))
    lds_add(e, C_HS, PT)
    lds_wait(e, C_HS, 8, PT)
    e.extend(trace(58))
    wdma(8)
    e("s_lshl_b32 s36, s44, 15")
    e("s_lshl_b32 s39, s29, 7")
    e("s_add_u32 s36, s36, s39")
    e("s_lshl_b32 s39, s47, 6")
    e("s_add_u32 s36, s36, s39")
    e("s_mov_b32 s77, 0")
    e("s_waitcnt vmcnt(0)")
    e.extend(stamp(4))
    e("s_barrier")
    e.extend(stamp(5))
    oload(32768, 0, 2)
    e.extend(rd(0) + rd(1))
    pgemm("B", False, 0, 32768)
    e.extend(trace(42))
    if OPT.get("trace"): e("v_writelane_b32 v159, s77, 41")
    for q in range(4): e(f"ds_write_b128 v150, {vr(ACC[1]+4*q,4)} offset:{q*1024}")
    e("s_waitcnt lgkmcnt(0)")
    e("s_barrier")
    for q in range(4): e(f"ds_read_b128 {vr(OF+4*q,4)}, v151 offset:{q*1024}")
    A = ACC[0]
    for pr in range(2):
        e(f"s_waitcnt lgkmcnt({2-2*pr})")
        for i in range(8 * pr, 8 * pr + 8, 2): e(f"v_pk_add_f32 {vr(A+i,2)}, {vr(A+i,2)}, {vr(OF+i,2)}")
        for q in range(4): e(f"v_cvt_pk_bf16_f32 v{A+8*pr+q}, v{A+8*pr+2*q}, v{A+8*pr+2*q+1}")
    for pr in range(2):
        e(f"v_permlane32_swap_b32 v{A+8*pr}, v{A+8*pr+2}")
        e(f"v_permlane32_swap_b32 v{A+8*pr+1}, v{A+8*pr+3}")
    for pr in range(2):
        e(f"buffer_store_dwordx4 {vr(A+8*pr,4)}, v152, s[12:15], s36 offen offset:{pr*32}" + ["", " sc1", " nt", " sc0 sc1"][OPT.get("ost", 0)])
    e.extend(trace(43))
    e("s_or_b32 s38, s2, s30")
    e("s_cbranch_scc1 L_noepoch")
    e(f"s_mov_b32 s38, {WS_EPOCH}")
    flag_store(e, "s38", PT)
    e.label("L_noepoch")
    stamp_end(e, 64)
    e.label("L_done")
    e("s_endpgm")
    for tag, base in (("A", 0), ("B", 32768)):
        for g in range(4):
            e.label(f"L_retry{tag}{g}")
            if tag == "A": e("s_sleep 8")
            oload(base, g, min(4, g + 2))
            e("s_add_u32 s77, s77, 1")
            e(f"s_waitcnt vmcnt({4 if g < 3 else 0})")
            e.extend(check(g))
            e(f"s_cbranch_vccz L_go{tag}{g}")
            e(f"s_cmp_lt_u32 s77, {OPT['spin']}")
            e(f"s_cbranch_scc1 L_retry{tag}{g}")
            e(f"s_branch L_go{tag}{g}")

    e.label("L_compute")
    ACC = 96; EACC = 128; WF = 144; I0 = 148; ONE = 156
    e("s_and_b32 s44, s30, 3")
    e("s_lshr_b32 s40, s30, 2")
    if OPT.get("pf", 0):
        e("s_cmp_lt_u32 s30, 3")
        e("s_movk_i32 s38, 1024")
        e("s_cselect_b32 s38, 3072, s38")
        e("v_mul_lo_u32 v30, v1, s38")
        e("s_mul_i32 s38, s38, s31")
        e("s_lshl_b32 s38, s38, 6")
        e("s_add_u32 s39, s30, 1")
        e("s_cmp_lt_u32 s30, 2")
        e("s_cselect_b32 s39, s39, 0")
        e("s_lshl_b32 s39, s39, 10")
        e("s_add_u32 s38, s38, s39")
        e("s_lshl_b32 s39, s29, 7")
        e("s_add_u32 s38, s38, s39")
        e("s_add_u32 s39, s31, s30")
        e("s_and_b32 s39, s39, 7")
        e("s_lshl_b32 s39, s39, 7")
        e("s_lshl_b32 s42, s28, 16")
        e("s_add_u32 s39, s39, s42")
        e("s_cmp_lt_u32 s30, 4")
        e("s_cselect_b32 s38, s38, s39")
        e("v_add_u32 v30, s38, v30")
        e("s_waitcnt lgkmcnt(0)")
        e("s_cselect_b32 s20, s58, s48")
        e("s_cselect_b32 s21, s59, s49")
        e("s_cmp_lt_u32 s30, 3")
        e("s_cselect_b32 s20, s50, s20")
        e("s_cselect_b32 s21, s51, s21")
        lo = OPT.get("pfx", 6)
        if lo > 4:
            e("s_sub_u32 s38, s30, 4")
            e(f"s_cmp_lt_u32 s38, {lo-4}")
            e("s_cbranch_scc1 L_nopf")
        e("global_load_dword v31, v30, s[20:21]" + ["", " sc1", " nt"][OPT.get("pfm", 0)])
        e.label("L_nopf")
    e("v_and_b32 v11, 31, v1")
    e("v_lshrrev_b32 v22, 5, v1")
    e("v_bfe_u32 v23, v1, 1, 3")
    e("v_xor_b32 v23, v23, v22")
    e("v_lshlrev_b32 v23, 4, v23")
    e("v_lshl_add_u32 v12, v11, 7, v23")
    e(f"v_add_u32 v12, {XT}, v12")
    for t in range(1, 4): e(f"v_xor_b32 v{12+t}, {32*t}, v12")
    su_w = ["v_lshrrev_b32 v22, 5, v1", "v_bfe_u32 v23, v1, 2, 2", "v_lshl_add_u32 v20, v22, 3, v23", "v_lshlrev_b32 v20, 7, v20",
            "v_bfe_u32 v23, v1, 3, 2", "v_xor_b32 v23, s44, v23", "v_lshl_add_u32 v20, v23, 5, v20", "v_bfe_u32 v24, v1, 4, 1",
            "v_lshl_add_u32 v20, v24, 13, v20", "v_and_b32 v23, 3, v1", "v_lshl_add_u32 v20, v23, 3, v20"]
    su_s = ["s_lshl_b32 s45, s29, 2", "s_add_u32 s45, s45, s44", "s_lshl_b32 s47, s28, 1", "s_xor_b32 s46, s40, 1",
            "s_add_u32 s47, s47, s46", "s_lshl_b32 s43, s47, 6", "s_add_u32 s43, s43, s45", "s_lshl_b32 s43, s43, 10",
            f"s_add_u32 s43, s43, {WS_OC+32*1024}",
            f"s_mov_b32 s74, {fbits(LOG2E)}", f"s_mov_b32 s75, {fbits(-LOG2E)}", f"s_mov_b32 s76, {fbits(0.25*LOG2E)}",
            "s_lshl_b32 s38, s44, 10", f"s_add_u32 s38, s38, {HND}", "v_add_u32 v28, s38, v10"]
    su_ws = ["s_waitcnt lgkmcnt(0)", f"s_load_dwordx2 s[78:79], s[72:73], {hex(WS_EPOCH)}",
             "s_mov_b32 s24, s72", "s_mov_b32 s25, s73", f"s_mov_b32 s26, {hex(WS_SIZE)}", "s_mov_b32 s27, 0x00020000"]
    su_ep = ["s_waitcnt lgkmcnt(0)", "s_add_u32 s78, s78, 1"]
    def su_id(n, I0):
        l = ["v_and_b32 v11, 31, v1", "v_lshrrev_b32 v22, 5, v1", "v_lshlrev_b32 v22, 2, v22", "v_sub_u32 v11, v11, v22",
             "v_mov_b32 v22, 0x3f80", "v_mov_b32 v23, 0x3f800000"]
        for sgn in range(n):
            for q in range(4):
                f0 = 16 * sgn + (2 * q if q < 2 else 8 + 2 * (q - 2))
                l += [f"v_cmp_eq_u32 vcc, {f0}, v11", f"v_cmp_eq_u32 s[38:39], {f0+1}, v11",
                      f"v_cndmask_b32 v{I0+4*sgn+q}, 0, v22, vcc", f"v_cndmask_b32 v{I0+4*sgn+q}, v{I0+4*sgn+q}, v23, s[38:39]"]
        return l
    Q = 4; NM = 8; O = 24; S = [40, 56]; PK = 72; KF = [80, 84]; VF = [144, 152]; AK = 2; AV = 3; T = 106
    U = 4; NIT = 16
    SEG = OPT.get("seg", (3, 8, 15, 16))
    ATT_SETUP = [f"v_mov_b32 v{AK}, v10", f"v_lshrrev_b32 v{T}, 5, v1", f"v_and_b32 v{AV}, 15, v1", f"v_lshlrev_b32 v{AV}, 4, v{AV}",
                 f"v_lshl_add_u32 v{AV}, v{T}, 8, v{AV}", f"v_add_u32 v{AV}, 1024, v{AV}", f"v_and_b32 v{T}, 27, v1",
                 f"v_mov_b32 v{T+1}, 0x3f803f80", f"v_cmp_eq_u32 vcc, 16, v{T}", "s_mov_b32 s20, 0xffff", "s_mov_b32 s21, 0xffff",
                 f"v_cndmask_b32 v{VF[0]}, 0, v{T+1}, vcc"] + [f"v_mov_b32 v{VF[0]+1}, v{VF[0]}"] + [f"v_mov_b64 {vr(VF[0]+i,2)}, {vr(VF[0],2)}" for i in range(2, 16, 2)] + \
                [f"s_mov_b32 s22, {SEG[0]}", "s_mov_b32 s23, 0"]
    def fr(buf, t):
        if buf == 0:
            b = 32 + 12 * t; return (b, b + 4, b + 8)
        return [(80, 84, 88), (128, 132, 136), (92, 140, 16), (4, 160, 164)][t]
    def reads(buf, g):
        l = []; p = g % 8; so = SLOT[g] & 0xffff; wa = 21 if g == 8 else 20
        for t in range(4):
            xa, xb, w = fr(buf, t)
            l.append(f"ds_read_b128 {vr(xa,4)}, v{12+t} offset:{p*8192}")
            for u in range(2):
                l.append(f"ds_read_b64_tr_b16 {vr(w+2*u,2)}, v{wa} offset:{so+(16*t+4*u)*128}")
            l.append(f"ds_read_b128 {vr(xb,4)}, v{12+t} offset:{p*8192+4096}")
        return l
    def mfmas(buf, first):
        l = []
        for t in range(4):
            xa, xb, w = fr(buf, t); z = first and t == 0
            l.append(mfma(ACC, w, xa, None if z else ACC))
            l.append(mfma(ACC + 16, w, xb, None if z else ACC + 16))
        return l
    def gpass(g0, first, last, extra={}):
        pend = None; NS = OPT.get("gspread", 5)
        for i in range(first, last + 1):
            e("s_barrier")
            mm = mfmas(pend & 1, pend == 0) if pend is not None else []
            todo = None
            for c in range(8):
                if USE[g0 + c] == i: todo = c
            if todo is not None:
                r = reads(todo & 1, g0 + todo)
                e.extend(spread(mm[:NS], r) + mm[NS:] if mm else r)
                e.extend(extra.get(i, []))
                e("s_waitcnt lgkmcnt(0)")
            else:
                e.extend(mm)
                e.extend(extra.get(i, []))
            pend = todo
        if pend is not None: e.extend(mfmas(pend & 1, False))
    PU = [32, 48]; PH = [64, 72]; TM = [80, 84]; VFR = [88, 92]
    e("s_cmp_lg_u32 s40, 0")
    e("s_cbranch_scc1 L_qwave")
    e(f"v_mov_b32 v26, {MISC}")
    for i in range(4): e(f"v_mov_b32 v{32+i}, 0")
    e("ds_write_b128 v26, v[32:35]")
    e("ds_write_b128 v26, v[32:35] offset:16")
    e.extend(su_w)
    e.extend(su_ws)
    wph = ["v_and_b32 v23, 15, v1", "v_lshlrev_b32 v23, 3, v23", "v_lshrrev_b32 v22, 5, v1", "v_lshl_add_u32 v25, v22, 7, v23",
           "s_lshl_b32 s38, s44, 9", f"s_add_u32 s38, s38, {WPH}", "v_add_u32 v25, s38, v25"]
    wpr = [f"ds_read_b64_tr_b16 {vr(WF+2*u,2)}, v25 offset:{u*256}" for u in range(2)]
    one = ["v_bfe_u32 v24, v1, 4, 1", f"v_mul_u32_u24 v{ONE}, 0x3f80, v24", f"v_lshl_or_b32 v{ONE}, v{ONE}, 16, v{ONE}"]
    xs = [i for i in range(8) if i not in USE.values() or i == USE[8] and i not in [USE[c] for c in range(8)]]
    idl = su_id(2, I0)
    KEND = USE[7] + 1
    gpass(0, 0, KEND, {xs[0]: su_s + wph, xs[1]: idl[:22], xs[2]: idl[22:] + one, xs[3]: su_ep + stamp(0), 9: wpr})
    e.extend(stamp(1))
    k = []
    for u in range(2):
        for q in range(4): k.append(f"v_cvt_pk_bf16_f32 v{PH[u]+q}, v{ACC+16*u+2*q}, v{ACC+16*u+2*q+1}")
    for u in range(2): k.append(mfma(PU[u], WF, PH[u], None))
    for u in range(2):
        a = ACC + 16 * u
        for q in range(4): k.append(f"v_cvt_pk_bf16_f32 v{VFR[u]+q}, v{a+8+2*q}, v{a+8+2*q+1}")
    for u in range(2): k.append(mfma(ACC + 16 * u, VFR[u], I0, None))
    k += interleave(*[phi_unit(PU[u], TM[u], PH[u]) for u in range(2)])
    for u in range(2): k.append(mfma(PU[u], PH[u], I0, None))
    for u in range(2): k.append(mfma(PU[u], PH[u] + 4, I0 + 4, PU[u]))
    for u in range(2):
        a = ACC + 16 * u
        for q in range(8): k.append(f"v_cvt_pk_bf16_f32 v{a+q}, v{a+2*q}, v{a+2*q+1}")
        for q in range(8): k.append(f"v_or_b32 v{a+q}, v{a+q}, v{ONE}")
    for u in range(2):
        for q in range(8): k.append(f"v_cvt_pk_bf16_f32 v{PH[u]+q}, v{PU[u]+2*q}, v{PU[u]+2*q+1}")
    D3 = EACC
    for u in range(2):
        k.append(mfma(D3, PH[u], ACC + 16 * u, None if u == 0 else D3))
        k.append(mfma(D3, PH[u] + 4, ACC + 16 * u + 4, D3))
    k += ["v_and_b32 v11, 31, v1", "v_lshlrev_b32 v11, 4, v11", "v_lshrrev_b32 v22, 5, v1", "v_lshl_add_u32 v11, v22, 14, v11",
          "s_lshl_b32 s38, s45, 17", "s_lshl_b32 s39, s28, 9", "s_add_u32 s38, s38, s39", f"s_add_u32 s38, s38, {WS_PART}"]
    for q in range(4):
        k.append(f"buffer_store_dwordx4 {vr(D3+4*q,4)}, v11, s[24:27], s38 offen sc1")
        if q < 3: k.append("s_add_u32 s38, s38, 32768")
    if not OPT.get("pk", 1): k = unpk(k)
    k = [x.strip() for x in fix_hazards(k, pre=mfmas(1, False))]
    def cost(x):
        if "mfma" in x: return 48
        if "v_exp" in x or "v_rcp" in x: return 8
        if "s_nop" in x: return 4 * (int(x.split()[1]) + 1)
        return 4
    NB = 20 - KEND
    acc = 260; nb = 0; LIM = OPT.get("klim", 140)
    for x in k:
        if nb < NB and acc + cost(x) > (LIM if nb < NB - 1 else OPT.get("klast", 300)):
            e("s_barrier"); nb += 1; acc = 0
            if nb == NB:
                e.extend(stamp(2)); e("s_setprio 2")
        e(x); acc += cost(x)
    while nb < NB:
        e("s_barrier"); nb += 1
    e("ds_read_b128 v[4:7], v28")
    e.extend(ATT_SETUP)
    e("s_branch L_attn")
    e.label("L_qwave")
    e.extend(su_w)
    e.extend(su_s)
    e.extend(ATT_SETUP)
    e("s_lshl_b32 s38, s44, 11")
    e(f"s_add_u32 s38, s38, {PHQ}")
    e("v_add_u32 v29, s38, v10")
    e("s_mov_b32 s41, 0")
    e.extend([x for x in su_ws if "s_load" not in x])
    e("s_cmp_eq_u32 s30, 6")
    e("s_cbranch_scc1 L_touch")
    e("s_cmp_eq_u32 s30, 7")
    e("s_cbranch_scc1 L_qidle")
    e("s_cmp_gt_u32 s29, 2")
    e("s_cbranch_scc1 L_qidle")
    e("s_lshl_b32 s38, s44, 12")
    for t in range(4): e(f"v_add_u32 v{16+t}, s38, v{12+t}")
    e("v_and_b32 v23, 15, v1")
    e("v_lshlrev_b32 v23, 3, v23")
    e("v_lshl_add_u32 v26, v22, 8, v23")
    e("v_lshlrev_b32 v27, 4, v22")
    e("s_lshl_b32 s42, s28, 1")
    e("s_add_u32 s42, s42, s44")
    e("s_cmp_eq_u32 s29, 2")
    e("s_cbranch_scc1 L_qgate")
    def extloop(gate):
        nbar = 0
        if not gate: e.extend(su_id(1, 160))
        def xr(p):
            B = 32 + 32 * (p % 3); va = 21 if p % 2 == 0 else 25
            l = [f"s_lshl_b32 s38, s31, {7 if gate else 11}", f"v_add_u32 v{va}, s38, v{27 if gate else 26}",
                 "s_add_u32 s31, s31, 1", "s_and_b32 s31, s31, 7"]
            r = []
            for t in range(4):
                r.append(f"ds_read_b128 {vr(B+8*t,4)}, v{16+t} offset:{p*8192}")
                if gate: r.append(f"ds_read_b128 {vr(B+8*t+4,4)}, v{va} offset:{t*32}")
                else:
                    for u in range(2): r.append(f"ds_read_b64_tr_b16 {vr(B+8*t+4+2*u,2)}, v{va} offset:{t*512+u*128}")
            return l, r
        def xm(p):
            B = 32 + 32 * (p % 3)
            return [mfma(EACC, B + 8 * t + 4, B + 8 * t, None if (p == 0 and t == 0) else EACC) for t in range(4)]
        n = 8 if gate else 12
        for p in range(0, 8, 2):
            a0, r0 = xr(p); a1, r1 = xr(p + 1)
            e.extend(a0 + a1)
            while nbar <= POS[f"x{p//2}"]:
                e("s_barrier"); nbar += 1
            e.extend(spread(xm(p - 1)[:3], r0 + r1) + xm(p - 1)[3:] if p else r0 + r1)
            e(f"s_waitcnt lgkmcnt({n})")
            e.extend(xm(p))
            e("s_waitcnt lgkmcnt(0)")
        while nbar <= XL + 1:
            e("s_barrier"); nbar += 1
        e.extend(xm(7))
    extloop(False)
    for q in range(4): e(f"v_cvt_pk_bf16_f32 v{EACC+q}, v{EACC+2*q}, v{EACC+2*q+1}")
    e("s_lshl_b32 s38, s42, 11")
    e("s_lshl_b32 s41, s44, 1")
    e("s_add_u32 s41, s41, s29")
    e("s_lshl_b32 s41, s41, 5")
    e("s_add_u32 s41, s41, s28")
    e("s_lshl_b32 s41, s41, 3")
    e(f"s_add_u32 s41, s41, {F1}")
    e("s_cmp_eq_u32 s29, 1")
    e("s_cbranch_scc1 L_qv")
    e(f"buffer_store_dwordx4 {vr(EACC,4)}, v10, s[24:27], s38 offen sc1")
    e("s_branch L_q5")
    e.label("L_qv")
    e("s_nop 1")
    e(mfma(32, EACC, 160, None))
    e("v_lshrrev_b32 v11, 5, v1")
    e("v_and_b32 v22, 15, v1")
    e("v_lshlrev_b32 v22, 4, v22")
    e("v_lshl_add_u32 v22, v11, 8, v22")
    for q in range(8): e(f"v_cvt_pk_bf16_f32 v{EACC+8+q}, v{32+2*q}, v{32+2*q+1}")
    e("s_mov_b32 exec_lo, 0xffff")
    e("s_mov_b32 exec_hi, 0xffff")
    e(f"buffer_store_dwordx4 {vr(EACC+8,4)}, v22, s[24:27], s38 offen offset:1024 sc1")
    e(f"buffer_store_dwordx4 {vr(EACC+12,4)}, v22, s[24:27], s38 offen offset:1536 sc1")
    e("s_mov_b64 exec, -1")
    e("s_branch L_q5")
    e.label("L_qgate")
    extloop(True)
    e(f"v_cvt_pk_bf16_f32 v11, v{EACC}, v{EACC}")
    e("v_and_b32 v11, 0xffff0000, v11")
    e("v_mul_f32 v11, s75, v11")
    e("v_exp_f32 v11, v11")
    e("v_add_f32 v11, 1.0, v11")
    e("v_rcp_f32 v11, v11")
    e("v_cvt_pk_bf16_f32 v11, v11, v11")
    e("v_and_b32 v11, 0xffff0000, v11")
    e("v_lshlrev_b32 v22, 2, v1")
    e("s_lshl_b32 s38, s42, 7")
    e(f"s_add_u32 s38, s38, {WS_GATE}")
    e("s_lshl_b32 s41, s42, 3")
    e(f"s_add_u32 s41, s41, {FG}")
    e("s_mov_b32 exec_hi, 0")
    e("buffer_store_dword v11, v22, s[24:27], s38 offen sc1")
    e("s_mov_b64 exec, -1")
    e("s_branch L_q5")
    e.label("L_touch")
    if OPT.get("touch", 0):
        e("v_mov_b32 v22, 0")
        e("v_min_u32 v23, 4, v1")
        e("v_lshlrev_b32 v23, 21, v23")
        for n, p in enumerate((50, 58, 52)):
            e(f"global_load_dword v{40+n}, v22, s[{p}:{p+1}]")
        e("global_load_dword v44, v23, s[72:73]")
        for n, p in enumerate((54, 64, 68)):
            e(f"global_load_dword v{45+n}, v22, s[{p}:{p+1}]")
    e.label("L_qidle")
    for i in range(XL + 2): e("s_barrier")
    e.label("L_q5")
    e(su_ws[1])
    e(f"v_add_u32 v21, {S5}, v20")
    fl = Emitter()
    fl("s_cmp_eq_u32 s41, 0")
    fl("s_cbranch_scc1 L_noflag")
    fl.extend(su_ep)
    fl("s_waitcnt vmcnt(0)")
    flag_store(fl, "s41", 22)
    fl.label("L_noflag")
    gpass(8, XL + 2, 19, {XL + OPT.get("flat", 5): fl.lines, USE[9] - 1: stamp(0) + ["s_setprio 1"]})
    e.extend(stamp(1))
    for u in (1, 0):
        a = ACC + 16 * u
        for i in range(8, 16, 2): e(f"v_pk_mul_f32 {vr(a+i,2)}, {vr(a+i,2)}, s[76:77] op_sel_hi:[1,0]")
        d = 76 if u else 4
        for q in range(4): e(f"v_cvt_pk_bf16_f32 v{d+q}, v{a+8+2*q}, v{a+8+2*q+1}")
        if u: e("ds_write_b128 v28, v[76:79]")
        for q in range(4): e(f"v_cvt_pk_bf16_f32 v{PH[u]+q}, v{a+2*q}, v{a+2*q+1}")
        e(f"ds_write_b128 v29, {vr(PH[u],4)} offset:{u*1024}")
    e("s_waitcnt lgkmcnt(0)")
    e.extend(stamp(2))
    e("s_barrier")
    e.label("L_attn")
    e.extend(stamp(3))
    e("s_setprio 2")
    e(f"ds_read_b128 {vr(KF[0],4)}, v{AK}")
    e(f"ds_read_b128 {vr(KF[1],4)}, v{AK} offset:2048")
    e("s_mov_b64 exec, s[20:21]")
    e(f"ds_read_b128 {vr(VF[0],4)}, v{AV}")
    e(f"ds_read_b128 {vr(VF[0]+4,4)}, v{AV} offset:512")
    e("s_mov_b64 exec, -1")
    for i in range(0, 16, 2): e(f"v_mov_b64 {vr(O+i,2)}, 0")
    for i in range(0, 4, 2): e(f"v_mov_b64 {vr(PK+4+i,2)}, 0")
    e("s_waitcnt lgkmcnt(0)")
    e(mfma(S[0], KF[0], Q, None))
    e(mfma(S[1], KF[1], Q, None))
    e(f"v_max3_f32 v{T}, v{S[0]}, v{S[0]+1}, v{S[0]+2}")
    rest = list(range(S[0] + 3, S[0] + 32))
    while len(rest) >= 2:
        e(f"v_max3_f32 v{T}, v{T}, v{rest[0]}, v{rest[1]}"); rest = rest[2:]
    if rest: e(f"v_max_f32 v{T}, v{T}, v{rest[0]}")
    def setnm():
        e(f"v_mov_b32 v{T+1}, v{T}")
        e(f"v_permlane32_swap_b32 v{T}, v{T+1}")
        e(f"v_max_f32 v{T}, v{T}, v{T+1}")
        for i in range(2): e(f"v_sub_f32 v{NM+i}, 0, v{T}")
        for i in range(2, 16, 2): e(f"v_mov_b64 {vr(NM+i,2)}, {vr(NM,2)}")
    setnm()
    e(mfma(S[0], KF[0], Q, NM))
    e("s_nop 7"); e("s_nop 1")
    body = Emitter()
    ex = lambda i: f"v_exp_f32 v{i}, v{i}"
    for j in range(U):
        a = j & 1; b = a ^ 1; Sa = S[a]
        cv = lambda q: f"v_cvt_pk_bf16_f32 v{PK+q}, v{Sa+2*q}, v{Sa+2*q+1}"
        body(mfma(S[b], KF[b], Q, NM))
        body(f"ds_read_b128 {vr(KF[a],4)}, v{AK} offset:{(j+2)*2048}")
        for i in range(7): body(ex(Sa + i))
        body(mfma(O, VF[b] + 4, PK + 4, O))
        body("s_mov_b64 exec, s[20:21]")
        body(f"ds_read_b128 {vr(VF[b],4)}, v{AV} offset:{(j+1)*2048}")
        body(f"ds_read_b128 {vr(VF[b]+4,4)}, v{AV} offset:{(j+1)*2048+512}")
        body("s_mov_b64 exec, -1")
        body(ex(Sa + 7)); body(ex(Sa + 8))
        for q in range(4): body(cv(q))
        body(ex(Sa + 9)); body(ex(Sa + 10))
        body("s_waitcnt lgkmcnt(3)")
        body(mfma(O, VF[a], PK, O))
        for i in range(11, 16): body(ex(Sa + i))
        if j == U - 1:
            body(f"v_add_u32 v{AK}, {U*2048}, v{AK}")
            body(f"v_add_u32 v{AV}, {U*2048}, v{AV}")
            body("s_add_u32 s23, s23, 1")
            body("s_cmp_lt_u32 s23, s22")
        for q in range(4, 8): body(cv(q))
        body("s_waitcnt lgkmcnt(2)")
    rep = []
    fix_hazards(body.lines, pre=body.lines, report=rep)
    assert not rep, rep
    e(".p2align 6")
    e.label("L_loop")
    if OPT.get("trace") == 3:
        e.extend(["s_memtime s[96:97]", "s_waitcnt lgkmcnt(0)", "s_sub_u32 s96, s96, s94", "s_lshl_b32 s97, s23, 1", "s_add_u32 m0, s97, 1", "v_writelane_b32 v111, s96, m0"])
    e.extend(body.lines)
    e("s_cbranch_scc1 L_loop")
    e(f"s_cmp_lg_u32 s22, {SEG[3]}")
    e("s_cbranch_scc1 L_seg")
    e(mfma(O, VF[1] + 4, PK + 4, O))
    e.extend(stamp(4))
    e(f"ds_read_b32 v{T+4}, v{T+4}")
    e(f"v_lshlrev_b32 v{AK}, 4, v1")
    e(f"v_fma_f32 v{T+1}, v{O}, 0, v{O+8}")
    e(f"v_mul_f32 v{T+3}, 0, v{O+1}")
    e(f"v_rcp_f32 v{T}, v{O+8}")
    for i in range(2, 8): e(f"v_fma_f32 v{T+1+2*(i&1)}, v{O+i}, 0, v{T+1+2*(i&1)}")
    e(f"v_add_f32 v{T+1}, v{T+1}, v{T+3}")
    e(f"v_cmp_ngt_f32 vcc, s39, v{T+1}")
    e("s_cbranch_vccnz L_fallback")
    e.label("L_fin")
    e(f"v_mul_f32 v{T}, v{T}, v{T+2}")
    for i in range(0, 8, 2): e(f"v_pk_mul_f32 {vr(O+i,2)}, {vr(O+i,2)}, {vr(T,2)} op_sel_hi:[1,0]")
    for q in range(4): e(f"v_cvt_pk_bf16_f32 v{O+q}, v{O+2*q}, v{O+2*q+1}")
    e("s_waitcnt lgkmcnt(0)")
    e(f"v_cmp_eq_u32 vcc, 0, v{T+4}")
    e("s_cbranch_vccnz L_far")
    e(f"buffer_store_dwordx4 {vr(O,4)}, v{AK}, s[24:27], s43 offen")
    if OPT["stamp"] == 1: e("s_branch L_cend")
    else: e("s_endpgm")
    e.label("L_far")
    e(f"buffer_store_dwordx4 {vr(O,4)}, v{AK}, s[24:27], s43 offen sc1")
    e.label("L_cend")
    e.extend(stamp(5))
    if OPT.get("trace") == 3: e("v_mov_b32 v159, v111")
    if OPT["stamp"] == 1: stamp_end(e, 40)
    e("s_endpgm")
    e.label("L_seg")
    e(f"s_cmp_eq_u32 s22, {SEG[1]}")
    e("s_cbranch_scc1 L_seg1")
    e(f"s_cmp_gt_u32 s22, {SEG[1]}")
    e("s_cbranch_scc1 L_seg2")
    e(f"s_mov_b32 s22, {SEG[1]}")
    e("s_cmp_lg_u32 s40, 0")
    e("s_cbranch_scc1 L_seg0b")
    e("s_lshl_b32 s38, s45, 5")
    e("s_add_u32 s38, s38, s28")
    e("s_lshl_b32 s38, s38, 3")
    e(f"s_add_u32 s38, s38, {F3}")
    e("s_waitcnt vmcnt(0)")
    flag_store(e, "s38", T)
    e.label("L_seg0b")
    lds_wait(e, C_KVALL, 4, T, sleep=1)
    e("s_branch L_loop")
    e.label("L_seg1")
    e(f"s_mov_b32 s22, {SEG[2]}")
    lds_add(e, C_PROG, T)
    lds_wait(e, C_GOK, 4, T)
    e("s_lshl_b32 s38, s46, 7")
    e(f"s_add_u32 s38, s38, {C_GATE}")
    e(f"v_and_b32 v{T}, 31, v1")
    e(f"v_lshl_add_u32 v{T}, v{T}, 2, s38")
    e(f"ds_read_b32 v{T+2}, v{T}")
    e(f"v_mov_b32 v{T+4}, {C_LOC}")
    e(f"s_mov_b32 s39, {fbits(2.0**120)}")
    e("s_waitcnt lgkmcnt(0)")
    e(f"v_sub_f32 v{T+2}, 1.0, v{T+2}")
    e(f"v_cvt_pk_bf16_f32 v{T+2}, v{T+2}, v{T+2}")
    e(f"v_and_b32 v{T+2}, 0xffff0000, v{T+2}")
    e("s_cmp_lg_u32 s40, 0")
    e("s_cbranch_scc1 L_loop")
    e("s_setprio 1")
    e(f"s_mov_b32 s22, {OPT.get('kdrop', SEG[2])}")
    e("s_branch L_loop")
    e.label("L_seg2")
    e(f"s_mov_b32 s22, {SEG[3]}")
    e("s_setprio 1")
    e("s_cmp_lg_u32 s40, 0")
    e("s_cbranch_scc1 L_loop")
    e("s_setprio 0")
    e("s_branch L_loop")
    e.label("L_fallback")
    e("s_waitcnt lgkmcnt(0)")
    e(f"v_add_u32 v{AV}, {-64*2048 & 0xffffffff}, v{AV}")
    e(f"v_mov_b32 v{T}, 0xff800000")
    e("s_mov_b32 s38, 0")
    e.label("L_fb1")
    e(f"buffer_load_dwordx4 {vr(KF[0],4)}, v{AK}, s[24:27], s38 offen sc1")
    e("s_add_u32 s38, s38, 2048")
    e("s_waitcnt vmcnt(0)")
    e(mfma(S[0], KF[0], Q, None))
    for i in range(8): e(f"v_max3_f32 v{T}, v{T}, v{S[0]+2*i}, v{S[0]+2*i+1}")
    e("s_cmp_lt_u32 s38, 0x20000")
    e("s_cbranch_scc1 L_fb1")
    setnm()
    for i in range(16): e(f"v_mov_b32 v{O+i}, 0")
    e("s_mov_b32 s38, 0")
    e.label("L_fb2")
    e(f"buffer_load_dwordx4 {vr(KF[0],4)}, v{AK}, s[24:27], s38 offen sc1")
    e("s_mov_b64 exec, s[20:21]")
    e(f"buffer_load_dwordx4 {vr(VF[0],4)}, v{AV}, s[24:27], s38 offen sc1")
    e(f"buffer_load_dwordx4 {vr(VF[0]+4,4)}, v{AV}, s[24:27], s38 offen offset:512 sc1")
    e("s_mov_b64 exec, -1")
    e("s_add_u32 s38, s38, 2048")
    e("s_waitcnt vmcnt(0)")
    e(mfma(S[0], KF[0], Q, NM))
    for i in range(16): e(ex(S[0] + i))
    for q in range(8): e(f"v_cvt_pk_bf16_f32 v{PK+q}, v{S[0]+2*q}, v{S[0]+2*q+1}")
    e(mfma(O, VF[0], PK, O))
    e(mfma(O, VF[0] + 4, PK + 4, O))
    e("s_nop 7")
    e("s_cmp_lt_u32 s38, 0x20000")
    e("s_cbranch_scc1 L_fb2")
    e("s_nop 7"); e("s_nop 7")
    e(f"v_rcp_f32 v{T}, v{O+8}")
    e("s_branch L_fin")
    return fix_hazards(e.lines if OPT.get("pk", 1) else unpk(e.lines))

def build():
    hdr = open("cdna_kernels/%s.s.ref" % NAME).read().split("\n")
    hdr = [l for l in hdr if l.startswith(";") and "@launch" not in l]
    out = list(hdr)
    out.append(f"; @launch grid=(256,1,1) block=(768,1,1) lds={LDS_BYTES}")
    out.append('.amdgcn_target "amdgcn-amd-amdhsa--gfx950"')
    out.append(".text")
    k = NAME + "_kernel"
    out += [f".globl {k}", ".p2align 8", f".type {k},@function", f"{k}:"]
    out += gen()
    out.append('.section .rodata,"a"')
    out.append(f""".p2align 6
.amdhsa_kernel {k}
  .amdhsa_next_free_vgpr 168
  .amdhsa_next_free_sgpr {102 if OPT['stamp'] else 80}
  .amdhsa_accum_offset 168
  .amdhsa_group_segment_fixed_size 0
  .amdhsa_kernarg_size 104
  .amdhsa_user_sgpr_count 2
  .amdhsa_user_sgpr_kernarg_segment_ptr 1
  .amdhsa_system_sgpr_workgroup_id_x 1
.end_amdhsa_kernel
""")
    return "\n".join(out) + "\n"

if __name__ == "__main__":
    dst = "f.s"
    for a in sys.argv[1:]:
        k, v = a.split("=")
        if k == "out": dst = v
        elif "," in v: OPT[k] = tuple(int(x) for x in v.split(","))
        else: OPT[k] = int(v)
    open(dst, "w").write(build())
    print("wrote", dst)
```

```python
import sys, math, struct
from asmlib import *

NAME = "gated_mix__linear_kernel_hedgehog__grouped_kv_mqa__prompt"
WS_KVB  = 0x000000
WS_GATE = 0x020000
WS_FL   = 0x024000
F1 = WS_FL; FG = WS_FL + 0x400; F3 = WS_FL + 0x1000; F3P = WS_FL + 0x3000; F4 = WS_FL + 0x4000
WS_EPOCH = WS_FL + 0x800
FP = WS_FL + 0x4000
WS_KVF  = 0x030000
WS_PART = 0x100000
WS_OC   = 0x500000
WS_STAMP = 0x900000
WS_SIZE = 0xB00000
XT = 65536; EXT = 0; S5 = 131072; PHQ = 131072; HND = 147456; WPH = 155648; MISC = 157696
LDS_BYTES = 158720
C_KVALL = MISC; C_PROG = MISC + 4; C_HS = MISC + 8; C_GOK = MISC + 12; C_LOC = MISC + 16; C_GATE = MISC + 64

def fbits(x): return "0x%08x" % struct.unpack("<I", struct.pack("<f", x))[0]
LOG2E = math.log2(math.e)
OPT = dict(map=2, rot=5, round_pq=0, stamp=0, spin=1 << 16)

def srd(e, d, lo, nbytes):
    e(f"s_mov_b32 s{d}, s{lo}")
    e(f"s_mov_b32 s{d+1}, s{lo+1}")
    e(f"s_mov_b32 s{d+2}, {hex(nbytes)}")
    e(f"s_mov_b32 s{d+3}, 0x00020000")

def stamp_begin(e):
    if OPT["stamp"]:
        e("s_memrealtime s[92:93]")
        e("s_memtime s[94:95]")
        for k in range(6): e(f"s_mov_b32 s{80+2*k}, 0")
def stamp(k):
    return [f"s_memtime s[{80+2*k}:{81+2*k}]"] if OPT["stamp"] else []
def trace(idx):
    if not OPT.get("trace"): return []
    return ["s_memtime s[96:97]", "s_waitcnt lgkmcnt(0)", "s_sub_u32 s96, s96, s94", f"v_writelane_b32 v159, s96, {idx}"]
def stamp_end(e, vt):
    if OPT.get("trace"):
        e(f"v_lshlrev_b32 v{vt}, 2, v0")
        e("s_mul_i32 s100, s2, 3072")
        e(f"s_add_u32 s100, s100, {WS_STAMP + 0x40000}")
        e(f"buffer_store_dword v159, v{vt}, s[24:27], s100 offen")
    if OPT["stamp"]:
        e("s_waitcnt vmcnt(0)")
        e("s_memrealtime s[96:97]")
        e("s_memtime s[98:99]")
        e("s_waitcnt lgkmcnt(0)")
        for r in (98, 80, 82, 84, 86, 88, 90): e(f"s_sub_u32 s{r}, s{r}, s94")
        e(f"v_lshrrev_b32 v{vt+12}, 6, v0")
        e(f"v_lshlrev_b32 v{vt+12}, 6, v{vt+12}")
        e("s_lshl_b32 s100, s2, 10")
        e(f"s_add_u32 s100, s100, {WS_STAMP}")
        for i, r in enumerate((92, 96, 98, 80, 82, 84, 86, 88, 90, 90, 90, 90)):
            e(f"v_mov_b32 v{vt+i}, s{r}")
        for q in range(3):
            e(f"buffer_store_dwordx4 v[{vt+4*q}:{vt+4*q+3}], v{vt+12}, s[24:27], s100 offen offset:{16*q}")

def phi_unit(P, T, O):
    l = []
    if OPT["round_pq"]:
        for q in range(4): l.append(f"v_cvt_pk_bf16_f32 v{P+8+q}, v{P+2*q}, v{P+2*q+1}")
        for q in range(4):
            l.append(f"v_lshlrev_b32 v{P+2*q}, 16, v{P+8+q}")
            l.append(f"v_and_b32 v{P+2*q+1}, 0xffff0000, v{P+8+q}")
    A = T; B = T + 2
    l += [f"v_max3_f32 v{A}, v{P}, v{P+1}, v{P+2}",
          f"v_max3_f32 v{B}, -v{P}, -v{P+1}, -v{P+2}",
          f"v_max3_f32 v{A}, v{A}, v{P+3}, v{P+4}",
          f"v_max3_f32 v{B}, v{B}, -v{P+3}, -v{P+4}",
          f"v_max3_f32 v{A}, v{A}, v{P+5}, v{P+6}",
          f"v_max3_f32 v{B}, v{B}, -v{P+5}, -v{P+6}",
          f"v_max_f32 v{A}, v{A}, v{P+7}",
          f"v_max_f32_e64 v{B}, v{B}, -v{P+7}",
          f"v_permlane32_swap_b32 v{A}, v{B}",
          f"v_max_f32 v{A}, v{A}, v{B}",
          f"v_mul_f32 v{A}, s75, v{A}",
          f"v_mov_b32 v{B}, v{A}",
          f"v_permlane32_swap_b32 v{A}, v{B}"]
    if OPT.get("pk", 1):
        for i in range(0, 8, 2):
            l.append(f"v_pk_fma_f32 {vr(P+8+i,2)}, {vr(P+i,2)}, s[74:75], {vr(B,2)} op_sel_hi:[1,0,0] neg_lo:[1,0,0] neg_hi:[1,0,0]")
            l.append(f"v_pk_fma_f32 {vr(P+i,2)}, {vr(P+i,2)}, s[74:75], {vr(A,2)} op_sel_hi:[1,0,0]")
    else:
        for i in range(8):
            l.append(f"v_fma_f32 v{P+8+i}, -v{P+i}, s74, v{B}")
            l.append(f"v_fma_f32 v{P+i}, v{P+i}, s74, v{A}")
    for i in range(16): l.append(f"v_exp_f32 v{P+i}, v{P+i}")
    for sg in range(2):
        l.append(f"v_pk_add_f32 {vr(O+4*sg,2)}, {vr(P+8*sg,2)}, {vr(P+8*sg+2,2)}")
        l.append(f"v_pk_add_f32 {vr(O+4*sg+2,2)}, {vr(P+8*sg+4,2)}, {vr(P+8*sg+6,2)}")
    for sg in range(2):
        l.append(f"v_pk_add_f32 {vr(O+4*sg,2)}, {vr(O+4*sg,2)}, {vr(O+4*sg+2,2)}")
    for sg in range(2):
        l.append(f"v_add_f32 v{T+2*sg}, v{O+4*sg}, v{O+4*sg+1}")
    l += [f"v_permlane32_swap_b32 v{A}, v{B}",
          f"v_add_f32 v{A}, v{A}, v{B}",
          f"v_rcp_f32 v{A}, v{A}",
          f"v_mov_b32 v{B}, v{A}",
          f"v_permlane32_swap_b32 v{A}, v{B}"]
    for i in range(0, 8, 2):
        l.append(f"v_pk_mul_f32 {vr(P+i,2)}, {vr(P+i,2)}, {vr(A,2)} op_sel_hi:[1,0]")
        l.append(f"v_pk_mul_f32 {vr(P+8+i,2)}, {vr(P+8+i,2)}, {vr(B,2)} op_sel_hi:[1,0]")
    for q in range(8): l.append(f"v_cvt_pk_bf16_f32 v{O+q}, v{P+2*q}, v{P+2*q+1}")
    return l

import re as _re
def unpk(lines):
    out = []
    for l in lines:
        m = _re.match(r"\s*v_pk_(add|mul)_f32 v\[(\d+):\d+\], v\[(\d+):\d+\], ([vs])\[(\d+):\d+\](.*)", l)
        if not m: out.append(l); continue
        op, d, a, k, b, mods = m.group(1), int(m.group(2)), int(m.group(3)), m.group(4), int(m.group(5)), m.group(6)
        bc = "op_sel_hi:[1,0]" in mods
        assert mods.strip() in ("", "op_sel_hi:[1,0]"), l
        for i in range(2):
            out.append(f"    v_{op}_f32 v{d+i}, {k}{b if bc else b+i}, v{a+i}")
    return out

def spread(mm, r):
    out = []; n = len(mm); k = 0
    for i, x in enumerate(mm):
        out.append(x)
        hi = (len(r) * (i + 1) + n - 1) // n
        out += r[k:hi]; k = max(k, hi)
    return out + r[k:]

_uid = [0]
def uid(p):
    _uid[0] += 1
    return f"{p}_{_uid[0]}"

def flag_store(e, soff, vt):
    e(f"v_mov_b32 v{vt}, s78")
    e(f"v_mov_b32 v{vt+1}, s79")
    e(f"v_mov_b32 v{vt+2}, 0")
    e("s_mov_b64 exec, 1")
    e(f"buffer_store_dwordx2 {vr(vt,2)}, v{vt+2}, s[24:27], {soff} offen sc1")
    e("s_mov_b64 exec, -1")

def flag_poll(e, vaddr, vt, sleep=4):
    L = uid("FP"); D = uid("FD")
    e("s_mov_b32 s77, 0")
    e.label(L)
    e(f"buffer_load_dwordx2 {vr(vt,2)}, v{vaddr}, s[24:27], 0 offen sc1")
    e("s_add_u32 s77, s77, 1")
    e("s_waitcnt vmcnt(0)")
    e(f"v_cmp_ne_u64 vcc, s[78:79], {vr(vt,2)}")
    e(f"s_cbranch_vccz {D}")
    e(f"s_cmp_gt_u32 s77, {OPT['spin']}")
    e(f"s_cbranch_scc1 {D}")
    if sleep: e(f"s_sleep {sleep}")
    e(f"s_branch {L}")
    e.label(D)

def lds_add(e, addr, vt):
    e(f"v_mov_b32 v{vt}, {addr}")
    e(f"v_mov_b32 v{vt+1}, 1")
    e("s_mov_b64 exec, 1")
    e(f"ds_add_u32 v{vt}, v{vt+1}")
    e("s_mov_b64 exec, -1")

def lds_wait(e, addr, target, vt, sleep=4):
    L = uid("LW"); D = uid("LD")
    e(f"v_mov_b32 v{vt}, {addr}")
    e("s_mov_b32 s77, 0")
    e.label(L)
    e(f"ds_read_b32 v{vt+1}, v{vt}")
    e("s_add_u32 s77, s77, 1")
    e("s_waitcnt lgkmcnt(0)")
    e(f"v_cmp_gt_u32 vcc, {target}, v{vt+1}")
    e(f"s_cbranch_vccz {D}")
    e(f"s_cmp_gt_u32 s77, {OPT['spin']*8}")
    e(f"s_cbranch_scc1 {D}")
    e(f"s_sleep {sleep}")
    e(f"s_branch {L}")
    e.label(D)

def gen():
    e = Emitter()
    ORD = {0: "x0 x1 x2 x3 w0 w1 w2 w3 w4 w5 w6 w7 w8",
           1: "x0 x1 x2 x3 w0 w8",
           2: "x0 w0 w8 x1 x2 x3",
           3: "x0 w0 x1 x2 x3 w8",
           4: "x0 x1 w0 x2 x3 w8",
           5: "x0 x1 x2 w0 x3 w8",
           6: "x0 w0 x1 w8 x2 x3"}[OPT.get("ord", 0)].split()
    ORD += [f"w{g}" for g in range(16) if f"w{g}" not in ORD]
    POS = {n: i for i, n in enumerate(ORD)}
    XL = POS["x3"]
    ring = [n for n in ORD if n[0] == "w" and n != "w8"]
    SLOT = {int(n[1:]): ((r + 1) % 4) * 16384 for r, n in enumerate(ring)}
    SLOT[8] = S5
    USE = {}; last = -1
    for c in range(8):
        last = max(POS[f"w{c}"], POS[f"x{c//2}"], last + 1); USE[c] = last
    last = XL + 1
    for c in range(8, 16):
        last = max(POS[f"w{c}"], last + 1); USE[c] = last
    assert USE[15] == 19
    e("s_cmp_ge_u32 s2, 256")
    e("s_cbranch_scc1 L_done")
    e("s_load_dwordx16 s[48:63], s[0:1], 0")
    e("s_load_dwordx8 s[64:71], s[0:1], 64")
    e("s_load_dwordx2 s[72:73], s[0:1], 96")
    stamp_begin(e)
    if OPT.get("trace"): e("v_mov_b32 v159, 0")
    e("v_and_b32 v1, 63, v0")
    e("v_lshrrev_b32 v11, 6, v0")
    e("v_readfirstlane_b32 s30, v11")
    e("s_and_b32 s36, s2, 7")
    e("s_lshr_b32 s37, s2, 3")
    lc = {0: 1, 1: 2, 2: 3}[OPT["map"]]
    e(f"s_and_b32 s29, s36, {(8>>lc)-1}")
    e(f"s_lshl_b32 s29, s29, {lc}")
    e(f"s_lshr_b32 s38, s37, {5-lc}")
    e("s_or_b32 s29, s29, s38")
    e(f"s_lshr_b32 s28, s36, {3-lc}")
    e(f"s_lshl_b32 s28, s28, {5-lc}")
    e(f"s_and_b32 s38, s37, {(32>>lc)-1}")
    e("s_add_u32 s28, s28, s38")
    if OPT["rot"] == 1:
        e("s_add_u32 s31, s28, s29"); e("s_lshl_b32 s31, s31, 1"); e("s_and_b32 s31, s31, 6")
    elif OPT["rot"] == 3:
        e("s_lshl_b32 s31, s29, 1"); e("s_add_u32 s31, s31, s28"); e("s_and_b32 s31, s31, 7")
    elif OPT["rot"] == 4:
        e("s_add_u32 s31, s28, s29"); e("s_and_b32 s31, s31, 7")
    elif OPT["rot"] == 5:
        e("s_lshl_b32 s31, s28, 1"); e("s_add_u32 s31, s31, s29"); e("s_and_b32 s31, s31, 7")
    elif OPT["rot"] == 2:
        e("s_add_u32 s31, s28, s29"); e("s_lshl_b32 s31, s31, 2"); e("s_and_b32 s31, s31, 4")
    else:
        e("s_mov_b32 s31, 0")
    e("v_lshlrev_b32 v10, 4, v1")
    e("s_cmp_lt_u32 s30, 8")
    e("s_cbranch_scc1 L_compute")
    e("s_setprio 3")
    e("s_sub_u32 s30, s30, 8")
    e("v_lshrrev_b32 v11, 3, v1")
    e("v_and_b32 v12, 7, v1")
    e("v_lshrrev_b32 v13, 4, v1")
    e("v_xor_b32 v14, v12, v13")
    e("v_lshlrev_b32 v14, 4, v14")
    e("v_lshl_add_u32 v2, v11, 10, v14")
    e("v_xor_b32 v3, 64, v2")
    e("v_add_u32 v3, 7168, v3")
    e("s_lshl_b32 s32, s28, 16")
    e("s_lshl_b32 s38, s30, 14")
    e("s_add_u32 s32, s32, s38")
    e("s_lshl_b32 s41, s30, 11")
    e("s_lshl_b32 s40, s30, 12")
    e("s_mov_b32 s36, s31")
    e("v_and_b32 v13, 1, v13")
    e("v_lshlrev_b32 v13, 1, v13")
    e("v_xor_b32 v14, v12, v13")
    e("v_lshlrev_b32 v14, 4, v14")
    e("v_mul_u32_u24 v6, 3072, v11")
    e("v_add_u32 v6, v6, v14")
    e(f"v_add_u32 v7, {8*3072-1024}, v6")
    e("v_xor_b32 v8, 64, v6")
    e(f"v_add_u32 v9, {8*3072-1024}, v8")
    e("s_lshl_b32 s38, s29, 7")
    e("s_mul_i32 s33, s30, 49152")
    e("s_add_u32 s33, s33, s38")
    e("v_xor_b32 v14, 64, v14")
    e("v_lshl_add_u32 v4, v11, 10, v14")
    e("v_add_u32 v5, 7168, v4")
    e("s_lshl_b32 s34, s30, 14")
    e("s_add_u32 s34, s34, s38")
    e("s_waitcnt lgkmcnt(0)")
    e.extend(trace(60))
    srd(e, 4, 48, 2048*512*2)
    srd(e, 8, 50, 512*1536*2)
    srd(e, 12, 58, 512*512*2)
    e("s_cmp_gt_u32 s29, 2")
    e("s_cbranch_scc1 L_noext")
    e("s_cmp_eq_u32 s29, 0")
    e("s_cselect_b32 s16, s60, s62")
    e("s_cselect_b32 s17, s61, s63")
    e("s_cmp_eq_u32 s29, 2")
    e("s_cselect_b32 s16, s66, s16")
    e("s_cselect_b32 s17, s67, s17")
    e("s_mov_b32 s18, 16384")
    e("s_cselect_b32 s18, 1024, s18")
    e("s_mov_b32 s19, 0x00020000")
    e("s_mov_b32 m0, s40")
    for i in range(4):
        e(f"buffer_load_dwordx4 v10, s[16:19], s40 offen offset:{i*1024} lds")
    e.label("L_noext")
    def item(i):
        l = []; nm = ORD[i]; idx = int(nm[1:])
        if nm[0] == "x":
            for q in range(2):
                l.append("s_lshl_b32 s38, s31, 7")
                l.append("s_add_u32 s38, s38, s32")
                l.append(f"s_add_u32 m0, s41, {XT + (2*idx+q)*8192}")
                l.append("s_add_u32 s31, s31, 1")
                for k in range(2):
                    l.append(f"buffer_load_dwordx4 v{2+k}, s[4:7], s38 offen offset:{k*1024} lds")
                l.append("s_and_b32 s31, s31, 7")
        else:
            g = idx
            l.append(f"s_add_u32 s35, s36, {g % 8}")
            l.append("s_and_b32 s35, s35, 7")
            l.append("s_mul_i32 s39, s35, 196608")
            l.append("s_add_u32 s39, s39, s33")
            l.append(f"s_add_u32 m0, s41, {SLOT[g]}")
            if g < 8: l.append("s_add_u32 s39, s39, 1024")
            else: l.append("s_lshl_b32 s38, s35, 16")
            for k in range(2):
                l.append(f"buffer_load_dwordx4 v{6+k}, s[8:11], s39 offen offset:{k*1024} lds")
            l.append(f"s_add_u32 m0, s41, {SLOT[g]+8192}")
            if g < 8:
                l.append("s_add_u32 s39, s39, 1024")
                for k in range(2):
                    l.append(f"buffer_load_dwordx4 v{8+k}, s[8:11], s39 offen offset:{k*1024} lds")
            else:
                l.append("s_add_u32 s38, s38, s34")
                for k in range(2):
                    l.append(f"buffer_load_dwordx4 v{4+k}, s[12:15], s38 offen offset:{k*1024} lds")
        return l
    def earliest(i):
        nm = ORD[i]; idx = int(nm[1:])
        if nm[0] == "x" or idx == 8: return -1
        r = ring.index(nm)
        if r < 3: return -1
        if r == 3: return XL + 1
        return USE[int(ring[r - 4][1:])] + 1
    DEP = OPT.get("dep", 3)
    for i in range(DEP): e.extend(item(i))
    e.extend(trace(61))
    e(f"s_load_dwordx2 s[78:79], s[72:73], {hex(WS_EPOCH)}")
    srd(e, 20, 52, 32*16*16*2)
    srd(e, 24, 72, WS_SIZE)
    e("s_and_b32 s46, s30, 1")
    e("s_lshr_b32 s47, s30, 1")
    e("v_bfe_u32 v13, v1, 4, 1")
    e("v_lshlrev_b32 v15, 2, v13")
    e("v_xor_b32 v15, v12, v15")
    e("v_lshlrev_b32 v15, 4, v15")
    e("v_lshl_add_u32 v144, v11, 10, v15")
    for k in range(1, 4): e(f"v_add_u32 v{144+k}, {k*7168}, v144")
    e("v_lshrrev_b32 v16, 5, v1")
    e("v_bfe_u32 v15, v1, 2, 2")
    e("v_lshl_add_u32 v148, v16, 2, v15")
    e("v_lshlrev_b32 v148, 7, v148")
    e("v_lshrrev_b32 v15, 1, v15")
    e("v_xor_b32 v15, s47, v15")
    e("v_lshl_add_u32 v148, v15, 6, v148")
    e("v_lshl_add_u32 v148, v13, 5, v148")
    e("v_and_b32 v15, 3, v1")
    e("v_lshl_add_u32 v148, v15, 3, v148")
    e("s_lshl_b32 s38, s47, 15")
    e("v_add_u32 v148, s38, v148")
    e("v_xor_b32 v149, 64, v148")
    e(f"s_add_u32 s38, s40, {PHQ}")
    e("v_add_u32 v150, s38, v10")
    e("v_xor_b32 v151, 0x2000, v150")
    e("v_and_b32 v155, 31, v1")
    e("v_lshlrev_b32 v152, 10, v155")
    e("v_lshl_add_u32 v152, v16, 4, v152")
    e("v_lshlrev_b32 v155, 2, v155")
    e("v_and_b32 v153, 15, v1")
    e("v_lshlrev_b32 v153, 3, v153")
    e("v_lshl_add_u32 v153, v16, 7, v153")
    e("s_lshl_b32 s38, s30, 9")
    e(f"s_add_u32 s38, s38, {WPH}")
    e("v_add_u32 v153, s38, v153")
    e(f"s_add_u32 s38, s41, {PHQ}")
    e("v_add_u32 v154, s38, v10")
    e("v_lshlrev_b32 v156, 3, v1")
    e("s_getreg_b32 s37, hwreg(HW_REG_XCC_ID, 0, 4)")
    e(f"s_mov_b32 s74, {fbits(LOG2E)}")
    e(f"s_mov_b32 s75, {fbits(-LOG2E)}")
    e("v_and_b32 v15, 31, v1")
    e("v_lshlrev_b32 v15, 3, v15")
    e("s_lshl_b32 s38, s30, 8")
    e(f"s_add_u32 s38, s38, {F1}")
    e("v_add_u32 v15, s38, v15")
    e("s_lshl_b32 s42, s30, 10")
    assert WS_KVB == 0
    def kvdma(n):
        l = []
        for _ in range(n):
            l.append("s_mov_b32 m0, s42")
            l.append("s_nop 0")
            l.append("buffer_load_dwordx4 v10, s[24:27], s42 offen sc1 lds")
            l.append("s_add_u32 s42, s42, 4096")
        return l
    out = []
    e("s_and_b32 s38, s30, 1")
    e("s_lshl_b32 s38, s38, 10")
    e(f"s_add_u32 m0, s38, {WPH}")
    e("s_lshl_b32 s39, s29, 11")
    e("s_add_u32 s38, s38, s39")
    e("buffer_load_dwordx4 v10, s[20:23], s38 offen lds")
    for i in range(DEP): out += [i] * 4
    out.append("w")
    nxt = DEP
    def waitfor(tag):
        idx = max(k for k, t in enumerate(out) if t == tag)
        n = len(out) - 1 - idx
        del out[:idx + 1]
        return f"s_waitcnt vmcnt({n})"
    PA = OPT.get("pa", 14)
    poll = "buffer_load_dwordx2 v[16:17], v15, s[24:27], 0 offen sc1"
    e.extend(trace(62))
    for i in range(18):
        e(waitfor(i))
        e.extend(trace(2 * i))
        e("s_barrier")
        e.extend(trace(2 * i + 1))
        if i == 0:
            e.extend(stamp(0))
        if i == 8:
            e("s_waitcnt lgkmcnt(0)")
            e("s_add_u32 s78, s78, 1")
        while nxt <= min(19, i + DEP) and earliest(nxt) <= i:
            e.extend(item(nxt)); out += [nxt] * 4; nxt += 1
        assert nxt > i + 1
        if i == PA:
            e(poll); out.append("p")
    if "p" in out: e(waitfor("p"))
    e("v_cmp_ne_u64 vcc, s[78:79], v[16:17]")
    e("s_cbranch_vccnz L_kvlate")
    save = list(out)
    e.extend(kvdma(4)); out += ["k0"] * 4
    if 18 in out: e(waitfor(18))
    e("s_barrier")
    e.extend(kvdma(4)); out += ["k1"] * 4
    if 19 in out: e(waitfor(19))
    e("s_barrier")
    e.extend(kvdma(4)); out += ["k2"] * 4
    e.label("L_kv20")
    e("s_waitcnt vmcnt(4)")
    e("s_barrier")
    e("s_branch L_kvjoin")
    e.label("L_kvlate")
    out[:] = save
    e(poll); out.append("p")
    if 18 in out: e(waitfor(18))
    e("s_barrier")
    if 19 in out: e(waitfor(19))
    e("s_barrier")
    e("s_waitcnt vmcnt(0)")
    e("v_cmp_ne_u64 vcc, s[78:79], v[16:17]")
    e("s_cbranch_vccz L_kvlate2")
    flag_poll(e, 15, 16, sleep=0)
    e.label("L_kvlate2")
    e.extend(kvdma(12))
    e("s_branch L_kv20")
    e.label("L_kvjoin")
    e.extend(stamp(1))
    e.extend(kvdma(20))
    HQ = 16; HK = 32; HG = 40; HT = 42; HD = 48; HP = 80
    for u in range(2): e(f"ds_read_b128 {vr(HQ+8*u,4)}, v154 offset:{u*1024}")
    for u in range(2): e(f"ds_read_b64_tr_b16 {vr(HK+2*u,2)}, v153 offset:{u*256}")
    e("s_lshl_b32 s38, s28, 4")
    e(f"s_add_u32 s38, s38, {FG}")
    e(f"v_and_b32 v{HT+4}, 8, v156")
    e(f"v_add_u32 v{HT+4}, s38, v{HT+4}")
    e("s_waitcnt vmcnt(0)")
    e.extend(trace(44))
    lds_add(e, C_KVALL, HT)
    e("s_lshl_b32 s45, s29, 2")
    e("s_lshl_b32 s36, s28, 7")
    e("s_add_u32 s36, s36, s45")
    e("s_add_u32 s36, s36, s30")
    e("s_lshl_b32 s36, s36, 10")
    e(f"s_add_u32 s36, s36, {WS_OC}")
    e(f"v_mov_b64 {vr(HD,2)}, -1")
    e(f"v_mov_b64 {vr(HD+2,2)}, -1")
    for i in range(4):
        e(f"s_add_u32 s38, s36, {i*32768}")
        e(f"buffer_store_dwordx4 {vr(HD,4)}, v10, s[24:27], s38 offen sc1")
    flag_poll(e, HT + 4, HT + 2)
    e("s_lshl_b32 s38, s28, 5")
    e("s_add_u32 s38, s38, s45")
    e("s_add_u32 s38, s38, s30")
    e("s_lshl_b32 s38, s38, 4")
    e(f"s_add_u32 s38, s38, {FP}")
    e(f"v_mov_b32 v{HD+4}, s78")
    e(f"v_mov_b32 v{HD+5}, s79")
    e(f"v_mov_b32 v{HD+6}, s37")
    e(f"v_mov_b32 v{HD+7}, 0")
    e("s_mov_b64 exec, 1")
    e(f"buffer_store_dwordx4 {vr(HD+4,4)}, v{HD+7}, s[24:27], s38 offen sc1")
    e("s_mov_b64 exec, -1")
    e("s_lshl_b32 s38, s28, 8")
    e(f"s_add_u32 s38, s38, {WS_GATE}")
    e(f"buffer_load_dword v{HG}, v155, s[24:27], s38 offen sc1")
    e(f"buffer_load_dword v{HG+1}, v155, s[24:27], s38 offen offset:128 sc1")
    e("s_waitcnt lgkmcnt(0)")
    for u in range(2): e(mfma(HD + 16 * u, HK, HQ + 8 * u, None))
    e.extend(interleave(*[phi_unit(HD + 16 * u, HP + 4 * u, HQ + 8 * u) for u in range(2)]))
    e(f"v_add_u32 v{HT}, {C_GATE}, v155")
    e("s_waitcnt vmcnt(0)")
    e(f"ds_write_b32 v{HT}, v{HG}")
    e(f"ds_write_b32 v{HT}, v{HG+1} offset:128")
    e("s_waitcnt lgkmcnt(0)")
    lds_add(e, C_GOK, HT)
    e.extend(trace(45))
    e("s_and_b32 s38, s28, 3")
    e("s_cmp_lg_u32 s38, s30")
    e("s_cbranch_scc1 L_nored")
    e("s_lshr_b32 s38, s28, 3")
    e("s_add_u32 s43, s45, s38")
    e("v_lshlrev_b32 v15, 1, v155")
    e("s_lshl_b32 s38, s43, 8")
    e(f"s_add_u32 s38, s38, {F3}")
    e(f"v_add_u32 v{HT}, s38, v15")
    flag_poll(e, HT, HT + 2)
    e.extend(trace(46))
    e("s_lshl_b32 s43, s43, 3")
    e("s_and_b32 s38, s28, 7")
    e("s_add_u32 s43, s43, s38")
    e("s_lshl_b32 s38, s43, 14")
    e(f"s_add_u32 s38, s38, {WS_PART}")
    for p in range(16):
        if p and p % 4 == 0: e("s_add_u32 s38, s38, 4096")
        e(f"buffer_load_dwordx4 {vr(HP+4*p,4)}, v10, s[24:27], s38 offen offset:{(p&3)*1024} sc1")
    e("s_waitcnt vmcnt(0)")
    e.extend(trace(47))
    for st in (32, 16, 8, 4):
        for i in range(0, st, 2): e(f"v_pk_add_f32 {vr(HP+i,2)}, {vr(HP+i,2)}, {vr(HP+st+i,2)}")
    e(f"v_permlane32_swap_b32 v{HP}, v{HP+2}")
    e(f"v_permlane32_swap_b32 v{HP+1}, v{HP+3}")
    e(f"v_pk_add_f32 {vr(HP,2)}, {vr(HP,2)}, {vr(HP+2,2)}")
    e(f"v_cvt_pk_bf16_f32 v{HP}, v{HP}, v{HP+1}")
    e(f"v_lshrrev_b32 v{HT}, 5, v1")
    e(f"v_lshl_add_u32 v{HT}, v{HT}, 2, v15")
    e("s_lshl_b32 s38, s43, 8")
    e(f"s_add_u32 s38, s38, {WS_KVF}")
    e(f"buffer_store_dword v{HP}, v{HT}, s[24:27], s38 offen sc1")
    e("s_lshl_b32 s38, s43, 3")
    e(f"s_add_u32 s38, s38, {F3P}")
    e("s_waitcnt vmcnt(0)")
    e.extend(trace(48))
    flag_store(e, "s38", HT)
    e.label("L_nored")
    e.extend(stamp(2))
    e("s_lshl_b32 s38, s28, 9")
    e(f"s_add_u32 s38, s38, {FP}")
    e("v_lshlrev_b32 v2, 2, v155")
    e("v_add_u32 v2, s38, v2")
    e("s_mov_b32 s77, 0")
    e("s_mov_b32 s35, 0")
    e.label("L_fpp")
    e(f"buffer_load_dwordx4 {vr(HD,4)}, v2, s[24:27], 0 offen sc1")
    e("s_add_u32 s77, s77, 1")
    e("s_waitcnt vmcnt(0)")
    e(f"v_cmp_ne_u64 vcc, s[78:79], {vr(HD,2)}")
    e("s_cbranch_vccz L_fpd")
    e("s_sleep 8")
    e(f"s_cmp_lt_u32 s77, {OPT['spin']}")
    e("s_cbranch_scc1 L_fpp")
    e("s_branch L_fpx")
    e.label("L_fpd")
    e(f"v_cmp_ne_u32 vcc, s37, v{HD+2}")
    e("s_cbranch_vccnz L_fpx")
    if OPT.get("loc", 1):
        lds_add(e, C_LOC, HT)
        e("s_mov_b32 s35, 1")
    e.label("L_fpx")
    e.extend(trace(57))
    e("s_add_u32 s45, s45, s30")
    e("s_lshl_b32 s38, s45, 6")
    e(f"s_add_u32 s38, s38, {F3P}")
    e(f"v_and_b32 v{HT}, 56, v156")
    e(f"v_add_u32 v{HT}, s38, v{HT}")
    flag_poll(e, HT, HT + 2)
    e.extend(trace(49))
    e("s_lshl_b32 s38, s45, 11")
    e(f"s_add_u32 s38, s38, {WS_KVF}")
    for q in range(4):
        e(f"buffer_load_dwordx2 {vr(HK+2*q,2)}, v156, s[24:27], s38 offen offset:{q*512} sc1")
    e("s_waitcnt vmcnt(0)")
    e.extend(trace(50))
    for u in range(2): e(mfma(HD + 16 * u, HK, HQ + 8 * u, None))
    for u in range(2): e(mfma(HD + 16 * u, HK + 4, HQ + 8 * u + 4, HD + 16 * u))
    for u in range(2):
        D = HD + 16 * u
        e(f"v_add_f32 v{HT}, {fbits(1e-6)}, v{D+8}")
        e(f"v_rcp_f32 v{HT}, v{HT}")
        e(f"v_mul_f32 v{HT}, v{HT}, v{HG+u}")
        for i in range(0, 8, 2): e(f"v_pk_mul_f32 {vr(D+i,2)}, {vr(D+i,2)}, {vr(HT,2)} op_sel_hi:[1,0]")
        for q in range(4): e(f"v_cvt_pk_bf16_f32 v{D+q}, v{D+2*q}, v{D+2*q+1}")
    e("s_add_u32 s38, s36, 65536")
    e(f"buffer_store_dwordx4 {vr(HD,4)}, v10, s[24:27], s36 offen sc1")
    e(f"buffer_store_dwordx4 {vr(HD+16,4)}, v10, s[24:27], s38 offen sc1")
    e.extend(trace(51))
    e.extend(stamp(3))
    ACC = [16, 32]; WFR = [48, 56, 132]; OF = 64; PT = 128
    srd(e, 4, 54, 512*512*2)
    srd(e, 8, 64, 512*512*2)
    srd(e, 12, 68, 2048*512*2)
    e("s_lshl_b32 s44, s28, 1")
    e("s_add_u32 s44, s44, s46")
    e("s_lshl_b32 s43, s44, 16")
    e("s_lshl_b32 s38, s47, 14")
    e("s_add_u32 s43, s43, s38")
    e(f"s_add_u32 s43, s43, {WS_OC}")
    def wdma(sd):
        e("s_lshl_b32 s38, s30, 17")
        e("s_lshl_b32 s39, s29, 7")
        e("s_add_u32 s38, s38, s39")
        e("s_lshl_b32 s39, s30, 14")
        for g in range(4):
            e("s_mov_b32 m0, s39")
            for k in range(4):
                e(f"buffer_load_dwordx4 v{144+k}, s[{sd}:{sd+3}], s38 offen offset:{k*1024} lds")
            if g < 3:
                e("s_add_u32 s38, s38, 32768")
                e("s_add_u32 s39, s39, 4096")
    def oload(base_add, g0=0, g1=4):
        for g in range(g0, g1):
            e(f"s_add_u32 s38, s43, {base_add + g*4096}")
            for t in range(4 * g, 4 * g + 4):
                e(f"buffer_load_dwordx4 {vr(OF+4*t,4)}, v10, s[24:27], s38 offen offset:{(t&3)*1024} sc1")
    def rd(t):
        return [f"ds_read_b64_tr_b16 {vr(WFR[t%3]+4*nt+2*u,2)}, v{148+nt} offset:{(16*t+8*u)*128}" for nt in range(2) for u in range(2)]
    def step(t, first, fill=[]):
        if t < 14: e.extend(rd(t + 2))
        e(f"s_waitcnt lgkmcnt({4*min(2, 15-t)})")
        for nt in range(2):
            e(mfma(ACC[nt], WFR[t % 3] + 4 * nt, OF + 4 * t, None if (first and t == 0) else ACC[nt]))
            e.extend(fill[nt * 5:nt * 5 + 5])
    def check(g):
        b = OF + 16 * g
        l = [f"v_max3_u32 v{PT}, v{b}, v{b+1}, v{b+2}", f"v_max3_u32 v{PT+1}, v{b+3}, v{b+4}, v{b+5}"]
        for i in (6, 10):
            l += [f"v_max3_u32 v{PT}, v{PT}, v{b+i}, v{b+i+1}", f"v_max3_u32 v{PT+1}, v{PT+1}, v{b+i+2}, v{b+i+3}"]
        l += [f"v_max3_u32 v{PT}, v{PT}, v{b+14}, v{b+15}", f"v_max_u32 v{PT}, v{PT}, v{PT+1}", f"v_cmp_eq_u32 vcc, -1, v{PT}"]
        return l
    def pgemm(tag, first, pace, base):
        e("s_waitcnt vmcnt(4)")
        e.extend(check(0))
        for g in range(4):
            e(f"s_cbranch_vccnz L_retry{tag}{g}")
            e.label(f"L_go{tag}{g}")
            if g == 0 and not first: e.extend(trace(40))
            for t in range(4 * g, 4 * g + 4):
                if t % 4 == 3 and g < 3: step(t, first, [f"s_waitcnt vmcnt({4 if g < 2 else 0})"] + check(g + 1))
                else: step(t, first)
                if t % 4 == 0 and g < 2: oload(base, g + 2, g + 3)
                if pace: e(f"s_sleep {pace}")
    lds_wait(e, C_PROG, 8, PT, sleep=8)
    e.extend(trace(54))
    wdma(4)
    oload(0, 0, 2)
    e("s_waitcnt vmcnt(8)")
    lds_add(e, C_HS, PT)
    lds_wait(e, C_HS, 4, PT)
    e.extend(trace(55))
    e.extend(rd(0) + rd(1))
    e("s_mov_b32 s77, 0")
    e(f"s_setprio {OPT.get('aprio', 2)}")
    pgemm("A", True, OPT.get("pace", 0), 0)
    e("s_setprio 3")
    e.extend(trace(56))
    lds_add(e, C_HS, PT)
    lds_wait(e, C_HS, 8, PT)
    e.extend(trace(58))
    wdma(8)
    e("s_lshl_b32 s36, s44, 15")
    e("s_lshl_b32 s39, s29, 7")
    e("s_add_u32 s36, s36, s39")
    e("s_lshl_b32 s39, s47, 6")
    e("s_add_u32 s36, s36, s39")
    e("s_mov_b32 s77, 0")
    e("s_waitcnt vmcnt(0)")
    e.extend(stamp(4))
    e("s_barrier")
    e.extend(stamp(5))
    oload(32768, 0, 2)
    e.extend(rd(0) + rd(1))
    pgemm("B", False, 0, 32768)
    e.extend(trace(42))
    if OPT.get("trace"): e("v_writelane_b32 v159, s77, 41")
    for q in range(4): e(f"ds_write_b128 v150, {vr(ACC[1]+4*q,4)} offset:{q*1024}")
    e("s_waitcnt lgkmcnt(0)")
    e("s_barrier")
    for q in range(4): e(f"ds_read_b128 {vr(OF+4*q,4)}, v151 offset:{q*1024}")
    A = ACC[0]
    for pr in range(2):
        e(f"s_waitcnt lgkmcnt({2-2*pr})")
        for i in range(8 * pr, 8 * pr + 8, 2): e(f"v_pk_add_f32 {vr(A+i,2)}, {vr(A+i,2)}, {vr(OF+i,2)}")
        for q in range(4): e(f"v_cvt_pk_bf16_f32 v{A+8*pr+q}, v{A+8*pr+2*q}, v{A+8*pr+2*q+1}")
    for pr in range(2):
        e(f"v_permlane32_swap_b32 v{A+8*pr}, v{A+8*pr+2}")
        e(f"v_permlane32_swap_b32 v{A+8*pr+1}, v{A+8*pr+3}")
    for pr in range(2):
        e(f"buffer_store_dwordx4 {vr(A+8*pr,4)}, v152, s[12:15], s36 offen offset:{pr*32}" + ["", " sc1", " nt", " sc0 sc1"][OPT.get("ost", 0)])
    e.extend(trace(43))
    e("s_or_b32 s38, s2, s30")
    e("s_cbranch_scc1 L_noepoch")
    e(f"s_mov_b32 s38, {WS_EPOCH}")
    flag_store(e, "s38", PT)
    e.label("L_noepoch")
    stamp_end(e, 64)
    e.label("L_done")
    e("s_endpgm")
    for tag, base in (("A", 0), ("B", 32768)):
        for g in range(4):
            e.label(f"L_retry{tag}{g}")
            if tag == "A": e("s_sleep 8")
            oload(base, g, min(4, g + 2))
            e("s_add_u32 s77, s77, 1")
            e(f"s_waitcnt vmcnt({4 if g < 3 else 0})")
            e.extend(check(g))
            e(f"s_cbranch_vccz L_go{tag}{g}")
            e(f"s_cmp_lt_u32 s77, {OPT['spin']}")
            e(f"s_cbranch_scc1 L_retry{tag}{g}")
            e(f"s_branch L_go{tag}{g}")

    e.label("L_compute")
    ACC = 96; EACC = 128; WF = 144; I0 = 148; ONE = 156
    e("s_and_b32 s44, s30, 3")
    e("s_lshr_b32 s40, s30, 2")
    if OPT.get("pf", 0):
        e("s_cmp_lt_u32 s30, 3")
        e("s_movk_i32 s38, 1024")
        e("s_cselect_b32 s38, 3072, s38")
        e("v_mul_lo_u32 v30, v1, s38")
        e("s_mul_i32 s38, s38, s31")
        e("s_lshl_b32 s38, s38, 6")
        e("s_add_u32 s39, s30, 1")
        e("s_cmp_lt_u32 s30, 2")
        e("s_cselect_b32 s39, s39, 0")
        e("s_lshl_b32 s39, s39, 10")
        e("s_add_u32 s38, s38, s39")
        e("s_lshl_b32 s39, s29, 7")
        e("s_add_u32 s38, s38, s39")
        e("s_add_u32 s39, s31, s30")
        e("s_and_b32 s39, s39, 7")
        e("s_lshl_b32 s39, s39, 7")
        e("s_lshl_b32 s42, s28, 16")
        e("s_add_u32 s39, s39, s42")
        e("s_cmp_lt_u32 s30, 4")
        e("s_cselect_b32 s38, s38, s39")
        e("v_add_u32 v30, s38, v30")
        e("s_waitcnt lgkmcnt(0)")
        e("s_cselect_b32 s20, s58, s48")
        e("s_cselect_b32 s21, s59, s49")
        e("s_cmp_lt_u32 s30, 3")
        e("s_cselect_b32 s20, s50, s20")
        e("s_cselect_b32 s21, s51, s21")
        lo = OPT.get("pfx", 6)
        if lo > 4:
            e("s_sub_u32 s38, s30, 4")
            e(f"s_cmp_lt_u32 s38, {lo-4}")
            e("s_cbranch_scc1 L_nopf")
        e("global_load_dword v31, v30, s[20:21]" + ["", " sc1", " nt"][OPT.get("pfm", 0)])
        e.label("L_nopf")
    e("v_and_b32 v11, 31, v1")
    e("v_lshrrev_b32 v22, 5, v1")
    e("v_bfe_u32 v23, v1, 1, 3")
    e("v_xor_b32 v23, v23, v22")
    e("v_lshlrev_b32 v23, 4, v23")
    e("v_lshl_add_u32 v12, v11, 7, v23")
    e(f"v_add_u32 v12, {XT}, v12")
    for t in range(1, 4): e(f"v_xor_b32 v{12+t}, {32*t}, v12")
    su_w = ["v_lshrrev_b32 v22, 5, v1", "v_bfe_u32 v23, v1, 2, 2", "v_lshl_add_u32 v20, v22, 3, v23", "v_lshlrev_b32 v20, 7, v20",
            "v_bfe_u32 v23, v1, 3, 2", "v_xor_b32 v23, s44, v23", "v_lshl_add_u32 v20, v23, 5, v20", "v_bfe_u32 v24, v1, 4, 1",
            "v_lshl_add_u32 v20, v24, 13, v20", "v_and_b32 v23, 3, v1", "v_lshl_add_u32 v20, v23, 3, v20"]
    su_s = ["s_lshl_b32 s45, s29, 2", "s_add_u32 s45, s45, s44", "s_lshl_b32 s47, s28, 1", "s_xor_b32 s46, s40, 1",
            "s_add_u32 s47, s47, s46", "s_lshl_b32 s43, s47, 6", "s_add_u32 s43, s43, s45", "s_lshl_b32 s43, s43, 10",
            f"s_add_u32 s43, s43, {WS_OC+32*1024}",
            f"s_mov_b32 s74, {fbits(LOG2E)}", f"s_mov_b32 s75, {fbits(-LOG2E)}", f"s_mov_b32 s76, {fbits(0.25*LOG2E)}",
            "s_lshl_b32 s38, s44, 10", f"s_add_u32 s38, s38, {HND}", "v_add_u32 v28, s38, v10"]
    su_ws = ["s_waitcnt lgkmcnt(0)", f"s_load_dwordx2 s[78:79], s[72:73], {hex(WS_EPOCH)}",
             "s_mov_b32 s24, s72", "s_mov_b32 s25, s73", f"s_mov_b32 s26, {hex(WS_SIZE)}", "s_mov_b32 s27, 0x00020000"]
    su_ep = ["s_waitcnt lgkmcnt(0)", "s_add_u32 s78, s78, 1"]
    def su_id(n, I0):
        l = ["v_and_b32 v11, 31, v1", "v_lshrrev_b32 v22, 5, v1", "v_lshlrev_b32 v22, 2, v22", "v_sub_u32 v11, v11, v22",
             "v_mov_b32 v22, 0x3f80", "v_mov_b32 v23, 0x3f800000"]
        for sgn in range(n):
            for q in range(4):
                f0 = 16 * sgn + (2 * q if q < 2 else 8 + 2 * (q - 2))
                l += [f"v_cmp_eq_u32 vcc, {f0}, v11", f"v_cmp_eq_u32 s[38:39], {f0+1}, v11",
                      f"v_cndmask_b32 v{I0+4*sgn+q}, 0, v22, vcc", f"v_cndmask_b32 v{I0+4*sgn+q}, v{I0+4*sgn+q}, v23, s[38:39]"]
        return l
    Q = 4; NM = 8; O = 24; S = [40, 56]; PK = 72; KF = [80, 84]; VF = [144, 152]; AK = 2; AV = 3; T = 106
    U = 4; NIT = 16
    SEG = OPT.get("seg", (2, 8, 15, 16))
    ATT_SETUP = [f"v_mov_b32 v{AK}, v10", f"v_lshrrev_b32 v{T}, 5, v1", f"v_and_b32 v{AV}, 15, v1", f"v_lshlrev_b32 v{AV}, 4, v{AV}",
                 f"v_lshl_add_u32 v{AV}, v{T}, 8, v{AV}", f"v_add_u32 v{AV}, 1024, v{AV}", f"v_and_b32 v{T}, 27, v1",
                 f"v_mov_b32 v{T+1}, 0x3f803f80", f"v_cmp_eq_u32 vcc, 16, v{T}", "s_mov_b32 s20, 0xffff", "s_mov_b32 s21, 0xffff",
                 f"v_cndmask_b32 v{VF[0]}, 0, v{T+1}, vcc"] + [f"v_mov_b32 v{VF[0]+1}, v{VF[0]}"] + [f"v_mov_b64 {vr(VF[0]+i,2)}, {vr(VF[0],2)}" for i in range(2, 16, 2)] + \
                [f"s_mov_b32 s22, {SEG[0]}", "s_mov_b32 s23, 0"]
    def fr(buf, t):
        if buf == 0:
            b = 32 + 12 * t; return (b, b + 4, b + 8)
        return [(80, 84, 88), (128, 132, 136), (92, 140, 16), (4, 160, 164)][t]
    def reads(buf, g):
        l = []; p = g % 8; so = SLOT[g] & 0xffff; wa = 21 if g == 8 else 20
        for t in range(4):
            xa, xb, w = fr(buf, t)
            l.append(f"ds_read_b128 {vr(xa,4)}, v{12+t} offset:{p*8192}")
            for u in range(2):
                l.append(f"ds_read_b64_tr_b16 {vr(w+2*u,2)}, v{wa} offset:{so+(16*t+4*u)*128}")
            l.append(f"ds_read_b128 {vr(xb,4)}, v{12+t} offset:{p*8192+4096}")
        return l
    def mfmas(buf, first):
        l = []
        for t in range(4):
            xa, xb, w = fr(buf, t); z = first and t == 0
            l.append(mfma(ACC, w, xa, None if z else ACC))
            l.append(mfma(ACC + 16, w, xb, None if z else ACC + 16))
        return l
    def gpass(g0, first, last, extra={}):
        pend = None; NS = OPT.get("gspread", 5)
        for i in range(first, last + 1):
            e("s_barrier")
            mm = mfmas(pend & 1, pend == 0) if pend is not None else []
            todo = None
            for c in range(8):
                if USE[g0 + c] == i: todo = c
            if todo is not None:
                r = reads(todo & 1, g0 + todo)
                e.extend(spread(mm[:NS], r) + mm[NS:] if mm else r)
                e.extend(extra.get(i, []))
                e("s_waitcnt lgkmcnt(0)")
            else:
                e.extend(mm)
                e.extend(extra.get(i, []))
            pend = todo
        if pend is not None: e.extend(mfmas(pend & 1, False))
    PU = [32, 48]; PH = [64, 72]; TM = [80, 84]; VFR = [88, 92]
    e("s_cmp_lg_u32 s40, 0")
    e("s_cbranch_scc1 L_qwave")
    e(f"v_mov_b32 v26, {MISC}")
    for i in range(4): e(f"v_mov_b32 v{32+i}, 0")
    e("ds_write_b128 v26, v[32:35]")
    e("ds_write_b128 v26, v[32:35] offset:16")
    e.extend(su_w)
    e.extend(su_ws)
    wph = ["v_and_b32 v23, 15, v1", "v_lshlrev_b32 v23, 3, v23", "v_lshrrev_b32 v22, 5, v1", "v_lshl_add_u32 v25, v22, 7, v23",
           "s_lshl_b32 s38, s44, 9", f"s_add_u32 s38, s38, {WPH}", "v_add_u32 v25, s38, v25"]
    wpr = [f"ds_read_b64_tr_b16 {vr(WF+2*u,2)}, v25 offset:{u*256}" for u in range(2)]
    one = ["v_bfe_u32 v24, v1, 4, 1", f"v_mul_u32_u24 v{ONE}, 0x3f80, v24", f"v_lshl_or_b32 v{ONE}, v{ONE}, 16, v{ONE}"]
    xs = [i for i in range(8) if i not in USE.values() or i == USE[8] and i not in [USE[c] for c in range(8)]]
    idl = su_id(2, I0)
    KEND = USE[7] + 1
    gpass(0, 0, KEND, {xs[0]: su_s + wph, xs[1]: idl[:22], xs[2]: idl[22:] + one, xs[3]: su_ep + stamp(0), 9: wpr})
    e.extend(stamp(1))
    k = []
    for u in range(2):
        for q in range(4): k.append(f"v_cvt_pk_bf16_f32 v{PH[u]+q}, v{ACC+16*u+2*q}, v{ACC+16*u+2*q+1}")
    for u in range(2): k.append(mfma(PU[u], WF, PH[u], None))
    for u in range(2):
        a = ACC + 16 * u
        for q in range(4): k.append(f"v_cvt_pk_bf16_f32 v{VFR[u]+q}, v{a+8+2*q}, v{a+8+2*q+1}")
    for u in range(2): k.append(mfma(ACC + 16 * u, VFR[u], I0, None))
    k += interleave(*[phi_unit(PU[u], TM[u], PH[u]) for u in range(2)])
    for u in range(2): k.append(mfma(PU[u], PH[u], I0, None))
    for u in range(2): k.append(mfma(PU[u], PH[u] + 4, I0 + 4, PU[u]))
    for u in range(2):
        a = ACC + 16 * u
        for q in range(8): k.append(f"v_cvt_pk_bf16_f32 v{a+q}, v{a+2*q}, v{a+2*q+1}")
        for q in range(8): k.append(f"v_or_b32 v{a+q}, v{a+q}, v{ONE}")
    for u in range(2):
        for q in range(8): k.append(f"v_cvt_pk_bf16_f32 v{PH[u]+q}, v{PU[u]+2*q}, v{PU[u]+2*q+1}")
    D3 = EACC
    for u in range(2):
        k.append(mfma(D3, PH[u], ACC + 16 * u, None if u == 0 else D3))
        k.append(mfma(D3, PH[u] + 4, ACC + 16 * u + 4, D3))
    PST = ["v_and_b32 v112, 31, v1", "v_lshlrev_b32 v112, 4, v112", "v_lshrrev_b32 v113, 5, v1", "v_lshl_add_u32 v112, v113, 14, v112",
          "s_lshl_b32 s38, s45, 17", "s_lshl_b32 s39, s28, 9", "s_add_u32 s38, s38, s39", f"s_add_u32 s38, s38, {WS_PART}"]
    for q in range(4):
        PST.append(f"buffer_store_dwordx4 {vr(D3+4*q,4)}, v112, s[24:27], s38 offen sc1")
        if q < 3: PST.append("s_add_u32 s38, s38, 32768")
    DEFER = OPT.get("defer", 1)
    if not DEFER: k += PST
    if not OPT.get("pk", 1): k = unpk(k)
    k = [x.strip() for x in fix_hazards(k, pre=mfmas(1, False))]
    def cost(x):
        if "mfma" in x: return 48
        if "v_exp" in x or "v_rcp" in x: return 8
        if "s_nop" in x: return 4 * (int(x.split()[1]) + 1)
        return 4
    NB = 20 - KEND
    acc = 260; nb = 0; LIM = OPT.get("klim", 140)
    for x in k:
        if nb < NB and acc + cost(x) > (LIM if nb < NB - 1 else OPT.get("klast", 300)):
            e("s_barrier"); nb += 1; acc = 0
            if nb == NB:
                e.extend(stamp(2)); e("s_setprio 2")
        e(x); acc += cost(x)
    while nb < NB:
        e("s_barrier"); nb += 1
    e("ds_read_b128 v[4:7], v28")
    e.extend(ATT_SETUP)
    e("s_branch L_attn")
    e.label("L_qwave")
    e.extend(su_w)
    e.extend(su_s)
    e.extend(ATT_SETUP)
    e("s_lshl_b32 s38, s44, 11")
    e(f"s_add_u32 s38, s38, {PHQ}")
    e("v_add_u32 v29, s38, v10")
    e("s_mov_b32 s41, 0")
    e.extend([x for x in su_ws if "s_load" not in x])
    e("s_cmp_eq_u32 s30, 6")
    e("s_cbranch_scc1 L_touch")
    e("s_cmp_eq_u32 s30, 7")
    e("s_cbranch_scc1 L_qidle")
    e("s_cmp_gt_u32 s29, 2")
    e("s_cbranch_scc1 L_qidle")
    e("s_lshl_b32 s38, s44, 12")
    for t in range(4): e(f"v_add_u32 v{16+t}, s38, v{12+t}")
    e("v_and_b32 v23, 15, v1")
    e("v_lshlrev_b32 v23, 3, v23")
    e("v_lshl_add_u32 v26, v22, 8, v23")
    e("v_lshlrev_b32 v27, 4, v22")
    e("s_lshl_b32 s42, s28, 1")
    e("s_add_u32 s42, s42, s44")
    e("s_cmp_eq_u32 s29, 2")
    e("s_cbranch_scc1 L_qgate")
    def extloop(gate):
        nbar = 0
        if not gate: e.extend(su_id(1, 160))
        def xr(p):
            B = 32 + 32 * (p % 3); va = 21 if p % 2 == 0 else 25
            l = [f"s_lshl_b32 s38, s31, {7 if gate else 11}", f"v_add_u32 v{va}, s38, v{27 if gate else 26}",
                 "s_add_u32 s31, s31, 1", "s_and_b32 s31, s31, 7"]
            r = []
            for t in range(4):
                r.append(f"ds_read_b128 {vr(B+8*t,4)}, v{16+t} offset:{p*8192}")
                if gate: r.append(f"ds_read_b128 {vr(B+8*t+4,4)}, v{va} offset:{t*32}")
                else:
                    for u in range(2): r.append(f"ds_read_b64_tr_b16 {vr(B+8*t+4+2*u,2)}, v{va} offset:{t*512+u*128}")
            return l, r
        def xm(p):
            B = 32 + 32 * (p % 3)
            return [mfma(EACC, B + 8 * t + 4, B + 8 * t, None if (p == 0 and t == 0) else EACC) for t in range(4)]
        n = 8 if gate else 12
        for p in range(0, 8, 2):
            a0, r0 = xr(p); a1, r1 = xr(p + 1)
            e.extend(a0 + a1)
            while nbar <= POS[f"x{p//2}"]:
                e("s_barrier"); nbar += 1
            e.extend(spread(xm(p - 1)[:3], r0 + r1) + xm(p - 1)[3:] if p else r0 + r1)
            e(f"s_waitcnt lgkmcnt({n})")
            e.extend(xm(p))
            e("s_waitcnt lgkmcnt(0)")
        while nbar <= XL + 1:
            e("s_barrier"); nbar += 1
        e.extend(xm(7))
    extloop(False)
    for q in range(4): e(f"v_cvt_pk_bf16_f32 v{EACC+q}, v{EACC+2*q}, v{EACC+2*q+1}")
    e("s_lshl_b32 s38, s42, 11")
    e("s_lshl_b32 s41, s44, 1")
    e("s_add_u32 s41, s41, s29")
    e("s_lshl_b32 s41, s41, 5")
    e("s_add_u32 s41, s41, s28")
    e("s_lshl_b32 s41, s41, 3")
    e(f"s_add_u32 s41, s41, {F1}")
    e("s_cmp_eq_u32 s29, 1")
    e("s_cbranch_scc1 L_qv")
    e(f"buffer_store_dwordx4 {vr(EACC,4)}, v10, s[24:27], s38 offen sc1")
    e("s_branch L_q5")
    e.label("L_qv")
    e("s_nop 1")
    e(mfma(32, EACC, 160, None))
    e("v_lshrrev_b32 v11, 5, v1")
    e("v_and_b32 v22, 15, v1")
    e("v_lshlrev_b32 v22, 4, v22")
    e("v_lshl_add_u32 v22, v11, 8, v22")
    for q in range(8): e(f"v_cvt_pk_bf16_f32 v{EACC+8+q}, v{32+2*q}, v{32+2*q+1}")
    e("s_mov_b32 exec_lo, 0xffff")
    e("s_mov_b32 exec_hi, 0xffff")
    e(f"buffer_store_dwordx4 {vr(EACC+8,4)}, v22, s[24:27], s38 offen offset:1024 sc1")
    e(f"buffer_store_dwordx4 {vr(EACC+12,4)}, v22, s[24:27], s38 offen offset:1536 sc1")
    e("s_mov_b64 exec, -1")
    e("s_branch L_q5")
    e.label("L_qgate")
    extloop(True)
    e(f"v_cvt_pk_bf16_f32 v11, v{EACC}, v{EACC}")
    e("v_and_b32 v11, 0xffff0000, v11")
    e("v_mul_f32 v11, s75, v11")
    e("v_exp_f32 v11, v11")
    e("v_add_f32 v11, 1.0, v11")
    e("v_rcp_f32 v11, v11")
    e("v_cvt_pk_bf16_f32 v11, v11, v11")
    e("v_and_b32 v11, 0xffff0000, v11")
    e("v_lshlrev_b32 v22, 2, v1")
    e("s_lshl_b32 s38, s42, 7")
    e(f"s_add_u32 s38, s38, {WS_GATE}")
    e("s_lshl_b32 s41, s42, 3")
    e(f"s_add_u32 s41, s41, {FG}")
    e("s_mov_b32 exec_hi, 0")
    e("buffer_store_dword v11, v22, s[24:27], s38 offen sc1")
    e("s_mov_b64 exec, -1")
    e("s_branch L_q5")
    e.label("L_touch")
    if OPT.get("touch", 0):
        e("v_mov_b32 v22, 0")
        e("v_min_u32 v23, 4, v1")
        e("v_lshlrev_b32 v23, 21, v23")
        for n, p in enumerate((50, 58, 52)):
            e(f"global_load_dword v{40+n}, v22, s[{p}:{p+1}]")
        e("global_load_dword v44, v23, s[72:73]")
        for n, p in enumerate((54, 64, 68)):
            e(f"global_load_dword v{45+n}, v22, s[{p}:{p+1}]")
    e.label("L_qidle")
    for i in range(XL + 2): e("s_barrier")
    e.label("L_q5")
    e(su_ws[1])
    e(f"v_add_u32 v21, {S5}, v20")
    fl = Emitter()
    fl("s_cmp_eq_u32 s41, 0")
    fl("s_cbranch_scc1 L_noflag")
    fl.extend(su_ep)
    fl("s_waitcnt vmcnt(0)")
    flag_store(fl, "s41", 22)
    fl.label("L_noflag")
    gpass(8, XL + 2, 19, {XL + OPT.get("flat", 5): fl.lines, USE[9] - 1: stamp(0) + ["s_setprio 1"]})
    e.extend(stamp(1))
    for u in (1, 0):
        a = ACC + 16 * u
        for i in range(8, 16, 2): e(f"v_pk_mul_f32 {vr(a+i,2)}, {vr(a+i,2)}, s[76:77] op_sel_hi:[1,0]")
        d = 76 if u else 4
        for q in range(4): e(f"v_cvt_pk_bf16_f32 v{d+q}, v{a+8+2*q}, v{a+8+2*q+1}")
        if u: e("ds_write_b128 v28, v[76:79]")
        for q in range(4): e(f"v_cvt_pk_bf16_f32 v{PH[u]+q}, v{a+2*q}, v{a+2*q+1}")
        e(f"ds_write_b128 v29, {vr(PH[u],4)} offset:{u*1024}")
    e("s_waitcnt lgkmcnt(0)")
    e.extend(stamp(2))
    e("s_barrier")
    e.label("L_attn")
    e.extend(stamp(3))
    e("s_setprio 2")
    e(f"ds_read_b128 {vr(KF[0],4)}, v{AK}")
    e(f"ds_read_b128 {vr(KF[1],4)}, v{AK} offset:2048")
    e("s_mov_b64 exec, s[20:21]")
    e(f"ds_read_b128 {vr(VF[0],4)}, v{AV}")
    e(f"ds_read_b128 {vr(VF[0]+4,4)}, v{AV} offset:512")
    e("s_mov_b64 exec, -1")
    for i in range(0, 16, 2): e(f"v_mov_b64 {vr(O+i,2)}, 0")
    for i in range(0, 4, 2): e(f"v_mov_b64 {vr(PK+4+i,2)}, 0")
    e("s_waitcnt lgkmcnt(0)")
    e(mfma(S[0], KF[0], Q, None))
    e(mfma(S[1], KF[1], Q, None))
    e(f"v_max3_f32 v{T}, v{S[0]}, v{S[0]+1}, v{S[0]+2}")
    rest = list(range(S[0] + 3, S[0] + 32))
    while len(rest) >= 2:
        e(f"v_max3_f32 v{T}, v{T}, v{rest[0]}, v{rest[1]}"); rest = rest[2:]
    if rest: e(f"v_max_f32 v{T}, v{T}, v{rest[0]}")
    def setnm():
        e(f"v_mov_b32 v{T+1}, v{T}")
        e(f"v_permlane32_swap_b32 v{T}, v{T+1}")
        e(f"v_max_f32 v{T}, v{T}, v{T+1}")
        for i in range(2): e(f"v_sub_f32 v{NM+i}, 0, v{T}")
        for i in range(2, 16, 2): e(f"v_mov_b64 {vr(NM+i,2)}, {vr(NM,2)}")
    setnm()
    e(mfma(S[0], KF[0], Q, NM))
    e("s_nop 7"); e("s_nop 1")
    body = Emitter()
    ex = lambda i: f"v_exp_f32 v{i}, v{i}"
    for j in range(U):
        a = j & 1; b = a ^ 1; Sa = S[a]
        cv = lambda q: f"v_cvt_pk_bf16_f32 v{PK+q}, v{Sa+2*q}, v{Sa+2*q+1}"
        body(mfma(S[b], KF[b], Q, NM))
        body(f"ds_read_b128 {vr(KF[a],4)}, v{AK} offset:{(j+2)*2048}")
        for i in range(7): body(ex(Sa + i))
        body(mfma(O, VF[b] + 4, PK + 4, O))
        body("s_mov_b64 exec, s[20:21]")
        body(f"ds_read_b128 {vr(VF[b],4)}, v{AV} offset:{(j+1)*2048}")
        body(f"ds_read_b128 {vr(VF[b]+4,4)}, v{AV} offset:{(j+1)*2048+512}")
        body("s_mov_b64 exec, -1")
        body(ex(Sa + 7)); body(ex(Sa + 8))
        for q in range(4): body(cv(q))
        body(ex(Sa + 9)); body(ex(Sa + 10))
        body("s_waitcnt lgkmcnt(3)")
        body(mfma(O, VF[a], PK, O))
        for i in range(11, 16): body(ex(Sa + i))
        if j == U - 1:
            body(f"v_add_u32 v{AK}, {U*2048}, v{AK}")
            body(f"v_add_u32 v{AV}, {U*2048}, v{AV}")
            body("s_add_u32 s23, s23, 1")
            body("s_cmp_lt_u32 s23, s22")
        for q in range(4, 8): body(cv(q))
        body("s_waitcnt lgkmcnt(2)")
    rep = []
    fix_hazards(body.lines, pre=body.lines, report=rep)
    assert not rep, rep
    e(".p2align 6")
    e.label("L_loop")
    if OPT.get("trace") == 3:
        e.extend(["s_memtime s[96:97]", "s_waitcnt lgkmcnt(0)", "s_sub_u32 s96, s96, s94", "s_lshl_b32 s97, s23, 1", "s_add_u32 m0, s97, 1", "v_writelane_b32 v111, s96, m0"])
    e.extend(body.lines)
    e("s_cbranch_scc1 L_loop")
    e(f"s_cmp_lg_u32 s22, {SEG[3]}")
    e("s_cbranch_scc1 L_seg")
    e(mfma(O, VF[1] + 4, PK + 4, O))
    e.extend(stamp(4))
    e(f"ds_read_b32 v{T+4}, v{T+4}")
    e(f"v_lshlrev_b32 v{AK}, 4, v1")
    e(f"v_fma_f32 v{T+1}, v{O}, 0, v{O+8}")
    e(f"v_mul_f32 v{T+3}, 0, v{O+1}")
    e(f"v_rcp_f32 v{T}, v{O+8}")
    for i in range(2, 8): e(f"v_fma_f32 v{T+1+2*(i&1)}, v{O+i}, 0, v{T+1+2*(i&1)}")
    e(f"v_add_f32 v{T+1}, v{T+1}, v{T+3}")
    e(f"v_cmp_ngt_f32 vcc, s39, v{T+1}")
    e("s_cbranch_vccnz L_fallback")
    e.label("L_fin")
    e(f"v_mul_f32 v{T}, v{T}, v{T+2}")
    for i in range(0, 8, 2): e(f"v_pk_mul_f32 {vr(O+i,2)}, {vr(O+i,2)}, {vr(T,2)} op_sel_hi:[1,0]")
    for q in range(4): e(f"v_cvt_pk_bf16_f32 v{O+q}, v{O+2*q}, v{O+2*q+1}")
    e("s_waitcnt lgkmcnt(0)")
    e(f"v_cmp_eq_u32 vcc, 0, v{T+4}")
    e("s_cbranch_vccnz L_far")
    e(f"buffer_store_dwordx4 {vr(O,4)}, v{AK}, s[24:27], s43 offen")
    if OPT["stamp"] == 1: e("s_branch L_cend")
    else: e("s_endpgm")
    e.label("L_far")
    e(f"buffer_store_dwordx4 {vr(O,4)}, v{AK}, s[24:27], s43 offen sc1")
    e.label("L_cend")
    e.extend(stamp(5))
    if OPT.get("trace") == 3: e("v_mov_b32 v159, v111")
    if OPT["stamp"] == 1: stamp_end(e, 40)
    e("s_endpgm")
    e.label("L_seg")
    e(f"s_cmp_eq_u32 s22, {SEG[1]}")
    e("s_cbranch_scc1 L_seg1")
    e(f"s_cmp_gt_u32 s22, {SEG[1]}")
    e("s_cbranch_scc1 L_seg2")
    if DEFER:
        e(f"s_cmp_lg_u32 s22, {SEG[0]}")
        e("s_cbranch_scc1 L_segf")
        lds_wait(e, C_KVALL, 4, T, sleep=1)
        e(f"s_mov_b32 s22, {SEG[1]}")
        e("s_cmp_lg_u32 s40, 0")
        e("s_cbranch_scc1 L_loop")
        e.extend(PST)
        e(f"s_mov_b32 s22, {SEG[0] + OPT.get('fgap', 2)}")
        e("s_branch L_loop")
        e.label("L_segf")
    e(f"s_mov_b32 s22, {SEG[1]}")
    if not DEFER:
        e("s_cmp_lg_u32 s40, 0")
        e("s_cbranch_scc1 L_seg0b")
    e("s_lshl_b32 s38, s45, 5")
    e("s_add_u32 s38, s38, s28")
    e("s_lshl_b32 s38, s38, 3")
    e(f"s_add_u32 s38, s38, {F3}")
    e("s_waitcnt vmcnt(0)")
    flag_store(e, "s38", T)
    e.label("L_seg0b")
    if not DEFER: lds_wait(e, C_KVALL, 4, T, sleep=1)
    e("s_branch L_loop")
    e.label("L_seg1")
    e(f"s_mov_b32 s22, {SEG[2]}")
    lds_add(e, C_PROG, T)
    lds_wait(e, C_GOK, 4, T)
    e("s_lshl_b32 s38, s46, 7")
    e(f"s_add_u32 s38, s38, {C_GATE}")
    e(f"v_and_b32 v{T}, 31, v1")
    e(f"v_lshl_add_u32 v{T}, v{T}, 2, s38")
    e(f"ds_read_b32 v{T+2}, v{T}")
    e(f"v_mov_b32 v{T+4}, {C_LOC}")
    e(f"s_mov_b32 s39, {fbits(2.0**120)}")
    e("s_waitcnt lgkmcnt(0)")
    e(f"v_sub_f32 v{T+2}, 1.0, v{T+2}")
    e(f"v_cvt_pk_bf16_f32 v{T+2}, v{T+2}, v{T+2}")
    e(f"v_and_b32 v{T+2}, 0xffff0000, v{T+2}")
    e("s_cmp_lg_u32 s40, 0")
    e("s_cbranch_scc1 L_loop")
    e("s_setprio 1")
    e(f"s_mov_b32 s22, {OPT.get('kdrop', 16)}")
    e("s_branch L_loop")
    e.label("L_seg2")
    e(f"s_mov_b32 s22, {SEG[3]}")
    e("s_setprio 1")
    e("s_cmp_lg_u32 s40, 0")
    e("s_cbranch_scc1 L_loop")
    e("s_setprio 0")
    e("s_branch L_loop")
    e.label("L_fallback")
    e("s_waitcnt lgkmcnt(0)")
    e(f"v_add_u32 v{AV}, {-64*2048 & 0xffffffff}, v{AV}")
    e(f"v_mov_b32 v{T}, 0xff800000")
    e("s_mov_b32 s38, 0")
    e.label("L_fb1")
    e(f"buffer_load_dwordx4 {vr(KF[0],4)}, v{AK}, s[24:27], s38 offen sc1")
    e("s_add_u32 s38, s38, 2048")
    e("s_waitcnt vmcnt(0)")
    e(mfma(S[0], KF[0], Q, None))
    for i in range(8): e(f"v_max3_f32 v{T}, v{T}, v{S[0]+2*i}, v{S[0]+2*i+1}")
    e("s_cmp_lt_u32 s38, 0x20000")
    e("s_cbranch_scc1 L_fb1")
    setnm()
    for i in range(16): e(f"v_mov_b32 v{O+i}, 0")
    e("s_mov_b32 s38, 0")
    e.label("L_fb2")
    e(f"buffer_load_dwordx4 {vr(KF[0],4)}, v{AK}, s[24:27], s38 offen sc1")
    e("s_mov_b64 exec, s[20:21]")
    e(f"buffer_load_dwordx4 {vr(VF[0],4)}, v{AV}, s[24:27], s38 offen sc1")
    e(f"buffer_load_dwordx4 {vr(VF[0]+4,4)}, v{AV}, s[24:27], s38 offen offset:512 sc1")
    e("s_mov_b64 exec, -1")
    e("s_add_u32 s38, s38, 2048")
    e("s_waitcnt vmcnt(0)")
    e(mfma(S[0], KF[0], Q, NM))
    for i in range(16): e(ex(S[0] + i))
    for q in range(8): e(f"v_cvt_pk_bf16_f32 v{PK+q}, v{S[0]+2*q}, v{S[0]+2*q+1}")
    e(mfma(O, VF[0], PK, O))
    e(mfma(O, VF[0] + 4, PK + 4, O))
    e("s_nop 7")
    e("s_cmp_lt_u32 s38, 0x20000")
    e("s_cbranch_scc1 L_fb2")
    e("s_nop 7"); e("s_nop 7")
    e(f"v_rcp_f32 v{T}, v{O+8}")
    e("s_branch L_fin")
    return fix_hazards(e.lines if OPT.get("pk", 1) else unpk(e.lines))

def build():
    hdr = open("cdna_kernels/%s.s.ref" % NAME).read().split("\n")
    hdr = [l for l in hdr if l.startswith(";") and "@launch" not in l]
    out = list(hdr)
    out.append(f"; @launch grid=(256,1,1) block=(768,1,1) lds={LDS_BYTES}")
    out.append('.amdgcn_target "amdgcn-amd-amdhsa--gfx950"')
    out.append(".text")
    k = NAME + "_kernel"
    out += [f".globl {k}", ".p2align 8", f".type {k},@function", f"{k}:"]
    out += gen()
    out.append('.section .rodata,"a"')
    out.append(f""".p2align 6
.amdhsa_kernel {k}
  .amdhsa_next_free_vgpr 168
  .amdhsa_next_free_sgpr {102 if OPT['stamp'] else 80}
  .amdhsa_accum_offset 168
  .amdhsa_group_segment_fixed_size 0
  .amdhsa_kernarg_size 104
  .amdhsa_user_sgpr_count 2
  .amdhsa_user_sgpr_kernarg_segment_ptr 1
  .amdhsa_system_sgpr_workgroup_id_x 1
.end_amdhsa_kernel
""")
    return "\n".join(out) + "\n"

if __name__ == "__main__":
    dst = "f.s"
    for a in sys.argv[1:]:
        k, v = a.split("=")
        if k == "out": dst = v
        elif "," in v: OPT[k] = tuple(int(x) for x in v.split(","))
        else: OPT[k] = int(v)
    open(dst, "w").write(build())
    print("wrote", dst)
```

```python
import sys, math, struct
from asmlib import *

NAME = "gated_mix__linear_kernel_hedgehog__grouped_kv_mqa__prompt"
WS_KVB  = 0x000000
WS_GATE = 0x020000
WS_FL   = 0x024000
F1 = WS_FL; FG = WS_FL + 0x400; F3 = WS_FL + 0x1000; F3P = WS_FL + 0x3000; F4 = WS_FL + 0x4000
WS_EPOCH = WS_FL + 0x800
FP = WS_FL + 0x4000
WS_KVF  = 0x030000
WS_PART = 0x100000
WS_OC   = 0x500000
WS_STAMP = 0x900000
WS_SIZE = 0xB00000
XT = 65536; EXT = 0; S5 = 131072; PHQ = 131072; HND = 147456; WPH = 155648; MISC = 157696
LDS_BYTES = 158720
C_KVALL = MISC; C_PROG = MISC + 4; C_HS = MISC + 8; C_GOK = MISC + 12; C_LOC = MISC + 16; C_GATE = MISC + 64

def fbits(x): return "0x%08x" % struct.unpack("<I", struct.pack("<f", x))[0]
LOG2E = math.log2(math.e)
OPT = dict(map=2, rot=5, round_pq=0, stamp=0, spin=1 << 16)

def srd(e, d, lo, nbytes):
    e(f"s_mov_b32 s{d}, s{lo}")
    e(f"s_mov_b32 s{d+1}, s{lo+1}")
    e(f"s_mov_b32 s{d+2}, {hex(nbytes)}")
    e(f"s_mov_b32 s{d+3}, 0x00020000")

def stamp_begin(e):
    if OPT["stamp"]:
        e("s_memrealtime s[92:93]")
        e("s_memtime s[94:95]")
        for k in range(6): e(f"s_mov_b32 s{80+2*k}, 0")
def stamp(k):
    return [f"s_memtime s[{80+2*k}:{81+2*k}]"] if OPT["stamp"] else []
def trace(idx):
    if not OPT.get("trace"): return []
    return ["s_memtime s[96:97]", "s_waitcnt lgkmcnt(0)", "s_sub_u32 s96, s96, s94", f"v_writelane_b32 v159, s96, {idx}"]
def stamp_end(e, vt):
    if OPT.get("trace"):
        e(f"v_lshlrev_b32 v{vt}, 2, v0")
        e("s_mul_i32 s100, s2, 3072")
        e(f"s_add_u32 s100, s100, {WS_STAMP + 0x40000}")
        e(f"buffer_store_dword v159, v{vt}, s[24:27], s100 offen")
    if OPT["stamp"]:
        e("s_waitcnt vmcnt(0)")
        e("s_memrealtime s[96:97]")
        e("s_memtime s[98:99]")
        e("s_waitcnt lgkmcnt(0)")
        for r in (98, 80, 82, 84, 86, 88, 90): e(f"s_sub_u32 s{r}, s{r}, s94")
        e(f"v_lshrrev_b32 v{vt+12}, 6, v0")
        e(f"v_lshlrev_b32 v{vt+12}, 6, v{vt+12}")
        e("s_lshl_b32 s100, s2, 10")
        e(f"s_add_u32 s100, s100, {WS_STAMP}")
        for i, r in enumerate((92, 96, 98, 80, 82, 84, 86, 88, 90, 90, 90, 90)):
            e(f"v_mov_b32 v{vt+i}, s{r}")
        for q in range(3):
            e(f"buffer_store_dwordx4 v[{vt+4*q}:{vt+4*q+3}], v{vt+12}, s[24:27], s100 offen offset:{16*q}")

def phi_unit(P, T, O):
    l = []
    if OPT["round_pq"]:
        for q in range(4): l.append(f"v_cvt_pk_bf16_f32 v{P+8+q}, v{P+2*q}, v{P+2*q+1}")
        for q in range(4):
            l.append(f"v_lshlrev_b32 v{P+2*q}, 16, v{P+8+q}")
            l.append(f"v_and_b32 v{P+2*q+1}, 0xffff0000, v{P+8+q}")
    A = T; B = T + 2
    l += [f"v_max3_f32 v{A}, v{P}, v{P+1}, v{P+2}",
          f"v_max3_f32 v{B}, -v{P}, -v{P+1}, -v{P+2}",
          f"v_max3_f32 v{A}, v{A}, v{P+3}, v{P+4}",
          f"v_max3_f32 v{B}, v{B}, -v{P+3}, -v{P+4}",
          f"v_max3_f32 v{A}, v{A}, v{P+5}, v{P+6}",
          f"v_max3_f32 v{B}, v{B}, -v{P+5}, -v{P+6}",
          f"v_max_f32 v{A}, v{A}, v{P+7}",
          f"v_max_f32_e64 v{B}, v{B}, -v{P+7}",
          f"v_permlane32_swap_b32 v{A}, v{B}",
          f"v_max_f32 v{A}, v{A}, v{B}",
          f"v_mul_f32 v{A}, s75, v{A}",
          f"v_mov_b32 v{B}, v{A}",
          f"v_permlane32_swap_b32 v{A}, v{B}"]
    if OPT.get("pk", 1):
        for i in range(0, 8, 2):
            l.append(f"v_pk_fma_f32 {vr(P+8+i,2)}, {vr(P+i,2)}, s[74:75], {vr(B,2)} op_sel_hi:[1,0,0] neg_lo:[1,0,0] neg_hi:[1,0,0]")
            l.append(f"v_pk_fma_f32 {vr(P+i,2)}, {vr(P+i,2)}, s[74:75], {vr(A,2)} op_sel_hi:[1,0,0]")
    else:
        for i in range(8):
            l.append(f"v_fma_f32 v{P+8+i}, -v{P+i}, s74, v{B}")
            l.append(f"v_fma_f32 v{P+i}, v{P+i}, s74, v{A}")
    for i in range(16): l.append(f"v_exp_f32 v{P+i}, v{P+i}")
    for sg in range(2):
        l.append(f"v_pk_add_f32 {vr(O+4*sg,2)}, {vr(P+8*sg,2)}, {vr(P+8*sg+2,2)}")
        l.append(f"v_pk_add_f32 {vr(O+4*sg+2,2)}, {vr(P+8*sg+4,2)}, {vr(P+8*sg+6,2)}")
    for sg in range(2):
        l.append(f"v_pk_add_f32 {vr(O+4*sg,2)}, {vr(O+4*sg,2)}, {vr(O+4*sg+2,2)}")
    for sg in range(2):
        l.append(f"v_add_f32 v{T+2*sg}, v{O+4*sg}, v{O+4*sg+1}")
    l += [f"v_permlane32_swap_b32 v{A}, v{B}",
          f"v_add_f32 v{A}, v{A}, v{B}",
          f"v_rcp_f32 v{A}, v{A}",
          f"v_mov_b32 v{B}, v{A}",
          f"v_permlane32_swap_b32 v{A}, v{B}"]
    for i in range(0, 8, 2):
        l.append(f"v_pk_mul_f32 {vr(P+i,2)}, {vr(P+i,2)}, {vr(A,2)} op_sel_hi:[1,0]")
        l.append(f"v_pk_mul_f32 {vr(P+8+i,2)}, {vr(P+8+i,2)}, {vr(B,2)} op_sel_hi:[1,0]")
    for q in range(8): l.append(f"v_cvt_pk_bf16_f32 v{O+q}, v{P+2*q}, v{P+2*q+1}")
    return l

import re as _re
def unpk(lines):
    out = []
    for l in lines:
        m = _re.match(r"\s*v_pk_(add|mul)_f32 v\[(\d+):\d+\], v\[(\d+):\d+\], ([vs])\[(\d+):\d+\](.*)", l)
        if not m: out.append(l); continue
        op, d, a, k, b, mods = m.group(1), int(m.group(2)), int(m.group(3)), m.group(4), int(m.group(5)), m.group(6)
        bc = "op_sel_hi:[1,0]" in mods
        assert mods.strip() in ("", "op_sel_hi:[1,0]"), l
        for i in range(2):
            out.append(f"    v_{op}_f32 v{d+i}, {k}{b if bc else b+i}, v{a+i}")
    return out

def spread(mm, r):
    out = []; n = len(mm); k = 0
    for i, x in enumerate(mm):
        out.append(x)
        hi = (len(r) * (i + 1) + n - 1) // n
        out += r[k:hi]; k = max(k, hi)
    return out + r[k:]

_uid = [0]
def uid(p):
    _uid[0] += 1
    return f"{p}_{_uid[0]}"

def flag_store(e, soff, vt):
    e(f"v_mov_b32 v{vt}, s78")
    e(f"v_mov_b32 v{vt+1}, s79")
    e(f"v_mov_b32 v{vt+2}, 0")
    e("s_mov_b64 exec, 1")
    e(f"buffer_store_dwordx2 {vr(vt,2)}, v{vt+2}, s[24:27], {soff} offen sc1")
    e("s_mov_b64 exec, -1")

def flag_poll(e, vaddr, vt, sleep=4):
    L = uid("FP"); D = uid("FD")
    e("s_mov_b32 s77, 0")
    e.label(L)
    e(f"buffer_load_dwordx2 {vr(vt,2)}, v{vaddr}, s[24:27], 0 offen sc1")
    e("s_add_u32 s77, s77, 1")
    e("s_waitcnt vmcnt(0)")
    e(f"v_cmp_ne_u64 vcc, s[78:79], {vr(vt,2)}")
    e(f"s_cbranch_vccz {D}")
    e(f"s_cmp_gt_u32 s77, {OPT['spin']}")
    e(f"s_cbranch_scc1 {D}")
    if sleep: e(f"s_sleep {sleep}")
    e(f"s_branch {L}")
    e.label(D)

def lds_add(e, addr, vt):
    e(f"v_mov_b32 v{vt}, {addr}")
    e(f"v_mov_b32 v{vt+1}, 1")
    e("s_mov_b64 exec, 1")
    e(f"ds_add_u32 v{vt}, v{vt+1}")
    e("s_mov_b64 exec, -1")

def lds_wait(e, addr, target, vt, sleep=4):
    L = uid("LW"); D = uid("LD")
    e(f"v_mov_b32 v{vt}, {addr}")
    e("s_mov_b32 s77, 0")
    e.label(L)
    e(f"ds_read_b32 v{vt+1}, v{vt}")
    e("s_add_u32 s77, s77, 1")
    e("s_waitcnt lgkmcnt(0)")
    e(f"v_cmp_gt_u32 vcc, {target}, v{vt+1}")
    e(f"s_cbranch_vccz {D}")
    e(f"s_cmp_gt_u32 s77, {OPT['spin']*8}")
    e(f"s_cbranch_scc1 {D}")
    e(f"s_sleep {sleep}")
    e(f"s_branch {L}")
    e.label(D)

def gen():
    e = Emitter()
    ORD = {0: "x0 x1 x2 x3 w0 w1 w2 w3 w4 w5 w6 w7 w8",
           1: "x0 x1 x2 x3 w0 w8",
           2: "x0 w0 w8 x1 x2 x3",
           3: "x0 w0 x1 x2 x3 w8",
           4: "x0 x1 w0 x2 x3 w8",
           5: "x0 x1 x2 w0 x3 w8",
           6: "x0 w0 x1 w8 x2 x3"}[OPT.get("ord", 0)].split()
    ORD += [f"w{g}" for g in range(16) if f"w{g}" not in ORD]
    POS = {n: i for i, n in enumerate(ORD)}
    XL = POS["x3"]
    ring = [n for n in ORD if n[0] == "w" and n != "w8"]
    SLOT = {int(n[1:]): ((r + 1) % 4) * 16384 for r, n in enumerate(ring)}
    SLOT[8] = S5
    USE = {}; last = -1
    for c in range(8):
        last = max(POS[f"w{c}"], POS[f"x{c//2}"], last + 1); USE[c] = last
    last = XL + 1
    for c in range(8, 16):
        last = max(POS[f"w{c}"], last + 1); USE[c] = last
    assert USE[15] == 19
    e("s_cmp_ge_u32 s2, 256")
    e("s_cbranch_scc1 L_done")
    e("s_load_dwordx16 s[48:63], s[0:1], 0")
    e("s_load_dwordx8 s[64:71], s[0:1], 64")
    e("s_load_dwordx2 s[72:73], s[0:1], 96")
    stamp_begin(e)
    if OPT.get("trace"): e("v_mov_b32 v159, 0")
    e("v_and_b32 v1, 63, v0")
    e("v_lshrrev_b32 v11, 6, v0")
    e("v_readfirstlane_b32 s30, v11")
    e("s_and_b32 s36, s2, 7")
    e("s_lshr_b32 s37, s2, 3")
    lc = {0: 1, 1: 2, 2: 3}[OPT["map"]]
    e(f"s_and_b32 s29, s36, {(8>>lc)-1}")
    e(f"s_lshl_b32 s29, s29, {lc}")
    e(f"s_lshr_b32 s38, s37, {5-lc}")
    e("s_or_b32 s29, s29, s38")
    e(f"s_lshr_b32 s28, s36, {3-lc}")
    e(f"s_lshl_b32 s28, s28, {5-lc}")
    e(f"s_and_b32 s38, s37, {(32>>lc)-1}")
    e("s_add_u32 s28, s28, s38")
    if OPT["rot"] == 1:
        e("s_add_u32 s31, s28, s29"); e("s_lshl_b32 s31, s31, 1"); e("s_and_b32 s31, s31, 6")
    elif OPT["rot"] == 3:
        e("s_lshl_b32 s31, s29, 1"); e("s_add_u32 s31, s31, s28"); e("s_and_b32 s31, s31, 7")
    elif OPT["rot"] == 4:
        e("s_add_u32 s31, s28, s29"); e("s_and_b32 s31, s31, 7")
    elif OPT["rot"] == 5:
        e("s_lshl_b32 s31, s28, 1"); e("s_add_u32 s31, s31, s29"); e("s_and_b32 s31, s31, 7")
    elif OPT["rot"] == 6:
        e("s_lshl_b32 s31, s28, 1"); e("s_add_u32 s31, s31, s29"); e("s_add_u32 s31, s31, s36"); e("s_and_b32 s31, s31, 7")
    elif OPT["rot"] == 2:
        e("s_add_u32 s31, s28, s29"); e("s_lshl_b32 s31, s31, 2"); e("s_and_b32 s31, s31, 4")
    else:
        e("s_mov_b32 s31, 0")
    e("v_lshlrev_b32 v10, 4, v1")
    if OPT.get("lf", 0):
        e("s_sub_u32 s30, s30, 4")
        e("s_cbranch_scc0 L_compute")
        e("s_add_u32 s30, s30, 12")
    else:
        e("s_cmp_lt_u32 s30, 8")
        e("s_cbranch_scc1 L_compute")
    e("s_setprio 3")
    e("s_sub_u32 s30, s30, 8")
    e("v_lshrrev_b32 v11, 3, v1")
    e("v_and_b32 v12, 7, v1")
    e("v_lshrrev_b32 v13, 4, v1")
    e("v_xor_b32 v14, v12, v13")
    e("v_lshlrev_b32 v14, 4, v14")
    e("v_lshl_add_u32 v2, v11, 10, v14")
    e("v_xor_b32 v3, 64, v2")
    e("v_add_u32 v3, 7168, v3")
    e("s_lshl_b32 s32, s28, 16")
    e("s_lshl_b32 s38, s30, 14")
    e("s_add_u32 s32, s32, s38")
    e("s_lshl_b32 s41, s30, 11")
    e("s_lshl_b32 s40, s30, 12")
    e("s_mov_b32 s36, s31")
    e("v_and_b32 v13, 1, v13")
    e("v_lshlrev_b32 v13, 1, v13")
    e("v_xor_b32 v14, v12, v13")
    e("v_lshlrev_b32 v14, 4, v14")
    e("v_mul_u32_u24 v6, 3072, v11")
    e("v_add_u32 v6, v6, v14")
    e(f"v_add_u32 v7, {8*3072-1024}, v6")
    e("v_xor_b32 v8, 64, v6")
    e(f"v_add_u32 v9, {8*3072-1024}, v8")
    e("s_lshl_b32 s38, s29, 7")
    e("s_mul_i32 s33, s30, 49152")
    e("s_add_u32 s33, s33, s38")
    e("v_xor_b32 v14, 64, v14")
    e("v_lshl_add_u32 v4, v11, 10, v14")
    e("v_add_u32 v5, 7168, v4")
    e("s_lshl_b32 s34, s30, 14")
    e("s_add_u32 s34, s34, s38")
    e("s_waitcnt lgkmcnt(0)")
    e.extend(trace(60))
    srd(e, 4, 48, 2048*512*2)
    srd(e, 8, 50, 512*1536*2)
    srd(e, 12, 58, 512*512*2)
    e("s_cmp_gt_u32 s29, 2")
    e("s_cbranch_scc1 L_noext")
    e("s_cmp_eq_u32 s29, 0")
    e("s_cselect_b32 s16, s60, s62")
    e("s_cselect_b32 s17, s61, s63")
    e("s_cmp_eq_u32 s29, 2")
    e("s_cselect_b32 s16, s66, s16")
    e("s_cselect_b32 s17, s67, s17")
    e("s_mov_b32 s18, 16384")
    e("s_cselect_b32 s18, 1024, s18")
    e("s_mov_b32 s19, 0x00020000")
    e("s_mov_b32 m0, s40")
    for i in range(4):
        e(f"buffer_load_dwordx4 v10, s[16:19], s40 offen offset:{i*1024} lds")
    e.label("L_noext")
    def item(i):
        l = []; nm = ORD[i]; idx = int(nm[1:])
        if nm[0] == "x":
            for q in range(2):
                l.append("s_lshl_b32 s38, s31, 7")
                l.append("s_add_u32 s38, s38, s32")
                l.append(f"s_add_u32 m0, s41, {XT + (2*idx+q)*8192}")
                l.append("s_add_u32 s31, s31, 1")
                for k in range(2):
                    l.append(f"buffer_load_dwordx4 v{2+k}, s[4:7], s38 offen offset:{k*1024} lds")
                l.append("s_and_b32 s31, s31, 7")
        else:
            g = idx
            l.append(f"s_add_u32 s35, s36, {g % 8}")
            l.append("s_and_b32 s35, s35, 7")
            l.append("s_mul_i32 s39, s35, 196608")
            l.append("s_add_u32 s39, s39, s33")
            l.append(f"s_add_u32 m0, s41, {SLOT[g]}")
            if g < 8: l.append("s_add_u32 s39, s39, 1024")
            else: l.append("s_lshl_b32 s38, s35, 16")
            for k in range(2):
                l.append(f"buffer_load_dwordx4 v{6+k}, s[8:11], s39 offen offset:{k*1024} lds")
            l.append(f"s_add_u32 m0, s41, {SLOT[g]+8192}")
            if g < 8:
                l.append("s_add_u32 s39, s39, 1024")
                for k in range(2):
                    l.append(f"buffer_load_dwordx4 v{8+k}, s[8:11], s39 offen offset:{k*1024} lds")
            else:
                l.append("s_add_u32 s38, s38, s34")
                for k in range(2):
                    l.append(f"buffer_load_dwordx4 v{4+k}, s[12:15], s38 offen offset:{k*1024} lds")
        return l
    def earliest(i):
        nm = ORD[i]; idx = int(nm[1:])
        if nm[0] == "x" or idx == 8: return -1
        r = ring.index(nm)
        if r < 3: return -1
        if r == 3: return XL + 1
        return USE[int(ring[r - 4][1:])] + 1
    DEP = OPT.get("dep", 3)
    for i in range(DEP): e.extend(item(i))
    e.extend(trace(61))
    e(f"s_load_dwordx2 s[78:79], s[72:73], {hex(WS_EPOCH)}")
    srd(e, 20, 52, 32*16*16*2)
    srd(e, 24, 72, WS_SIZE)
    e("s_and_b32 s46, s30, 1")
    e("s_lshr_b32 s47, s30, 1")
    e("v_bfe_u32 v13, v1, 4, 1")
    e("v_lshlrev_b32 v15, 2, v13")
    e("v_xor_b32 v15, v12, v15")
    e("v_lshlrev_b32 v15, 4, v15")
    e("v_lshl_add_u32 v144, v11, 10, v15")
    for k in range(1, 4): e(f"v_add_u32 v{144+k}, {k*7168}, v144")
    e("v_lshrrev_b32 v16, 5, v1")
    e("v_bfe_u32 v15, v1, 2, 2")
    e("v_lshl_add_u32 v148, v16, 2, v15")
    e("v_lshlrev_b32 v148, 7, v148")
    e("v_lshrrev_b32 v15, 1, v15")
    e("v_xor_b32 v15, s47, v15")
    e("v_lshl_add_u32 v148, v15, 6, v148")
    e("v_lshl_add_u32 v148, v13, 5, v148")
    e("v_and_b32 v15, 3, v1")
    e("v_lshl_add_u32 v148, v15, 3, v148")
    e("s_lshl_b32 s38, s47, 15")
    e("v_add_u32 v148, s38, v148")
    e("v_xor_b32 v149, 64, v148")
    e(f"s_add_u32 s38, s40, {PHQ}")
    e("v_add_u32 v150, s38, v10")
    e("v_xor_b32 v151, 0x2000, v150")
    e("v_and_b32 v155, 31, v1")
    e("v_lshlrev_b32 v152, 10, v155")
    e("v_lshl_add_u32 v152, v16, 4, v152")
    e("v_lshlrev_b32 v155, 2, v155")
    e("v_and_b32 v153, 15, v1")
    e("v_lshlrev_b32 v153, 3, v153")
    e("v_lshl_add_u32 v153, v16, 7, v153")
    e("s_lshl_b32 s38, s30, 9")
    e(f"s_add_u32 s38, s38, {WPH}")
    e("v_add_u32 v153, s38, v153")
    e(f"s_add_u32 s38, s41, {PHQ}")
    e("v_add_u32 v154, s38, v10")
    e("v_lshlrev_b32 v156, 3, v1")
    e("s_getreg_b32 s37, hwreg(HW_REG_XCC_ID, 0, 4)")
    e(f"s_mov_b32 s74, {fbits(LOG2E)}")
    e(f"s_mov_b32 s75, {fbits(-LOG2E)}")
    e("v_and_b32 v15, 31, v1")
    e("v_lshlrev_b32 v15, 3, v15")
    e("s_lshl_b32 s38, s30, 8")
    e(f"s_add_u32 s38, s38, {F1}")
    e("v_add_u32 v15, s38, v15")
    e("s_lshl_b32 s42, s30, 10")
    assert WS_KVB == 0
    def kvdma(n):
        l = []
        for _ in range(n):
            l.append("s_mov_b32 m0, s42")
            l.append("s_nop 0")
            l.append("buffer_load_dwordx4 v10, s[24:27], s42 offen sc1 lds")
            l.append("s_add_u32 s42, s42, 4096")
        return l
    out = []
    e("s_and_b32 s38, s30, 1")
    e("s_lshl_b32 s38, s38, 10")
    e(f"s_add_u32 m0, s38, {WPH}")
    e("s_lshl_b32 s39, s29, 11")
    e("s_add_u32 s38, s38, s39")
    e("buffer_load_dwordx4 v10, s[20:23], s38 offen lds")
    for i in range(DEP): out += [i] * 4
    out.append("w")
    nxt = DEP
    def waitfor(tag):
        idx = max(k for k, t in enumerate(out) if t == tag)
        n = len(out) - 1 - idx
        del out[:idx + 1]
        return f"s_waitcnt vmcnt({n})"
    PA = OPT.get("pa", 14)
    poll = "buffer_load_dwordx2 v[16:17], v15, s[24:27], 0 offen sc1"
    e.extend(trace(62))
    for i in range(18):
        e(waitfor(i))
        e.extend(trace(2 * i))
        e("s_barrier")
        e.extend(trace(2 * i + 1))
        if i == 0:
            e.extend(stamp(0))
        if i == 8:
            e("s_waitcnt lgkmcnt(0)")
            e("s_add_u32 s78, s78, 1")
        while nxt <= min(19, i + DEP) and earliest(nxt) <= i:
            e.extend(item(nxt)); out += [nxt] * 4; nxt += 1
        assert nxt > i + 1
        if i == PA:
            e(poll); out.append("p")
    if "p" in out: e(waitfor("p"))
    e("v_cmp_ne_u64 vcc, s[78:79], v[16:17]")
    e("s_cbranch_vccnz L_kvlate")
    save = list(out)
    e.extend(kvdma(4)); out += ["k0"] * 4
    if 18 in out: e(waitfor(18))
    e("s_barrier")
    e.extend(kvdma(4)); out += ["k1"] * 4
    if 19 in out: e(waitfor(19))
    e("s_barrier")
    e.extend(kvdma(4)); out += ["k2"] * 4
    e.label("L_kv20")
    e("s_waitcnt vmcnt(4)")
    e("s_barrier")
    e("s_branch L_kvjoin")
    e.label("L_kvlate")
    out[:] = save
    e(poll); out.append("p")
    if 18 in out: e(waitfor(18))
    e("s_barrier")
    if 19 in out: e(waitfor(19))
    e("s_barrier")
    e("s_waitcnt vmcnt(0)")
    e("v_cmp_ne_u64 vcc, s[78:79], v[16:17]")
    e("s_cbranch_vccz L_kvlate2")
    flag_poll(e, 15, 16, sleep=0)
    e.label("L_kvlate2")
    e.extend(kvdma(12))
    e("s_branch L_kv20")
    e.label("L_kvjoin")
    e.extend(stamp(1))
    e.extend(kvdma(20))
    HQ = 16; HK = 32; HG = 40; HT = 42; HD = 48; HP = 80
    for u in range(2): e(f"ds_read_b128 {vr(HQ+8*u,4)}, v154 offset:{u*1024}")
    for u in range(2): e(f"ds_read_b64_tr_b16 {vr(HK+2*u,2)}, v153 offset:{u*256}")
    e("s_lshl_b32 s38, s28, 4")
    e(f"s_add_u32 s38, s38, {FG}")
    e(f"v_and_b32 v{HT+4}, 8, v156")
    e(f"v_add_u32 v{HT+4}, s38, v{HT+4}")
    e("s_waitcnt vmcnt(0)")
    e.extend(trace(44))
    lds_add(e, C_KVALL, HT)
    e("s_lshl_b32 s45, s29, 2")
    e("s_lshl_b32 s36, s28, 7")
    e("s_add_u32 s36, s36, s45")
    e("s_add_u32 s36, s36, s30")
    e("s_lshl_b32 s36, s36, 10")
    e(f"s_add_u32 s36, s36, {WS_OC}")
    e(f"v_mov_b64 {vr(HD,2)}, -1")
    e(f"v_mov_b64 {vr(HD+2,2)}, -1")
    for i in range(4):
        e(f"s_add_u32 s38, s36, {i*32768}")
        e(f"buffer_store_dwordx4 {vr(HD,4)}, v10, s[24:27], s38 offen sc1")
    flag_poll(e, HT + 4, HT + 2)
    e("s_lshl_b32 s38, s28, 5")
    e("s_add_u32 s38, s38, s45")
    e("s_add_u32 s38, s38, s30")
    e("s_lshl_b32 s38, s38, 4")
    e(f"s_add_u32 s38, s38, {FP}")
    e(f"v_mov_b32 v{HD+4}, s78")
    e(f"v_mov_b32 v{HD+5}, s79")
    e(f"v_mov_b32 v{HD+6}, s37")
    e(f"v_mov_b32 v{HD+7}, 0")
    e("s_mov_b64 exec, 1")
    e(f"buffer_store_dwordx4 {vr(HD+4,4)}, v{HD+7}, s[24:27], s38 offen sc1")
    e("s_mov_b64 exec, -1")
    e("s_lshl_b32 s38, s28, 8")
    e(f"s_add_u32 s38, s38, {WS_GATE}")
    e(f"buffer_load_dword v{HG}, v155, s[24:27], s38 offen sc1")
    e(f"buffer_load_dword v{HG+1}, v155, s[24:27], s38 offen offset:128 sc1")
    e("s_waitcnt lgkmcnt(0)")
    for u in range(2): e(mfma(HD + 16 * u, HK, HQ + 8 * u, None))
    e.extend(interleave(*[phi_unit(HD + 16 * u, HP + 4 * u, HQ + 8 * u) for u in range(2)]))
    e(f"v_add_u32 v{HT}, {C_GATE}, v155")
    e("s_waitcnt vmcnt(0)")
    e(f"ds_write_b32 v{HT}, v{HG}")
    e(f"ds_write_b32 v{HT}, v{HG+1} offset:128")
    e("s_waitcnt lgkmcnt(0)")
    lds_add(e, C_GOK, HT)
    e.extend(trace(45))
    e("s_and_b32 s38, s28, 3")
    e("s_cmp_lg_u32 s38, s30")
    e("s_cbranch_scc1 L_nored")
    e("s_lshr_b32 s38, s28, 3")
    e("s_add_u32 s43, s45, s38")
    e("v_lshlrev_b32 v15, 1, v155")
    e("s_lshl_b32 s38, s43, 8")
    e(f"s_add_u32 s38, s38, {F3}")
    e(f"v_add_u32 v{HT}, s38, v15")
    flag_poll(e, HT, HT + 2)
    e.extend(trace(46))
    e("s_lshl_b32 s43, s43, 3")
    e("s_and_b32 s38, s28, 7")
    e("s_add_u32 s43, s43, s38")
    e("s_lshl_b32 s38, s43, 14")
    e(f"s_add_u32 s38, s38, {WS_PART}")
    for p in range(16):
        if p and p % 4 == 0: e("s_add_u32 s38, s38, 4096")
        e(f"buffer_load_dwordx4 {vr(HP+4*p,4)}, v10, s[24:27], s38 offen offset:{(p&3)*1024} sc1")
    e("s_waitcnt vmcnt(0)")
    e.extend(trace(47))
    for st in (32, 16, 8, 4):
        for i in range(0, st, 2): e(f"v_pk_add_f32 {vr(HP+i,2)}, {vr(HP+i,2)}, {vr(HP+st+i,2)}")
    e(f"v_permlane32_swap_b32 v{HP}, v{HP+2}")
    e(f"v_permlane32_swap_b32 v{HP+1}, v{HP+3}")
    e(f"v_pk_add_f32 {vr(HP,2)}, {vr(HP,2)}, {vr(HP+2,2)}")
    e(f"v_cvt_pk_bf16_f32 v{HP}, v{HP}, v{HP+1}")
    e(f"v_lshrrev_b32 v{HT}, 5, v1")
    e(f"v_lshl_add_u32 v{HT}, v{HT}, 2, v15")
    e("s_lshl_b32 s38, s43, 8")
    e(f"s_add_u32 s38, s38, {WS_KVF}")
    e(f"buffer_store_dword v{HP}, v{HT}, s[24:27], s38 offen sc1")
    e("s_lshl_b32 s38, s43, 3")
    e(f"s_add_u32 s38, s38, {F3P}")
    e("s_waitcnt vmcnt(0)")
    e.extend(trace(48))
    flag_store(e, "s38", HT)
    e.label("L_nored")
    e.extend(stamp(2))
    e("s_lshl_b32 s38, s28, 9")
    e(f"s_add_u32 s38, s38, {FP}")
    e("v_lshlrev_b32 v2, 2, v155")
    e("v_add_u32 v2, s38, v2")
    e("s_mov_b32 s77, 0")
    e("s_mov_b32 s35, 0")
    e.label("L_fpp")
    e(f"buffer_load_dwordx4 {vr(HD,4)}, v2, s[24:27], 0 offen sc1")
    e("s_add_u32 s77, s77, 1")
    e("s_waitcnt vmcnt(0)")
    e(f"v_cmp_ne_u64 vcc, s[78:79], {vr(HD,2)}")
    e("s_cbranch_vccz L_fpd")
    e("s_sleep 8")
    e(f"s_cmp_lt_u32 s77, {OPT['spin']}")
    e("s_cbranch_scc1 L_fpp")
    e("s_branch L_fpx")
    e.label("L_fpd")
    e(f"v_cmp_ne_u32 vcc, s37, v{HD+2}")
    e("s_cbranch_vccnz L_fpx")
    if OPT.get("loc", 1):
        lds_add(e, C_LOC, HT)
        e("s_mov_b32 s35, 1")
    e.label("L_fpx")
    e.extend(trace(57))
    e("s_add_u32 s45, s45, s30")
    e("s_lshl_b32 s38, s45, 6")
    e(f"s_add_u32 s38, s38, {F3P}")
    e(f"v_and_b32 v{HT}, 56, v156")
    e(f"v_add_u32 v{HT}, s38, v{HT}")
    flag_poll(e, HT, HT + 2)
    e.extend(trace(49))
    e("s_lshl_b32 s38, s45, 11")
    e(f"s_add_u32 s38, s38, {WS_KVF}")
    for q in range(4):
        e(f"buffer_load_dwordx2 {vr(HK+2*q,2)}, v156, s[24:27], s38 offen offset:{q*512} sc1")
    e("s_waitcnt vmcnt(0)")
    e.extend(trace(50))
    for u in range(2): e(mfma(HD + 16 * u, HK, HQ + 8 * u, None))
    for u in range(2): e(mfma(HD + 16 * u, HK + 4, HQ + 8 * u + 4, HD + 16 * u))
    for u in range(2):
        D = HD + 16 * u
        e(f"v_add_f32 v{HT}, {fbits(1e-6)}, v{D+8}")
        e(f"v_rcp_f32 v{HT}, v{HT}")
        e(f"v_mul_f32 v{HT}, v{HT}, v{HG+u}")
        for i in range(0, 8, 2): e(f"v_pk_mul_f32 {vr(D+i,2)}, {vr(D+i,2)}, {vr(HT,2)} op_sel_hi:[1,0]")
        for q in range(4): e(f"v_cvt_pk_bf16_f32 v{D+q}, v{D+2*q}, v{D+2*q+1}")
    e("s_add_u32 s38, s36, 65536")
    e(f"buffer_store_dwordx4 {vr(HD,4)}, v10, s[24:27], s36 offen sc1")
    e(f"buffer_store_dwordx4 {vr(HD+16,4)}, v10, s[24:27], s38 offen sc1")
    e.extend(trace(51))
    e.extend(stamp(3))
    ACC = [16, 32]; WFR = [48, 56, 132]; OF = 64; PT = 128
    srd(e, 4, 54, 512*512*2)
    srd(e, 8, 64, 512*512*2)
    srd(e, 12, 68, 2048*512*2)
    e("s_lshl_b32 s44, s28, 1")
    e("s_add_u32 s44, s44, s46")
    e("s_lshl_b32 s43, s44, 16")
    e("s_lshl_b32 s38, s47, 14")
    e("s_add_u32 s43, s43, s38")
    e(f"s_add_u32 s43, s43, {WS_OC}")
    def wdma(sd):
        e("s_lshl_b32 s38, s30, 17")
        e("s_lshl_b32 s39, s29, 7")
        e("s_add_u32 s38, s38, s39")
        e("s_lshl_b32 s39, s30, 14")
        for g in range(4):
            e("s_mov_b32 m0, s39")
            for k in range(4):
                e(f"buffer_load_dwordx4 v{144+k}, s[{sd}:{sd+3}], s38 offen offset:{k*1024} lds")
            if g < 3:
                e("s_add_u32 s38, s38, 32768")
                e("s_add_u32 s39, s39, 4096")
    def oload(base_add, g0=0, g1=4):
        for g in range(g0, g1):
            e(f"s_add_u32 s38, s43, {base_add + g*4096}")
            for t in range(4 * g, 4 * g + 4):
                e(f"buffer_load_dwordx4 {vr(OF+4*t,4)}, v10, s[24:27], s38 offen offset:{(t&3)*1024} sc1")
    def rd(t):
        return [f"ds_read_b64_tr_b16 {vr(WFR[t%3]+4*nt+2*u,2)}, v{148+nt} offset:{(16*t+8*u)*128}" for nt in range(2) for u in range(2)]
    def step(t, first, fill=[]):
        if t < 14: e.extend(rd(t + 2))
        e(f"s_waitcnt lgkmcnt({4*min(2, 15-t)})")
        for nt in range(2):
            e(mfma(ACC[nt], WFR[t % 3] + 4 * nt, OF + 4 * t, None if (first and t == 0) else ACC[nt]))
            e.extend(fill[nt * 5:nt * 5 + 5])
    def check(g):
        b = OF + 16 * g
        l = [f"v_max3_u32 v{PT}, v{b}, v{b+1}, v{b+2}", f"v_max3_u32 v{PT+1}, v{b+3}, v{b+4}, v{b+5}"]
        for i in (6, 10):
            l += [f"v_max3_u32 v{PT}, v{PT}, v{b+i}, v{b+i+1}", f"v_max3_u32 v{PT+1}, v{PT+1}, v{b+i+2}, v{b+i+3}"]
        l += [f"v_max3_u32 v{PT}, v{PT}, v{b+14}, v{b+15}", f"v_max_u32 v{PT}, v{PT}, v{PT+1}", f"v_cmp_eq_u32 vcc, -1, v{PT}"]
        return l
    def pgemm(tag, first, pace, base):
        e("s_waitcnt vmcnt(4)")
        e.extend(check(0))
        for g in range(4):
            e(f"s_cbranch_vccnz L_retry{tag}{g}")
            e.label(f"L_go{tag}{g}")
            if g == 0 and not first: e.extend(trace(40))
            for t in range(4 * g, 4 * g + 4):
                if t % 4 == 3 and g < 3: step(t, first, [f"s_waitcnt vmcnt({4 if g < 2 else 0})"] + check(g + 1))
                else: step(t, first)
                if t % 4 == 0 and g < 2: oload(base, g + 2, g + 3)
                if pace: e(f"s_sleep {pace}")
    lds_wait(e, C_PROG, 8, PT, sleep=8)
    e.extend(trace(54))
    wdma(4)
    oload(0, 0, 2)
    e("s_waitcnt vmcnt(8)")
    lds_add(e, C_HS, PT)
    lds_wait(e, C_HS, 4, PT)
    e.extend(trace(55))
    e.extend(rd(0) + rd(1))
    e("s_mov_b32 s77, 0")
    e(f"s_setprio {OPT.get('aprio', 2)}")
    pgemm("A", True, OPT.get("pace", 0), 0)
    e("s_setprio 3")
    e.extend(trace(56))
    lds_add(e, C_HS, PT)
    lds_wait(e, C_HS, 8, PT)
    e.extend(trace(58))
    wdma(8)
    e("s_lshl_b32 s36, s44, 15")
    e("s_lshl_b32 s39, s29, 7")
    e("s_add_u32 s36, s36, s39")
    e("s_lshl_b32 s39, s47, 6")
    e("s_add_u32 s36, s36, s39")
    e("s_mov_b32 s77, 0")
    e("s_waitcnt vmcnt(0)")
    e.extend(stamp(4))
    e("s_barrier")
    e.extend(stamp(5))
    oload(32768, 0, 2)
    e.extend(rd(0) + rd(1))
    pgemm("B", False, 0, 32768)
    e.extend(trace(42))
    if OPT.get("trace"): e("v_writelane_b32 v159, s77, 41")
    for q in range(4): e(f"ds_write_b128 v150, {vr(ACC[1]+4*q,4)} offset:{q*1024}")
    e("s_waitcnt lgkmcnt(0)")
    e("s_barrier")
    for q in range(4): e(f"ds_read_b128 {vr(OF+4*q,4)}, v151 offset:{q*1024}")
    A = ACC[0]
    for pr in range(2):
        e(f"s_waitcnt lgkmcnt({2-2*pr})")
        for i in range(8 * pr, 8 * pr + 8, 2): e(f"v_pk_add_f32 {vr(A+i,2)}, {vr(A+i,2)}, {vr(OF+i,2)}")
        for q in range(4): e(f"v_cvt_pk_bf16_f32 v{A+8*pr+q}, v{A+8*pr+2*q}, v{A+8*pr+2*q+1}")
    for pr in range(2):
        e(f"v_permlane32_swap_b32 v{A+8*pr}, v{A+8*pr+2}")
        e(f"v_permlane32_swap_b32 v{A+8*pr+1}, v{A+8*pr+3}")
    for pr in range(2):
        e(f"buffer_store_dwordx4 {vr(A+8*pr,4)}, v152, s[12:15], s36 offen offset:{pr*32}" + ["", " sc1", " nt", " sc0 sc1"][OPT.get("ost", 0)])
    e.extend(trace(43))
    e("s_or_b32 s38, s2, s30")
    e("s_cbranch_scc1 L_noepoch")
    e(f"s_mov_b32 s38, {WS_EPOCH}")
    flag_store(e, "s38", PT)
    e.label("L_noepoch")
    stamp_end(e, 64)
    e.label("L_done")
    e("s_endpgm")
    for tag, base in (("A", 0), ("B", 32768)):
        for g in range(4):
            e.label(f"L_retry{tag}{g}")
            if tag == "A": e("s_sleep 8")
            oload(base, g, min(4, g + 2))
            e("s_add_u32 s77, s77, 1")
            e(f"s_waitcnt vmcnt({4 if g < 3 else 0})")
            e.extend(check(g))
            e(f"s_cbranch_vccz L_go{tag}{g}")
            e(f"s_cmp_lt_u32 s77, {OPT['spin']}")
            e(f"s_cbranch_scc1 L_retry{tag}{g}")
            e(f"s_branch L_go{tag}{g}")

    e.label("L_compute")
    ACC = 96; EACC = 128; WF = 144; I0 = 148; ONE = 156
    e("s_and_b32 s44, s30, 3")
    e("s_lshr_b32 s40, s30, 2")
    if OPT.get("pf", 0):
        e("s_cmp_lt_u32 s44, 3")
        e("s_movk_i32 s38, 1024")
        e("s_cselect_b32 s38, 3072, s38")
        e("v_mul_lo_u32 v30, v1, s38")
        e("s_add_u32 s39, s31, s40")
        e("s_and_b32 s39, s39, 7")
        e("s_mul_i32 s38, s38, s39")
        e("s_lshl_b32 s38, s38, 6")
        e("s_add_u32 s39, s44, 1")
        e("s_cmp_lt_u32 s44, 2")
        e("s_cselect_b32 s39, s39, 0")
        e("s_lshl_b32 s39, s39, 10")
        e("s_add_u32 s38, s38, s39")
        e("s_lshl_b32 s39, s29, 7")
        e("s_add_u32 s38, s38, s39")
        e("v_add_u32 v30, s38, v30")
        e("s_waitcnt lgkmcnt(0)")
        e("s_cmp_lt_u32 s44, 3")
        e("s_cselect_b32 s16, s50, s58")
        e("s_cselect_b32 s17, s51, s59")
        mask = {1: 0x0f, 2: 0xff, 3: 0x33, 4: 0x03}[OPT["pf"]]
        e(f"s_lshr_b32 s38, {mask}, s30")
        e("s_and_b32 s38, s38, 1")
        e("s_cbranch_scc0 L_nopf")
        e("global_load_dword v31, v30, s[16:17]")
        e.label("L_nopf")
    e("v_and_b32 v11, 31, v1")
    e("v_lshrrev_b32 v22, 5, v1")
    e("v_bfe_u32 v23, v1, 1, 3")
    e("v_xor_b32 v23, v23, v22")
    e("v_lshlrev_b32 v23, 4, v23")
    e("v_lshl_add_u32 v12, v11, 7, v23")
    e(f"v_add_u32 v12, {XT}, v12")
    for t in range(1, 4): e(f"v_xor_b32 v{12+t}, {32*t}, v12")
    su_w = ["v_lshrrev_b32 v22, 5, v1", "v_bfe_u32 v23, v1, 2, 2", "v_lshl_add_u32 v20, v22, 3, v23", "v_lshlrev_b32 v20, 7, v20",
            "v_bfe_u32 v23, v1, 3, 2", "v_xor_b32 v23, s44, v23", "v_lshl_add_u32 v20, v23, 5, v20", "v_bfe_u32 v24, v1, 4, 1",
            "v_lshl_add_u32 v20, v24, 13, v20", "v_and_b32 v23, 3, v1", "v_lshl_add_u32 v20, v23, 3, v20"]
    su_s = ["s_lshl_b32 s45, s29, 2", "s_add_u32 s45, s45, s44", "s_lshl_b32 s47, s28, 1", "s_xor_b32 s46, s40, 1",
            "s_add_u32 s47, s47, s46", "s_lshl_b32 s43, s47, 6", "s_add_u32 s43, s43, s45", "s_lshl_b32 s43, s43, 10",
            f"s_add_u32 s43, s43, {WS_OC+32*1024}",
            f"s_mov_b32 s74, {fbits(LOG2E)}", f"s_mov_b32 s75, {fbits(-LOG2E)}", f"s_mov_b32 s76, {fbits(0.25*LOG2E)}",
            "s_lshl_b32 s38, s44, 10", f"s_add_u32 s38, s38, {HND}", "v_add_u32 v28, s38, v10"]
    su_ws = ["s_waitcnt lgkmcnt(0)", f"s_load_dwordx2 s[78:79], s[72:73], {hex(WS_EPOCH)}",
             "s_mov_b32 s24, s72", "s_mov_b32 s25, s73", f"s_mov_b32 s26, {hex(WS_SIZE)}", "s_mov_b32 s27, 0x00020000"]
    su_ep = ["s_waitcnt lgkmcnt(0)", "s_add_u32 s78, s78, 1"]
    def su_id(n, I0):
        l = ["v_and_b32 v11, 31, v1", "v_lshrrev_b32 v22, 5, v1", "v_lshlrev_b32 v22, 2, v22", "v_sub_u32 v11, v11, v22",
             "v_mov_b32 v22, 0x3f80", "v_mov_b32 v23, 0x3f800000"]
        for sgn in range(n):
            for q in range(4):
                f0 = 16 * sgn + (2 * q if q < 2 else 8 + 2 * (q - 2))
                l += [f"v_cmp_eq_u32 vcc, {f0}, v11", f"v_cmp_eq_u32 s[38:39], {f0+1}, v11",
                      f"v_cndmask_b32 v{I0+4*sgn+q}, 0, v22, vcc", f"v_cndmask_b32 v{I0+4*sgn+q}, v{I0+4*sgn+q}, v23, s[38:39]"]
        return l
    Q = 4; NM = 8; O = 24; S = [40, 56]; PK = 72; KF = [80, 84]; VF = [144, 152]; AK = 2; AV = 3; T = 106
    U = 4; NIT = 16
    SEG = OPT.get("seg", (2, 8, 15, 16))
    ATT_SETUP = [f"v_mov_b32 v{AK}, v10", f"v_lshrrev_b32 v{T}, 5, v1", f"v_and_b32 v{AV}, 15, v1", f"v_lshlrev_b32 v{AV}, 4, v{AV}",
                 f"v_lshl_add_u32 v{AV}, v{T}, 8, v{AV}", f"v_add_u32 v{AV}, 1024, v{AV}", f"v_and_b32 v{T}, 27, v1",
                 f"v_mov_b32 v{T+1}, 0x3f803f80", f"v_cmp_eq_u32 vcc, 16, v{T}", "s_mov_b32 s20, 0xffff", "s_mov_b32 s21, 0xffff",
                 f"v_cndmask_b32 v{VF[0]}, 0, v{T+1}, vcc"] + [f"v_mov_b32 v{VF[0]+1}, v{VF[0]}"] + [f"v_mov_b64 {vr(VF[0]+i,2)}, {vr(VF[0],2)}" for i in range(2, 16, 2)] + \
                [f"s_mov_b32 s22, {SEG[0]}", "s_mov_b32 s23, 0"]
    def fr(buf, t):
        if buf == 0:
            b = 32 + 12 * t; return (b, b + 4, b + 8)
        return [(80, 84, 88), (128, 132, 136), (92, 140, 16), (4, 160, 164)][t]
    def reads(buf, g):
        l = []; p = g % 8; so = SLOT[g] & 0xffff; wa = 21 if g == 8 else 20
        for t in range(4):
            xa, xb, w = fr(buf, t)
            l.append(f"ds_read_b128 {vr(xa,4)}, v{12+t} offset:{p*8192}")
            for u in range(2):
                l.append(f"ds_read_b64_tr_b16 {vr(w+2*u,2)}, v{wa} offset:{so+(16*t+4*u)*128}")
            l.append(f"ds_read_b128 {vr(xb,4)}, v{12+t} offset:{p*8192+4096}")
        return l
    def mfmas(buf, first):
        l = []
        for t in range(4):
            xa, xb, w = fr(buf, t); z = first and t == 0
            l.append(mfma(ACC, w, xa, None if z else ACC))
            l.append(mfma(ACC + 16, w, xb, None if z else ACC + 16))
        return l
    def gpass(g0, first, last, extra={}):
        pend = None; NS = OPT.get("gspread", 5)
        for i in range(first, last + 1):
            e("s_barrier")
            mm = mfmas(pend & 1, pend == 0) if pend is not None else []
            todo = None
            for c in range(8):
                if USE[g0 + c] == i: todo = c
            if todo is not None:
                r = reads(todo & 1, g0 + todo)
                e.extend(spread(mm[:NS], r) + mm[NS:] if mm else r)
                e.extend(extra.get(i, []))
                e("s_waitcnt lgkmcnt(0)")
            else:
                e.extend(mm)
                e.extend(extra.get(i, []))
            pend = todo
        if pend is not None: e.extend(mfmas(pend & 1, False))
    PU = [32, 48]; PH = [64, 72]; TM = [80, 84]; VFR = [88, 92]
    e("s_cmp_lg_u32 s40, 0")
    e("s_cbranch_scc1 L_qwave")
    e(f"v_mov_b32 v26, {MISC}")
    for i in range(4): e(f"v_mov_b32 v{32+i}, 0")
    e("ds_write_b128 v26, v[32:35]")
    e("ds_write_b128 v26, v[32:35] offset:16")
    e.extend(su_w)
    e.extend(su_ws)
    wph = ["v_and_b32 v23, 15, v1", "v_lshlrev_b32 v23, 3, v23", "v_lshrrev_b32 v22, 5, v1", "v_lshl_add_u32 v25, v22, 7, v23",
           "s_lshl_b32 s38, s44, 9", f"s_add_u32 s38, s38, {WPH}", "v_add_u32 v25, s38, v25"]
    wpr = [f"ds_read_b64_tr_b16 {vr(WF+2*u,2)}, v25 offset:{u*256}" for u in range(2)]
    one = ["v_bfe_u32 v24, v1, 4, 1", f"v_mul_u32_u24 v{ONE}, 0x3f80, v24", f"v_lshl_or_b32 v{ONE}, v{ONE}, 16, v{ONE}"]
    xs = [i for i in range(8) if i not in USE.values() or i == USE[8] and i not in [USE[c] for c in range(8)]]
    idl = su_id(2, I0)
    KEND = USE[7] + 1
    kx = {xs[0]: su_s + wph, xs[1]: idl[:22], xs[2]: idl[22:] + one, xs[3]: su_ep + stamp(0), 9: wpr}
    if "pf8" in OPT:
        kx[OPT["pf8"]] = ["s_cmp_lt_u32 s44, 2", "s_cbranch_scc1 L_nopf8", "global_load_dword v31, v30, s[16:17]", "L_nopf8:"] + kx.get(OPT["pf8"], [])
    gpass(0, 0, KEND, kx)
    e.extend(stamp(1))
    k = []
    for u in range(2):
        for q in range(4): k.append(f"v_cvt_pk_bf16_f32 v{PH[u]+q}, v{ACC+16*u+2*q}, v{ACC+16*u+2*q+1}")
    for u in range(2): k.append(mfma(PU[u], WF, PH[u], None))
    for u in range(2):
        a = ACC + 16 * u
        for q in range(4): k.append(f"v_cvt_pk_bf16_f32 v{VFR[u]+q}, v{a+8+2*q}, v{a+8+2*q+1}")
    for u in range(2): k.append(mfma(ACC + 16 * u, VFR[u], I0, None))
    k += interleave(*[phi_unit(PU[u], TM[u], PH[u]) for u in range(2)])
    for u in range(2): k.append(mfma(PU[u], PH[u], I0, None))
    for u in range(2): k.append(mfma(PU[u], PH[u] + 4, I0 + 4, PU[u]))
    for u in range(2):
        a = ACC + 16 * u
        for q in range(8): k.append(f"v_cvt_pk_bf16_f32 v{a+q}, v{a+2*q}, v{a+2*q+1}")
        for q in range(8): k.append(f"v_or_b32 v{a+q}, v{a+q}, v{ONE}")
    for u in range(2):
        for q in range(8): k.append(f"v_cvt_pk_bf16_f32 v{PH[u]+q}, v{PU[u]+2*q}, v{PU[u]+2*q+1}")
    D3 = EACC
    for u in range(2):
        k.append(mfma(D3, PH[u], ACC + 16 * u, None if u == 0 else D3))
        k.append(mfma(D3, PH[u] + 4, ACC + 16 * u + 4, D3))
    PST = ["v_and_b32 v112, 31, v1", "v_lshlrev_b32 v112, 4, v112", "v_lshrrev_b32 v113, 5, v1", "v_lshl_add_u32 v112, v113, 14, v112",
          "s_lshl_b32 s38, s45, 17", "s_lshl_b32 s39, s28, 9", "s_add_u32 s38, s38, s39", f"s_add_u32 s38, s38, {WS_PART}"]
    for q in range(4):
        PST.append(f"buffer_store_dwordx4 {vr(D3+4*q,4)}, v112, s[24:27], s38 offen sc1")
        if q < 3: PST.append("s_add_u32 s38, s38, 32768")
    DEFER = OPT.get("defer", 1)
    if not DEFER: k += PST
    if not OPT.get("pk", 1): k = unpk(k)
    k = [x.strip() for x in fix_hazards(k, pre=mfmas(1, False))]
    def cost(x):
        if "mfma" in x: return 48
        if "v_exp" in x or "v_rcp" in x: return 8
        if "s_nop" in x: return 4 * (int(x.split()[1]) + 1)
        return 4
    NB = 20 - KEND
    acc = 260; nb = 0; LIM = OPT.get("klim", 140)
    for x in k:
        if nb < NB and acc + cost(x) > (LIM if nb < NB - 1 else OPT.get("klast", 300)):
            e("s_barrier"); nb += 1; acc = 0
            if nb == NB:
                e.extend(stamp(2)); e("s_setprio 2")
        e(x); acc += cost(x)
    while nb < NB:
        e("s_barrier"); nb += 1
    e("ds_read_b128 v[4:7], v28")
    e.extend(ATT_SETUP)
    e("s_branch L_attn")
    e.label("L_qwave")
    e.extend(su_w)
    e.extend(su_s)
    e.extend(ATT_SETUP)
    e("s_lshl_b32 s38, s44, 11")
    e(f"s_add_u32 s38, s38, {PHQ}")
    e("v_add_u32 v29, s38, v10")
    e("s_mov_b32 s41, 0")
    e.extend([x for x in su_ws if "s_load" not in x])
    e("s_cmp_eq_u32 s30, 6")
    e("s_cbranch_scc1 L_touch")
    e("s_cmp_eq_u32 s30, 7")
    e("s_cbranch_scc1 L_touch7")
    e("s_cmp_gt_u32 s29, 2")
    e("s_cbranch_scc1 L_qidle")
    e("s_lshl_b32 s38, s44, 12")
    for t in range(4): e(f"v_add_u32 v{16+t}, s38, v{12+t}")
    e("v_and_b32 v23, 15, v1")
    e("v_lshlrev_b32 v23, 3, v23")
    e("v_lshl_add_u32 v26, v22, 8, v23")
    e("v_lshlrev_b32 v27, 4, v22")
    e("s_lshl_b32 s42, s28, 1")
    e("s_add_u32 s42, s42, s44")
    e("s_cmp_eq_u32 s29, 2")
    e("s_cbranch_scc1 L_qgate")
    def extloop(gate):
        nbar = 0
        if not gate: e.extend(su_id(1, 160))
        def xr(p):
            B = 32 + 32 * (p % 3); va = 21 if p % 2 == 0 else 25
            l = [f"s_lshl_b32 s38, s31, {7 if gate else 11}", f"v_add_u32 v{va}, s38, v{27 if gate else 26}",
                 "s_add_u32 s31, s31, 1", "s_and_b32 s31, s31, 7"]
            r = []
            for t in range(4):
                r.append(f"ds_read_b128 {vr(B+8*t,4)}, v{16+t} offset:{p*8192}")
                if gate: r.append(f"ds_read_b128 {vr(B+8*t+4,4)}, v{va} offset:{t*32}")
                else:
                    for u in range(2): r.append(f"ds_read_b64_tr_b16 {vr(B+8*t+4+2*u,2)}, v{va} offset:{t*512+u*128}")
            return l, r
        def xm(p):
            B = 32 + 32 * (p % 3)
            return [mfma(EACC, B + 8 * t + 4, B + 8 * t, None if (p == 0 and t == 0) else EACC) for t in range(4)]
        n = 8 if gate else 12
        for p in range(0, 8, 2):
            a0, r0 = xr(p); a1, r1 = xr(p + 1)
            e.extend(a0 + a1)
            while nbar <= POS[f"x{p//2}"]:
                e("s_barrier"); nbar += 1
            e.extend(spread(xm(p - 1)[:3], r0 + r1) + xm(p - 1)[3:] if p else r0 + r1)
            e(f"s_waitcnt lgkmcnt({n})")
            e.extend(xm(p))
            e("s_waitcnt lgkmcnt(0)")
        while nbar <= XL + 1:
            e("s_barrier"); nbar += 1
        e.extend(xm(7))
    extloop(False)
    for q in range(4): e(f"v_cvt_pk_bf16_f32 v{EACC+q}, v{EACC+2*q}, v{EACC+2*q+1}")
    e("s_lshl_b32 s38, s42, 11")
    e("s_lshl_b32 s41, s44, 1")
    e("s_add_u32 s41, s41, s29")
    e("s_lshl_b32 s41, s41, 5")
    e("s_add_u32 s41, s41, s28")
    e("s_lshl_b32 s41, s41, 3")
    e(f"s_add_u32 s41, s41, {F1}")
    e("s_cmp_eq_u32 s29, 1")
    e("s_cbranch_scc1 L_qv")
    e(f"buffer_store_dwordx4 {vr(EACC,4)}, v10, s[24:27], s38 offen sc1")
    e("s_branch L_q5")
    e.label("L_qv")
    e("s_nop 1")
    e(mfma(32, EACC, 160, None))
    e("v_lshrrev_b32 v11, 5, v1")
    e("v_and_b32 v22, 15, v1")
    e("v_lshlrev_b32 v22, 4, v22")
    e("v_lshl_add_u32 v22, v11, 8, v22")
    for q in range(8): e(f"v_cvt_pk_bf16_f32 v{EACC+8+q}, v{32+2*q}, v{32+2*q+1}")
    e("s_mov_b32 exec_lo, 0xffff")
    e("s_mov_b32 exec_hi, 0xffff")
    e(f"buffer_store_dwordx4 {vr(EACC+8,4)}, v22, s[24:27], s38 offen offset:1024 sc1")
    e(f"buffer_store_dwordx4 {vr(EACC+12,4)}, v22, s[24:27], s38 offen offset:1536 sc1")
    e("s_mov_b64 exec, -1")
    e("s_branch L_q5")
    e.label("L_qgate")
    extloop(True)
    e(f"v_cvt_pk_bf16_f32 v11, v{EACC}, v{EACC}")
    e("v_and_b32 v11, 0xffff0000, v11")
    e("v_mul_f32 v11, s75, v11")
    e("v_exp_f32 v11, v11")
    e("v_add_f32 v11, 1.0, v11")
    e("v_rcp_f32 v11, v11")
    e("v_cvt_pk_bf16_f32 v11, v11, v11")
    e("v_and_b32 v11, 0xffff0000, v11")
    e("v_lshlrev_b32 v22, 2, v1")
    e("s_lshl_b32 s38, s42, 7")
    e(f"s_add_u32 s38, s38, {WS_GATE}")
    e("s_lshl_b32 s41, s42, 3")
    e(f"s_add_u32 s41, s41, {FG}")
    e("s_mov_b32 exec_hi, 0")
    e("buffer_store_dword v11, v22, s[24:27], s38 offen sc1")
    e("s_mov_b64 exec, -1")
    e("s_branch L_q5")
    SPF = OPT.get("spf", 0)
    FSTEP = XL + OPT.get("flat", 5)
    for wv in (6, 7):
        e.label("L_touch" if wv == 6 else "L_touch7")
        if SPF:
            pitch = 3072 if wv == 6 else 1024; p = 50 if wv == 6 else 58
            for ch in range(2):
                e(f"s_add_u32 s38, s31, {ch}")
                e("s_and_b32 s38, s38, 7")
                e(f"s_mul_i32 s38, s38, {64*pitch}")
                e("s_lshl_b32 s39, s29, 7")
                e("s_add_u32 s38, s38, s39")
                e(f"s_add_u32 s{4+2*ch}, s{p}, s38")
                e(f"s_addc_u32 s{5+2*ch}, s{p+1}, 0")
            ld = [f"s_load_dword s{8+(r&7)}, s[{4+2*(r>>6)}:{5+2*(r>>6)}], {(r&63)*pitch}" for r in range(64 * SPF)]
            n0 = OPT.get("spf0", 24); n1 = OPT.get("spf1", 5)
            e.extend(ld[:n0]); k_ = n0
            for i in range(FSTEP + 1):
                e("s_barrier")
                e.extend(ld[k_:k_ + n1]); k_ += n1
            e(f"v_add_u32 v21, {S5}, v20")
            e("s_branch L_noflag")
    e.label("L_qidle")
    for i in range(XL + 2): e("s_barrier")
    e.label("L_q5")
    e(su_ws[1])
    e(f"v_add_u32 v21, {S5}, v20")
    fl = Emitter()
    fl("s_cmp_eq_u32 s41, 0")
    fl("s_cbranch_scc1 L_noflag")
    fl.extend(su_ep)
    fl("s_waitcnt vmcnt(0)")
    flag_store(fl, "s41", 22)
    fl.label("L_noflag")
    gpass(8, XL + 2, 19, {FSTEP: fl.lines, USE[9] - 1: stamp(0) + ["s_setprio 1"]})
    e.extend(stamp(1))
    for u in (1, 0):
        a = ACC + 16 * u
        for i in range(8, 16, 2): e(f"v_pk_mul_f32 {vr(a+i,2)}, {vr(a+i,2)}, s[76:77] op_sel_hi:[1,0]")
        d = 76 if u else 4
        for q in range(4): e(f"v_cvt_pk_bf16_f32 v{d+q}, v{a+8+2*q}, v{a+8+2*q+1}")
        if u: e("ds_write_b128 v28, v[76:79]")
        for q in range(4): e(f"v_cvt_pk_bf16_f32 v{PH[u]+q}, v{a+2*q}, v{a+2*q+1}")
        e(f"ds_write_b128 v29, {vr(PH[u],4)} offset:{u*1024}")
    e("s_waitcnt lgkmcnt(0)")
    e.extend(stamp(2))
    e("s_barrier")
    e.label("L_attn")
    e.extend(stamp(3))
    e("s_setprio 2")
    e(f"ds_read_b128 {vr(KF[0],4)}, v{AK}")
    e(f"ds_read_b128 {vr(KF[1],4)}, v{AK} offset:2048")
    e("s_mov_b64 exec, s[20:21]")
    e(f"ds_read_b128 {vr(VF[0],4)}, v{AV}")
    e(f"ds_read_b128 {vr(VF[0]+4,4)}, v{AV} offset:512")
    e("s_mov_b64 exec, -1")
    for i in range(0, 16, 2): e(f"v_mov_b64 {vr(O+i,2)}, 0")
    for i in range(0, 4, 2): e(f"v_mov_b64 {vr(PK+4+i,2)}, 0")
    e("s_waitcnt lgkmcnt(0)")
    e(mfma(S[0], KF[0], Q, None))
    e(mfma(S[1], KF[1], Q, None))
    e(f"v_max3_f32 v{T}, v{S[0]}, v{S[0]+1}, v{S[0]+2}")
    rest = list(range(S[0] + 3, S[0] + 32))
    while len(rest) >= 2:
        e(f"v_max3_f32 v{T}, v{T}, v{rest[0]}, v{rest[1]}"); rest = rest[2:]
    if rest: e(f"v_max_f32 v{T}, v{T}, v{rest[0]}")
    def setnm():
        e(f"v_mov_b32 v{T+1}, v{T}")
        e(f"v_permlane32_swap_b32 v{T}, v{T+1}")
        e(f"v_max_f32 v{T}, v{T}, v{T+1}")
        for i in range(2): e(f"v_sub_f32 v{NM+i}, 0, v{T}")
        for i in range(2, 16, 2): e(f"v_mov_b64 {vr(NM+i,2)}, {vr(NM,2)}")
    setnm()
    e(mfma(S[0], KF[0], Q, NM))
    e("s_nop 7"); e("s_nop 1")
    body = Emitter()
    ex = lambda i: f"v_exp_f32 v{i}, v{i}"
    for j in range(U):
        a = j & 1; b = a ^ 1; Sa = S[a]
        cv = lambda q: f"v_cvt_pk_bf16_f32 v{PK+q}, v{Sa+2*q}, v{Sa+2*q+1}"
        body(mfma(S[b], KF[b], Q, NM))
        body(f"ds_read_b128 {vr(KF[a],4)}, v{AK} offset:{(j+2)*2048}")
        for i in range(7): body(ex(Sa + i))
        body(mfma(O, VF[b] + 4, PK + 4, O))
        body("s_mov_b64 exec, s[20:21]")
        body(f"ds_read_b128 {vr(VF[b],4)}, v{AV} offset:{(j+1)*2048}")
        body(f"ds_read_b128 {vr(VF[b]+4,4)}, v{AV} offset:{(j+1)*2048+512}")
        body("s_mov_b64 exec, -1")
        body(ex(Sa + 7)); body(ex(Sa + 8))
        for q in range(4): body(cv(q))
        body(ex(Sa + 9)); body(ex(Sa + 10))
        body("s_waitcnt lgkmcnt(3)")
        body(mfma(O, VF[a], PK, O))
        for i in range(11, 16): body(ex(Sa + i))
        if j == U - 1:
            body(f"v_add_u32 v{AK}, {U*2048}, v{AK}")
            body(f"v_add_u32 v{AV}, {U*2048}, v{AV}")
            body("s_add_u32 s23, s23, 1")
            body("s_cmp_lt_u32 s23, s22")
        for q in range(4, 8): body(cv(q))
        body("s_waitcnt lgkmcnt(2)")
    rep = []
    fix_hazards(body.lines, pre=body.lines, report=rep)
    assert not rep, rep
    e(".p2align 6")
    e.label("L_loop")
    if OPT.get("trace") == 3:
        e.extend(["s_memtime s[96:97]", "s_waitcnt lgkmcnt(0)", "s_sub_u32 s96, s96, s94", "s_lshl_b32 s97, s23, 1", "s_add_u32 m0, s97, 1", "v_writelane_b32 v111, s96, m0"])
    e.extend(body.lines)
    e("s_cbranch_scc1 L_loop")
    e(f"s_cmp_lg_u32 s22, {SEG[3]}")
    e("s_cbranch_scc1 L_seg")
    e(mfma(O, VF[1] + 4, PK + 4, O))
    e.extend(stamp(4))
    e(f"ds_read_b32 v{T+4}, v{T+4}")
    e(f"v_lshlrev_b32 v{AK}, 4, v1")
    e(f"v_fma_f32 v{T+1}, v{O}, 0, v{O+8}")
    e(f"v_mul_f32 v{T+3}, 0, v{O+1}")
    e(f"v_rcp_f32 v{T}, v{O+8}")
    for i in range(2, 8): e(f"v_fma_f32 v{T+1+2*(i&1)}, v{O+i}, 0, v{T+1+2*(i&1)}")
    e(f"v_add_f32 v{T+1}, v{T+1}, v{T+3}")
    e(f"v_cmp_ngt_f32 vcc, s39, v{T+1}")
    e("s_cbranch_vccnz L_fallback")
    e.label("L_fin")
    e(f"v_mul_f32 v{T}, v{T}, v{T+2}")
    for i in range(0, 8, 2): e(f"v_pk_mul_f32 {vr(O+i,2)}, {vr(O+i,2)}, {vr(T,2)} op_sel_hi:[1,0]")
    for q in range(4): e(f"v_cvt_pk_bf16_f32 v{O+q}, v{O+2*q}, v{O+2*q+1}")
    e("s_waitcnt lgkmcnt(0)")
    e(f"v_cmp_eq_u32 vcc, 0, v{T+4}")
    e("s_cbranch_vccnz L_far")
    e(f"buffer_store_dwordx4 {vr(O,4)}, v{AK}, s[24:27], s43 offen")
    if OPT["stamp"] == 1: e("s_branch L_cend")
    else: e("s_endpgm")
    e.label("L_far")
    e(f"buffer_store_dwordx4 {vr(O,4)}, v{AK}, s[24:27], s43 offen sc1")
    e.label("L_cend")
    e.extend(stamp(5))
    if OPT.get("trace") == 3: e("v_mov_b32 v159, v111")
    if OPT["stamp"] == 1: stamp_end(e, 40)
    e("s_endpgm")
    e.label("L_seg")
    e(f"s_cmp_eq_u32 s22, {SEG[1]}")
    e("s_cbranch_scc1 L_seg1")
    e(f"s_cmp_gt_u32 s22, {SEG[1]}")
    e("s_cbranch_scc1 L_seg2")
    if DEFER:
        e(f"s_cmp_lg_u32 s22, {SEG[0]}")
        e("s_cbranch_scc1 L_segf")
        lds_wait(e, C_KVALL, 4, T, sleep=1)
        e(f"s_mov_b32 s22, {SEG[1]}")
        e("s_cmp_lg_u32 s40, 0")
        e("s_cbranch_scc1 L_loop")
        e.extend(PST)
        e(f"s_mov_b32 s22, {SEG[0] + OPT.get('fgap', 2)}")
        e("s_branch L_loop")
        e.label("L_segf")
    e(f"s_mov_b32 s22, {SEG[1]}")
    if not DEFER:
        e("s_cmp_lg_u32 s40, 0")
        e("s_cbranch_scc1 L_seg0b")
    e("s_lshl_b32 s38, s45, 5")
    e("s_add_u32 s38, s38, s28")
    e("s_lshl_b32 s38, s38, 3")
    e(f"s_add_u32 s38, s38, {F3}")
    e("s_waitcnt vmcnt(0)")
    flag_store(e, "s38", T)
    e.label("L_seg0b")
    if not DEFER: lds_wait(e, C_KVALL, 4, T, sleep=1)
    e("s_branch L_loop")
    e.label("L_seg1")
    e(f"s_mov_b32 s22, {SEG[2]}")
    lds_add(e, C_PROG, T)
    lds_wait(e, C_GOK, 4, T)
    e("s_lshl_b32 s38, s46, 7")
    e(f"s_add_u32 s38, s38, {C_GATE}")
    e(f"v_and_b32 v{T}, 31, v1")
    e(f"v_lshl_add_u32 v{T}, v{T}, 2, s38")
    e(f"ds_read_b32 v{T+2}, v{T}")
    e(f"v_mov_b32 v{T+4}, {C_LOC}")
    e(f"s_mov_b32 s39, {fbits(2.0**120)}")
    e("s_waitcnt lgkmcnt(0)")
    e(f"v_sub_f32 v{T+2}, 1.0, v{T+2}")
    e(f"v_cvt_pk_bf16_f32 v{T+2}, v{T+2}, v{T+2}")
    e(f"v_and_b32 v{T+2}, 0xffff0000, v{T+2}")
    e("s_cmp_lg_u32 s40, 0")
    e("s_cbranch_scc1 L_loop")
    e("s_setprio 1")
    e(f"s_mov_b32 s22, {OPT.get('kdrop', 16)}")
    e("s_branch L_loop")
    e.label("L_seg2")
    e(f"s_mov_b32 s22, {SEG[3]}")
    e("s_setprio 1")
    e("s_cmp_lg_u32 s40, 0")
    e("s_cbranch_scc1 L_loop")
    e("s_setprio 0")
    e("s_branch L_loop")
    e.label("L_fallback")
    e("s_waitcnt lgkmcnt(0)")
    e(f"v_add_u32 v{AV}, {-64*2048 & 0xffffffff}, v{AV}")
    e(f"v_mov_b32 v{T}, 0xff800000")
    e("s_mov_b32 s38, 0")
    e.label("L_fb1")
    e(f"buffer_load_dwordx4 {vr(KF[0],4)}, v{AK}, s[24:27], s38 offen sc1")
    e("s_add_u32 s38, s38, 2048")
    e("s_waitcnt vmcnt(0)")
    e(mfma(S[0], KF[0], Q, None))
    for i in range(8): e(f"v_max3_f32 v{T}, v{T}, v{S[0]+2*i}, v{S[0]+2*i+1}")
    e("s_cmp_lt_u32 s38, 0x20000")
    e("s_cbranch_scc1 L_fb1")
    setnm()
    for i in range(16): e(f"v_mov_b32 v{O+i}, 0")
    e("s_mov_b32 s38, 0")
    e.label("L_fb2")
    e(f"buffer_load_dwordx4 {vr(KF[0],4)}, v{AK}, s[24:27], s38 offen sc1")
    e("s_mov_b64 exec, s[20:21]")
    e(f"buffer_load_dwordx4 {vr(VF[0],4)}, v{AV}, s[24:27], s38 offen sc1")
    e(f"buffer_load_dwordx4 {vr(VF[0]+4,4)}, v{AV}, s[24:27], s38 offen offset:512 sc1")
    e("s_mov_b64 exec, -1")
    e("s_add_u32 s38, s38, 2048")
    e("s_waitcnt vmcnt(0)")
    e(mfma(S[0], KF[0], Q, NM))
    for i in range(16): e(ex(S[0] + i))
    for q in range(8): e(f"v_cvt_pk_bf16_f32 v{PK+q}, v{S[0]+2*q}, v{S[0]+2*q+1}")
    e(mfma(O, VF[0], PK, O))
    e(mfma(O, VF[0] + 4, PK + 4, O))
    e("s_nop 7")
    e("s_cmp_lt_u32 s38, 0x20000")
    e("s_cbranch_scc1 L_fb2")
    e("s_nop 7"); e("s_nop 7")
    e(f"v_rcp_f32 v{T}, v{O+8}")
    e("s_branch L_fin")
    return fix_hazards(e.lines if OPT.get("pk", 1) else unpk(e.lines))

def build():
    hdr = open("cdna_kernels/%s.s.ref" % NAME).read().split("\n")
    hdr = [l for l in hdr if l.startswith(";") and "@launch" not in l]
    out = list(hdr)
    out.append(f"; @launch grid=(256,1,1) block=(768,1,1) lds={LDS_BYTES}")
    out.append('.amdgcn_target "amdgcn-amd-amdhsa--gfx950"')
    out.append(".text")
    k = NAME + "_kernel"
    out += [f".globl {k}", ".p2align 8", f".type {k},@function", f"{k}:"]
    out += gen()
    out.append('.section .rodata,"a"')
    out.append(f""".p2align 6
.amdhsa_kernel {k}
  .amdhsa_next_free_vgpr 168
  .amdhsa_next_free_sgpr {102 if OPT['stamp'] else 80}
  .amdhsa_accum_offset 168
  .amdhsa_group_segment_fixed_size 0
  .amdhsa_kernarg_size 104
  .amdhsa_user_sgpr_count 2
  .amdhsa_user_sgpr_kernarg_segment_ptr 1
  .amdhsa_system_sgpr_workgroup_id_x 1
.end_amdhsa_kernel
""")
    return "\n".join(out) + "\n"

if __name__ == "__main__":
    dst = "f.s"
    for a in sys.argv[1:]:
        k, v = a.split("=")
        if k == "out": dst = v
        elif "," in v: OPT[k] = tuple(int(x) for x in v.split(","))
        else: OPT[k] = int(v)
    open(dst, "w").write(build())
    print("wrote", dst)
```

```python
import sys, math, struct
from asmlib import *

NAME = "gated_mix__linear_kernel_hedgehog__grouped_kv_mqa__prompt"
WS_KVB  = 0x000000
WS_GATE = 0x020000
WS_FL   = 0x024000
F1 = WS_FL + 0x8000; FG = WS_FL + 0x400; F3 = WS_FL + 0x1000; F3P = WS_FL + 0x3000; F4 = WS_FL + 0x4000
WS_EPOCH = WS_FL + 0x800
FP = WS_FL + 0x4000
WS_KVF  = 0x030000
WS_PART = 0x100000
WS_OC   = 0x500000
WS_STAMP = 0x900000
WS_SIZE = 0xB00000
XT = 65536; EXT = 0; S5 = 131072; PHQ = 131072; HND = 147456; WPH = 155648; MISC = 157696
LDS_BYTES = 158720
C_KVALL = MISC; C_PROG = MISC + 4; C_HS = MISC + 8; C_GOK = MISC + 12; C_LOC = MISC + 16; C_DONE = MISC + 20; C_GATE = MISC + 64

def fbits(x): return "0x%08x" % struct.unpack("<I", struct.pack("<f", x))[0]
LOG2E = math.log2(math.e)
OPT = dict(map=1, rot=3, pf=4, dep=4, round_pq=0, stamp=0, spin=1 << 16)

def srd(e, d, lo, nbytes):
    e(f"s_mov_b32 s{d}, s{lo}")
    e(f"s_mov_b32 s{d+1}, s{lo+1}")
    e(f"s_mov_b32 s{d+2}, {hex(nbytes)}")
    e(f"s_mov_b32 s{d+3}, 0x00020000")

def stamp_begin(e):
    if OPT["stamp"]:
        e("s_memrealtime s[92:93]")
        e("s_memtime s[94:95]")
        for k in range(6): e(f"s_mov_b32 s{80+2*k}, 0")
def stamp(k):
    return [f"s_memtime s[{80+2*k}:{81+2*k}]"] if OPT["stamp"] else []
def trace(idx):
    if not OPT.get("trace"): return []
    return ["s_memtime s[96:97]", "s_waitcnt lgkmcnt(0)", "s_sub_u32 s96, s96, s94", f"v_writelane_b32 v159, s96, {idx}"]
def stamp_end(e, vt):
    if OPT.get("trace"):
        e(f"v_lshlrev_b32 v{vt}, 2, v0")
        e("s_mul_i32 s100, s2, 3072")
        e(f"s_add_u32 s100, s100, {WS_STAMP + 0x40000}")
        e(f"buffer_store_dword v159, v{vt}, s[24:27], s100 offen")
    if OPT["stamp"]:
        e("s_waitcnt vmcnt(0)")
        e("s_memrealtime s[96:97]")
        e("s_memtime s[98:99]")
        e("s_waitcnt lgkmcnt(0)")
        for r in (98, 80, 82, 84, 86, 88, 90): e(f"s_sub_u32 s{r}, s{r}, s94")
        e(f"v_lshrrev_b32 v{vt+12}, 6, v0")
        e(f"v_lshlrev_b32 v{vt+12}, 6, v{vt+12}")
        e("s_lshl_b32 s100, s2, 10")
        e(f"s_add_u32 s100, s100, {WS_STAMP}")
        for i, r in enumerate((92, 96, 98, 80, 82, 84, 86, 88, 90, 90, 90, 90)):
            e(f"v_mov_b32 v{vt+i}, s{r}")
        for q in range(3):
            e(f"buffer_store_dwordx4 v[{vt+4*q}:{vt+4*q+3}], v{vt+12}, s[24:27], s100 offen offset:{16*q}")

def phi_unit(P, T, O):
    l = []
    if OPT["round_pq"]:
        for q in range(4): l.append(f"v_cvt_pk_bf16_f32 v{P+8+q}, v{P+2*q}, v{P+2*q+1}")
        for q in range(4):
            l.append(f"v_lshlrev_b32 v{P+2*q}, 16, v{P+8+q}")
            l.append(f"v_and_b32 v{P+2*q+1}, 0xffff0000, v{P+8+q}")
    A = T; B = T + 2
    l += [f"v_max3_f32 v{A}, v{P}, v{P+1}, v{P+2}",
          f"v_max3_f32 v{B}, -v{P}, -v{P+1}, -v{P+2}",
          f"v_max3_f32 v{A}, v{A}, v{P+3}, v{P+4}",
          f"v_max3_f32 v{B}, v{B}, -v{P+3}, -v{P+4}",
          f"v_max3_f32 v{A}, v{A}, v{P+5}, v{P+6}",
          f"v_max3_f32 v{B}, v{B}, -v{P+5}, -v{P+6}",
          f"v_max_f32 v{A}, v{A}, v{P+7}",
          f"v_max_f32_e64 v{B}, v{B}, -v{P+7}",
          f"v_permlane32_swap_b32 v{A}, v{B}",
          f"v_max_f32 v{A}, v{A}, v{B}",
          f"v_mul_f32 v{A}, s75, v{A}",
          f"v_mov_b32 v{B}, v{A}",
          f"v_permlane32_swap_b32 v{A}, v{B}"]
    if OPT.get("pk", 1):
        for i in range(0, 8, 2):
            l.append(f"v_pk_fma_f32 {vr(P+8+i,2)}, {vr(P+i,2)}, s[74:75], {vr(B,2)} op_sel_hi:[1,0,0] neg_lo:[1,0,0] neg_hi:[1,0,0]")
            l.append(f"v_pk_fma_f32 {vr(P+i,2)}, {vr(P+i,2)}, s[74:75], {vr(A,2)} op_sel_hi:[1,0,0]")
    else:
        for i in range(8):
            l.append(f"v_fma_f32 v{P+8+i}, -v{P+i}, s74, v{B}")
            l.append(f"v_fma_f32 v{P+i}, v{P+i}, s74, v{A}")
    for i in range(16): l.append(f"v_exp_f32 v{P+i}, v{P+i}")
    for sg in range(2):
        l.append(f"v_pk_add_f32 {vr(O+4*sg,2)}, {vr(P+8*sg,2)}, {vr(P+8*sg+2,2)}")
        l.append(f"v_pk_add_f32 {vr(O+4*sg+2,2)}, {vr(P+8*sg+4,2)}, {vr(P+8*sg+6,2)}")
    for sg in range(2):
        l.append(f"v_pk_add_f32 {vr(O+4*sg,2)}, {vr(O+4*sg,2)}, {vr(O+4*sg+2,2)}")
    for sg in range(2):
        l.append(f"v_add_f32 v{T+2*sg}, v{O+4*sg}, v{O+4*sg+1}")
    l += [f"v_permlane32_swap_b32 v{A}, v{B}",
          f"v_add_f32 v{A}, v{A}, v{B}",
          f"v_rcp_f32 v{A}, v{A}",
          f"v_mov_b32 v{B}, v{A}",
          f"v_permlane32_swap_b32 v{A}, v{B}"]
    for i in range(0, 8, 2):
        l.append(f"v_pk_mul_f32 {vr(P+i,2)}, {vr(P+i,2)}, {vr(A,2)} op_sel_hi:[1,0]")
        l.append(f"v_pk_mul_f32 {vr(P+8+i,2)}, {vr(P+8+i,2)}, {vr(B,2)} op_sel_hi:[1,0]")
    for q in range(8): l.append(f"v_cvt_pk_bf16_f32 v{O+q}, v{P+2*q}, v{P+2*q+1}")
    return l

import re as _re
def unpk(lines):
    out = []
    for l in lines:
        m = _re.match(r"\s*v_pk_(add|mul)_f32 v\[(\d+):\d+\], v\[(\d+):\d+\], ([vs])\[(\d+):\d+\](.*)", l)
        if not m: out.append(l); continue
        op, d, a, k, b, mods = m.group(1), int(m.group(2)), int(m.group(3)), m.group(4), int(m.group(5)), m.group(6)
        bc = "op_sel_hi:[1,0]" in mods
        assert mods.strip() in ("", "op_sel_hi:[1,0]"), l
        for i in range(2):
            out.append(f"    v_{op}_f32 v{d+i}, {k}{b if bc else b+i}, v{a+i}")
    return out

def spread(mm, r):
    out = []; n = len(mm); k = 0
    for i, x in enumerate(mm):
        out.append(x)
        hi = (len(r) * (i + 1) + n - 1) // n
        out += r[k:hi]; k = max(k, hi)
    return out + r[k:]

_uid = [0]
def uid(p):
    _uid[0] += 1
    return f"{p}_{_uid[0]}"

def flag_store(e, soff, vt):
    e(f"v_mov_b32 v{vt}, s78")
    e(f"v_mov_b32 v{vt+1}, s79")
    e(f"v_mov_b32 v{vt+2}, 0")
    e("s_mov_b64 exec, 1")
    e(f"buffer_store_dwordx2 {vr(vt,2)}, v{vt+2}, s[24:27], {soff} offen sc1")
    e("s_mov_b64 exec, -1")

def flag_poll(e, vaddr, vt, sleep=4):
    L = uid("FP"); D = uid("FD")
    e("s_mov_b32 s77, 0")
    e.label(L)
    e(f"buffer_load_dwordx2 {vr(vt,2)}, v{vaddr}, s[24:27], 0 offen sc1")
    e("s_add_u32 s77, s77, 1")
    e("s_waitcnt vmcnt(0)")
    e(f"v_cmp_ne_u64 vcc, s[78:79], {vr(vt,2)}")
    e(f"s_cbranch_vccz {D}")
    e(f"s_cmp_gt_u32 s77, {OPT['spin']}")
    e(f"s_cbranch_scc1 {D}")
    if sleep: e(f"s_sleep {sleep}")
    e(f"s_branch {L}")
    e.label(D)

def lds_add(e, addr, vt):
    e(f"v_mov_b32 v{vt}, {addr}")
    e(f"v_mov_b32 v{vt+1}, 1")
    e("s_mov_b64 exec, 1")
    e(f"ds_add_u32 v{vt}, v{vt+1}")
    e("s_mov_b64 exec, -1")

def lds_wait(e, addr, target, vt, sleep=4):
    L = uid("LW"); D = uid("LD")
    e(f"v_mov_b32 v{vt}, {addr}")
    e("s_mov_b32 s77, 0")
    e.label(L)
    e(f"ds_read_b32 v{vt+1}, v{vt}")
    e("s_add_u32 s77, s77, 1")
    e("s_waitcnt lgkmcnt(0)")
    e(f"v_cmp_gt_u32 vcc, {target}, v{vt+1}")
    e(f"s_cbranch_vccz {D}")
    e(f"s_cmp_gt_u32 s77, {OPT['spin']*8}")
    e(f"s_cbranch_scc1 {D}")
    e(f"s_sleep {sleep}")
    e(f"s_branch {L}")
    e.label(D)

def gen():
    e = Emitter()
    ORD = {0: "x0 x1 x2 x3 w0 w1 w2 w3 w4 w5 w6 w7 w8",
           1: "x0 x1 x2 x3 w0 w8",
           2: "x0 w0 w8 x1 x2 x3",
           3: "x0 w0 x1 x2 x3 w8",
           4: "x0 x1 w0 x2 x3 w8",
           5: "x0 x1 x2 w0 x3 w8",
           6: "x0 w0 x1 w8 x2 x3"}[OPT.get("ord", 0)].split()
    ORD += [f"w{g}" for g in range(16) if f"w{g}" not in ORD]
    POS = {n: i for i, n in enumerate(ORD)}
    XL = POS["x3"]
    ring = [n for n in ORD if n[0] == "w" and n != "w8"]
    SLOT = {int(n[1:]): ((r + 1) % 4) * 16384 for r, n in enumerate(ring)}
    SLOT[8] = S5
    USE = {}; last = -1
    for c in range(8):
        last = max(POS[f"w{c}"], POS[f"x{c//2}"], last + 1); USE[c] = last
    last = XL + 1
    for c in range(8, 16):
        last = max(POS[f"w{c}"], last + 1); USE[c] = last
    assert USE[15] == 19
    e("s_cmp_ge_u32 s2, 256")
    e("s_cbranch_scc1 L_done")
    e("s_load_dwordx16 s[48:63], s[0:1], 0")
    e("s_load_dwordx8 s[64:71], s[0:1], 64")
    e("s_load_dwordx2 s[72:73], s[0:1], 96")
    stamp_begin(e)
    if OPT.get("trace"): e("v_mov_b32 v159, 0")
    e("v_and_b32 v1, 63, v0")
    e("v_lshrrev_b32 v11, 6, v0")
    e("v_readfirstlane_b32 s30, v11")
    e("s_and_b32 s36, s2, 7")
    e("s_lshr_b32 s37, s2, 3")
    lc = {0: 1, 1: 2, 2: 3}[OPT["map"]]
    e(f"s_and_b32 s29, s36, {(8>>lc)-1}")
    e(f"s_lshl_b32 s29, s29, {lc}")
    e(f"s_lshr_b32 s38, s37, {5-lc}")
    e("s_or_b32 s29, s29, s38")
    e(f"s_lshr_b32 s28, s36, {3-lc}")
    e(f"s_lshl_b32 s28, s28, {5-lc}")
    e(f"s_and_b32 s38, s37, {(32>>lc)-1}")
    e("s_add_u32 s28, s28, s38")
    if OPT["rot"] == 1:
        e("s_add_u32 s31, s28, s29"); e("s_lshl_b32 s31, s31, 1"); e("s_and_b32 s31, s31, 6")
    elif OPT["rot"] == 3:
        e("s_lshl_b32 s31, s29, 1"); e("s_add_u32 s31, s31, s28"); e("s_and_b32 s31, s31, 7")
    elif OPT["rot"] == 4:
        e("s_add_u32 s31, s28, s29"); e("s_and_b32 s31, s31, 7")
    elif OPT["rot"] == 5:
        e("s_lshl_b32 s31, s28, 1"); e("s_add_u32 s31, s31, s29"); e("s_and_b32 s31, s31, 7")
    elif OPT["rot"] == 6:
        e("s_lshl_b32 s31, s28, 1"); e("s_add_u32 s31, s31, s29"); e("s_add_u32 s31, s31, s36"); e("s_and_b32 s31, s31, 7")
    elif OPT["rot"] == 2:
        e("s_add_u32 s31, s28, s29"); e("s_lshl_b32 s31, s31, 2"); e("s_and_b32 s31, s31, 4")
    else:
        e("s_mov_b32 s31, 0")
    e("v_lshlrev_b32 v10, 4, v1")
    if OPT.get("lf", 0):
        e("s_sub_u32 s30, s30, 4")
        e("s_cbranch_scc0 L_compute")
        e("s_add_u32 s30, s30, 12")
    else:
        e("s_cmp_lt_u32 s30, 8")
        e("s_cbranch_scc1 L_compute")
    e("s_setprio 3")
    e("s_sub_u32 s30, s30, 8")
    e("v_lshrrev_b32 v11, 3, v1")
    e("v_and_b32 v12, 7, v1")
    e("v_lshrrev_b32 v13, 4, v1")
    e("v_xor_b32 v14, v12, v13")
    e("v_lshlrev_b32 v14, 4, v14")
    e("v_lshl_add_u32 v2, v11, 10, v14")
    e("v_xor_b32 v3, 64, v2")
    e("v_add_u32 v3, 7168, v3")
    e("s_lshl_b32 s32, s28, 16")
    e("s_lshl_b32 s38, s30, 14")
    e("s_add_u32 s32, s32, s38")
    e("s_lshl_b32 s41, s30, 11")
    e("s_lshl_b32 s40, s30, 12")
    e("s_mov_b32 s36, s31")
    e("v_and_b32 v13, 1, v13")
    e("v_lshlrev_b32 v13, 1, v13")
    e("v_xor_b32 v14, v12, v13")
    e("v_lshlrev_b32 v14, 4, v14")
    e("v_mul_u32_u24 v6, 3072, v11")
    e("v_add_u32 v6, v6, v14")
    e(f"v_add_u32 v7, {8*3072-1024}, v6")
    e("v_xor_b32 v8, 64, v6")
    e(f"v_add_u32 v9, {8*3072-1024}, v8")
    e("s_lshl_b32 s38, s29, 7")
    e("s_mul_i32 s33, s30, 49152")
    e("s_add_u32 s33, s33, s38")
    e("v_xor_b32 v14, 64, v14")
    e("v_lshl_add_u32 v4, v11, 10, v14")
    e("v_add_u32 v5, 7168, v4")
    e("s_lshl_b32 s34, s30, 14")
    e("s_add_u32 s34, s34, s38")
    e("s_waitcnt lgkmcnt(0)")
    e.extend(trace(60))
    srd(e, 4, 48, 2048*512*2)
    srd(e, 8, 50, 512*1536*2)
    srd(e, 12, 58, 512*512*2)
    e("s_cmp_gt_u32 s29, 2")
    e("s_cbranch_scc1 L_noext")
    e("s_cmp_eq_u32 s29, 0")
    e("s_cselect_b32 s16, s60, s62")
    e("s_cselect_b32 s17, s61, s63")
    e("s_cmp_eq_u32 s29, 2")
    e("s_cselect_b32 s16, s66, s16")
    e("s_cselect_b32 s17, s67, s17")
    e("s_mov_b32 s18, 16384")
    e("s_cselect_b32 s18, 1024, s18")
    e("s_mov_b32 s19, 0x00020000")
    e("s_mov_b32 m0, s40")
    for i in range(4):
        e(f"buffer_load_dwordx4 v10, s[16:19], s40 offen offset:{i*1024} lds")
    e.label("L_noext")
    def item(i):
        l = []; nm = ORD[i]; idx = int(nm[1:])
        if nm[0] == "x":
            for q in range(2):
                l.append("s_lshl_b32 s38, s31, 7")
                l.append("s_add_u32 s38, s38, s32")
                l.append(f"s_add_u32 m0, s41, {XT + (2*idx+q)*8192}")
                l.append("s_add_u32 s31, s31, 1")
                for k in range(2):
                    l.append(f"buffer_load_dwordx4 v{2+k}, s[4:7], s38 offen offset:{k*1024} lds")
                l.append("s_and_b32 s31, s31, 7")
        else:
            g = idx
            l.append(f"s_add_u32 s35, s36, {g % 8}")
            l.append("s_and_b32 s35, s35, 7")
            l.append("s_mul_i32 s39, s35, 196608")
            l.append("s_add_u32 s39, s39, s33")
            l.append(f"s_add_u32 m0, s41, {SLOT[g]}")
            if g < 8: l.append("s_add_u32 s39, s39, 1024")
            else: l.append("s_lshl_b32 s38, s35, 16")
            for k in range(2):
                l.append(f"buffer_load_dwordx4 v{6+k}, s[8:11], s39 offen offset:{k*1024} lds")
            l.append(f"s_add_u32 m0, s41, {SLOT[g]+8192}")
            if g < 8:
                l.append("s_add_u32 s39, s39, 1024")
                for k in range(2):
                    l.append(f"buffer_load_dwordx4 v{8+k}, s[8:11], s39 offen offset:{k*1024} lds")
            else:
                l.append("s_add_u32 s38, s38, s34")
                for k in range(2):
                    l.append(f"buffer_load_dwordx4 v{4+k}, s[12:15], s38 offen offset:{k*1024} lds")
        return l
    def earliest(i):
        nm = ORD[i]; idx = int(nm[1:])
        if nm[0] == "x" or idx == 8: return -1
        r = ring.index(nm)
        if r < 3: return -1
        if r == 3: return XL + 1
        return USE[int(ring[r - 4][1:])] + 1
    DEP = OPT.get("dep", 3)
    for i in range(DEP): e.extend(item(i))
    e.extend(trace(61))
    e(f"s_load_dwordx2 s[78:79], s[72:73], {hex(WS_EPOCH)}")
    srd(e, 20, 52, 32*16*16*2)
    srd(e, 24, 72, WS_SIZE)
    e("s_and_b32 s46, s30, 1")
    e("s_lshr_b32 s47, s30, 1")
    e("v_bfe_u32 v13, v1, 4, 1")
    e("v_lshlrev_b32 v15, 2, v13")
    e("v_xor_b32 v15, v12, v15")
    e("v_lshlrev_b32 v15, 4, v15")
    e("v_lshl_add_u32 v144, v11, 10, v15")
    for k in range(1, 4): e(f"v_add_u32 v{144+k}, {k*7168}, v144")
    e("v_lshrrev_b32 v16, 5, v1")
    e("v_bfe_u32 v15, v1, 2, 2")
    e("v_lshl_add_u32 v148, v16, 2, v15")
    e("v_lshlrev_b32 v148, 7, v148")
    e("v_lshrrev_b32 v15, 1, v15")
    e("v_xor_b32 v15, s47, v15")
    e("v_lshl_add_u32 v148, v15, 6, v148")
    e("v_lshl_add_u32 v148, v13, 5, v148")
    e("v_and_b32 v15, 3, v1")
    e("v_lshl_add_u32 v148, v15, 3, v148")
    e("s_lshl_b32 s38, s47, 15")
    e("v_add_u32 v148, s38, v148")
    e("v_xor_b32 v149, 64, v148")
    e(f"s_add_u32 s38, s40, {PHQ}")
    e("v_add_u32 v150, s38, v10")
    e("v_xor_b32 v151, 0x2000, v150")
    e("v_and_b32 v155, 31, v1")
    e("v_lshlrev_b32 v152, 10, v155")
    e("v_lshl_add_u32 v152, v16, 4, v152")
    e("v_lshlrev_b32 v155, 2, v155")
    e("v_and_b32 v153, 15, v1")
    e("v_lshlrev_b32 v153, 3, v153")
    e("v_lshl_add_u32 v153, v16, 7, v153")
    e("s_lshl_b32 s38, s30, 9")
    e(f"s_add_u32 s38, s38, {WPH}")
    e("v_add_u32 v153, s38, v153")
    e(f"s_add_u32 s38, s41, {PHQ}")
    e("v_add_u32 v154, s38, v10")
    e("v_lshlrev_b32 v156, 3, v1")
    e("s_getreg_b32 s37, hwreg(HW_REG_XCC_ID, 0, 4)")
    e(f"s_mov_b32 s74, {fbits(LOG2E)}")
    e(f"s_mov_b32 s75, {fbits(-LOG2E)}")
    e("v_and_b32 v15, 31, v1")
    FS = OPT.get("fs", 3)
    e(f"v_lshlrev_b32 v15, {FS}, v15")
    e(f"s_lshl_b32 s38, s30, {FS+5}")
    e(f"s_add_u32 s38, s38, {F1}")
    e("v_add_u32 v15, s38, v15")
    e("s_lshl_b32 s42, s30, 10")
    assert WS_KVB == 0
    def kvdma(n):
        l = []
        for _ in range(n):
            l.append("s_mov_b32 m0, s42")
            l.append("s_nop 0")
            l.append("buffer_load_dwordx4 v10, s[24:27], s42 offen sc1 lds")
            l.append("s_add_u32 s42, s42, 4096")
        return l
    out = []
    e("s_and_b32 s38, s30, 1")
    e("s_lshl_b32 s38, s38, 10")
    e(f"s_add_u32 m0, s38, {WPH}")
    e("s_lshl_b32 s39, s29, 11")
    e("s_add_u32 s38, s38, s39")
    e("buffer_load_dwordx4 v10, s[20:23], s38 offen lds")
    for i in range(DEP): out += [i] * 4
    out.append("w")
    nxt = DEP
    def waitfor(tag):
        idx = max(k for k, t in enumerate(out) if t == tag)
        n = len(out) - 1 - idx
        del out[:idx + 1]
        return f"s_waitcnt vmcnt({n})"
    PA = OPT.get("pa", 14)
    poll = "buffer_load_dwordx2 v[16:17], v15, s[24:27], 0 offen sc1"
    e.extend(trace(62))
    for i in range(18):
        e(waitfor(i))
        e.extend(trace(2 * i))
        e("s_barrier")
        e.extend(trace(2 * i + 1))
        if i == 0:
            e.extend(stamp(0))
        if i == 8:
            e("s_waitcnt lgkmcnt(0)")
            e("s_add_u32 s78, s78, 1")
        while nxt <= min(19, i + DEP) and earliest(nxt) <= i:
            e.extend(item(nxt)); out += [nxt] * 4; nxt += 1
        assert nxt > i + 1
        if i == PA:
            e(poll); out.append("p")
    if "p" in out: e(waitfor("p"))
    e("v_cmp_ne_u64 vcc, s[78:79], v[16:17]")
    e("s_cbranch_vccnz L_kvlate")
    save = list(out)
    e.extend(kvdma(4)); out += ["k0"] * 4
    if 18 in out: e(waitfor(18))
    e("s_barrier")
    e.extend(kvdma(4)); out += ["k1"] * 4
    if 19 in out: e(waitfor(19))
    e("s_barrier")
    e.extend(kvdma(4)); out += ["k2"] * 4
    e.label("L_kv20")
    e("s_waitcnt vmcnt(4)")
    e("s_barrier")
    e("s_branch L_kvjoin")
    e.label("L_kvlate")
    out[:] = save
    e(poll); out.append("p")
    if 18 in out: e(waitfor(18))
    e("s_barrier")
    if 19 in out: e(waitfor(19))
    e("s_barrier")
    e("s_waitcnt vmcnt(0)")
    e("v_cmp_ne_u64 vcc, s[78:79], v[16:17]")
    e("s_cbranch_vccz L_kvlate2")
    flag_poll(e, 15, 16, sleep=0)
    e.label("L_kvlate2")
    e.extend(kvdma(12))
    e("s_branch L_kv20")
    e.label("L_kvjoin")
    e.extend(stamp(1))
    e.extend(kvdma(20))
    HQ = 16; HK = 32; HG = 40; HT = 42; HD = 48; HP = 80
    for u in range(2): e(f"ds_read_b128 {vr(HQ+8*u,4)}, v154 offset:{u*1024}")
    for u in range(2): e(f"ds_read_b64_tr_b16 {vr(HK+2*u,2)}, v153 offset:{u*256}")
    e("s_lshl_b32 s38, s28, 4")
    e(f"s_add_u32 s38, s38, {FG}")
    e(f"v_and_b32 v{HT+4}, 8, v156")
    e(f"v_add_u32 v{HT+4}, s38, v{HT+4}")
    e("s_waitcnt vmcnt(0)")
    e.extend(trace(44))
    lds_add(e, C_KVALL, HT)
    e("s_lshl_b32 s45, s29, 2")
    e("s_lshl_b32 s36, s28, 7")
    e("s_add_u32 s36, s36, s45")
    e("s_add_u32 s36, s36, s30")
    e("s_lshl_b32 s36, s36, 10")
    e(f"s_add_u32 s36, s36, {WS_OC}")
    e(f"v_mov_b64 {vr(HD,2)}, -1")
    e(f"v_mov_b64 {vr(HD+2,2)}, -1")
    for i in range(4):
        e(f"s_add_u32 s38, s36, {i*32768}")
        e(f"buffer_store_dwordx4 {vr(HD,4)}, v10, s[24:27], s38 offen sc1")
    flag_poll(e, HT + 4, HT + 2)
    e("s_lshl_b32 s38, s28, 5")
    e("s_add_u32 s38, s38, s45")
    e("s_add_u32 s38, s38, s30")
    e("s_lshl_b32 s38, s38, 4")
    e(f"s_add_u32 s38, s38, {FP}")
    e(f"v_mov_b32 v{HD+4}, s78")
    e(f"v_mov_b32 v{HD+5}, s79")
    e(f"v_mov_b32 v{HD+6}, s37")
    e(f"v_mov_b32 v{HD+7}, 0")
    e("s_mov_b64 exec, 1")
    e(f"buffer_store_dwordx4 {vr(HD+4,4)}, v{HD+7}, s[24:27], s38 offen sc1")
    e("s_mov_b64 exec, -1")
    e("s_lshl_b32 s38, s28, 8")
    e(f"s_add_u32 s38, s38, {WS_GATE}")
    e(f"buffer_load_dword v{HG}, v155, s[24:27], s38 offen sc1")
    e(f"buffer_load_dword v{HG+1}, v155, s[24:27], s38 offen offset:128 sc1")
    e("s_waitcnt lgkmcnt(0)")
    for u in range(2): e(mfma(HD + 16 * u, HK, HQ + 8 * u, None))
    e.extend(interleave(*[phi_unit(HD + 16 * u, HP + 4 * u, HQ + 8 * u) for u in range(2)]))
    e(f"v_add_u32 v{HT}, {C_GATE}, v155")
    e("s_waitcnt vmcnt(0)")
    e(f"ds_write_b32 v{HT}, v{HG}")
    e(f"ds_write_b32 v{HT}, v{HG+1} offset:128")
    e("s_waitcnt lgkmcnt(0)")
    lds_add(e, C_GOK, HT)
    e.extend(trace(45))
    e("s_and_b32 s38, s28, 3")
    e("s_cmp_lg_u32 s38, s30")
    e("s_cbranch_scc1 L_nored")
    e("s_lshr_b32 s38, s28, 3")
    e("s_add_u32 s43, s45, s38")
    e("v_lshlrev_b32 v15, 1, v155")
    e("s_lshl_b32 s38, s43, 8")
    e(f"s_add_u32 s38, s38, {F3}")
    e(f"v_add_u32 v{HT}, s38, v15")
    flag_poll(e, HT, HT + 2)
    e.extend(trace(46))
    e("s_lshl_b32 s43, s43, 3")
    e("s_and_b32 s38, s28, 7")
    e("s_add_u32 s43, s43, s38")
    e("s_lshl_b32 s38, s43, 14")
    e(f"s_add_u32 s38, s38, {WS_PART}")
    for p in range(16):
        if p and p % 4 == 0: e("s_add_u32 s38, s38, 4096")
        e(f"buffer_load_dwordx4 {vr(HP+4*p,4)}, v10, s[24:27], s38 offen offset:{(p&3)*1024} sc1")
    e("s_waitcnt vmcnt(0)")
    e.extend(trace(47))
    for st in (32, 16, 8, 4):
        for i in range(0, st, 2): e(f"v_pk_add_f32 {vr(HP+i,2)}, {vr(HP+i,2)}, {vr(HP+st+i,2)}")
    e(f"v_permlane32_swap_b32 v{HP}, v{HP+2}")
    e(f"v_permlane32_swap_b32 v{HP+1}, v{HP+3}")
    e(f"v_pk_add_f32 {vr(HP,2)}, {vr(HP,2)}, {vr(HP+2,2)}")
    e(f"v_cvt_pk_bf16_f32 v{HP}, v{HP}, v{HP+1}")
    e(f"v_lshrrev_b32 v{HT}, 5, v1")
    e(f"v_lshl_add_u32 v{HT}, v{HT}, 2, v15")
    e("s_lshl_b32 s38, s43, 8")
    e(f"s_add_u32 s38, s38, {WS_KVF}")
    e(f"buffer_store_dword v{HP}, v{HT}, s[24:27], s38 offen sc1")
    e("s_lshl_b32 s38, s43, 3")
    e(f"s_add_u32 s38, s38, {F3P}")
    e("s_waitcnt vmcnt(0)")
    e.extend(trace(48))
    flag_store(e, "s38", HT)
    e.label("L_nored")
    e.extend(stamp(2))
    e("s_lshl_b32 s38, s28, 9")
    e(f"s_add_u32 s38, s38, {FP}")
    e("v_lshlrev_b32 v2, 2, v155")
    e("v_add_u32 v2, s38, v2")
    e("s_mov_b32 s77, 0")
    e("s_mov_b32 s35, 0")
    e.label("L_fpp")
    e(f"buffer_load_dwordx4 {vr(HD,4)}, v2, s[24:27], 0 offen sc1")
    e("s_add_u32 s77, s77, 1")
    e("s_waitcnt vmcnt(0)")
    e(f"v_cmp_ne_u64 vcc, s[78:79], {vr(HD,2)}")
    e("s_cbranch_vccz L_fpd")
    e("s_sleep 8")
    e(f"s_cmp_lt_u32 s77, {OPT['spin']}")
    e("s_cbranch_scc1 L_fpp")
    e("s_branch L_fpx")
    e.label("L_fpd")
    e(f"v_cmp_ne_u32 vcc, s37, v{HD+2}")
    e("s_cbranch_vccnz L_fpx")
    if OPT.get("loc", 1):
        lds_add(e, C_LOC, HT)
        e("s_mov_b32 s35, 1")
    e.label("L_fpx")
    e.extend(trace(57))
    e("s_add_u32 s45, s45, s30")
    e("s_lshl_b32 s38, s45, 6")
    e(f"s_add_u32 s38, s38, {F3P}")
    e(f"v_and_b32 v{HT}, 56, v156")
    e(f"v_add_u32 v{HT}, s38, v{HT}")
    flag_poll(e, HT, HT + 2)
    e.extend(trace(49))
    e("s_lshl_b32 s38, s45, 11")
    e(f"s_add_u32 s38, s38, {WS_KVF}")
    for q in range(4):
        e(f"buffer_load_dwordx2 {vr(HK+2*q,2)}, v156, s[24:27], s38 offen offset:{q*512} sc1")
    e("s_waitcnt vmcnt(0)")
    e.extend(trace(50))
    for u in range(2): e(mfma(HD + 16 * u, HK, HQ + 8 * u, None))
    for u in range(2): e(mfma(HD + 16 * u, HK + 4, HQ + 8 * u + 4, HD + 16 * u))
    for u in range(2):
        D = HD + 16 * u
        e(f"v_add_f32 v{HT}, {fbits(1e-6)}, v{D+8}")
        e(f"v_rcp_f32 v{HT}, v{HT}")
        e(f"v_mul_f32 v{HT}, v{HT}, v{HG+u}")
        for i in range(0, 8, 2): e(f"v_pk_mul_f32 {vr(D+i,2)}, {vr(D+i,2)}, {vr(HT,2)} op_sel_hi:[1,0]")
        for q in range(4): e(f"v_cvt_pk_bf16_f32 v{D+q}, v{D+2*q}, v{D+2*q+1}")
    e("s_add_u32 s38, s36, 65536")
    e(f"buffer_store_dwordx4 {vr(HD,4)}, v10, s[24:27], s36 offen sc1")
    e(f"buffer_store_dwordx4 {vr(HD+16,4)}, v10, s[24:27], s38 offen sc1")
    e.extend(trace(51))
    e.extend(stamp(3))
    ACC = [16, 32]; WFR = [48, 56, 132]; OF = 64; PT = 128
    srd(e, 4, 54, 512*512*2)
    srd(e, 8, 64, 512*512*2)
    srd(e, 12, 68, 2048*512*2)
    e("s_lshl_b32 s44, s28, 1")
    e("s_add_u32 s44, s44, s46")
    e("s_lshl_b32 s43, s44, 16")
    e("s_lshl_b32 s38, s47, 14")
    e("s_add_u32 s43, s43, s38")
    e(f"s_add_u32 s43, s43, {WS_OC}")
    def wdma(sd):
        e("s_lshl_b32 s38, s30, 17")
        e("s_lshl_b32 s39, s29, 7")
        e("s_add_u32 s38, s38, s39")
        e("s_lshl_b32 s39, s30, 14")
        for g in range(4):
            e("s_mov_b32 m0, s39")
            for k in range(4):
                e(f"buffer_load_dwordx4 v{144+k}, s[{sd}:{sd+3}], s38 offen offset:{k*1024} lds")
            if g < 3:
                e("s_add_u32 s38, s38, 32768")
                e("s_add_u32 s39, s39, 4096")
    def oload(base_add, g0=0, g1=4):
        for g in range(g0, g1):
            e(f"s_add_u32 s38, s43, {base_add + g*4096}")
            for t in range(4 * g, 4 * g + 4):
                e(f"buffer_load_dwordx4 {vr(OF+4*t,4)}, v10, s[24:27], s38 offen offset:{(t&3)*1024} sc1")
    WA = [148]
    def rd(t):
        return [f"ds_read_b64_tr_b16 {vr(WFR[t%3]+4*nt+2*u,2)}, v{WA[0]+nt} offset:{(16*t+8*u)*128}" for nt in range(2) for u in range(2)]
    def step(t, first, fill=[]):
        if t < 14: e.extend(rd(t + 2))
        e(f"s_waitcnt lgkmcnt({4*min(2, 15-t)})")
        for nt in ((1, 0) if t == 15 else (0, 1)):
            e(mfma(ACC[nt], WFR[t % 3] + 4 * nt, OF + 4 * t, None if (first and t == 0) else ACC[nt]))
            e.extend(fill[nt * 5:nt * 5 + 5])
    def check(g):
        b = OF + 16 * g
        l = [f"v_max3_u32 v{PT}, v{b}, v{b+1}, v{b+2}", f"v_max3_u32 v{PT+1}, v{b+3}, v{b+4}, v{b+5}"]
        for i in (6, 10):
            l += [f"v_max3_u32 v{PT}, v{PT}, v{b+i}, v{b+i+1}", f"v_max3_u32 v{PT+1}, v{PT+1}, v{b+i+2}, v{b+i+3}"]
        l += [f"v_max3_u32 v{PT}, v{PT}, v{b+14}, v{b+15}", f"v_max_u32 v{PT}, v{PT}, v{PT+1}", f"v_cmp_eq_u32 vcc, -1, v{PT}"]
        return l
    NG = OPT.get("ng", 2)
    def pgemm(tag, first, pace, base):
        e(f"s_waitcnt vmcnt({4*(NG-1)})")
        e.extend(check(0))
        for g in range(4):
            e(f"s_cbranch_vccnz L_retry{tag}{g}")
            e.label(f"L_go{tag}{g}")
            if g == 0 and not first: e.extend(trace(40))
            for t in range(4 * g, 4 * g + 4):
                if t % 4 == 3 and g < 3: step(t, first, [f"s_waitcnt vmcnt({4*(min(4, g+1+NG)-g-2)})"] + check(g + 1))
                else: step(t, first)
                if t % 4 == 0 and g + NG < 4: oload(base, g + NG, g + NG + 1)
                if pace: e(f"s_sleep {pace}")
    if OPT.get("late", 0):
        lds_wait(e, C_PROG, 8, PT, sleep=8)
        e.extend(trace(54))
        wdma(4)
        e("v_lshlrev_b32 v2, 10, v1")
        e("s_lshl_b32 s38, s30, 17")
        e("s_lshl_b32 s39, s29, 7")
        e("s_add_u32 s38, s38, s39")
        e("buffer_load_dword v3, v2, s[8:11], s38 offen")
        e("s_add_u32 s38, s38, 65536")
        e("buffer_load_dword v4, v2, s[8:11], s38 offen")
        e("s_mov_b32 s77, 0")
        e.label("L_apoll")
        oload(0)
        e("s_add_u32 s77, s77, 1")
        e("s_waitcnt vmcnt(0)")
        e(f"v_max3_u32 v{PT}, v{OF}, v{OF+1}, v{OF+2}")
        e(f"v_max3_u32 v{PT+1}, v{OF+3}, v{OF+4}, v{OF+5}")
        for i_ in range(6, 62, 4):
            e(f"v_max3_u32 v{PT}, v{PT}, v{OF+i_}, v{OF+i_+1}")
            e(f"v_max3_u32 v{PT+1}, v{PT+1}, v{OF+i_+2}, v{OF+i_+3}")
        e(f"v_max3_u32 v{PT}, v{PT}, v{OF+62}, v{OF+63}")
        e(f"v_max_u32 v{PT}, v{PT}, v{PT+1}")
        e(f"v_cmp_eq_u32 vcc, -1, v{PT}")
        e("s_cbranch_vccz L_aready")
        e("s_sleep 32")
        e(f"s_cmp_lt_u32 s77, {OPT['spin']}")
        e("s_cbranch_scc1 L_apoll")
        e.label("L_aready")
        lds_add(e, C_HS, PT)
        lds_wait(e, C_HS, 4, PT)
        e.extend(trace(55))
        e.extend(rd(0) + rd(1))
        e("v_add_u32 v2, 0x10000, v148")
        e("v_add_u32 v3, 0x10000, v149")
        e("s_lshl_b32 s36, s44, 15")
        e("s_lshl_b32 s39, s29, 7")
        e("s_add_u32 s36, s36, s39")
        e("s_lshl_b32 s39, s47, 6")
        e("s_add_u32 s36, s36, s39")
        e("s_lshl_b32 s38, s30, 17")
        e("s_lshl_b32 s39, s29, 7")
        e("s_add_u32 s38, s38, s39")
        e("s_lshl_b32 s39, s30, 14")
        e("s_add_u32 s39, s39, 0x10000")
        e.extend(stamp(4))
        lds_wait(e, C_DONE, 8, PT, sleep=OPT.get("dsleep", 2))
        e.extend(trace(56))
        for t in range(16):
            if t % 4 == 0: e("s_mov_b32 m0, s39")
            e(f"buffer_load_dwordx4 v{144+t%4}, s[8:11], s38 offen offset:{(t%4)*1024} lds")
            if t % 4 == 3:
                e("s_add_u32 s38, s38, 32768"); e("s_add_u32 s39, s39, 4096")
            step(t, True)
        e.extend(trace(58))
        WA[0] = 2
        e("s_mov_b32 s77, 0")
        oload(32768, 0, NG)
        e(f"s_waitcnt vmcnt({4*NG})")
        e("s_barrier")
    else:
        lds_wait(e, C_PROG, 8, PT, sleep=8)
        e.extend(trace(54))
        wdma(4)
        oload(0, 0, NG)
        e(f"s_waitcnt vmcnt({4*NG})")
        lds_add(e, C_HS, PT)
        lds_wait(e, C_HS, 4, PT)
        e.extend(trace(55))
        e.extend(rd(0) + rd(1))
        e("s_mov_b32 s77, 0")
        e(f"s_setprio {OPT.get('aprio', 2)}")
        pgemm("A", True, OPT.get("pace", 0), 0)
        e("s_setprio 3")
        e.extend(trace(56))
        lds_add(e, C_HS, PT)
        lds_wait(e, C_HS, 8, PT)
        e.extend(trace(58))
        wdma(8)
        e("s_lshl_b32 s36, s44, 15")
        e("s_lshl_b32 s39, s29, 7")
        e("s_add_u32 s36, s36, s39")
        e("s_lshl_b32 s39, s47, 6")
        e("s_add_u32 s36, s36, s39")
        e("s_mov_b32 s77, 0")
        e("s_waitcnt vmcnt(0)")
        e.extend(stamp(4))
        e("s_barrier")
    e.extend(stamp(5))
    if not OPT.get("late", 0): oload(32768, 0, NG)
    e.extend(rd(0) + rd(1))
    pgemm("B", False, 0, 32768)
    e.extend(trace(42))
    if OPT.get("trace"): e("v_writelane_b32 v159, s77, 41")
    for q in range(4): e(f"ds_write_b128 v150, {vr(ACC[1]+4*q,4)} offset:{q*1024}")
    e("s_waitcnt lgkmcnt(0)")
    e("s_barrier")
    for q in range(4): e(f"ds_read_b128 {vr(OF+4*q,4)}, v151 offset:{q*1024}")
    A = ACC[0]
    for pr in range(2):
        e(f"s_waitcnt lgkmcnt({2-2*pr})")
        for i in range(8 * pr, 8 * pr + 8, 2): e(f"v_pk_add_f32 {vr(A+i,2)}, {vr(A+i,2)}, {vr(OF+i,2)}")
        for q in range(4): e(f"v_cvt_pk_bf16_f32 v{A+8*pr+q}, v{A+8*pr+2*q}, v{A+8*pr+2*q+1}")
    for pr in range(2):
        e(f"v_permlane32_swap_b32 v{A+8*pr}, v{A+8*pr+2}")
        e(f"v_permlane32_swap_b32 v{A+8*pr+1}, v{A+8*pr+3}")
    for pr in range(2):
        e(f"buffer_store_dwordx4 {vr(A+8*pr,4)}, v152, s[12:15], s36 offen offset:{pr*32}" + ["", " sc1", " nt", " sc0 sc1"][OPT.get("ost", 0)])
    e.extend(trace(43))
    e("s_or_b32 s38, s2, s30")
    e("s_cbranch_scc1 L_noepoch")
    e(f"s_mov_b32 s38, {WS_EPOCH}")
    flag_store(e, "s38", PT)
    e.label("L_noepoch")
    stamp_end(e, 64)
    e.label("L_done")
    e("s_endpgm")
    for tag, base in ((("B", 32768),) if OPT.get("late", 0) else (("A", 0), ("B", 32768))):
        for g in range(4):
            e.label(f"L_retry{tag}{g}")
            if tag == "A": e("s_sleep 8")
            oload(base, g, min(4, g + NG))
            e("s_add_u32 s77, s77, 1")
            e(f"s_waitcnt vmcnt({4*(min(4, g+NG)-g-1)})")
            e.extend(check(g))
            e(f"s_cbranch_vccz L_go{tag}{g}")
            e(f"s_cmp_lt_u32 s77, {OPT['spin']}")
            e(f"s_cbranch_scc1 L_retry{tag}{g}")
            e(f"s_branch L_go{tag}{g}")

    e.label("L_compute")
    ACC = 96; EACC = 128; WF = 144; I0 = 148; ONE = 156
    e("s_and_b32 s44, s30, 3")
    e("s_lshr_b32 s40, s30, 2")
    if OPT.get("pf", 0):
        e("s_cmp_lt_u32 s44, 3")
        e("s_movk_i32 s38, 1024")
        e("s_cselect_b32 s38, 3072, s38")
        e("v_mul_lo_u32 v30, v1, s38")
        e("s_add_u32 s39, s31, s40")
        e("s_and_b32 s39, s39, 7")
        e("s_mul_i32 s38, s38, s39")
        e("s_lshl_b32 s38, s38, 6")
        e("s_add_u32 s39, s44, 1")
        e("s_cmp_lt_u32 s44, 2")
        e("s_cselect_b32 s39, s39, 0")
        e("s_lshl_b32 s39, s39, 10")
        e("s_add_u32 s38, s38, s39")
        e("s_lshl_b32 s39, s29, 7")
        e("s_add_u32 s38, s38, s39")
        e("v_add_u32 v30, s38, v30")
        e("s_waitcnt lgkmcnt(0)")
        e("s_cmp_lt_u32 s44, 3")
        e("s_cselect_b32 s16, s50, s58")
        e("s_cselect_b32 s17, s51, s59")
        mask = {1: 0x0f, 2: 0xff, 3: 0x33, 4: 0x03}[OPT["pf"]]
        e(f"s_lshr_b32 s38, {mask}, s30")
        e("s_and_b32 s38, s38, 1")
        e("s_cbranch_scc0 L_nopf")
        e("global_load_dword v31, v30, s[16:17]")
        e.label("L_nopf")
    e("v_and_b32 v11, 31, v1")
    e("v_lshrrev_b32 v22, 5, v1")
    e("v_bfe_u32 v23, v1, 1, 3")
    e("v_xor_b32 v23, v23, v22")
    e("v_lshlrev_b32 v23, 4, v23")
    e("v_lshl_add_u32 v12, v11, 7, v23")
    e(f"v_add_u32 v12, {XT}, v12")
    for t in range(1, 4): e(f"v_xor_b32 v{12+t}, {32*t}, v12")
    su_w = ["v_lshrrev_b32 v22, 5, v1", "v_bfe_u32 v23, v1, 2, 2", "v_lshl_add_u32 v20, v22, 3, v23", "v_lshlrev_b32 v20, 7, v20",
            "v_bfe_u32 v23, v1, 3, 2", "v_xor_b32 v23, s44, v23", "v_lshl_add_u32 v20, v23, 5, v20", "v_bfe_u32 v24, v1, 4, 1",
            "v_lshl_add_u32 v20, v24, 13, v20", "v_and_b32 v23, 3, v1", "v_lshl_add_u32 v20, v23, 3, v20"]
    su_s = ["s_lshl_b32 s45, s29, 2", "s_add_u32 s45, s45, s44", "s_lshl_b32 s47, s28, 1", "s_xor_b32 s46, s40, 1",
            "s_add_u32 s47, s47, s46", "s_lshl_b32 s43, s47, 6", "s_add_u32 s43, s43, s45", "s_lshl_b32 s43, s43, 10",
            f"s_add_u32 s43, s43, {WS_OC+32*1024}",
            f"s_mov_b32 s74, {fbits(LOG2E)}", f"s_mov_b32 s75, {fbits(-LOG2E)}", f"s_mov_b32 s76, {fbits(0.25*LOG2E)}",
            "s_lshl_b32 s38, s44, 10", f"s_add_u32 s38, s38, {HND}", "v_add_u32 v28, s38, v10"]
    su_ws = ["s_waitcnt lgkmcnt(0)", f"s_load_dwordx2 s[78:79], s[72:73], {hex(WS_EPOCH)}",
             "s_mov_b32 s24, s72", "s_mov_b32 s25, s73", f"s_mov_b32 s26, {hex(WS_SIZE)}", "s_mov_b32 s27, 0x00020000"]
    su_ep = ["s_waitcnt lgkmcnt(0)", "s_add_u32 s78, s78, 1"]
    def su_id(n, I0):
        l = ["v_and_b32 v11, 31, v1", "v_lshrrev_b32 v22, 5, v1", "v_lshlrev_b32 v22, 2, v22", "v_sub_u32 v11, v11, v22",
             "v_mov_b32 v22, 0x3f80", "v_mov_b32 v23, 0x3f800000"]
        for sgn in range(n):
            for q in range(4):
                f0 = 16 * sgn + (2 * q if q < 2 else 8 + 2 * (q - 2))
                l += [f"v_cmp_eq_u32 vcc, {f0}, v11", f"v_cmp_eq_u32 s[38:39], {f0+1}, v11",
                      f"v_cndmask_b32 v{I0+4*sgn+q}, 0, v22, vcc", f"v_cndmask_b32 v{I0+4*sgn+q}, v{I0+4*sgn+q}, v23, s[38:39]"]
        return l
    Q = 4; NM = 8; O = 24; S = [40, 56]; PK = 72; KF = [80, 84]; VF = [144, 152]; AK = 2; AV = 3; T = 106
    U = 4; NIT = 16
    SEG = OPT.get("seg", (2, 8, 15, 16))
    ATT_SETUP = [f"v_mov_b32 v{AK}, v10", f"v_lshrrev_b32 v{T}, 5, v1", f"v_and_b32 v{AV}, 15, v1", f"v_lshlrev_b32 v{AV}, 4, v{AV}",
                 f"v_lshl_add_u32 v{AV}, v{T}, 8, v{AV}", f"v_add_u32 v{AV}, 1024, v{AV}", f"v_and_b32 v{T}, 27, v1",
                 f"v_mov_b32 v{T+1}, 0x3f803f80", f"v_cmp_eq_u32 vcc, 16, v{T}", "s_mov_b32 s20, 0xffff", "s_mov_b32 s21, 0xffff",
                 f"v_cndmask_b32 v{VF[0]}, 0, v{T+1}, vcc"] + [f"v_mov_b32 v{VF[0]+1}, v{VF[0]}"] + [f"v_mov_b64 {vr(VF[0]+i,2)}, {vr(VF[0],2)}" for i in range(2, 16, 2)] + \
                [f"s_mov_b32 s22, {SEG[0]}", "s_mov_b32 s23, 0"]
    def fr(buf, t):
        if buf == 0:
            b = 32 + 12 * t; return (b, b + 4, b + 8)
        return [(80, 84, 88), (128, 132, 136), (92, 140, 16), (4, 160, 164)][t]
    def reads(buf, g):
        l = []; p = g % 8; so = SLOT[g] & 0xffff; wa = 21 if g == 8 else 20
        for t in range(4):
            xa, xb, w = fr(buf, t)
            l.append(f"ds_read_b128 {vr(xa,4)}, v{12+t} offset:{p*8192}")
            for u in range(2):
                l.append(f"ds_read_b64_tr_b16 {vr(w+2*u,2)}, v{wa} offset:{so+(16*t+4*u)*128}")
            l.append(f"ds_read_b128 {vr(xb,4)}, v{12+t} offset:{p*8192+4096}")
        return l
    def mfmas(buf, first):
        l = []
        for t in range(4):
            xa, xb, w = fr(buf, t); z = first and t == 0
            l.append(mfma(ACC, w, xa, None if z else ACC))
            l.append(mfma(ACC + 16, w, xb, None if z else ACC + 16))
        return l
    def gpass(g0, first, last, extra={}):
        pend = None; NS = OPT.get("gspread", 5)
        for i in range(first, last + 1):
            e("s_barrier")
            mm = mfmas(pend & 1, pend == 0) if pend is not None else []
            todo = None
            for c in range(8):
                if USE[g0 + c] == i: todo = c
            if todo is not None:
                r = reads(todo & 1, g0 + todo)
                e.extend(spread(mm[:NS], r) + mm[NS:] if mm else r)
                e.extend(extra.get(i, []))
                e("s_waitcnt lgkmcnt(0)")
            else:
                e.extend(mm)
                e.extend(extra.get(i, []))
            pend = todo
        if pend is not None: e.extend(mfmas(pend & 1, False))
    PU = [32, 48]; PH = [64, 72]; TM = [80, 84]; VFR = [88, 92]
    e("s_cmp_lg_u32 s40, 0")
    e("s_cbranch_scc1 L_qwave")
    e(f"v_mov_b32 v26, {MISC}")
    for i in range(4): e(f"v_mov_b32 v{32+i}, 0")
    e("ds_write_b128 v26, v[32:35]")
    e("ds_write_b128 v26, v[32:35] offset:16")
    e.extend(su_w)
    e.extend(su_ws)
    wph = ["v_and_b32 v23, 15, v1", "v_lshlrev_b32 v23, 3, v23", "v_lshrrev_b32 v22, 5, v1", "v_lshl_add_u32 v25, v22, 7, v23",
           "s_lshl_b32 s38, s44, 9", f"s_add_u32 s38, s38, {WPH}", "v_add_u32 v25, s38, v25"]
    wpr = [f"ds_read_b64_tr_b16 {vr(WF+2*u,2)}, v25 offset:{u*256}" for u in range(2)]
    one = ["v_bfe_u32 v24, v1, 4, 1", f"v_mul_u32_u24 v{ONE}, 0x3f80, v24", f"v_lshl_or_b32 v{ONE}, v{ONE}, 16, v{ONE}"]
    xs = [i for i in range(8) if i not in USE.values() or i == USE[8] and i not in [USE[c] for c in range(8)]]
    idl = su_id(2, I0)
    KEND = USE[7] + 1
    kx = {xs[0]: su_s + wph, xs[1]: idl[:22], xs[2]: idl[22:] + one, xs[3]: su_ep + stamp(0), 9: wpr}
    if "pf8" in OPT:
        kx[OPT["pf8"]] = ["s_cmp_lt_u32 s44, 2", "s_cbranch_scc1 L_nopf8", "global_load_dword v31, v30, s[16:17]", "L_nopf8:"] + kx.get(OPT["pf8"], [])
    gpass(0, 0, KEND, kx)
    e.extend(stamp(1))
    k = []
    for u in range(2):
        for q in range(4): k.append(f"v_cvt_pk_bf16_f32 v{PH[u]+q}, v{ACC+16*u+2*q}, v{ACC+16*u+2*q+1}")
    for u in range(2): k.append(mfma(PU[u], WF, PH[u], None))
    for u in range(2):
        a = ACC + 16 * u
        for q in range(4): k.append(f"v_cvt_pk_bf16_f32 v{VFR[u]+q}, v{a+8+2*q}, v{a+8+2*q+1}")
    for u in range(2): k.append(mfma(ACC + 16 * u, VFR[u], I0, None))
    k += interleave(*[phi_unit(PU[u], TM[u], PH[u]) for u in range(2)])
    for u in range(2): k.append(mfma(PU[u], PH[u], I0, None))
    for u in range(2): k.append(mfma(PU[u], PH[u] + 4, I0 + 4, PU[u]))
    for u in range(2):
        a = ACC + 16 * u
        for q in range(8): k.append(f"v_cvt_pk_bf16_f32 v{a+q}, v{a+2*q}, v{a+2*q+1}")
        for q in range(8): k.append(f"v_or_b32 v{a+q}, v{a+q}, v{ONE}")
    for u in range(2):
        for q in range(8): k.append(f"v_cvt_pk_bf16_f32 v{PH[u]+q}, v{PU[u]+2*q}, v{PU[u]+2*q+1}")
    D3 = EACC
    for u in range(2):
        k.append(mfma(D3, PH[u], ACC + 16 * u, None if u == 0 else D3))
        k.append(mfma(D3, PH[u] + 4, ACC + 16 * u + 4, D3))
    PST = ["v_and_b32 v112, 31, v1", "v_lshlrev_b32 v112, 4, v112", "v_lshrrev_b32 v113, 5, v1", "v_lshl_add_u32 v112, v113, 14, v112",
          "s_lshl_b32 s38, s45, 17", "s_lshl_b32 s39, s28, 9", "s_add_u32 s38, s38, s39", f"s_add_u32 s38, s38, {WS_PART}"]
    for q in range(4):
        PST.append(f"buffer_store_dwordx4 {vr(D3+4*q,4)}, v112, s[24:27], s38 offen sc1")
        if q < 3: PST.append("s_add_u32 s38, s38, 32768")
    DEFER = OPT.get("defer", 1)
    if not DEFER: k += PST
    if not OPT.get("pk", 1): k = unpk(k)
    k = [x.strip() for x in fix_hazards(k, pre=mfmas(1, False))]
    def cost(x):
        if "mfma" in x: return 48
        if "v_exp" in x or "v_rcp" in x: return 8
        if "s_nop" in x: return 4 * (int(x.split()[1]) + 1)
        return 4
    NB = 20 - KEND
    acc = 260; nb = 0; LIM = OPT.get("klim", 140)
    for x in k:
        if nb < NB and acc + cost(x) > (LIM if nb < NB - 1 else OPT.get("klast", 300)):
            e("s_barrier"); nb += 1; acc = 0
            if nb == NB:
                e.extend(stamp(2)); e("s_setprio 2")
        e(x); acc += cost(x)
    while nb < NB:
        e("s_barrier"); nb += 1
    e("ds_read_b128 v[4:7], v28")
    e.extend(ATT_SETUP)
    e("s_branch L_attn")
    e.label("L_qwave")
    e.extend(su_w)
    e.extend(su_s)
    e.extend(ATT_SETUP)
    e("s_lshl_b32 s38, s44, 11")
    e(f"s_add_u32 s38, s38, {PHQ}")
    e("v_add_u32 v29, s38, v10")
    e("s_mov_b32 s41, 0")
    e.extend([x for x in su_ws if "s_load" not in x])
    e("s_cmp_eq_u32 s30, 6")
    e("s_cbranch_scc1 L_touch")
    e("s_cmp_eq_u32 s30, 7")
    e("s_cbranch_scc1 L_touch7")
    e("s_cmp_gt_u32 s29, 2")
    e("s_cbranch_scc1 L_qidle")
    e("s_lshl_b32 s38, s44, 12")
    for t in range(4): e(f"v_add_u32 v{16+t}, s38, v{12+t}")
    e("v_and_b32 v23, 15, v1")
    e("v_lshlrev_b32 v23, 3, v23")
    e("v_lshl_add_u32 v26, v22, 8, v23")
    e("v_lshlrev_b32 v27, 4, v22")
    e("s_lshl_b32 s42, s28, 1")
    e("s_add_u32 s42, s42, s44")
    e("s_cmp_eq_u32 s29, 2")
    e("s_cbranch_scc1 L_qgate")
    def extloop(gate):
        nbar = 0
        if not gate: e.extend(su_id(1, 160))
        def xr(p):
            B = 32 + 32 * (p % 3); va = 21 if p % 2 == 0 else 25
            l = [f"s_lshl_b32 s38, s31, {7 if gate else 11}", f"v_add_u32 v{va}, s38, v{27 if gate else 26}",
                 "s_add_u32 s31, s31, 1", "s_and_b32 s31, s31, 7"]
            r = []
            for t in range(4):
                r.append(f"ds_read_b128 {vr(B+8*t,4)}, v{16+t} offset:{p*8192}")
                if gate: r.append(f"ds_read_b128 {vr(B+8*t+4,4)}, v{va} offset:{t*32}")
                else:
                    for u in range(2): r.append(f"ds_read_b64_tr_b16 {vr(B+8*t+4+2*u,2)}, v{va} offset:{t*512+u*128}")
            return l, r
        def xm(p):
            B = 32 + 32 * (p % 3)
            return [mfma(EACC, B + 8 * t + 4, B + 8 * t, None if (p == 0 and t == 0) else EACC) for t in range(4)]
        n = 8 if gate else 12
        for p in range(0, 8, 2):
            a0, r0 = xr(p); a1, r1 = xr(p + 1)
            e.extend(a0 + a1)
            while nbar <= POS[f"x{p//2}"]:
                e("s_barrier"); nbar += 1
            e.extend(spread(xm(p - 1)[:3], r0 + r1) + xm(p - 1)[3:] if p else r0 + r1)
            e(f"s_waitcnt lgkmcnt({n})")
            e.extend(xm(p))
            e("s_waitcnt lgkmcnt(0)")
        while nbar <= XL + 1:
            e("s_barrier"); nbar += 1
        e.extend(xm(7))
    extloop(False)
    for q in range(4): e(f"v_cvt_pk_bf16_f32 v{EACC+q}, v{EACC+2*q}, v{EACC+2*q+1}")
    e("s_lshl_b32 s38, s42, 11")
    e("s_lshl_b32 s41, s44, 1")
    e("s_add_u32 s41, s41, s29")
    e("s_lshl_b32 s41, s41, 5")
    e("s_add_u32 s41, s41, s28")
    e(f"s_lshl_b32 s41, s41, {FS}")
    e(f"s_add_u32 s41, s41, {F1}")
    e("s_cmp_eq_u32 s29, 1")
    e("s_cbranch_scc1 L_qv")
    e(f"buffer_store_dwordx4 {vr(EACC,4)}, v10, s[24:27], s38 offen sc1")
    e("s_branch L_q5")
    e.label("L_qv")
    e("s_nop 1")
    e(mfma(32, EACC, 160, None))
    e("v_lshrrev_b32 v11, 5, v1")
    e("v_and_b32 v22, 15, v1")
    e("v_lshlrev_b32 v22, 4, v22")
    e("v_lshl_add_u32 v22, v11, 8, v22")
    for q in range(8): e(f"v_cvt_pk_bf16_f32 v{EACC+8+q}, v{32+2*q}, v{32+2*q+1}")
    e("s_mov_b32 exec_lo, 0xffff")
    e("s_mov_b32 exec_hi, 0xffff")
    e(f"buffer_store_dwordx4 {vr(EACC+8,4)}, v22, s[24:27], s38 offen offset:1024 sc1")
    e(f"buffer_store_dwordx4 {vr(EACC+12,4)}, v22, s[24:27], s38 offen offset:1536 sc1")
    e("s_mov_b64 exec, -1")
    e("s_branch L_q5")
    e.label("L_qgate")
    extloop(True)
    e(f"v_cvt_pk_bf16_f32 v11, v{EACC}, v{EACC}")
    e("v_and_b32 v11, 0xffff0000, v11")
    e("v_mul_f32 v11, s75, v11")
    e("v_exp_f32 v11, v11")
    e("v_add_f32 v11, 1.0, v11")
    e("v_rcp_f32 v11, v11")
    e("v_cvt_pk_bf16_f32 v11, v11, v11")
    e("v_and_b32 v11, 0xffff0000, v11")
    e("v_lshlrev_b32 v22, 2, v1")
    e("s_lshl_b32 s38, s42, 7")
    e(f"s_add_u32 s38, s38, {WS_GATE}")
    e("s_lshl_b32 s41, s42, 3")
    e(f"s_add_u32 s41, s41, {FG}")
    e("s_mov_b32 exec_hi, 0")
    e("buffer_store_dword v11, v22, s[24:27], s38 offen sc1")
    e("s_mov_b64 exec, -1")
    e("s_branch L_q5")
    SPF = OPT.get("spf", 0)
    FSTEP = XL + OPT.get("flat", 5)
    for wv in (6, 7):
        e.label("L_touch" if wv == 6 else "L_touch7")
        if SPF:
            pitch = 3072 if wv == 6 else 1024; p = 50 if wv == 6 else 58
            for ch in range(2):
                e(f"s_add_u32 s38, s31, {ch}")
                e("s_and_b32 s38, s38, 7")
                e(f"s_mul_i32 s38, s38, {64*pitch}")
                e("s_lshl_b32 s39, s29, 7")
                e("s_add_u32 s38, s38, s39")
                e(f"s_add_u32 s{4+2*ch}, s{p}, s38")
                e(f"s_addc_u32 s{5+2*ch}, s{p+1}, 0")
            ld = [f"s_load_dword s{8+(r&7)}, s[{4+2*(r>>6)}:{5+2*(r>>6)}], {(r&63)*pitch}" for r in range(64 * SPF)]
            n0 = OPT.get("spf0", 24); n1 = OPT.get("spf1", 5)
            e.extend(ld[:n0]); k_ = n0
            for i in range(FSTEP + 1):
                e("s_barrier")
                e.extend(ld[k_:k_ + n1]); k_ += n1
            e(f"v_add_u32 v21, {S5}, v20")
            e("s_branch L_noflag")
    e.label("L_qidle")
    for i in range(XL + 2): e("s_barrier")
    e.label("L_q5")
    e(su_ws[1])
    e(f"v_add_u32 v21, {S5}, v20")
    fl = Emitter()
    fl("s_cmp_eq_u32 s41, 0")
    fl("s_cbranch_scc1 L_noflag")
    fl.extend(su_ep)
    fl("s_waitcnt vmcnt(0)")
    flag_store(fl, "s41", 22)
    fl.label("L_noflag")
    gpass(8, XL + 2, 19, {FSTEP: fl.lines, USE[9] - 1: stamp(0) + ["s_setprio 1"]})
    e.extend(stamp(1))
    for u in (1, 0):
        a = ACC + 16 * u
        for i in range(8, 16, 2): e(f"v_pk_mul_f32 {vr(a+i,2)}, {vr(a+i,2)}, s[76:77] op_sel_hi:[1,0]")
        d = 76 if u else 4
        for q in range(4): e(f"v_cvt_pk_bf16_f32 v{d+q}, v{a+8+2*q}, v{a+8+2*q+1}")
        if u: e("ds_write_b128 v28, v[76:79]")
        for q in range(4): e(f"v_cvt_pk_bf16_f32 v{PH[u]+q}, v{a+2*q}, v{a+2*q+1}")
        e(f"ds_write_b128 v29, {vr(PH[u],4)} offset:{u*1024}")
    e("s_waitcnt lgkmcnt(0)")
    e.extend(stamp(2))
    e("s_barrier")
    e.label("L_attn")
    if OPT.get("rts"): e.extend(["s_memrealtime s[80:81]", "s_waitcnt lgkmcnt(0)", "s_sub_u32 s80, s80, s92", "s_add_u32 s80, s80, s94"])
    e.extend(stamp(3))
    e("s_setprio 2")
    e(f"ds_read_b128 {vr(KF[0],4)}, v{AK}")
    e(f"ds_read_b128 {vr(KF[1],4)}, v{AK} offset:2048")
    e("s_mov_b64 exec, s[20:21]")
    e(f"ds_read_b128 {vr(VF[0],4)}, v{AV}")
    e(f"ds_read_b128 {vr(VF[0]+4,4)}, v{AV} offset:512")
    e("s_mov_b64 exec, -1")
    for i in range(0, 16, 2): e(f"v_mov_b64 {vr(O+i,2)}, 0")
    for i in range(0, 4, 2): e(f"v_mov_b64 {vr(PK+4+i,2)}, 0")
    e("s_waitcnt lgkmcnt(0)")
    e(mfma(S[0], KF[0], Q, None))
    e(mfma(S[1], KF[1], Q, None))
    e(f"v_max3_f32 v{T}, v{S[0]}, v{S[0]+1}, v{S[0]+2}")
    rest = list(range(S[0] + 3, S[0] + 32))
    while len(rest) >= 2:
        e(f"v_max3_f32 v{T}, v{T}, v{rest[0]}, v{rest[1]}"); rest = rest[2:]
    if rest: e(f"v_max_f32 v{T}, v{T}, v{rest[0]}")
    def setnm():
        e(f"v_mov_b32 v{T+1}, v{T}")
        e(f"v_permlane32_swap_b32 v{T}, v{T+1}")
        e(f"v_max_f32 v{T}, v{T}, v{T+1}")
        for i in range(2): e(f"v_sub_f32 v{NM+i}, 0, v{T}")
        for i in range(2, 16, 2): e(f"v_mov_b64 {vr(NM+i,2)}, {vr(NM,2)}")
    setnm()
    e(mfma(S[0], KF[0], Q, NM))
    e("s_nop 7"); e("s_nop 1")
    body = Emitter()
    ex = lambda i: f"v_exp_f32 v{i}, v{i}"
    for j in range(U):
        a = j & 1; b = a ^ 1; Sa = S[a]
        cv = lambda q: f"v_cvt_pk_bf16_f32 v{PK+q}, v{Sa+2*q}, v{Sa+2*q+1}"
        body(mfma(S[b], KF[b], Q, NM))
        body(f"ds_read_b128 {vr(KF[a],4)}, v{AK} offset:{(j+2)*2048}")
        for i in range(7): body(ex(Sa + i))
        body(mfma(O, VF[b] + 4, PK + 4, O))
        body("s_mov_b64 exec, s[20:21]")
        body(f"ds_read_b128 {vr(VF[b],4)}, v{AV} offset:{(j+1)*2048}")
        body(f"ds_read_b128 {vr(VF[b]+4,4)}, v{AV} offset:{(j+1)*2048+512}")
        body("s_mov_b64 exec, -1")
        body(ex(Sa + 7)); body(ex(Sa + 8))
        for q in range(4): body(cv(q))
        body(ex(Sa + 9)); body(ex(Sa + 10))
        body("s_waitcnt lgkmcnt(3)")
        body(mfma(O, VF[a], PK, O))
        for i in range(11, 16): body(ex(Sa + i))
        if j == U - 1:
            body(f"v_add_u32 v{AK}, {U*2048}, v{AK}")
            body(f"v_add_u32 v{AV}, {U*2048}, v{AV}")
            body("s_add_u32 s23, s23, 1")
            body("s_cmp_lt_u32 s23, s22")
        for q in range(4, 8): body(cv(q))
        body("s_waitcnt lgkmcnt(2)")
    rep = []
    fix_hazards(body.lines, pre=body.lines, report=rep)
    assert not rep, rep
    e(".p2align 6")
    e.label("L_loop")
    if OPT.get("trace") == 3:
        e.extend(["s_memtime s[96:97]", "s_waitcnt lgkmcnt(0)", "s_sub_u32 s96, s96, s94", "s_lshl_b32 s97, s23, 1", "s_add_u32 m0, s97, 1", "v_writelane_b32 v111, s96, m0"])
    e.extend(body.lines)
    e("s_cbranch_scc1 L_loop")
    e(f"s_cmp_lg_u32 s22, {SEG[3]}")
    e("s_cbranch_scc1 L_seg")
    e(mfma(O, VF[1] + 4, PK + 4, O))
    if OPT.get("rts"): e.extend(["s_memrealtime s[82:83]", "s_waitcnt lgkmcnt(0)", "s_sub_u32 s82, s82, s92", "s_add_u32 s82, s82, s94"])
    e.extend(stamp(4))
    e(f"ds_read_b32 v{T+4}, v{T+4}")
    if OPT.get("late", 0):
        e("s_mov_b64 exec, 1")
        e(f"ds_add_u32 v{T+6}, v{T+7}")
        e("s_mov_b64 exec, -1")
    e(f"v_lshlrev_b32 v{AK}, 4, v1")
    e(f"v_fma_f32 v{T+1}, v{O}, 0, v{O+8}")
    e(f"v_mul_f32 v{T+3}, 0, v{O+1}")
    e(f"v_rcp_f32 v{T}, v{O+8}")
    for i in range(2, 8): e(f"v_fma_f32 v{T+1+2*(i&1)}, v{O+i}, 0, v{T+1+2*(i&1)}")
    e(f"v_add_f32 v{T+1}, v{T+1}, v{T+3}")
    e(f"v_cmp_ngt_f32 vcc, s39, v{T+1}")
    e("s_cbranch_vccnz L_fallback")
    e.label("L_fin")
    e(f"v_mul_f32 v{T}, v{T}, v{T+2}")
    for i in range(0, 8, 2): e(f"v_pk_mul_f32 {vr(O+i,2)}, {vr(O+i,2)}, {vr(T,2)} op_sel_hi:[1,0]")
    for q in range(4): e(f"v_cvt_pk_bf16_f32 v{O+q}, v{O+2*q}, v{O+2*q+1}")
    e("s_waitcnt lgkmcnt(0)")
    e(f"v_cmp_eq_u32 vcc, 0, v{T+4}")
    e("s_cbranch_vccnz L_far")
    e(f"buffer_store_dwordx4 {vr(O,4)}, v{AK}, s[24:27], s43 offen")
    if OPT["stamp"] == 1: e("s_branch L_cend")
    else: e("s_endpgm")
    e.label("L_far")
    e(f"buffer_store_dwordx4 {vr(O,4)}, v{AK}, s[24:27], s43 offen sc1")
    e.label("L_cend")
    e.extend(stamp(5))
    if OPT.get("trace") == 3: e("v_mov_b32 v159, v111")
    if OPT["stamp"] == 1: stamp_end(e, 40)
    e("s_endpgm")
    e.label("L_seg")
    e(f"s_cmp_eq_u32 s22, {SEG[1]}")
    e("s_cbranch_scc1 L_seg1")
    e(f"s_cmp_gt_u32 s22, {SEG[1]}")
    e("s_cbranch_scc1 L_seg2")
    if DEFER:
        e(f"s_cmp_lg_u32 s22, {SEG[0]}")
        e("s_cbranch_scc1 L_segf")
        lds_wait(e, C_KVALL, 4, T, sleep=1)
        e(f"s_mov_b32 s22, {SEG[1]}")
        e("s_cmp_lg_u32 s40, 0")
        e("s_cbranch_scc1 L_loop")
        e.extend(PST)
        e(f"s_mov_b32 s22, {SEG[0] + OPT.get('fgap', 2)}")
        e("s_branch L_loop")
        e.label("L_segf")
    e(f"s_mov_b32 s22, {SEG[1]}")
    if not DEFER:
        e("s_cmp_lg_u32 s40, 0")
        e("s_cbranch_scc1 L_seg0b")
    e("s_lshl_b32 s38, s45, 5")
    e("s_add_u32 s38, s38, s28")
    e("s_lshl_b32 s38, s38, 3")
    e(f"s_add_u32 s38, s38, {F3}")
    e("s_waitcnt vmcnt(0)")
    flag_store(e, "s38", T)
    e.label("L_seg0b")
    if not DEFER: lds_wait(e, C_KVALL, 4, T, sleep=1)
    e("s_branch L_loop")
    e.label("L_seg1")
    e(f"s_mov_b32 s22, {SEG[2]}")
    lds_add(e, C_PROG, T)
    lds_wait(e, C_GOK, 4, T)
    e("s_lshl_b32 s38, s46, 7")
    e(f"s_add_u32 s38, s38, {C_GATE}")
    e(f"v_and_b32 v{T}, 31, v1")
    e(f"v_lshl_add_u32 v{T}, v{T}, 2, s38")
    e(f"ds_read_b32 v{T+2}, v{T}")
    e(f"v_mov_b32 v{T+4}, {C_LOC}")
    e(f"v_mov_b32 v{T+6}, {C_DONE}")
    e(f"v_mov_b32 v{T+7}, 1")
    e(f"s_mov_b32 s39, {fbits(2.0**120)}")
    e("s_waitcnt lgkmcnt(0)")
    e(f"v_sub_f32 v{T+2}, 1.0, v{T+2}")
    e(f"v_cvt_pk_bf16_f32 v{T+2}, v{T+2}, v{T+2}")
    e(f"v_and_b32 v{T+2}, 0xffff0000, v{T+2}")
    e("s_cmp_lg_u32 s40, 0")
    e("s_cbranch_scc1 L_loop")
    e("s_setprio 1")
    e(f"s_mov_b32 s22, {OPT.get('kdrop', 16)}")
    e("s_branch L_loop")
    e.label("L_seg2")
    e(f"s_mov_b32 s22, {SEG[3]}")
    e("s_setprio 1")
    e("s_cmp_lg_u32 s40, 0")
    e("s_cbranch_scc1 L_loop")
    e("s_setprio 0")
    e("s_branch L_loop")
    e.label("L_fallback")
    e("s_waitcnt lgkmcnt(0)")
    e(f"v_add_u32 v{AV}, {-64*2048 & 0xffffffff}, v{AV}")
    e(f"v_mov_b32 v{T}, 0xff800000")
    e("s_mov_b32 s38, 0")
    e.label("L_fb1")
    e(f"buffer_load_dwordx4 {vr(KF[0],4)}, v{AK}, s[24:27], s38 offen sc1")
    e("s_add_u32 s38, s38, 2048")
    e("s_waitcnt vmcnt(0)")
    e(mfma(S[0], KF[0], Q, None))
    for i in range(8): e(f"v_max3_f32 v{T}, v{T}, v{S[0]+2*i}, v{S[0]+2*i+1}")
    e("s_cmp_lt_u32 s38, 0x20000")
    e("s_cbranch_scc1 L_fb1")
    setnm()
    for i in range(16): e(f"v_mov_b32 v{O+i}, 0")
    e("s_mov_b32 s38, 0")
    e.label("L_fb2")
    e(f"buffer_load_dwordx4 {vr(KF[0],4)}, v{AK}, s[24:27], s38 offen sc1")
    e("s_mov_b64 exec, s[20:21]")
    e(f"buffer_load_dwordx4 {vr(VF[0],4)}, v{AV}, s[24:27], s38 offen sc1")
    e(f"buffer_load_dwordx4 {vr(VF[0]+4,4)}, v{AV}, s[24:27], s38 offen offset:512 sc1")
    e("s_mov_b64 exec, -1")
    e("s_add_u32 s38, s38, 2048")
    e("s_waitcnt vmcnt(0)")
    e(mfma(S[0], KF[0], Q, NM))
    for i in range(16): e(ex(S[0] + i))
    for q in range(8): e(f"v_cvt_pk_bf16_f32 v{PK+q}, v{S[0]+2*q}, v{S[0]+2*q+1}")
    e(mfma(O, VF[0], PK, O))
    e(mfma(O, VF[0] + 4, PK + 4, O))
    e("s_nop 7")
    e("s_cmp_lt_u32 s38, 0x20000")
    e("s_cbranch_scc1 L_fb2")
    e("s_nop 7"); e("s_nop 7")
    e(f"v_rcp_f32 v{T}, v{O+8}")
    e("s_branch L_fin")
    return fix_hazards(e.lines if OPT.get("pk", 1) else unpk(e.lines))

def build():
    hdr = open("cdna_kernels/%s.s.ref" % NAME).read().split("\n")
    hdr = [l for l in hdr if l.startswith(";") and "@launch" not in l]
    out = list(hdr)
    out.append(f"; @launch grid=(256,1,1) block=(768,1,1) lds={LDS_BYTES}")
    out.append('.amdgcn_target "amdgcn-amd-amdhsa--gfx950"')
    out.append(".text")
    k = NAME + "_kernel"
    out += [f".globl {k}", ".p2align 8", f".type {k},@function", f"{k}:"]
    out += gen()
    out.append('.section .rodata,"a"')
    out.append(f""".p2align 6
.amdhsa_kernel {k}
  .amdhsa_next_free_vgpr 168
  .amdhsa_next_free_sgpr {102 if OPT['stamp'] else 80}
  .amdhsa_accum_offset 168
  .amdhsa_group_segment_fixed_size 0
  .amdhsa_kernarg_size 104
  .amdhsa_user_sgpr_count 2
  .amdhsa_user_sgpr_kernarg_segment_ptr 1
  .amdhsa_system_sgpr_workgroup_id_x 1
.end_amdhsa_kernel
""")
    return "\n".join(out) + "\n"

if __name__ == "__main__":
    dst = "f.s"
    for a in sys.argv[1:]:
        k, v = a.split("=")
        if k == "out": dst = v
        elif "," in v: OPT[k] = tuple(int(x) for x in v.split(","))
        else: OPT[k] = int(v)
    open(dst, "w").write(build())
    print("wrote", dst)
```

```python
import sys, math, struct
from asmlib import *

NAME = "gated_mix__linear_kernel_hedgehog__grouped_kv_mqa__prompt"
WS_KVB  = 0x000000
WS_GATE = 0x020000
WS_FL   = 0x024000
F1 = WS_FL + 0x8000; FG = WS_FL + 0x400; F3 = WS_FL + 0x1000; F3P = WS_FL + 0x3000; F4 = WS_FL + 0x4000
WS_EPOCH = WS_FL + 0x800
FP = WS_FL + 0x4000
WS_KVF  = 0x030000
WS_PART = 0x100000
WS_OC   = 0x500000
WS_STAMP = 0x900000
WS_SIZE = 0xB00000
XT = 65536; EXT = 0; S5 = 131072; PHQ = 131072; HND = 147456; WPH = 155648; MISC = 157696
LDS_BYTES = 158720
C_KVALL = MISC; C_PROG = MISC + 4; C_HS = MISC + 8; C_GOK = MISC + 12; C_LOC = MISC + 16; C_DONE = MISC + 20; C_GATE = MISC + 64

def fbits(x): return "0x%08x" % struct.unpack("<I", struct.pack("<f", x))[0]
LOG2E = math.log2(math.e)
OPT = dict(map=1, rot=3, pf=4, dep=4, round_pq=0, stamp=0, spin=1 << 16)

def srd(e, d, lo, nbytes):
    e(f"s_mov_b32 s{d}, s{lo}")
    e(f"s_mov_b32 s{d+1}, s{lo+1}")
    e(f"s_mov_b32 s{d+2}, {hex(nbytes)}")
    e(f"s_mov_b32 s{d+3}, 0x00020000")

def stamp_begin(e):
    if OPT["stamp"]:
        e("s_memrealtime s[92:93]")
        e("s_memtime s[94:95]")
        for k in range(6): e(f"s_mov_b32 s{80+2*k}, 0")
def stamp(k):
    return [f"s_memtime s[{80+2*k}:{81+2*k}]"] if OPT["stamp"] else []
def trace(idx):
    if not OPT.get("trace"): return []
    return ["s_memtime s[96:97]", "s_waitcnt lgkmcnt(0)", "s_sub_u32 s96, s96, s94", f"v_writelane_b32 v159, s96, {idx}"]
def stamp_end(e, vt):
    if OPT.get("trace"):
        e(f"v_lshlrev_b32 v{vt}, 2, v0")
        e("s_mul_i32 s100, s2, 3072")
        e(f"s_add_u32 s100, s100, {WS_STAMP + 0x40000}")
        e(f"buffer_store_dword v159, v{vt}, s[24:27], s100 offen")
    if OPT["stamp"]:
        e("s_waitcnt vmcnt(0)")
        e("s_memrealtime s[96:97]")
        e("s_memtime s[98:99]")
        e("s_waitcnt lgkmcnt(0)")
        for r in (98, 80, 82, 84, 86, 88, 90): e(f"s_sub_u32 s{r}, s{r}, s94")
        e(f"v_lshrrev_b32 v{vt+12}, 6, v0")
        e(f"v_lshlrev_b32 v{vt+12}, 6, v{vt+12}")
        e("s_lshl_b32 s100, s2, 10")
        e(f"s_add_u32 s100, s100, {WS_STAMP}")
        for i, r in enumerate((92, 96, 98, 80, 82, 84, 86, 88, 90, 90, 90, 90)):
            e(f"v_mov_b32 v{vt+i}, s{r}")
        for q in range(3):
            e(f"buffer_store_dwordx4 v[{vt+4*q}:{vt+4*q+3}], v{vt+12}, s[24:27], s100 offen offset:{16*q}")

def phi_unit(P, T, O):
    l = []
    if OPT["round_pq"]:
        for q in range(4): l.append(f"v_cvt_pk_bf16_f32 v{P+8+q}, v{P+2*q}, v{P+2*q+1}")
        for q in range(4):
            l.append(f"v_lshlrev_b32 v{P+2*q}, 16, v{P+8+q}")
            l.append(f"v_and_b32 v{P+2*q+1}, 0xffff0000, v{P+8+q}")
    A = T; B = T + 2
    l += [f"v_max3_f32 v{A}, v{P}, v{P+1}, v{P+2}",
          f"v_max3_f32 v{B}, -v{P}, -v{P+1}, -v{P+2}",
          f"v_max3_f32 v{A}, v{A}, v{P+3}, v{P+4}",
          f"v_max3_f32 v{B}, v{B}, -v{P+3}, -v{P+4}",
          f"v_max3_f32 v{A}, v{A}, v{P+5}, v{P+6}",
          f"v_max3_f32 v{B}, v{B}, -v{P+5}, -v{P+6}",
          f"v_max_f32 v{A}, v{A}, v{P+7}",
          f"v_max_f32_e64 v{B}, v{B}, -v{P+7}",
          f"v_permlane32_swap_b32 v{A}, v{B}",
          f"v_max_f32 v{A}, v{A}, v{B}",
          f"v_mul_f32 v{A}, s75, v{A}",
          f"v_mov_b32 v{B}, v{A}",
          f"v_permlane32_swap_b32 v{A}, v{B}"]
    if OPT.get("pk", 1):
        for i in range(0, 8, 2):
            l.append(f"v_pk_fma_f32 {vr(P+8+i,2)}, {vr(P+i,2)}, s[74:75], {vr(B,2)} op_sel_hi:[1,0,0] neg_lo:[1,0,0] neg_hi:[1,0,0]")
            l.append(f"v_pk_fma_f32 {vr(P+i,2)}, {vr(P+i,2)}, s[74:75], {vr(A,2)} op_sel_hi:[1,0,0]")
    else:
        for i in range(8):
            l.append(f"v_fma_f32 v{P+8+i}, -v{P+i}, s74, v{B}")
            l.append(f"v_fma_f32 v{P+i}, v{P+i}, s74, v{A}")
    for i in range(16): l.append(f"v_exp_f32 v{P+i}, v{P+i}")
    for sg in range(2):
        l.append(f"v_pk_add_f32 {vr(O+4*sg,2)}, {vr(P+8*sg,2)}, {vr(P+8*sg+2,2)}")
        l.append(f"v_pk_add_f32 {vr(O+4*sg+2,2)}, {vr(P+8*sg+4,2)}, {vr(P+8*sg+6,2)}")
    for sg in range(2):
        l.append(f"v_pk_add_f32 {vr(O+4*sg,2)}, {vr(O+4*sg,2)}, {vr(O+4*sg+2,2)}")
    for sg in range(2):
        l.append(f"v_add_f32 v{T+2*sg}, v{O+4*sg}, v{O+4*sg+1}")
    l += [f"v_permlane32_swap_b32 v{A}, v{B}",
          f"v_add_f32 v{A}, v{A}, v{B}",
          f"v_rcp_f32 v{A}, v{A}",
          f"v_mov_b32 v{B}, v{A}",
          f"v_permlane32_swap_b32 v{A}, v{B}"]
    for i in range(0, 8, 2):
        l.append(f"v_pk_mul_f32 {vr(P+i,2)}, {vr(P+i,2)}, {vr(A,2)} op_sel_hi:[1,0]")
        l.append(f"v_pk_mul_f32 {vr(P+8+i,2)}, {vr(P+8+i,2)}, {vr(B,2)} op_sel_hi:[1,0]")
    for q in range(8): l.append(f"v_cvt_pk_bf16_f32 v{O+q}, v{P+2*q}, v{P+2*q+1}")
    return l

import re as _re
def unpk(lines):
    out = []
    for l in lines:
        m = _re.match(r"\s*v_pk_(add|mul)_f32 v\[(\d+):\d+\], v\[(\d+):\d+\], ([vs])\[(\d+):\d+\](.*)", l)
        if not m: out.append(l); continue
        op, d, a, k, b, mods = m.group(1), int(m.group(2)), int(m.group(3)), m.group(4), int(m.group(5)), m.group(6)
        bc = "op_sel_hi:[1,0]" in mods
        assert mods.strip() in ("", "op_sel_hi:[1,0]"), l
        for i in range(2):
            out.append(f"    v_{op}_f32 v{d+i}, {k}{b if bc else b+i}, v{a+i}")
    return out

def spread(mm, r):
    out = []; n = len(mm); k = 0
    for i, x in enumerate(mm):
        out.append(x)
        hi = (len(r) * (i + 1) + n - 1) // n
        out += r[k:hi]; k = max(k, hi)
    return out + r[k:]

_uid = [0]
def uid(p):
    _uid[0] += 1
    return f"{p}_{_uid[0]}"

def flag_store(e, soff, vt):
    e(f"v_mov_b32 v{vt}, s78")
    e(f"v_mov_b32 v{vt+1}, s79")
    e(f"v_mov_b32 v{vt+2}, 0")
    e("s_mov_b64 exec, 1")
    e(f"buffer_store_dwordx2 {vr(vt,2)}, v{vt+2}, s[24:27], {soff} offen sc1")
    e("s_mov_b64 exec, -1")

def flag_poll(e, vaddr, vt, sleep=4):
    L = uid("FP"); D = uid("FD")
    e("s_mov_b32 s77, 0")
    e.label(L)
    e(f"buffer_load_dwordx2 {vr(vt,2)}, v{vaddr}, s[24:27], 0 offen sc1")
    e("s_add_u32 s77, s77, 1")
    e("s_waitcnt vmcnt(0)")
    e(f"v_cmp_ne_u64 vcc, s[78:79], {vr(vt,2)}")
    e(f"s_cbranch_vccz {D}")
    e(f"s_cmp_gt_u32 s77, {OPT['spin']}")
    e(f"s_cbranch_scc1 {D}")
    if sleep: e(f"s_sleep {sleep}")
    e(f"s_branch {L}")
    e.label(D)

def lds_add(e, addr, vt):
    e(f"v_mov_b32 v{vt}, {addr}")
    e(f"v_mov_b32 v{vt+1}, 1")
    e("s_mov_b64 exec, 1")
    e(f"ds_add_u32 v{vt}, v{vt+1}")
    e("s_mov_b64 exec, -1")

def lds_wait(e, addr, target, vt, sleep=4):
    L = uid("LW"); D = uid("LD")
    e(f"v_mov_b32 v{vt}, {addr}")
    e("s_mov_b32 s77, 0")
    e.label(L)
    e(f"ds_read_b32 v{vt+1}, v{vt}")
    e("s_add_u32 s77, s77, 1")
    e("s_waitcnt lgkmcnt(0)")
    e(f"v_cmp_gt_u32 vcc, {target}, v{vt+1}")
    e(f"s_cbranch_vccz {D}")
    e(f"s_cmp_gt_u32 s77, {OPT['spin']*8}")
    e(f"s_cbranch_scc1 {D}")
    e(f"s_sleep {sleep}")
    e(f"s_branch {L}")
    e.label(D)

def gen():
    e = Emitter()
    ORD = {0: "x0 x1 x2 x3 w0 w1 w2 w3 w4 w5 w6 w7 w8",
           1: "x0 x1 x2 x3 w0 w8",
           2: "x0 w0 w8 x1 x2 x3",
           3: "x0 w0 x1 x2 x3 w8",
           4: "x0 x1 w0 x2 x3 w8",
           5: "x0 x1 x2 w0 x3 w8",
           6: "x0 w0 x1 w8 x2 x3"}[OPT.get("ord", 0)].split()
    ORD += [f"w{g}" for g in range(16) if f"w{g}" not in ORD]
    POS = {n: i for i, n in enumerate(ORD)}
    XL = POS["x3"]
    ring = [n for n in ORD if n[0] == "w" and n != "w8"]
    SLOT = {int(n[1:]): ((r + 1) % 4) * 16384 for r, n in enumerate(ring)}
    SLOT[8] = S5
    USE = {}; last = -1
    for c in range(8):
        last = max(POS[f"w{c}"], POS[f"x{c//2}"], last + 1); USE[c] = last
    last = XL + 1
    for c in range(8, 16):
        last = max(POS[f"w{c}"], last + 1); USE[c] = last
    assert USE[15] == 19
    e("s_cmp_ge_u32 s2, 256")
    e("s_cbranch_scc1 L_done")
    e("s_load_dwordx16 s[48:63], s[0:1], 0")
    e("s_load_dwordx8 s[64:71], s[0:1], 64")
    e("s_load_dwordx2 s[72:73], s[0:1], 96")
    stamp_begin(e)
    if OPT.get("trace"): e("v_mov_b32 v159, 0")
    e("v_and_b32 v1, 63, v0")
    e("v_lshrrev_b32 v11, 6, v0")
    e("v_readfirstlane_b32 s30, v11")
    e("s_and_b32 s36, s2, 7")
    e("s_lshr_b32 s37, s2, 3")
    lc = {0: 1, 1: 2, 2: 3}[OPT["map"]]
    e(f"s_and_b32 s29, s36, {(8>>lc)-1}")
    e(f"s_lshl_b32 s29, s29, {lc}")
    e(f"s_lshr_b32 s38, s37, {5-lc}")
    e("s_or_b32 s29, s29, s38")
    e(f"s_lshr_b32 s28, s36, {3-lc}")
    e(f"s_lshl_b32 s28, s28, {5-lc}")
    e(f"s_and_b32 s38, s37, {(32>>lc)-1}")
    e("s_add_u32 s28, s28, s38")
    if OPT["rot"] == 1:
        e("s_add_u32 s31, s28, s29"); e("s_lshl_b32 s31, s31, 1"); e("s_and_b32 s31, s31, 6")
    elif OPT["rot"] == 3:
        e("s_lshl_b32 s31, s29, 1"); e("s_add_u32 s31, s31, s28"); e("s_and_b32 s31, s31, 7")
    elif OPT["rot"] == 4:
        e("s_add_u32 s31, s28, s29"); e("s_and_b32 s31, s31, 7")
    elif OPT["rot"] == 5:
        e("s_lshl_b32 s31, s28, 1"); e("s_add_u32 s31, s31, s29"); e("s_and_b32 s31, s31, 7")
    elif OPT["rot"] == 6:
        e("s_lshl_b32 s31, s28, 1"); e("s_add_u32 s31, s31, s29"); e("s_add_u32 s31, s31, s36"); e("s_and_b32 s31, s31, 7")
    elif OPT["rot"] == 2:
        e("s_add_u32 s31, s28, s29"); e("s_lshl_b32 s31, s31, 2"); e("s_and_b32 s31, s31, 4")
    else:
        e("s_mov_b32 s31, 0")
    e("v_lshlrev_b32 v10, 4, v1")
    if OPT.get("lf", 0):
        e("s_sub_u32 s30, s30, 4")
        e("s_cbranch_scc0 L_compute")
        e("s_add_u32 s30, s30, 12")
    else:
        e("s_cmp_lt_u32 s30, 8")
        e("s_cbranch_scc1 L_compute")
    e("s_setprio 3")
    e("s_sub_u32 s30, s30, 8")
    e("v_lshrrev_b32 v11, 3, v1")
    e("v_and_b32 v12, 7, v1")
    e("v_lshrrev_b32 v13, 4, v1")
    e("v_xor_b32 v14, v12, v13")
    e("v_lshlrev_b32 v14, 4, v14")
    e("v_lshl_add_u32 v2, v11, 10, v14")
    e("v_xor_b32 v3, 64, v2")
    e("v_add_u32 v3, 7168, v3")
    e("s_lshl_b32 s32, s28, 16")
    e("s_lshl_b32 s38, s30, 14")
    e("s_add_u32 s32, s32, s38")
    e("s_lshl_b32 s41, s30, 11")
    e("s_lshl_b32 s40, s30, 12")
    e("s_mov_b32 s36, s31")
    e("v_and_b32 v13, 1, v13")
    e("v_lshlrev_b32 v13, 1, v13")
    e("v_xor_b32 v14, v12, v13")
    e("v_lshlrev_b32 v14, 4, v14")
    e("v_mul_u32_u24 v6, 3072, v11")
    e("v_add_u32 v6, v6, v14")
    e(f"v_add_u32 v7, {8*3072-1024}, v6")
    e("v_xor_b32 v8, 64, v6")
    e(f"v_add_u32 v9, {8*3072-1024}, v8")
    e("s_lshl_b32 s38, s29, 7")
    e("s_mul_i32 s33, s30, 49152")
    e("s_add_u32 s33, s33, s38")
    e("v_xor_b32 v14, 64, v14")
    e("v_lshl_add_u32 v4, v11, 10, v14")
    e("v_add_u32 v5, 7168, v4")
    e("s_lshl_b32 s34, s30, 14")
    e("s_add_u32 s34, s34, s38")
    e("s_waitcnt lgkmcnt(0)")
    e.extend(trace(60))
    srd(e, 4, 48, 2048*512*2)
    srd(e, 8, 50, 512*1536*2)
    srd(e, 12, 58, 512*512*2)
    e("s_cmp_gt_u32 s29, 2")
    e("s_cbranch_scc1 L_noext")
    e("s_cmp_eq_u32 s29, 0")
    e("s_cselect_b32 s16, s60, s62")
    e("s_cselect_b32 s17, s61, s63")
    e("s_cmp_eq_u32 s29, 2")
    e("s_cselect_b32 s16, s66, s16")
    e("s_cselect_b32 s17, s67, s17")
    e("s_mov_b32 s18, 16384")
    e("s_cselect_b32 s18, 1024, s18")
    e("s_mov_b32 s19, 0x00020000")
    e("s_mov_b32 m0, s40")
    for i in range(4):
        e(f"buffer_load_dwordx4 v10, s[16:19], s40 offen offset:{i*1024} lds")
    e.label("L_noext")
    def item(i):
        l = []; nm = ORD[i]; idx = int(nm[1:])
        if nm[0] == "x":
            for q in range(2):
                l.append("s_lshl_b32 s38, s31, 7")
                l.append("s_add_u32 s38, s38, s32")
                l.append(f"s_add_u32 m0, s41, {XT + (2*idx+q)*8192}")
                l.append("s_add_u32 s31, s31, 1")
                for k in range(2):
                    l.append(f"buffer_load_dwordx4 v{2+k}, s[4:7], s38 offen offset:{k*1024} lds")
                l.append("s_and_b32 s31, s31, 7")
        else:
            g = idx
            l.append(f"s_add_u32 s35, s36, {g % 8}")
            l.append("s_and_b32 s35, s35, 7")
            l.append("s_mul_i32 s39, s35, 196608")
            l.append("s_add_u32 s39, s39, s33")
            l.append(f"s_add_u32 m0, s41, {SLOT[g]}")
            if g < 8: l.append("s_add_u32 s39, s39, 1024")
            else: l.append("s_lshl_b32 s38, s35, 16")
            for k in range(2):
                l.append(f"buffer_load_dwordx4 v{6+k}, s[8:11], s39 offen offset:{k*1024} lds")
            l.append(f"s_add_u32 m0, s41, {SLOT[g]+8192}")
            if g < 8:
                l.append("s_add_u32 s39, s39, 1024")
                for k in range(2):
                    l.append(f"buffer_load_dwordx4 v{8+k}, s[8:11], s39 offen offset:{k*1024} lds")
            else:
                l.append("s_add_u32 s38, s38, s34")
                for k in range(2):
                    l.append(f"buffer_load_dwordx4 v{4+k}, s[12:15], s38 offen offset:{k*1024} lds")
        return l
    def earliest(i):
        nm = ORD[i]; idx = int(nm[1:])
        if nm[0] == "x" or idx == 8: return -1
        r = ring.index(nm)
        if r < 3: return -1
        if r == 3: return XL + 1
        return USE[int(ring[r - 4][1:])] + 1
    DEP = OPT.get("dep", 3)
    for i in range(DEP): e.extend(item(i))
    e.extend(trace(61))
    e(f"s_load_dwordx2 s[78:79], s[72:73], {hex(WS_EPOCH)}")
    srd(e, 20, 52, 32*16*16*2)
    srd(e, 24, 72, WS_SIZE)
    e("s_and_b32 s46, s30, 1")
    e("s_lshr_b32 s47, s30, 1")
    e("v_bfe_u32 v13, v1, 4, 1")
    e("v_lshlrev_b32 v15, 2, v13")
    e("v_xor_b32 v15, v12, v15")
    e("v_lshlrev_b32 v15, 4, v15")
    e("v_lshl_add_u32 v144, v11, 10, v15")
    for k in range(1, 4): e(f"v_add_u32 v{144+k}, {k*7168}, v144")
    e("v_lshrrev_b32 v16, 5, v1")
    e("v_bfe_u32 v15, v1, 2, 2")
    e("v_lshl_add_u32 v148, v16, 2, v15")
    e("v_lshlrev_b32 v148, 7, v148")
    e("v_lshrrev_b32 v15, 1, v15")
    e("v_xor_b32 v15, s47, v15")
    e("v_lshl_add_u32 v148, v15, 6, v148")
    e("v_lshl_add_u32 v148, v13, 5, v148")
    e("v_and_b32 v15, 3, v1")
    e("v_lshl_add_u32 v148, v15, 3, v148")
    e("s_lshl_b32 s38, s47, 15")
    e("v_add_u32 v148, s38, v148")
    e("v_xor_b32 v149, 64, v148")
    e(f"s_add_u32 s38, s40, {PHQ}")
    e("v_add_u32 v150, s38, v10")
    e("v_xor_b32 v151, 0x2000, v150")
    e("v_and_b32 v155, 31, v1")
    e("v_lshlrev_b32 v152, 10, v155")
    e("v_lshl_add_u32 v152, v16, 4, v152")
    e("v_lshlrev_b32 v155, 2, v155")
    e("v_and_b32 v153, 15, v1")
    e("v_lshlrev_b32 v153, 3, v153")
    e("v_lshl_add_u32 v153, v16, 7, v153")
    e("s_lshl_b32 s38, s30, 9")
    e(f"s_add_u32 s38, s38, {WPH}")
    e("v_add_u32 v153, s38, v153")
    e(f"s_add_u32 s38, s41, {PHQ}")
    e("v_add_u32 v154, s38, v10")
    e("v_lshlrev_b32 v156, 3, v1")
    e("s_getreg_b32 s37, hwreg(HW_REG_XCC_ID, 0, 4)")
    e(f"s_mov_b32 s74, {fbits(LOG2E)}")
    e(f"s_mov_b32 s75, {fbits(-LOG2E)}")
    e("v_and_b32 v15, 31, v1")
    FS = OPT.get("fs", 3)
    e(f"v_lshlrev_b32 v15, {FS}, v15")
    e(f"s_lshl_b32 s38, s30, {FS+5}")
    e(f"s_add_u32 s38, s38, {F1}")
    e("v_add_u32 v15, s38, v15")
    e("s_lshl_b32 s42, s30, 10")
    assert WS_KVB == 0
    def kvdma(n):
        l = []
        for _ in range(n):
            l.append("s_mov_b32 m0, s42")
            l.append("s_nop 0")
            l.append("buffer_load_dwordx4 v10, s[24:27], s42 offen sc1 lds")
            l.append("s_add_u32 s42, s42, 4096")
        return l
    out = []
    e("s_and_b32 s38, s30, 1")
    e("s_lshl_b32 s38, s38, 10")
    e(f"s_add_u32 m0, s38, {WPH}")
    e("s_lshl_b32 s39, s29, 11")
    e("s_add_u32 s38, s38, s39")
    e("buffer_load_dwordx4 v10, s[20:23], s38 offen lds")
    for i in range(DEP): out += [i] * 4
    out.append("w")
    nxt = DEP
    def waitfor(tag):
        idx = max(k for k, t in enumerate(out) if t == tag)
        n = len(out) - 1 - idx
        del out[:idx + 1]
        return f"s_waitcnt vmcnt({n})"
    PA = OPT.get("pa", 14)
    poll = "buffer_load_dwordx2 v[16:17], v15, s[24:27], 0 offen sc1"
    e.extend(trace(62))
    for i in range(18):
        e(waitfor(i))
        e.extend(trace(2 * i))
        e("s_barrier")
        e.extend(trace(2 * i + 1))
        if i == 0:
            e.extend(stamp(0))
        if i == 8:
            e("s_waitcnt lgkmcnt(0)")
            e("s_add_u32 s78, s78, 1")
        while nxt <= min(19, i + DEP) and earliest(nxt) <= i:
            e.extend(item(nxt)); out += [nxt] * 4; nxt += 1
        assert nxt > i + 1
        if i == PA:
            e(poll); out.append("p")
    if "p" in out: e(waitfor("p"))
    e("v_cmp_ne_u64 vcc, s[78:79], v[16:17]")
    e("s_cbranch_vccnz L_kvlate")
    save = list(out)
    e.extend(kvdma(4)); out += ["k0"] * 4
    if 18 in out: e(waitfor(18))
    e("s_barrier")
    e.extend(kvdma(4)); out += ["k1"] * 4
    if 19 in out: e(waitfor(19))
    e("s_barrier")
    e.extend(kvdma(4)); out += ["k2"] * 4
    e.label("L_kv20")
    e("s_waitcnt vmcnt(4)")
    e("s_barrier")
    e("s_branch L_kvjoin")
    e.label("L_kvlate")
    out[:] = save
    e(poll); out.append("p")
    if 18 in out: e(waitfor(18))
    e("s_barrier")
    if 19 in out: e(waitfor(19))
    e("s_barrier")
    e("s_waitcnt vmcnt(0)")
    e("v_cmp_ne_u64 vcc, s[78:79], v[16:17]")
    e("s_cbranch_vccz L_kvlate2")
    flag_poll(e, 15, 16, sleep=0)
    e.label("L_kvlate2")
    e.extend(kvdma(12))
    e("s_branch L_kv20")
    e.label("L_kvjoin")
    e.extend(stamp(1))
    e.extend(kvdma(20))
    HQ = 16; HK = 32; HG = 40; HT = 42; HD = 48; HP = 80
    for u in range(2): e(f"ds_read_b128 {vr(HQ+8*u,4)}, v154 offset:{u*1024}")
    for u in range(2): e(f"ds_read_b64_tr_b16 {vr(HK+2*u,2)}, v153 offset:{u*256}")
    e("s_lshl_b32 s38, s28, 4")
    e(f"s_add_u32 s38, s38, {FG}")
    e(f"v_and_b32 v{HT+4}, 8, v156")
    e(f"v_add_u32 v{HT+4}, s38, v{HT+4}")
    e("s_waitcnt vmcnt(0)")
    e.extend(trace(44))
    lds_add(e, C_KVALL, HT)
    e("s_lshl_b32 s45, s29, 2")
    e("s_lshl_b32 s36, s28, 7")
    e("s_add_u32 s36, s36, s45")
    e("s_add_u32 s36, s36, s30")
    e("s_lshl_b32 s36, s36, 10")
    e(f"s_add_u32 s36, s36, {WS_OC}")
    e(f"v_mov_b64 {vr(HD,2)}, -1")
    e(f"v_mov_b64 {vr(HD+2,2)}, -1")
    for i in range(4):
        e(f"s_add_u32 s38, s36, {i*32768}")
        e(f"buffer_store_dwordx4 {vr(HD,4)}, v10, s[24:27], s38 offen sc1")
    flag_poll(e, HT + 4, HT + 2)
    e("s_lshl_b32 s38, s28, 5")
    e("s_add_u32 s38, s38, s45")
    e("s_add_u32 s38, s38, s30")
    e("s_lshl_b32 s38, s38, 4")
    e(f"s_add_u32 s38, s38, {FP}")
    e(f"v_mov_b32 v{HD+4}, s78")
    e(f"v_mov_b32 v{HD+5}, s79")
    e(f"v_mov_b32 v{HD+6}, s37")
    e(f"v_mov_b32 v{HD+7}, 0")
    e("s_mov_b64 exec, 1")
    e(f"buffer_store_dwordx4 {vr(HD+4,4)}, v{HD+7}, s[24:27], s38 offen sc1")
    e("s_mov_b64 exec, -1")
    e("s_lshl_b32 s38, s28, 8")
    e(f"s_add_u32 s38, s38, {WS_GATE}")
    e(f"buffer_load_dword v{HG}, v155, s[24:27], s38 offen sc1")
    e(f"buffer_load_dword v{HG+1}, v155, s[24:27], s38 offen offset:128 sc1")
    e("s_waitcnt lgkmcnt(0)")
    for u in range(2): e(mfma(HD + 16 * u, HK, HQ + 8 * u, None))
    e.extend(interleave(*[phi_unit(HD + 16 * u, HP + 4 * u, HQ + 8 * u) for u in range(2)]))
    e(f"v_add_u32 v{HT}, {C_GATE}, v155")
    e("s_waitcnt vmcnt(0)")
    e(f"ds_write_b32 v{HT}, v{HG}")
    e(f"ds_write_b32 v{HT}, v{HG+1} offset:128")
    e("s_waitcnt lgkmcnt(0)")
    lds_add(e, C_GOK, HT)
    e.extend(trace(45))
    e("s_and_b32 s38, s28, 3")
    e("s_cmp_lg_u32 s38, s30")
    e("s_cbranch_scc1 L_nored")
    e("s_lshr_b32 s38, s28, 3")
    e("s_add_u32 s43, s45, s38")
    e("v_lshlrev_b32 v15, 1, v155")
    e("s_lshl_b32 s38, s43, 8")
    e(f"s_add_u32 s38, s38, {F3}")
    e(f"v_add_u32 v{HT}, s38, v15")
    flag_poll(e, HT, HT + 2)
    e.extend(trace(46))
    e("s_lshl_b32 s43, s43, 3")
    e("s_and_b32 s38, s28, 7")
    e("s_add_u32 s43, s43, s38")
    e("s_lshl_b32 s38, s43, 14")
    e(f"s_add_u32 s38, s38, {WS_PART}")
    for p in range(16):
        if p and p % 4 == 0: e("s_add_u32 s38, s38, 4096")
        e(f"buffer_load_dwordx4 {vr(HP+4*p,4)}, v10, s[24:27], s38 offen offset:{(p&3)*1024} sc1")
    e("s_waitcnt vmcnt(0)")
    e.extend(trace(47))
    for st in (32, 16, 8, 4):
        for i in range(0, st, 2): e(f"v_pk_add_f32 {vr(HP+i,2)}, {vr(HP+i,2)}, {vr(HP+st+i,2)}")
    e(f"v_permlane32_swap_b32 v{HP}, v{HP+2}")
    e(f"v_permlane32_swap_b32 v{HP+1}, v{HP+3}")
    e(f"v_pk_add_f32 {vr(HP,2)}, {vr(HP,2)}, {vr(HP+2,2)}")
    e(f"v_cvt_pk_bf16_f32 v{HP}, v{HP}, v{HP+1}")
    e(f"v_lshrrev_b32 v{HT}, 5, v1")
    e(f"v_lshl_add_u32 v{HT}, v{HT}, 2, v15")
    e("s_lshl_b32 s38, s43, 8")
    e(f"s_add_u32 s38, s38, {WS_KVF}")
    e(f"buffer_store_dword v{HP}, v{HT}, s[24:27], s38 offen sc1")
    e("s_lshl_b32 s38, s43, 3")
    e(f"s_add_u32 s38, s38, {F3P}")
    e("s_waitcnt vmcnt(0)")
    e.extend(trace(48))
    flag_store(e, "s38", HT)
    e.label("L_nored")
    e.extend(stamp(2))
    e("s_lshl_b32 s38, s28, 9")
    e(f"s_add_u32 s38, s38, {FP}")
    e("v_lshlrev_b32 v2, 2, v155")
    e("v_add_u32 v2, s38, v2")
    e("s_mov_b32 s77, 0")
    e("s_mov_b32 s35, 0")
    e.label("L_fpp")
    e(f"buffer_load_dwordx4 {vr(HD,4)}, v2, s[24:27], 0 offen sc1")
    e("s_add_u32 s77, s77, 1")
    e("s_waitcnt vmcnt(0)")
    e(f"v_cmp_ne_u64 vcc, s[78:79], {vr(HD,2)}")
    e("s_cbranch_vccz L_fpd")
    e("s_sleep 8")
    e(f"s_cmp_lt_u32 s77, {OPT['spin']}")
    e("s_cbranch_scc1 L_fpp")
    e("s_branch L_fpx")
    e.label("L_fpd")
    e(f"v_cmp_ne_u32 vcc, s37, v{HD+2}")
    e("s_cbranch_vccnz L_fpx")
    if OPT.get("loc", 1):
        lds_add(e, C_LOC, HT)
        e("s_mov_b32 s35, 1")
    e.label("L_fpx")
    e.extend(trace(57))
    e("s_add_u32 s45, s45, s30")
    e("s_lshl_b32 s38, s45, 6")
    e(f"s_add_u32 s38, s38, {F3P}")
    e(f"v_and_b32 v{HT}, 56, v156")
    e(f"v_add_u32 v{HT}, s38, v{HT}")
    flag_poll(e, HT, HT + 2)
    e.extend(trace(49))
    e("s_lshl_b32 s38, s45, 11")
    e(f"s_add_u32 s38, s38, {WS_KVF}")
    for q in range(4):
        e(f"buffer_load_dwordx2 {vr(HK+2*q,2)}, v156, s[24:27], s38 offen offset:{q*512} sc1")
    e("s_waitcnt vmcnt(0)")
    e.extend(trace(50))
    for u in range(2): e(mfma(HD + 16 * u, HK, HQ + 8 * u, None))
    for u in range(2): e(mfma(HD + 16 * u, HK + 4, HQ + 8 * u + 4, HD + 16 * u))
    for u in range(2):
        D = HD + 16 * u
        e(f"v_add_f32 v{HT}, {fbits(1e-6)}, v{D+8}")
        e(f"v_rcp_f32 v{HT}, v{HT}")
        e(f"v_mul_f32 v{HT}, v{HT}, v{HG+u}")
        for i in range(0, 8, 2): e(f"v_pk_mul_f32 {vr(D+i,2)}, {vr(D+i,2)}, {vr(HT,2)} op_sel_hi:[1,0]")
        for q in range(4): e(f"v_cvt_pk_bf16_f32 v{D+q}, v{D+2*q}, v{D+2*q+1}")
    e("s_add_u32 s38, s36, 65536")
    e(f"buffer_store_dwordx4 {vr(HD,4)}, v10, s[24:27], s36 offen sc1")
    e(f"buffer_store_dwordx4 {vr(HD+16,4)}, v10, s[24:27], s38 offen sc1")
    e.extend(trace(51))
    e.extend(stamp(3))
    ACC = [16, 32]; WFR = [48, 56, 132]; OF = 64; PT = 128
    srd(e, 4, 54, 512*512*2)
    srd(e, 8, 64, 512*512*2)
    srd(e, 12, 68, 2048*512*2)
    e("s_lshl_b32 s44, s28, 1")
    e("s_add_u32 s44, s44, s46")
    e("s_lshl_b32 s43, s44, 16")
    e("s_lshl_b32 s38, s47, 14")
    e("s_add_u32 s43, s43, s38")
    e(f"s_add_u32 s43, s43, {WS_OC}")
    def wdma(sd):
        e("s_lshl_b32 s38, s30, 17")
        e("s_lshl_b32 s39, s29, 7")
        e("s_add_u32 s38, s38, s39")
        e("s_lshl_b32 s39, s30, 14")
        for g in range(4):
            e("s_mov_b32 m0, s39")
            for k in range(4):
                e(f"buffer_load_dwordx4 v{144+k}, s[{sd}:{sd+3}], s38 offen offset:{k*1024} lds")
            if g < 3:
                e("s_add_u32 s38, s38, 32768")
                e("s_add_u32 s39, s39, 4096")
    def oload(base_add, g0=0, g1=4):
        for g in range(g0, g1):
            e(f"s_add_u32 s38, s43, {base_add + g*4096}")
            for t in range(4 * g, 4 * g + 4):
                e(f"buffer_load_dwordx4 {vr(OF+4*t,4)}, v10, s[24:27], s38 offen offset:{(t&3)*1024} sc1")
    WA = [148]
    def rd(t):
        return [f"ds_read_b64_tr_b16 {vr(WFR[t%3]+4*nt+2*u,2)}, v{WA[0]+nt} offset:{(16*t+8*u)*128}" for nt in range(2) for u in range(2)]
    def step(t, first, fill=[]):
        if t < 14: e.extend(rd(t + 2))
        e(f"s_waitcnt lgkmcnt({4*min(2, 15-t)})")
        for nt in ((1, 0) if t == 15 else (0, 1)):
            e(mfma(ACC[nt], WFR[t % 3] + 4 * nt, OF + 4 * t, None if (first and t == 0) else ACC[nt]))
            e.extend(fill[nt * 5:nt * 5 + 5])
    def check(g):
        b = OF + 16 * g
        l = [f"v_max3_u32 v{PT}, v{b}, v{b+1}, v{b+2}", f"v_max3_u32 v{PT+1}, v{b+3}, v{b+4}, v{b+5}"]
        for i in (6, 10):
            l += [f"v_max3_u32 v{PT}, v{PT}, v{b+i}, v{b+i+1}", f"v_max3_u32 v{PT+1}, v{PT+1}, v{b+i+2}, v{b+i+3}"]
        l += [f"v_max3_u32 v{PT}, v{PT}, v{b+14}, v{b+15}", f"v_max_u32 v{PT}, v{PT}, v{PT+1}", f"v_cmp_eq_u32 vcc, -1, v{PT}"]
        return l
    NG = OPT.get("ng", 2)
    def pgemm(tag, first, pace, base):
        e(f"s_waitcnt vmcnt({4*(NG-1)})")
        e.extend(check(0))
        for g in range(4):
            e(f"s_cbranch_vccnz L_retry{tag}{g}")
            e.label(f"L_go{tag}{g}")
            if g == 0 and not first: e.extend(trace(40))
            for t in range(4 * g, 4 * g + 4):
                if t % 4 == 3 and g < 3: step(t, first, [f"s_waitcnt vmcnt({4*(min(4, g+1+NG)-g-2)})"] + check(g + 1))
                else: step(t, first)
                if t % 4 == 0 and g + NG < 4: oload(base, g + NG, g + NG + 1)
                if pace: e(f"s_sleep {pace}")
    if OPT.get("late", 0):
        lds_wait(e, C_PROG, 8, PT, sleep=8)
        e.extend(trace(54))
        wdma(4)
        e("v_lshlrev_b32 v2, 10, v1")
        e("s_lshl_b32 s38, s30, 17")
        e("s_lshl_b32 s39, s29, 7")
        e("s_add_u32 s38, s38, s39")
        e("buffer_load_dword v3, v2, s[8:11], s38 offen")
        e("s_add_u32 s38, s38, 65536")
        e("buffer_load_dword v4, v2, s[8:11], s38 offen")
        e("s_mov_b32 s77, 0")
        e.label("L_apoll")
        oload(0)
        e("s_add_u32 s77, s77, 1")
        e("s_waitcnt vmcnt(0)")
        e(f"v_max3_u32 v{PT}, v{OF}, v{OF+1}, v{OF+2}")
        e(f"v_max3_u32 v{PT+1}, v{OF+3}, v{OF+4}, v{OF+5}")
        for i_ in range(6, 62, 4):
            e(f"v_max3_u32 v{PT}, v{PT}, v{OF+i_}, v{OF+i_+1}")
            e(f"v_max3_u32 v{PT+1}, v{PT+1}, v{OF+i_+2}, v{OF+i_+3}")
        e(f"v_max3_u32 v{PT}, v{PT}, v{OF+62}, v{OF+63}")
        e(f"v_max_u32 v{PT}, v{PT}, v{PT+1}")
        e(f"v_cmp_eq_u32 vcc, -1, v{PT}")
        e("s_cbranch_vccz L_aready")
        e("s_sleep 32")
        e(f"s_cmp_lt_u32 s77, {OPT['spin']}")
        e("s_cbranch_scc1 L_apoll")
        e.label("L_aready")
        lds_add(e, C_HS, PT)
        lds_wait(e, C_HS, 4, PT)
        e.extend(trace(55))
        e.extend(rd(0) + rd(1))
        e("v_add_u32 v2, 0x10000, v148")
        e("v_add_u32 v3, 0x10000, v149")
        e("s_lshl_b32 s36, s44, 15")
        e("s_lshl_b32 s39, s29, 7")
        e("s_add_u32 s36, s36, s39")
        e("s_lshl_b32 s39, s47, 6")
        e("s_add_u32 s36, s36, s39")
        e("s_lshl_b32 s38, s30, 17")
        e("s_lshl_b32 s39, s29, 7")
        e("s_add_u32 s38, s38, s39")
        e("s_lshl_b32 s39, s30, 14")
        e("s_add_u32 s39, s39, 0x10000")
        e.extend(stamp(4))
        lds_wait(e, C_DONE, 8, PT, sleep=OPT.get("dsleep", 2))
        e.extend(trace(56))
        for t in range(16):
            if t % 4 == 0: e("s_mov_b32 m0, s39")
            e(f"buffer_load_dwordx4 v{144+t%4}, s[8:11], s38 offen offset:{(t%4)*1024} lds")
            if t % 4 == 3:
                e("s_add_u32 s38, s38, 32768"); e("s_add_u32 s39, s39, 4096")
            step(t, True)
        e.extend(trace(58))
        WA[0] = 2
        e("s_mov_b32 s77, 0")
        oload(32768, 0, NG)
        e(f"s_waitcnt vmcnt({4*NG})")
        e("s_barrier")
    else:
        lds_wait(e, C_PROG, 8, PT, sleep=8)
        e.extend(trace(54))
        wdma(4)
        oload(0, 0, NG)
        e(f"s_waitcnt vmcnt({4*NG})")
        lds_add(e, C_HS, PT)
        lds_wait(e, C_HS, 4, PT)
        e.extend(trace(55))
        e.extend(rd(0) + rd(1))
        e("s_mov_b32 s77, 0")
        e(f"s_setprio {OPT.get('aprio', 2)}")
        pgemm("A", True, OPT.get("pace", 0), 0)
        e("s_setprio 3")
        e.extend(trace(56))
        lds_add(e, C_HS, PT)
        lds_wait(e, C_HS, 8, PT)
        e.extend(trace(58))
        wdma(8)
        e("s_lshl_b32 s36, s44, 15")
        e("s_lshl_b32 s39, s29, 7")
        e("s_add_u32 s36, s36, s39")
        e("s_lshl_b32 s39, s47, 6")
        e("s_add_u32 s36, s36, s39")
        e("s_mov_b32 s77, 0")
        e("s_waitcnt vmcnt(0)")
        e.extend(stamp(4))
        e("s_barrier")
    e.extend(stamp(5))
    if not OPT.get("late", 0): oload(32768, 0, NG)
    e.extend(rd(0) + rd(1))
    pgemm("B", False, 0, 32768)
    e.extend(trace(42))
    if OPT.get("trace"): e("v_writelane_b32 v159, s77, 41")
    for q in range(4): e(f"ds_write_b128 v150, {vr(ACC[1]+4*q,4)} offset:{q*1024}")
    e("s_waitcnt lgkmcnt(0)")
    e("s_barrier")
    for q in range(4): e(f"ds_read_b128 {vr(OF+4*q,4)}, v151 offset:{q*1024}")
    A = ACC[0]
    for pr in range(2):
        e(f"s_waitcnt lgkmcnt({2-2*pr})")
        for i in range(8 * pr, 8 * pr + 8, 2): e(f"v_pk_add_f32 {vr(A+i,2)}, {vr(A+i,2)}, {vr(OF+i,2)}")
        for q in range(4): e(f"v_cvt_pk_bf16_f32 v{A+8*pr+q}, v{A+8*pr+2*q}, v{A+8*pr+2*q+1}")
    for pr in range(2):
        e(f"v_permlane32_swap_b32 v{A+8*pr}, v{A+8*pr+2}")
        e(f"v_permlane32_swap_b32 v{A+8*pr+1}, v{A+8*pr+3}")
    for pr in range(2):
        e(f"buffer_store_dwordx4 {vr(A+8*pr,4)}, v152, s[12:15], s36 offen offset:{pr*32}" + ["", " sc1", " nt", " sc0 sc1"][OPT.get("ost", 0)])
    e.extend(trace(43))
    e("s_or_b32 s38, s2, s30")
    e("s_cbranch_scc1 L_noepoch")
    e(f"s_mov_b32 s38, {WS_EPOCH}")
    flag_store(e, "s38", PT)
    e.label("L_noepoch")
    stamp_end(e, 64)
    e.label("L_done")
    e("s_endpgm")
    for tag, base in ((("B", 32768),) if OPT.get("late", 0) else (("A", 0), ("B", 32768))):
        for g in range(4):
            e.label(f"L_retry{tag}{g}")
            if tag == "A": e("s_sleep 8")
            oload(base, g, min(4, g + NG))
            e("s_add_u32 s77, s77, 1")
            e(f"s_waitcnt vmcnt({4*(min(4, g+NG)-g-1)})")
            e.extend(check(g))
            e(f"s_cbranch_vccz L_go{tag}{g}")
            e(f"s_cmp_lt_u32 s77, {OPT['spin']}")
            e(f"s_cbranch_scc1 L_retry{tag}{g}")
            e(f"s_branch L_go{tag}{g}")

    e.label("L_compute")
    ACC = 96; EACC = 128; WF = 144; I0 = 148; ONE = 156
    e("s_and_b32 s44, s30, 3")
    e("s_lshr_b32 s40, s30, 2")
    if OPT.get("pf", 0):
        e("s_cmp_lt_u32 s44, 3")
        e("s_movk_i32 s38, 1024")
        e("s_cselect_b32 s38, 3072, s38")
        e("v_mul_lo_u32 v30, v1, s38")
        e("s_add_u32 s39, s31, s40")
        e("s_and_b32 s39, s39, 7")
        e("s_mul_i32 s38, s38, s39")
        e("s_lshl_b32 s38, s38, 6")
        e("s_add_u32 s39, s44, 1")
        e("s_cmp_lt_u32 s44, 2")
        e("s_cselect_b32 s39, s39, 0")
        e("s_lshl_b32 s39, s39, 10")
        e("s_add_u32 s38, s38, s39")
        e("s_lshl_b32 s39, s29, 7")
        e("s_add_u32 s38, s38, s39")
        e("v_add_u32 v30, s38, v30")
        e("s_waitcnt lgkmcnt(0)")
        e("s_cmp_lt_u32 s44, 3")
        e("s_cselect_b32 s16, s50, s58")
        e("s_cselect_b32 s17, s51, s59")
        mask = {1: 0x0f, 2: 0xff, 3: 0x33, 4: 0x03}[OPT["pf"]]
        e(f"s_lshr_b32 s38, {mask}, s30")
        e("s_and_b32 s38, s38, 1")
        e("s_cbranch_scc0 L_nopf")
        e("global_load_dword v31, v30, s[16:17]")
        e.label("L_nopf")
    e("v_and_b32 v11, 31, v1")
    e("v_lshrrev_b32 v22, 5, v1")
    e("v_bfe_u32 v23, v1, 1, 3")
    e("v_xor_b32 v23, v23, v22")
    e("v_lshlrev_b32 v23, 4, v23")
    e("v_lshl_add_u32 v12, v11, 7, v23")
    e(f"v_add_u32 v12, {XT}, v12")
    for t in range(1, 4): e(f"v_xor_b32 v{12+t}, {32*t}, v12")
    su_w = ["v_lshrrev_b32 v22, 5, v1", "v_bfe_u32 v23, v1, 2, 2", "v_lshl_add_u32 v20, v22, 3, v23", "v_lshlrev_b32 v20, 7, v20",
            "v_bfe_u32 v23, v1, 3, 2", "v_xor_b32 v23, s44, v23", "v_lshl_add_u32 v20, v23, 5, v20", "v_bfe_u32 v24, v1, 4, 1",
            "v_lshl_add_u32 v20, v24, 13, v20", "v_and_b32 v23, 3, v1", "v_lshl_add_u32 v20, v23, 3, v20"]
    su_s = ["s_lshl_b32 s45, s29, 2", "s_add_u32 s45, s45, s44", "s_lshl_b32 s47, s28, 1", "s_xor_b32 s46, s40, 1",
            "s_add_u32 s47, s47, s46", "s_lshl_b32 s43, s47, 6", "s_add_u32 s43, s43, s45", "s_lshl_b32 s43, s43, 10",
            f"s_add_u32 s43, s43, {WS_OC+32*1024}",
            f"s_mov_b32 s74, {fbits(LOG2E)}", f"s_mov_b32 s75, {fbits(-LOG2E)}", f"s_mov_b32 s76, {fbits(0.25*LOG2E)}",
            "s_lshl_b32 s38, s44, 10", f"s_add_u32 s38, s38, {HND}", "v_add_u32 v28, s38, v10"]
    su_ws = ["s_waitcnt lgkmcnt(0)", f"s_load_dwordx2 s[78:79], s[72:73], {hex(WS_EPOCH)}",
             "s_mov_b32 s24, s72", "s_mov_b32 s25, s73", f"s_mov_b32 s26, {hex(WS_SIZE)}", "s_mov_b32 s27, 0x00020000"]
    su_ep = ["s_waitcnt lgkmcnt(0)", "s_add_u32 s78, s78, 1"]
    def su_id(n, I0):
        l = ["v_and_b32 v11, 31, v1", "v_lshrrev_b32 v22, 5, v1", "v_lshlrev_b32 v22, 2, v22", "v_sub_u32 v11, v11, v22",
             "v_mov_b32 v22, 0x3f80", "v_mov_b32 v23, 0x3f800000"]
        for sgn in range(n):
            for q in range(4):
                f0 = 16 * sgn + (2 * q if q < 2 else 8 + 2 * (q - 2))
                l += [f"v_cmp_eq_u32 vcc, {f0}, v11", f"v_cmp_eq_u32 s[38:39], {f0+1}, v11",
                      f"v_cndmask_b32 v{I0+4*sgn+q}, 0, v22, vcc", f"v_cndmask_b32 v{I0+4*sgn+q}, v{I0+4*sgn+q}, v23, s[38:39]"]
        return l
    Q = 4; NM = 8; O = 24; S = [40, 56]; PK = 72; KF = [80, 84]; VF = [144, 152]; AK = 2; AV = 3; T = 106
    U = 4; NIT = 16
    SEG = OPT.get("seg", (2, 8, 15, 16))
    ATT_SETUP = [f"v_mov_b32 v{AK}, v10", f"v_lshrrev_b32 v{T}, 5, v1", f"v_and_b32 v{AV}, 15, v1", f"v_lshlrev_b32 v{AV}, 4, v{AV}",
                 f"v_lshl_add_u32 v{AV}, v{T}, 8, v{AV}", f"v_add_u32 v{AV}, 1024, v{AV}", f"v_and_b32 v{T}, 27, v1",
                 f"v_mov_b32 v{T+1}, 0x3f803f80", f"v_cmp_eq_u32 vcc, 16, v{T}", "s_mov_b32 s20, 0xffff", "s_mov_b32 s21, 0xffff",
                 f"v_cndmask_b32 v{VF[0]}, 0, v{T+1}, vcc"] + [f"v_mov_b32 v{VF[0]+1}, v{VF[0]}"] + [f"v_mov_b64 {vr(VF[0]+i,2)}, {vr(VF[0],2)}" for i in range(2, 16, 2)] + \
                [f"s_mov_b32 s22, {SEG[0]}", "s_mov_b32 s23, 0"]
    def fr(buf, t):
        if buf == 0:
            b = 32 + 12 * t; return (b, b + 4, b + 8)
        return [(80, 84, 88), (128, 132, 136), (92, 140, 16), (4, 160, 164)][t]
    def reads(buf, g):
        l = []; p = g % 8; so = SLOT[g] & 0xffff; wa = 21 if g == 8 else 20
        for t in range(4):
            xa, xb, w = fr(buf, t)
            l.append(f"ds_read_b128 {vr(xa,4)}, v{12+t} offset:{p*8192}")
            for u in range(2):
                l.append(f"ds_read_b64_tr_b16 {vr(w+2*u,2)}, v{wa} offset:{so+(16*t+4*u)*128}")
            l.append(f"ds_read_b128 {vr(xb,4)}, v{12+t} offset:{p*8192+4096}")
        return l
    def mfmas(buf, first):
        l = []
        for t in range(4):
            xa, xb, w = fr(buf, t); z = first and t == 0
            l.append(mfma(ACC, w, xa, None if z else ACC))
            l.append(mfma(ACC + 16, w, xb, None if z else ACC + 16))
        return l
    def gpass(g0, first, last, extra={}):
        pend = None; NS = OPT.get("gspread", 5)
        for i in range(first, last + 1):
            e("s_barrier")
            mm = mfmas(pend & 1, pend == 0) if pend is not None else []
            todo = None
            for c in range(8):
                if USE[g0 + c] == i: todo = c
            if todo is not None:
                r = reads(todo & 1, g0 + todo)
                e.extend(spread(mm[:NS], r) + mm[NS:] if mm else r)
                e.extend(extra.get(i, []))
                e("s_waitcnt lgkmcnt(0)")
            else:
                e.extend(mm)
                e.extend(extra.get(i, []))
            pend = todo
        if pend is not None and g0 == 0: e.extend(mfmas(pend & 1, False))
    PU = [32, 48]; PH = [64, 72]; TM = [80, 84]; VFR = [88, 92]
    e("s_cmp_lg_u32 s40, 0")
    e("s_cbranch_scc1 L_qwave")
    e(f"v_mov_b32 v26, {MISC}")
    for i in range(4): e(f"v_mov_b32 v{32+i}, 0")
    e("ds_write_b128 v26, v[32:35]")
    e("ds_write_b128 v26, v[32:35] offset:16")
    e.extend(su_w)
    e.extend(su_ws)
    wph = ["v_and_b32 v23, 15, v1", "v_lshlrev_b32 v23, 3, v23", "v_lshrrev_b32 v22, 5, v1", "v_lshl_add_u32 v25, v22, 7, v23",
           "s_lshl_b32 s38, s44, 9", f"s_add_u32 s38, s38, {WPH}", "v_add_u32 v25, s38, v25"]
    wpr = [f"ds_read_b64_tr_b16 {vr(WF+2*u,2)}, v25 offset:{u*256}" for u in range(2)]
    one = ["v_bfe_u32 v24, v1, 4, 1", f"v_mul_u32_u24 v{ONE}, 0x3f80, v24", f"v_lshl_or_b32 v{ONE}, v{ONE}, 16, v{ONE}"]
    xs = [i for i in range(8) if i not in USE.values() or i == USE[8] and i not in [USE[c] for c in range(8)]]
    idl = su_id(2, I0)
    KEND = USE[7] + 1
    kx = {xs[0]: su_s + wph, xs[1]: idl[:22], xs[2]: idl[22:] + one, xs[3]: su_ep + stamp(0), 9: wpr}
    if "pf8" in OPT:
        kx[OPT["pf8"]] = ["s_cmp_lt_u32 s44, 2", "s_cbranch_scc1 L_nopf8", "global_load_dword v31, v30, s[16:17]", "L_nopf8:"] + kx.get(OPT["pf8"], [])
    gpass(0, 0, KEND, kx)
    e.extend(stamp(1))
    k = []
    for u in range(2):
        for q in range(4): k.append(f"v_cvt_pk_bf16_f32 v{PH[u]+q}, v{ACC+16*u+2*q}, v{ACC+16*u+2*q+1}")
    for u in range(2): k.append(mfma(PU[u], WF, PH[u], None))
    for u in range(2):
        a = ACC + 16 * u
        for q in range(4): k.append(f"v_cvt_pk_bf16_f32 v{VFR[u]+q}, v{a+8+2*q}, v{a+8+2*q+1}")
    for u in range(2): k.append(mfma(ACC + 16 * u, VFR[u], I0, None))
    k += interleave(*[phi_unit(PU[u], TM[u], PH[u]) for u in range(2)])
    for u in range(2): k.append(mfma(PU[u], PH[u], I0, None))
    for u in range(2): k.append(mfma(PU[u], PH[u] + 4, I0 + 4, PU[u]))
    for u in range(2):
        a = ACC + 16 * u
        for q in range(8): k.append(f"v_cvt_pk_bf16_f32 v{a+q}, v{a+2*q}, v{a+2*q+1}")
        for q in range(8): k.append(f"v_or_b32 v{a+q}, v{a+q}, v{ONE}")
    for u in range(2):
        for q in range(8): k.append(f"v_cvt_pk_bf16_f32 v{PH[u]+q}, v{PU[u]+2*q}, v{PU[u]+2*q+1}")
    D3 = EACC
    for u in range(2):
        k.append(mfma(D3, PH[u], ACC + 16 * u, None if u == 0 else D3))
        k.append(mfma(D3, PH[u] + 4, ACC + 16 * u + 4, D3))
    PST = ["v_and_b32 v112, 31, v1", "v_lshlrev_b32 v112, 4, v112", "v_lshrrev_b32 v113, 5, v1", "v_lshl_add_u32 v112, v113, 14, v112",
          "s_lshl_b32 s38, s45, 17", "s_lshl_b32 s39, s28, 9", "s_add_u32 s38, s38, s39", f"s_add_u32 s38, s38, {WS_PART}"]
    for q in range(4):
        PST.append(f"buffer_store_dwordx4 {vr(D3+4*q,4)}, v112, s[24:27], s38 offen sc1")
        if q < 3: PST.append("s_add_u32 s38, s38, 32768")
    DEFER = OPT.get("defer", 1)
    if not DEFER: k += PST
    if not OPT.get("pk", 1): k = unpk(k)
    k = [x.strip() for x in fix_hazards(k, pre=mfmas(1, False))]
    def cost(x):
        if "mfma" in x: return 48
        if "v_exp" in x or "v_rcp" in x: return 8
        if "s_nop" in x: return 4 * (int(x.split()[1]) + 1)
        return 4
    NB = 20 - KEND
    acc = 260; nb = 0; LIM = OPT.get("klim", 140)
    for x in k:
        if nb < NB and acc + cost(x) > (LIM if nb < NB - 1 else OPT.get("klast", 300)):
            e("s_barrier"); nb += 1; acc = 0
            if nb == NB:
                e.extend(stamp(2)); e("s_setprio 2")
        e(x); acc += cost(x)
    while nb < NB:
        e("s_barrier"); nb += 1
    e("ds_read_b128 v[4:7], v28")
    e.extend(ATT_SETUP)
    e("s_branch L_attn")
    e.label("L_qwave")
    e.extend(su_w)
    e.extend(su_s)
    e.extend(ATT_SETUP)
    e("s_lshl_b32 s38, s44, 11")
    e(f"s_add_u32 s38, s38, {PHQ}")
    e("v_add_u32 v29, s38, v10")
    e("s_mov_b32 s41, 0")
    e.extend([x for x in su_ws if "s_load" not in x])
    e("s_cmp_eq_u32 s30, 6")
    e("s_cbranch_scc1 L_touch")
    e("s_cmp_eq_u32 s30, 7")
    e("s_cbranch_scc1 L_touch7")
    e("s_cmp_gt_u32 s29, 2")
    e("s_cbranch_scc1 L_qidle")
    e("s_lshl_b32 s38, s44, 12")
    for t in range(4): e(f"v_add_u32 v{16+t}, s38, v{12+t}")
    e("v_and_b32 v23, 15, v1")
    e("v_lshlrev_b32 v23, 3, v23")
    e("v_lshl_add_u32 v26, v22, 8, v23")
    e("v_lshlrev_b32 v27, 4, v22")
    e("s_lshl_b32 s42, s28, 1")
    e("s_add_u32 s42, s42, s44")
    e("s_cmp_eq_u32 s29, 2")
    e("s_cbranch_scc1 L_qgate")
    def extloop(gate):
        nbar = 0
        if not gate: e.extend(su_id(1, 160))
        def xr(p):
            B = 32 + 32 * (p % 3); va = 21 if p % 2 == 0 else 25
            l = [f"s_lshl_b32 s38, s31, {7 if gate else 11}", f"v_add_u32 v{va}, s38, v{27 if gate else 26}",
                 "s_add_u32 s31, s31, 1", "s_and_b32 s31, s31, 7"]
            r = []
            for t in range(4):
                r.append(f"ds_read_b128 {vr(B+8*t,4)}, v{16+t} offset:{p*8192}")
                if gate: r.append(f"ds_read_b128 {vr(B+8*t+4,4)}, v{va} offset:{t*32}")
                else:
                    for u in range(2): r.append(f"ds_read_b64_tr_b16 {vr(B+8*t+4+2*u,2)}, v{va} offset:{t*512+u*128}")
            return l, r
        def xm(p):
            B = 32 + 32 * (p % 3)
            return [mfma(EACC, B + 8 * t + 4, B + 8 * t, None if (p == 0 and t == 0) else EACC) for t in range(4)]
        n = 8 if gate else 12
        for p in range(0, 8, 2):
            a0, r0 = xr(p); a1, r1 = xr(p + 1)
            e.extend(a0 + a1)
            while nbar <= POS[f"x{p//2}"]:
                e("s_barrier"); nbar += 1
            e.extend(spread(xm(p - 1)[:3], r0 + r1) + xm(p - 1)[3:] if p else r0 + r1)
            e(f"s_waitcnt lgkmcnt({n})")
            e.extend(xm(p))
            e("s_waitcnt lgkmcnt(0)")
        while nbar <= XL + 1:
            e("s_barrier"); nbar += 1
        e.extend(xm(7))
    extloop(False)
    for q in range(4): e(f"v_cvt_pk_bf16_f32 v{EACC+q}, v{EACC+2*q}, v{EACC+2*q+1}")
    e("s_lshl_b32 s38, s42, 11")
    e("s_lshl_b32 s41, s44, 1")
    e("s_add_u32 s41, s41, s29")
    e("s_lshl_b32 s41, s41, 5")
    e("s_add_u32 s41, s41, s28")
    e(f"s_lshl_b32 s41, s41, {FS}")
    e(f"s_add_u32 s41, s41, {F1}")
    e("s_cmp_eq_u32 s29, 1")
    e("s_cbranch_scc1 L_qv")
    e(f"buffer_store_dwordx4 {vr(EACC,4)}, v10, s[24:27], s38 offen sc1")
    e("s_branch L_q5")
    e.label("L_qv")
    e("s_nop 1")
    e(mfma(32, EACC, 160, None))
    e("v_lshrrev_b32 v11, 5, v1")
    e("v_and_b32 v22, 15, v1")
    e("v_lshlrev_b32 v22, 4, v22")
    e("v_lshl_add_u32 v22, v11, 8, v22")
    for q in range(8): e(f"v_cvt_pk_bf16_f32 v{EACC+8+q}, v{32+2*q}, v{32+2*q+1}")
    e("s_mov_b32 exec_lo, 0xffff")
    e("s_mov_b32 exec_hi, 0xffff")
    e(f"buffer_store_dwordx4 {vr(EACC+8,4)}, v22, s[24:27], s38 offen offset:1024 sc1")
    e(f"buffer_store_dwordx4 {vr(EACC+12,4)}, v22, s[24:27], s38 offen offset:1536 sc1")
    e("s_mov_b64 exec, -1")
    e("s_branch L_q5")
    e.label("L_qgate")
    extloop(True)
    e(f"v_cvt_pk_bf16_f32 v11, v{EACC}, v{EACC}")
    e("v_and_b32 v11, 0xffff0000, v11")
    e("v_mul_f32 v11, s75, v11")
    e("v_exp_f32 v11, v11")
    e("v_add_f32 v11, 1.0, v11")
    e("v_rcp_f32 v11, v11")
    e("v_cvt_pk_bf16_f32 v11, v11, v11")
    e("v_and_b32 v11, 0xffff0000, v11")
    e("v_lshlrev_b32 v22, 2, v1")
    e("s_lshl_b32 s38, s42, 7")
    e(f"s_add_u32 s38, s38, {WS_GATE}")
    e("s_lshl_b32 s41, s42, 3")
    e(f"s_add_u32 s41, s41, {FG}")
    e("s_mov_b32 exec_hi, 0")
    e("buffer_store_dword v11, v22, s[24:27], s38 offen sc1")
    e("s_mov_b64 exec, -1")
    e("s_branch L_q5")
    SPF = OPT.get("spf", 0)
    FSTEP = XL + OPT.get("flat", 4)
    for wv in (6, 7):
        e.label("L_touch" if wv == 6 else "L_touch7")
        if SPF:
            pitch = 3072 if wv == 6 else 1024; p = 50 if wv == 6 else 58
            for ch in range(2):
                e(f"s_add_u32 s38, s31, {ch}")
                e("s_and_b32 s38, s38, 7")
                e(f"s_mul_i32 s38, s38, {64*pitch}")
                e("s_lshl_b32 s39, s29, 7")
                e("s_add_u32 s38, s38, s39")
                e(f"s_add_u32 s{4+2*ch}, s{p}, s38")
                e(f"s_addc_u32 s{5+2*ch}, s{p+1}, 0")
            ld = [f"s_load_dword s{8+(r&7)}, s[{4+2*(r>>6)}:{5+2*(r>>6)}], {(r&63)*pitch}" for r in range(64 * SPF)]
            n0 = OPT.get("spf0", 24); n1 = OPT.get("spf1", 5)
            e.extend(ld[:n0]); k_ = n0
            for i in range(FSTEP + 1):
                e("s_barrier")
                e.extend(ld[k_:k_ + n1]); k_ += n1
            e(f"v_add_u32 v21, {S5}, v20")
            e("s_branch L_noflag")
    e.label("L_qidle")
    for i in range(XL + 2): e("s_barrier")
    e.label("L_q5")
    e(su_ws[1])
    e(f"v_add_u32 v21, {S5}, v20")
    fl = Emitter()
    fl("s_cmp_eq_u32 s41, 0")
    fl("s_cbranch_scc1 L_noflag")
    fl.extend(su_ep)
    fl("s_waitcnt vmcnt(0)")
    flag_store(fl, "s41", 22)
    fl.label("L_noflag")
    gpass(8, XL + 2, 19, {FSTEP: fl.lines, USE[9] - 1: stamp(0) + ["s_setprio 1"]})
    mm = mfmas(1, False)
    def qconv(u):
        a = ACC + 16 * u; d = 76 if u else 68; l = []
        for i in range(8, 16, 2): l.append(f"v_pk_mul_f32 {vr(a+i,2)}, {vr(a+i,2)}, s[76:77] op_sel_hi:[1,0]")
        for q in range(4): l.append(f"v_cvt_pk_bf16_f32 v{(76 if u else 4)+q}, v{a+8+2*q}, v{a+8+2*q+1}")
        if u: l.append("ds_write_b128 v28, v[76:79]")
        for q in range(4): l.append(f"v_cvt_pk_bf16_f32 v{PH[u]+q}, v{a+2*q}, v{a+2*q+1}")
        l.append(f"ds_write_b128 v29, {vr(PH[u],4)} offset:{u*1024}")
        return l
    e.extend(mm[1::2] + mm[0:4:2])
    e("s_nop 7"); e("s_nop 1")
    c1 = unpk(qconv(1))
    e.extend(c1[:8] + [mm[4]] + c1[8:14] + [mm[6]] + c1[14:])
    e.extend(stamp(1))
    c0 = qconv(0)
    e.extend(c0[8:] + c0[:8])
    e("s_waitcnt lgkmcnt(0)")
    e.extend(stamp(2))
    e("s_barrier")
    e.label("L_attn")
    if OPT.get("rts"): e.extend(["s_memrealtime s[80:81]", "s_waitcnt lgkmcnt(0)", "s_sub_u32 s80, s80, s92", "s_add_u32 s80, s80, s94"])
    e.extend(stamp(3))
    e("s_setprio 2")
    e(f"ds_read_b128 {vr(KF[0],4)}, v{AK}")
    e(f"ds_read_b128 {vr(KF[1],4)}, v{AK} offset:2048")
    e("s_mov_b64 exec, s[20:21]")
    e(f"ds_read_b128 {vr(VF[0],4)}, v{AV}")
    e(f"ds_read_b128 {vr(VF[0]+4,4)}, v{AV} offset:512")
    e("s_mov_b64 exec, -1")
    for i in range(0, 16, 2): e(f"v_mov_b64 {vr(O+i,2)}, 0")
    for i in range(0, 4, 2): e(f"v_mov_b64 {vr(PK+4+i,2)}, 0")
    e("s_waitcnt lgkmcnt(0)")
    e(mfma(S[0], KF[0], Q, None))
    e(mfma(S[1], KF[1], Q, None))
    e(f"v_max3_f32 v{T}, v{S[0]}, v{S[0]+1}, v{S[0]+2}")
    e(f"v_max3_f32 v{T+1}, v{S[0]+3}, v{S[0]+4}, v{S[0]+5}")
    for i in range(6, 30, 4):
        e(f"v_max3_f32 v{T}, v{T}, v{S[0]+i}, v{S[0]+i+1}")
        e(f"v_max3_f32 v{T+1}, v{T+1}, v{S[0]+i+2}, v{S[0]+i+3}")
    e(f"v_max3_f32 v{T}, v{T}, v{S[0]+30}, v{S[0]+31}")
    e(f"v_max_f32 v{T}, v{T}, v{T+1}")
    def setnm():
        e(f"v_mov_b32 v{T+1}, v{T}")
        e(f"v_permlane32_swap_b32 v{T}, v{T+1}")
        e(f"v_max_f32 v{T}, v{T}, v{T+1}")
        for i in range(2): e(f"v_sub_f32 v{NM+i}, 0, v{T}")
        for i in range(2, 16, 2): e(f"v_mov_b64 {vr(NM+i,2)}, {vr(NM,2)}")
    setnm()
    e(mfma(S[0], KF[0], Q, NM))
    e("s_nop 7"); e("s_nop 1")
    body = Emitter()
    ex = lambda i: f"v_exp_f32 v{i}, v{i}"
    for j in range(U):
        a = j & 1; b = a ^ 1; Sa = S[a]
        cv = lambda q: f"v_cvt_pk_bf16_f32 v{PK+q}, v{Sa+2*q}, v{Sa+2*q+1}"
        body(mfma(S[b], KF[b], Q, NM))
        body(f"ds_read_b128 {vr(KF[a],4)}, v{AK} offset:{(j+2)*2048}")
        for i in range(7): body(ex(Sa + i))
        body(mfma(O, VF[b] + 4, PK + 4, O))
        body("s_mov_b64 exec, s[20:21]")
        body(f"ds_read_b128 {vr(VF[b],4)}, v{AV} offset:{(j+1)*2048}")
        body(f"ds_read_b128 {vr(VF[b]+4,4)}, v{AV} offset:{(j+1)*2048+512}")
        body("s_mov_b64 exec, -1")
        body(ex(Sa + 7)); body(ex(Sa + 8))
        for q in range(4): body(cv(q))
        body(ex(Sa + 9)); body(ex(Sa + 10))
        body("s_waitcnt lgkmcnt(3)")
        body(mfma(O, VF[a], PK, O))
        for i in range(11, 16): body(ex(Sa + i))
        if j == U - 1:
            body(f"v_add_u32 v{AK}, {U*2048}, v{AK}")
            body(f"v_add_u32 v{AV}, {U*2048}, v{AV}")
            body("s_add_u32 s23, s23, 1")
            body("s_cmp_lt_u32 s23, s22")
        for q in range(4, 8): body(cv(q))
        body("s_waitcnt lgkmcnt(2)")
    rep = []
    fix_hazards(body.lines, pre=body.lines, report=rep)
    assert not rep, rep
    e(".p2align 6")
    e.label("L_loop")
    if OPT.get("trace") == 3:
        e.extend(["s_memtime s[96:97]", "s_waitcnt lgkmcnt(0)", "s_sub_u32 s96, s96, s94", "s_lshl_b32 s97, s23, 1", "s_add_u32 m0, s97, 1", "v_writelane_b32 v111, s96, m0"])
    e.extend(body.lines)
    e("s_cbranch_scc1 L_loop")
    e(f"s_cmp_lg_u32 s22, {SEG[3]}")
    e("s_cbranch_scc1 L_seg")
    e(mfma(O, VF[1] + 4, PK + 4, O))
    if OPT.get("rts"): e.extend(["s_memrealtime s[82:83]", "s_waitcnt lgkmcnt(0)", "s_sub_u32 s82, s82, s92", "s_add_u32 s82, s82, s94"])
    e.extend(stamp(4))
    e(f"ds_read_b32 v{T+4}, v{T+4}")
    if OPT.get("late", 0):
        e("s_mov_b64 exec, 1")
        e(f"ds_add_u32 v{T+6}, v{T+7}")
        e("s_mov_b64 exec, -1")
    e(f"v_lshlrev_b32 v{AK}, 4, v1")
    e(f"v_fma_f32 v{T+1}, v{O}, 0, v{O+8}")
    e(f"v_mul_f32 v{T+3}, 0, v{O+1}")
    e(f"v_rcp_f32 v{T}, v{O+8}")
    for i in range(2, 8): e(f"v_fma_f32 v{T+1+2*(i&1)}, v{O+i}, 0, v{T+1+2*(i&1)}")
    e(f"v_add_f32 v{T+1}, v{T+1}, v{T+3}")
    e(f"v_cmp_ngt_f32 vcc, s39, v{T+1}")
    e("s_cbranch_vccnz L_fallback")
    e.label("L_fin")
    e(f"v_mul_f32 v{T}, v{T}, v{T+2}")
    for i in range(0, 8, 2): e(f"v_pk_mul_f32 {vr(O+i,2)}, {vr(O+i,2)}, {vr(T,2)} op_sel_hi:[1,0]")
    for q in range(4): e(f"v_cvt_pk_bf16_f32 v{O+q}, v{O+2*q}, v{O+2*q+1}")
    e("s_waitcnt lgkmcnt(0)")
    e(f"v_cmp_eq_u32 vcc, 0, v{T+4}")
    e("s_cbranch_vccnz L_far")
    e(f"buffer_store_dwordx4 {vr(O,4)}, v{AK}, s[24:27], s43 offen")
    if OPT["stamp"] == 1: e("s_branch L_cend")
    else: e("s_endpgm")
    e.label("L_far")
    e(f"buffer_store_dwordx4 {vr(O,4)}, v{AK}, s[24:27], s43 offen sc1")
    e.label("L_cend")
    e.extend(stamp(5))
    if OPT.get("trace") == 3: e("v_mov_b32 v159, v111")
    if OPT["stamp"] == 1: stamp_end(e, 40)
    e("s_endpgm")
    e.label("L_seg")
    e(f"s_cmp_eq_u32 s22, {SEG[1]}")
    e("s_cbranch_scc1 L_seg1")
    e(f"s_cmp_gt_u32 s22, {SEG[1]}")
    e("s_cbranch_scc1 L_seg2")
    if DEFER:
        e(f"s_cmp_lg_u32 s22, {SEG[0]}")
        e("s_cbranch_scc1 L_segf")
        lds_wait(e, C_KVALL, 4, T, sleep=1)
        e(f"s_mov_b32 s22, {SEG[1]}")
        e("s_cmp_lg_u32 s40, 0")
        e("s_cbranch_scc1 L_loop")
        e.extend(PST)
        e(f"s_mov_b32 s22, {SEG[0] + OPT.get('fgap', 2)}")
        e("s_branch L_loop")
        e.label("L_segf")
    e(f"s_mov_b32 s22, {SEG[1]}")
    if not DEFER:
        e("s_cmp_lg_u32 s40, 0")
        e("s_cbranch_scc1 L_seg0b")
    e("s_lshl_b32 s38, s45, 5")
    e("s_add_u32 s38, s38, s28")
    e("s_lshl_b32 s38, s38, 3")
    e(f"s_add_u32 s38, s38, {F3}")
    e("s_waitcnt vmcnt(0)")
    flag_store(e, "s38", T)
    e.label("L_seg0b")
    if not DEFER: lds_wait(e, C_KVALL, 4, T, sleep=1)
    e("s_branch L_loop")
    e.label("L_seg1")
    e(f"s_mov_b32 s22, {SEG[2]}")
    lds_add(e, C_PROG, T)
    lds_wait(e, C_GOK, 4, T)
    e("s_lshl_b32 s38, s46, 7")
    e(f"s_add_u32 s38, s38, {C_GATE}")
    e(f"v_and_b32 v{T}, 31, v1")
    e(f"v_lshl_add_u32 v{T}, v{T}, 2, s38")
    e(f"ds_read_b32 v{T+2}, v{T}")
    e(f"v_mov_b32 v{T+4}, {C_LOC}")
    e(f"v_mov_b32 v{T+6}, {C_DONE}")
    e(f"v_mov_b32 v{T+7}, 1")
    e(f"s_mov_b32 s39, {fbits(2.0**120)}")
    e("s_waitcnt lgkmcnt(0)")
    e(f"v_sub_f32 v{T+2}, 1.0, v{T+2}")
    e(f"v_cvt_pk_bf16_f32 v{T+2}, v{T+2}, v{T+2}")
    e(f"v_and_b32 v{T+2}, 0xffff0000, v{T+2}")
    e("s_cmp_lg_u32 s40, 0")
    e("s_cbranch_scc1 L_loop")
    e("s_setprio 1")
    e(f"s_mov_b32 s22, {OPT.get('kdrop', 16)}")
    e("s_branch L_loop")
    e.label("L_seg2")
    e(f"s_mov_b32 s22, {SEG[3]}")
    e("s_setprio 1")
    e("s_cmp_lg_u32 s40, 0")
    e("s_cbranch_scc1 L_loop")
    e("s_setprio 0")
    e("s_branch L_loop")
    e.label("L_fallback")
    e("s_waitcnt lgkmcnt(0)")
    e(f"v_add_u32 v{AV}, {-64*2048 & 0xffffffff}, v{AV}")
    e(f"v_mov_b32 v{T}, 0xff800000")
    e("s_mov_b32 s38, 0")
    e.label("L_fb1")
    e(f"buffer_load_dwordx4 {vr(KF[0],4)}, v{AK}, s[24:27], s38 offen sc1")
    e("s_add_u32 s38, s38, 2048")
    e("s_waitcnt vmcnt(0)")
    e(mfma(S[0], KF[0], Q, None))
    for i in range(8): e(f"v_max3_f32 v{T}, v{T}, v{S[0]+2*i}, v{S[0]+2*i+1}")
    e("s_cmp_lt_u32 s38, 0x20000")
    e("s_cbranch_scc1 L_fb1")
    setnm()
    for i in range(16): e(f"v_mov_b32 v{O+i}, 0")
    e("s_mov_b32 s38, 0")
    e.label("L_fb2")
    e(f"buffer_load_dwordx4 {vr(KF[0],4)}, v{AK}, s[24:27], s38 offen sc1")
    e("s_mov_b64 exec, s[20:21]")
    e(f"buffer_load_dwordx4 {vr(VF[0],4)}, v{AV}, s[24:27], s38 offen sc1")
    e(f"buffer_load_dwordx4 {vr(VF[0]+4,4)}, v{AV}, s[24:27], s38 offen offset:512 sc1")
    e("s_mov_b64 exec, -1")
    e("s_add_u32 s38, s38, 2048")
    e("s_waitcnt vmcnt(0)")
    e(mfma(S[0], KF[0], Q, NM))
    for i in range(16): e(ex(S[0] + i))
    for q in range(8): e(f"v_cvt_pk_bf16_f32 v{PK+q}, v{S[0]+2*q}, v{S[0]+2*q+1}")
    e(mfma(O, VF[0], PK, O))
    e(mfma(O, VF[0] + 4, PK + 4, O))
    e("s_nop 7")
    e("s_cmp_lt_u32 s38, 0x20000")
    e("s_cbranch_scc1 L_fb2")
    e("s_nop 7"); e("s_nop 7")
    e(f"v_rcp_f32 v{T}, v{O+8}")
    e("s_branch L_fin")
    return fix_hazards(e.lines if OPT.get("pk", 1) else unpk(e.lines))

def build():
    hdr = open("cdna_kernels/%s.s.ref" % NAME).read().split("\n")
    hdr = [l for l in hdr if l.startswith(";") and "@launch" not in l]
    out = list(hdr)
    out.append(f"; @launch grid=(256,1,1) block=(768,1,1) lds={LDS_BYTES}")
    out.append('.amdgcn_target "amdgcn-amd-amdhsa--gfx950"')
    out.append(".text")
    k = NAME + "_kernel"
    out += [f".globl {k}", ".p2align 8", f".type {k},@function", f"{k}:"]
    out += gen()
    out.append('.section .rodata,"a"')
    out.append(f""".p2align 6
.amdhsa_kernel {k}
  .amdhsa_next_free_vgpr 168
  .amdhsa_next_free_sgpr {102 if OPT['stamp'] else 80}
  .amdhsa_accum_offset 168
  .amdhsa_group_segment_fixed_size 0
  .amdhsa_kernarg_size 104
  .amdhsa_user_sgpr_count 2
  .amdhsa_user_sgpr_kernarg_segment_ptr 1
  .amdhsa_system_sgpr_workgroup_id_x 1
.end_amdhsa_kernel
""")
    return "\n".join(out) + "\n"

if __name__ == "__main__":
    dst = "f.s"
    for a in sys.argv[1:]:
        k, v = a.split("=")
        if k == "out": dst = v
        elif "," in v: OPT[k] = tuple(int(x) for x in v.split(","))
        else: OPT[k] = int(v)
    open(dst, "w").write(build())
    print("wrote", dst)
```

```python
import sys
s = open(sys.argv[1]).read()
wave = int(sys.argv[3]); fa = int(sys.argv[4]); fb = int(sys.argv[5]); mode = sys.argv[6]
k = "gated_mix__linear_kernel_hedgehog__grouped_kv_mqa__prompt_kernel"
line = [l for l in s.split("\n") if "@launch" in l][0]
new = line.replace("@launch ", f"@launch kernel={k} ") + "\n; @launch kernel=diag_kernel grid=(1,1,1) block=(64,1,1) lds=0"
s = s.replace(line, new)
off = 0x900000 + wave * 64
rt = fa < 2
clk = "s_memrealtime"
sub = f"s_sub_u32 s30, s{8+fa}, s{8+fb}" if fb >= 0 else f"s_mov_b32 s30, s{8+fa}"
acc = "s_add_u32 s31, s31, s30" if mode == "avg" else ("s_max_u32 s31, s31, s30" if mode == "max" else "s_min_u32 s31, s31, s30")
fin = "s_lshr_b32 s31, s31, 8" if mode == "avg" else "s_nop 0"
init = "s_mov_b32 s31, -1" if mode == "min" else "s_mov_b32 s31, 0"
if mode == "gap":
    sub = "s_sub_u32 s30, s24, s9"; acc = "s_min_u32 s31, s31, s30"; init = "s_mov_b32 s31, -1"; fin = "s_nop 0"; rt = True
if mode == "gap0":
    sub = "s_sub_u32 s30, s24, s8"; acc = "s_max_u32 s31, s31, s30"; init = "s_mov_b32 s31, 0"; fin = "s_nop 0"; rt = True
if mode == "gap1":
    sub = "s_sub_u32 s30, s24, s8"; acc = "s_min_u32 s31, s31, s30"; init = "s_mov_b32 s31, -1"; fin = "s_nop 0"; rt = True
if mode == "gap2":
    sub = "s_sub_u32 s30, s24, s9"; acc = "s_max_u32 s31, s31, s30"; init = "s_mov_b32 s31, 0"; fin = "s_nop 0"; rt = True
if mode == "gap3":
    sub = "s_sub_u32 s30, s24, s9"; acc = "s_add_u32 s31, s31, s30"; init = "s_mov_b32 s31, 0"; fin = "s_lshr_b32 s31, s31, 8"; rt = True
stride = 1024
if mode == "tr":
    off = 0x940000 + wave * 256 + (fa & ~15) * 4; stride = 3072
    sub = f"s_mov_b32 s30, s{8 + (fa & 15)}"; acc = "s_add_u32 s31, s31, s30"; fin = "s_lshr_b32 s31, s31, 8"; init = "s_mov_b32 s31, 0"; rt = False
scale = "s_mul_i32 s31, s31, 10" if rt else "s_nop 0"
body = f""".globl diag_kernel
.p2align 8
.type diag_kernel,@function
diag_kernel:
    s_cmp_ge_u32 s2, 1
    s_cbranch_scc1 D_done
    s_load_dwordx2 s[4:5], s[0:1], 96
    {clk} s[24:25]
    s_waitcnt lgkmcnt(0)
    s_add_u32 s4, s4, {off}
    s_addc_u32 s5, s5, 0
    {init}
    s_mov_b32 s29, 0
D_a:
    s_load_dwordx16 s[8:23], s[4:5], s29
    s_waitcnt lgkmcnt(0)
    {sub}
    {acc}
    s_add_u32 s29, s29, {stride}
    s_cmp_lt_u32 s29, {stride*256}
    s_cbranch_scc1 D_a
    {fin}
    s_min_u32 s31, s31, 100000
    {scale}
    s_add_u32 s31, s31, 20000
D_l:
    {clk} s[26:27]
    s_waitcnt lgkmcnt(0)
    s_sub_u32 s26, s26, s24
    s_cmp_lt_u32 s26, s31
    s_cbranch_scc1 D_l
D_done:
    s_endpgm
"""
kd = """.p2align 6
.amdhsa_kernel diag_kernel
  .amdhsa_next_free_vgpr 8
  .amdhsa_next_free_sgpr 40
  .amdhsa_accum_offset 8
  .amdhsa_group_segment_fixed_size 0
  .amdhsa_kernarg_size 104
  .amdhsa_user_sgpr_count 2
  .amdhsa_user_sgpr_kernarg_segment_ptr 1
  .amdhsa_system_sgpr_workgroup_id_x 1
.end_amdhsa_kernel
"""
s = s.replace('.section .rodata,"a"\n', body + '.section .rodata,"a"\n' + kd, 1)
open(sys.argv[2], "w").write(s)
```

```python
import sys, math, struct
from asmlib import *

NAME = "gated_mix__linear_kernel_hedgehog__grouped_kv_mqa__prompt"
WS_KVB  = 0x000000
WS_GATE = 0x020000
WS_FL   = 0x024000
F1 = WS_FL + 0x8000; FG = WS_FL + 0x400; F3 = WS_FL + 0x1000; F3P = WS_FL + 0x3000; F4 = WS_FL + 0x4000
WS_EPOCH = WS_FL + 0x800
FP = WS_FL + 0x4000
WS_KVF  = 0x030000
WS_PART = 0x100000
WS_OC   = 0x500000
WS_STAMP = 0x900000
WS_SIZE = 0xB00000
XT = 65536; EXT = 0; S5 = 131072; PHQ = 131072; HND = 147456; WPH = 155648; MISC = 157696
LDS_BYTES = 158720
C_KVALL = MISC; C_PROG = MISC + 4; C_HS = MISC + 8; C_GOK = MISC + 12; C_LOC = MISC + 16; C_DONE = MISC + 20; C_GATE = MISC + 64

def fbits(x): return "0x%08x" % struct.unpack("<I", struct.pack("<f", x))[0]
LOG2E = math.log2(math.e)
OPT = dict(map=1, rot=3, pf=4, dep=4, round_pq=0, stamp=0, spin=1 << 16)

def srd(e, d, lo, nbytes):
    e(f"s_mov_b32 s{d}, s{lo}")
    e(f"s_mov_b32 s{d+1}, s{lo+1}")
    e(f"s_mov_b32 s{d+2}, {hex(nbytes)}")
    e(f"s_mov_b32 s{d+3}, 0x00020000")

def stamp_begin(e):
    if OPT["stamp"]:
        e("s_memrealtime s[92:93]")
        e("s_memtime s[94:95]")
        for k in range(6): e(f"s_mov_b32 s{80+2*k}, 0")
def stamp(k):
    return [f"s_memtime s[{80+2*k}:{81+2*k}]"] if OPT["stamp"] else []
def trace(idx):
    if not OPT.get("trace"): return []
    return ["s_memtime s[96:97]", "s_waitcnt lgkmcnt(0)", "s_sub_u32 s96, s96, s94", f"v_writelane_b32 v159, s96, {idx}"]
def stamp_end(e, vt):
    if OPT.get("trace"):
        e(f"v_lshlrev_b32 v{vt}, 2, v0")
        e("s_mul_i32 s100, s2, 3072")
        e(f"s_add_u32 s100, s100, {WS_STAMP + 0x40000}")
        e(f"buffer_store_dword v159, v{vt}, s[24:27], s100 offen")
    if OPT["stamp"]:
        e("s_waitcnt vmcnt(0)")
        e("s_memrealtime s[96:97]")
        e("s_memtime s[98:99]")
        e("s_waitcnt lgkmcnt(0)")
        for r in (98, 80, 82, 84, 86, 88, 90): e(f"s_sub_u32 s{r}, s{r}, s94")
        e(f"v_lshrrev_b32 v{vt+12}, 6, v0")
        e(f"v_lshlrev_b32 v{vt+12}, 6, v{vt+12}")
        e("s_lshl_b32 s100, s2, 10")
        e(f"s_add_u32 s100, s100, {WS_STAMP}")
        for i, r in enumerate((92, 96, 98, 80, 82, 84, 86, 88, 90, 90, 90, 90)):
            e(f"v_mov_b32 v{vt+i}, s{r}")
        for q in range(3):
            e(f"buffer_store_dwordx4 v[{vt+4*q}:{vt+4*q+3}], v{vt+12}, s[24:27], s100 offen offset:{16*q}")

def phi_unit(P, T, O):
    l = []
    if OPT["round_pq"]:
        for q in range(4): l.append(f"v_cvt_pk_bf16_f32 v{P+8+q}, v{P+2*q}, v{P+2*q+1}")
        for q in range(4):
            l.append(f"v_lshlrev_b32 v{P+2*q}, 16, v{P+8+q}")
            l.append(f"v_and_b32 v{P+2*q+1}, 0xffff0000, v{P+8+q}")
    A = T; B = T + 2
    l += [f"v_max3_f32 v{A}, v{P}, v{P+1}, v{P+2}",
          f"v_max3_f32 v{B}, -v{P}, -v{P+1}, -v{P+2}",
          f"v_max3_f32 v{A}, v{A}, v{P+3}, v{P+4}",
          f"v_max3_f32 v{B}, v{B}, -v{P+3}, -v{P+4}",
          f"v_max3_f32 v{A}, v{A}, v{P+5}, v{P+6}",
          f"v_max3_f32 v{B}, v{B}, -v{P+5}, -v{P+6}",
          f"v_max_f32 v{A}, v{A}, v{P+7}",
          f"v_max_f32_e64 v{B}, v{B}, -v{P+7}",
          f"v_permlane32_swap_b32 v{A}, v{B}",
          f"v_max_f32 v{A}, v{A}, v{B}",
          f"v_mul_f32 v{A}, s75, v{A}",
          f"v_mov_b32 v{B}, v{A}",
          f"v_permlane32_swap_b32 v{A}, v{B}"]
    if OPT.get("pk", 1):
        for i in range(0, 8, 2):
            l.append(f"v_pk_fma_f32 {vr(P+8+i,2)}, {vr(P+i,2)}, s[74:75], {vr(B,2)} op_sel_hi:[1,0,0] neg_lo:[1,0,0] neg_hi:[1,0,0]")
            l.append(f"v_pk_fma_f32 {vr(P+i,2)}, {vr(P+i,2)}, s[74:75], {vr(A,2)} op_sel_hi:[1,0,0]")
    else:
        for i in range(8):
            l.append(f"v_fma_f32 v{P+8+i}, -v{P+i}, s74, v{B}")
            l.append(f"v_fma_f32 v{P+i}, v{P+i}, s74, v{A}")
    for i in range(16): l.append(f"v_exp_f32 v{P+i}, v{P+i}")
    for sg in range(2):
        l.append(f"v_pk_add_f32 {vr(O+4*sg,2)}, {vr(P+8*sg,2)}, {vr(P+8*sg+2,2)}")
        l.append(f"v_pk_add_f32 {vr(O+4*sg+2,2)}, {vr(P+8*sg+4,2)}, {vr(P+8*sg+6,2)}")
    for sg in range(2):
        l.append(f"v_pk_add_f32 {vr(O+4*sg,2)}, {vr(O+4*sg,2)}, {vr(O+4*sg+2,2)}")
    for sg in range(2):
        l.append(f"v_add_f32 v{T+2*sg}, v{O+4*sg}, v{O+4*sg+1}")
    l += [f"v_permlane32_swap_b32 v{A}, v{B}",
          f"v_add_f32 v{A}, v{A}, v{B}",
          f"v_rcp_f32 v{A}, v{A}",
          f"v_mov_b32 v{B}, v{A}",
          f"v_permlane32_swap_b32 v{A}, v{B}"]
    for i in range(0, 8, 2):
        l.append(f"v_pk_mul_f32 {vr(P+i,2)}, {vr(P+i,2)}, {vr(A,2)} op_sel_hi:[1,0]")
        l.append(f"v_pk_mul_f32 {vr(P+8+i,2)}, {vr(P+8+i,2)}, {vr(B,2)} op_sel_hi:[1,0]")
    for q in range(8): l.append(f"v_cvt_pk_bf16_f32 v{O+q}, v{P+2*q}, v{P+2*q+1}")
    return l

import re as _re
def unpk(lines):
    out = []
    for l in lines:
        m = _re.match(r"\s*v_pk_(add|mul)_f32 v\[(\d+):\d+\], v\[(\d+):\d+\], ([vs])\[(\d+):\d+\](.*)", l)
        if not m: out.append(l); continue
        op, d, a, k, b, mods = m.group(1), int(m.group(2)), int(m.group(3)), m.group(4), int(m.group(5)), m.group(6)
        bc = "op_sel_hi:[1,0]" in mods
        assert mods.strip() in ("", "op_sel_hi:[1,0]"), l
        for i in range(2):
            out.append(f"    v_{op}_f32 v{d+i}, {k}{b if bc else b+i}, v{a+i}")
    return out

def spread(mm, r):
    out = []; n = len(mm); k = 0
    for i, x in enumerate(mm):
        out.append(x)
        hi = (len(r) * (i + 1) + n - 1) // n
        out += r[k:hi]; k = max(k, hi)
    return out + r[k:]

_uid = [0]
def uid(p):
    _uid[0] += 1
    return f"{p}_{_uid[0]}"

def flag_store(e, soff, vt):
    e(f"v_mov_b32 v{vt}, s78")
    e(f"v_mov_b32 v{vt+1}, s79")
    e(f"v_mov_b32 v{vt+2}, 0")
    e("s_mov_b64 exec, 1")
    e(f"buffer_store_dwordx2 {vr(vt,2)}, v{vt+2}, s[24:27], {soff} offen sc1")
    e("s_mov_b64 exec, -1")

def flag_poll(e, vaddr, vt, sleep=4):
    L = uid("FP"); D = uid("FD")
    e("s_mov_b32 s77, 0")
    e.label(L)
    e(f"buffer_load_dwordx2 {vr(vt,2)}, v{vaddr}, s[24:27], 0 offen sc1")
    e("s_add_u32 s77, s77, 1")
    e("s_waitcnt vmcnt(0)")
    e(f"v_cmp_ne_u64 vcc, s[78:79], {vr(vt,2)}")
    e(f"s_cbranch_vccz {D}")
    e(f"s_cmp_gt_u32 s77, {OPT['spin']}")
    e(f"s_cbranch_scc1 {D}")
    e(f"s_sleep {max(2, sleep * OPT.get('slp', 1))}")
    e(f"s_branch {L}")
    e.label(D)

def lds_add(e, addr, vt):
    e(f"v_mov_b32 v{vt}, {addr}")
    e(f"v_mov_b32 v{vt+1}, 1")
    e("s_mov_b64 exec, 1")
    e(f"ds_add_u32 v{vt}, v{vt+1}")
    e("s_mov_b64 exec, -1")

def lds_wait(e, addr, target, vt, sleep=4):
    L = uid("LW"); D = uid("LD")
    e(f"v_mov_b32 v{vt}, {addr}")
    e("s_mov_b32 s77, 0")
    e.label(L)
    e(f"ds_read_b32 v{vt+1}, v{vt}")
    e("s_add_u32 s77, s77, 1")
    e("s_waitcnt lgkmcnt(0)")
    e(f"v_cmp_gt_u32 vcc, {target}, v{vt+1}")
    e(f"s_cbranch_vccz {D}")
    e(f"s_cmp_gt_u32 s77, {OPT['spin']*8}")
    e(f"s_cbranch_scc1 {D}")
    e(f"s_sleep {sleep * OPT.get('slp', 1) if sleep > 1 else sleep}")
    e(f"s_branch {L}")
    e.label(D)

def gen():
    e = Emitter()
    ORD = {0: "x0 x1 x2 x3 w0 w1 w2 w3 w4 w5 w6 w7 w8",
           1: "x0 x1 x2 x3 w0 w8",
           2: "x0 w0 w8 x1 x2 x3",
           3: "x0 w0 x1 x2 x3 w8",
           4: "x0 x1 w0 x2 x3 w8",
           5: "x0 x1 x2 w0 x3 w8",
           6: "x0 w0 x1 w8 x2 x3"}[OPT.get("ord", 0)].split()
    ORD += [f"w{g}" for g in range(16) if f"w{g}" not in ORD]
    POS = {n: i for i, n in enumerate(ORD)}
    XL = POS["x3"]
    ring = [n for n in ORD if n[0] == "w" and n != "w8"]
    SLOT = {int(n[1:]): ((r + 1) % 4) * 16384 for r, n in enumerate(ring)}
    SLOT[8] = S5
    USE = {}; last = -1
    for c in range(8):
        last = max(POS[f"w{c}"], POS[f"x{c//2}"], last + 1); USE[c] = last
    last = XL + 1
    for c in range(8, 16):
        last = max(POS[f"w{c}"], last + 1); USE[c] = last
    assert USE[15] == 19
    e("s_cmp_ge_u32 s2, 256")
    e("s_cbranch_scc1 L_done")
    e("s_load_dwordx16 s[48:63], s[0:1], 0")
    e("s_load_dwordx8 s[64:71], s[0:1], 64")
    e("s_load_dwordx2 s[72:73], s[0:1], 96")
    stamp_begin(e)
    if OPT.get("trace"): e("v_mov_b32 v159, 0")
    e("v_and_b32 v1, 63, v0")
    e("v_lshrrev_b32 v11, 6, v0")
    e("v_readfirstlane_b32 s30, v11")
    e("s_and_b32 s36, s2, 7")
    e("s_lshr_b32 s37, s2, 3")
    lc = {0: 1, 1: 2, 2: 3}[OPT["map"]]
    e(f"s_and_b32 s29, s36, {(8>>lc)-1}")
    e(f"s_lshl_b32 s29, s29, {lc}")
    e(f"s_lshr_b32 s38, s37, {5-lc}")
    e("s_or_b32 s29, s29, s38")
    e(f"s_lshr_b32 s28, s36, {3-lc}")
    e(f"s_lshl_b32 s28, s28, {5-lc}")
    e(f"s_and_b32 s38, s37, {(32>>lc)-1}")
    e("s_add_u32 s28, s28, s38")
    if OPT["rot"] == 1:
        e("s_add_u32 s31, s28, s29"); e("s_lshl_b32 s31, s31, 1"); e("s_and_b32 s31, s31, 6")
    elif OPT["rot"] == 3:
        e("s_lshl_b32 s31, s29, 1"); e("s_add_u32 s31, s31, s28"); e("s_and_b32 s31, s31, 7")
    elif OPT["rot"] == 4:
        e("s_add_u32 s31, s28, s29"); e("s_and_b32 s31, s31, 7")
    elif OPT["rot"] == 5:
        e("s_lshl_b32 s31, s28, 1"); e("s_add_u32 s31, s31, s29"); e("s_and_b32 s31, s31, 7")
    elif OPT["rot"] == 6:
        e("s_lshl_b32 s31, s28, 1"); e("s_add_u32 s31, s31, s29"); e("s_add_u32 s31, s31, s36"); e("s_and_b32 s31, s31, 7")
    elif OPT["rot"] == 2:
        e("s_add_u32 s31, s28, s29"); e("s_lshl_b32 s31, s31, 2"); e("s_and_b32 s31, s31, 4")
    else:
        e("s_mov_b32 s31, 0")
    roles = {0: (0, 1, 2), 1: (3, 7, 6), 2: (3, 7, 2), 3: (7, 6, 5), 4: (7, 6, 0)}[OPT.get("role", 0)]
    tab = sum((roles.index(c) if c in roles else 3) << (2 * c) for c in range(8))
    e("s_lshl_b32 s3, s29, 1")
    e(f"s_lshr_b32 s3, {hex(tab)}, s3")
    e("s_and_b32 s3, s3, 3")
    e("v_lshlrev_b32 v10, 4, v1")
    if OPT.get("lf", 0):
        e("s_sub_u32 s30, s30, 4")
        e("s_cbranch_scc0 L_compute")
        e("s_add_u32 s30, s30, 12")
    else:
        e("s_cmp_lt_u32 s30, 8")
        e("s_cbranch_scc1 L_compute")
    e("s_setprio 3")
    e("s_sub_u32 s30, s30, 8")
    e("v_lshrrev_b32 v11, 3, v1")
    e("v_and_b32 v12, 7, v1")
    e("v_lshrrev_b32 v13, 4, v1")
    e("v_xor_b32 v14, v12, v13")
    e("v_lshlrev_b32 v14, 4, v14")
    e("v_lshl_add_u32 v2, v11, 10, v14")
    e("v_xor_b32 v3, 64, v2")
    e("v_add_u32 v3, 7168, v3")
    e("s_lshl_b32 s32, s28, 16")
    e("s_lshl_b32 s38, s30, 14")
    e("s_add_u32 s32, s32, s38")
    e("s_lshl_b32 s41, s30, 11")
    e("s_lshl_b32 s40, s30, 12")
    e("s_mov_b32 s36, s31")
    e("v_and_b32 v13, 1, v13")
    e("v_lshlrev_b32 v13, 1, v13")
    e("v_xor_b32 v14, v12, v13")
    e("v_lshlrev_b32 v14, 4, v14")
    e("v_mul_u32_u24 v6, 3072, v11")
    e("v_add_u32 v6, v6, v14")
    e(f"v_add_u32 v7, {8*3072-1024}, v6")
    e("v_xor_b32 v8, 64, v6")
    e(f"v_add_u32 v9, {8*3072-1024}, v8")
    e("s_lshl_b32 s38, s29, 7")
    e("s_mul_i32 s33, s30, 49152")
    e("s_add_u32 s33, s33, s38")
    e("v_xor_b32 v14, 64, v14")
    e("v_lshl_add_u32 v4, v11, 10, v14")
    e("v_add_u32 v5, 7168, v4")
    e("s_lshl_b32 s34, s30, 14")
    e("s_add_u32 s34, s34, s38")
    e("s_waitcnt lgkmcnt(0)")
    e.extend(trace(60))
    srd(e, 4, 48, 2048*512*2)
    srd(e, 8, 50, 512*1536*2)
    srd(e, 12, 58, 512*512*2)
    e("s_cmp_gt_u32 s3, 2")
    e("s_cbranch_scc1 L_noext")
    e("s_cmp_eq_u32 s3, 0")
    e("s_cselect_b32 s16, s60, s62")
    e("s_cselect_b32 s17, s61, s63")
    e("s_cmp_eq_u32 s3, 2")
    e("s_cselect_b32 s16, s66, s16")
    e("s_cselect_b32 s17, s67, s17")
    e("s_mov_b32 s18, 16384")
    e("s_cselect_b32 s18, 1024, s18")
    e("s_mov_b32 s19, 0x00020000")
    e("s_mov_b32 m0, s40")
    for i in range(4):
        e(f"buffer_load_dwordx4 v10, s[16:19], s40 offen offset:{i*1024} lds")
    e.label("L_noext")
    def item(i):
        l = []; nm = ORD[i]; idx = int(nm[1:])
        if nm[0] == "x":
            for q in range(2):
                l.append("s_lshl_b32 s38, s31, 7")
                l.append("s_add_u32 s38, s38, s32")
                l.append(f"s_add_u32 m0, s41, {XT + (2*idx+q)*8192}")
                l.append("s_add_u32 s31, s31, 1")
                for k in range(2):
                    l.append(f"buffer_load_dwordx4 v{2+k}, s[4:7], s38 offen offset:{k*1024} lds")
                l.append("s_and_b32 s31, s31, 7")
        else:
            g = idx
            l.append(f"s_add_u32 s35, s36, {g % 8}")
            l.append("s_and_b32 s35, s35, 7")
            l.append("s_mul_i32 s39, s35, 196608")
            l.append("s_add_u32 s39, s39, s33")
            l.append(f"s_add_u32 m0, s41, {SLOT[g]}")
            if g < 8: l.append("s_add_u32 s39, s39, 1024")
            else: l.append("s_lshl_b32 s38, s35, 16")
            for k in range(2):
                l.append(f"buffer_load_dwordx4 v{6+k}, s[8:11], s39 offen offset:{k*1024} lds")
            l.append(f"s_add_u32 m0, s41, {SLOT[g]+8192}")
            if g < 8:
                l.append("s_add_u32 s39, s39, 1024")
                for k in range(2):
                    l.append(f"buffer_load_dwordx4 v{8+k}, s[8:11], s39 offen offset:{k*1024} lds")
            else:
                l.append("s_add_u32 s38, s38, s34")
                for k in range(2):
                    l.append(f"buffer_load_dwordx4 v{4+k}, s[12:15], s38 offen offset:{k*1024} lds")
        return l
    def earliest(i):
        nm = ORD[i]; idx = int(nm[1:])
        if nm[0] == "x" or idx == 8: return -1
        r = ring.index(nm)
        if r < 3: return -1
        if r == 3: return XL + 1
        return USE[int(ring[r - 4][1:])] + 1
    DEP = OPT.get("dep", 3)
    for i in range(DEP): e.extend(item(i))
    e.extend(trace(61))
    e(f"s_load_dwordx2 s[78:79], s[72:73], {hex(WS_EPOCH)}")
    srd(e, 20, 52, 32*16*16*2)
    srd(e, 24, 72, WS_SIZE)
    e("s_and_b32 s46, s30, 1")
    e("s_lshr_b32 s47, s30, 1")
    e("v_bfe_u32 v13, v1, 4, 1")
    e("v_lshlrev_b32 v15, 2, v13")
    e("v_xor_b32 v15, v12, v15")
    e("v_lshlrev_b32 v15, 4, v15")
    e("v_lshl_add_u32 v144, v11, 10, v15")
    for k in range(1, 4): e(f"v_add_u32 v{144+k}, {k*7168}, v144")
    e("v_lshrrev_b32 v16, 5, v1")
    e("v_bfe_u32 v15, v1, 2, 2")
    e("v_lshl_add_u32 v148, v16, 2, v15")
    e("v_lshlrev_b32 v148, 7, v148")
    e("v_lshrrev_b32 v15, 1, v15")
    e("v_xor_b32 v15, s47, v15")
    e("v_lshl_add_u32 v148, v15, 6, v148")
    e("v_lshl_add_u32 v148, v13, 5, v148")
    e("v_and_b32 v15, 3, v1")
    e("v_lshl_add_u32 v148, v15, 3, v148")
    e("s_lshl_b32 s38, s47, 15")
    e("v_add_u32 v148, s38, v148")
    e("v_xor_b32 v149, 64, v148")
    e(f"s_add_u32 s38, s40, {PHQ}")
    e("v_add_u32 v150, s38, v10")
    e("v_xor_b32 v151, 0x2000, v150")
    e("v_and_b32 v155, 31, v1")
    e("v_lshlrev_b32 v152, 10, v155")
    e("v_lshl_add_u32 v152, v16, 4, v152")
    e("v_lshlrev_b32 v155, 2, v155")
    e("v_and_b32 v153, 15, v1")
    e("v_lshlrev_b32 v153, 3, v153")
    e("v_lshl_add_u32 v153, v16, 7, v153")
    e("s_lshl_b32 s38, s30, 9")
    e(f"s_add_u32 s38, s38, {WPH}")
    e("v_add_u32 v153, s38, v153")
    e(f"s_add_u32 s38, s41, {PHQ}")
    e("v_add_u32 v154, s38, v10")
    e("v_lshlrev_b32 v156, 3, v1")
    e("s_getreg_b32 s37, hwreg(HW_REG_XCC_ID, 0, 4)")
    e(f"s_mov_b32 s74, {fbits(LOG2E)}")
    e(f"s_mov_b32 s75, {fbits(-LOG2E)}")
    e("v_and_b32 v15, 31, v1")
    FS = OPT.get("fs", 3)
    e(f"v_lshlrev_b32 v15, {FS}, v15")
    e(f"s_lshl_b32 s38, s30, {FS+5}")
    e(f"s_add_u32 s38, s38, {F1}")
    e("v_add_u32 v15, s38, v15")
    e("s_lshl_b32 s42, s30, 10")
    assert WS_KVB == 0
    def kvdma(n):
        l = []
        for _ in range(n):
            l.append("s_mov_b32 m0, s42")
            l.append("s_nop 0")
            l.append("buffer_load_dwordx4 v10, s[24:27], s42 offen sc1 lds")
            l.append("s_add_u32 s42, s42, 4096")
        return l
    out = []
    e("s_and_b32 s38, s30, 1")
    e("s_lshl_b32 s38, s38, 10")
    e(f"s_add_u32 m0, s38, {WPH}")
    e("s_lshl_b32 s39, s29, 11")
    e("s_add_u32 s38, s38, s39")
    e("buffer_load_dwordx4 v10, s[20:23], s38 offen lds")
    for i in range(DEP): out += [i] * 4
    out.append("w")
    nxt = DEP
    def waitfor(tag):
        idx = max(k for k, t in enumerate(out) if t == tag)
        n = len(out) - 1 - idx
        del out[:idx + 1]
        return f"s_waitcnt vmcnt({n})"
    PA = OPT.get("pa", 14)
    poll = "buffer_load_dwordx2 v[16:17], v15, s[24:27], 0 offen sc1"
    e.extend(trace(62))
    for i in range(18):
        e(waitfor(i))
        e.extend(trace(2 * i))
        e("s_barrier")
        e.extend(trace(2 * i + 1))
        if i == 0:
            e.extend(stamp(0))
        if i == 8:
            e("s_waitcnt lgkmcnt(0)")
            e("s_add_u32 s78, s78, 1")
        while nxt <= min(19, i + DEP) and earliest(nxt) <= i:
            e.extend(item(nxt)); out += [nxt] * 4; nxt += 1
        assert nxt > i + 1
        if i == PA:
            e(poll); out.append("p")
    if "p" in out: e(waitfor("p"))
    e("v_cmp_ne_u64 vcc, s[78:79], v[16:17]")
    e("s_cbranch_vccnz L_kvlate")
    save = list(out)
    e.extend(kvdma(4)); out += ["k0"] * 4
    if 18 in out: e(waitfor(18))
    e("s_barrier")
    e.extend(kvdma(4)); out += ["k1"] * 4
    if 19 in out: e(waitfor(19))
    e("s_barrier")
    e.extend(kvdma(4)); out += ["k2"] * 4
    e.label("L_kv20")
    e("s_waitcnt vmcnt(4)")
    e("s_barrier")
    e("s_branch L_kvjoin")
    e.label("L_kvlate")
    out[:] = save
    e(poll); out.append("p")
    if 18 in out: e(waitfor(18))
    e("s_barrier")
    if 19 in out: e(waitfor(19))
    e("s_barrier")
    e("s_waitcnt vmcnt(0)")
    e("v_cmp_ne_u64 vcc, s[78:79], v[16:17]")
    e("s_cbranch_vccz L_kvlate2")
    flag_poll(e, 15, 16, sleep=0)
    e.label("L_kvlate2")
    e.extend(kvdma(12))
    e("s_branch L_kv20")
    e.label("L_kvjoin")
    e.extend(stamp(1))
    e.extend(kvdma(20))
    HQ = 16; HK = 32; HG = 40; HT = 42; HD = 48; HP = 80
    for u in range(2): e(f"ds_read_b128 {vr(HQ+8*u,4)}, v154 offset:{u*1024}")
    for u in range(2): e(f"ds_read_b64_tr_b16 {vr(HK+2*u,2)}, v153 offset:{u*256}")
    e("s_lshl_b32 s38, s28, 4")
    e(f"s_add_u32 s38, s38, {FG}")
    e(f"v_and_b32 v{HT+4}, 8, v156")
    e(f"v_add_u32 v{HT+4}, s38, v{HT+4}")
    e("s_waitcnt vmcnt(0)")
    e.extend(trace(44))
    lds_add(e, C_KVALL, HT)
    if OPT.get("nohelp") == 1:
        lds_add(e, C_GOK, HT)
        e("s_barrier")
        stamp_end(e, 64)
        e("s_endpgm")
    e("s_lshl_b32 s45, s29, 2")
    e("s_lshl_b32 s36, s28, 7")
    e("s_add_u32 s36, s36, s45")
    e("s_add_u32 s36, s36, s30")
    e("s_lshl_b32 s36, s36, 10")
    e(f"s_add_u32 s36, s36, {WS_OC}")
    e(f"v_mov_b64 {vr(HD,2)}, -1")
    e(f"v_mov_b64 {vr(HD+2,2)}, -1")
    for i in range(4):
        e(f"s_add_u32 s38, s36, {i*32768}")
        e(f"buffer_store_dwordx4 {vr(HD,4)}, v10, s[24:27], s38 offen sc1")
    flag_poll(e, HT + 4, HT + 2)
    e("s_lshl_b32 s38, s28, 5")
    e("s_add_u32 s38, s38, s45")
    e("s_add_u32 s38, s38, s30")
    e("s_lshl_b32 s38, s38, 4")
    e(f"s_add_u32 s38, s38, {FP}")
    e(f"v_mov_b32 v{HD+4}, s78")
    e(f"v_mov_b32 v{HD+5}, s79")
    e(f"v_mov_b32 v{HD+6}, s37")
    e(f"v_mov_b32 v{HD+7}, 0")
    e("s_mov_b64 exec, 1")
    e(f"buffer_store_dwordx4 {vr(HD+4,4)}, v{HD+7}, s[24:27], s38 offen sc1")
    e("s_mov_b64 exec, -1")
    e("s_lshl_b32 s38, s28, 8")
    e(f"s_add_u32 s38, s38, {WS_GATE}")
    e(f"buffer_load_dword v{HG}, v155, s[24:27], s38 offen sc1")
    e(f"buffer_load_dword v{HG+1}, v155, s[24:27], s38 offen offset:128 sc1")
    e("s_waitcnt lgkmcnt(0)")
    for u in range(2): e(mfma(HD + 16 * u, HK, HQ + 8 * u, None))
    e.extend(interleave(*[phi_unit(HD + 16 * u, HP + 4 * u, HQ + 8 * u) for u in range(2)]))
    e(f"v_add_u32 v{HT}, {C_GATE}, v155")
    e("s_waitcnt vmcnt(0)")
    e(f"ds_write_b32 v{HT}, v{HG}")
    e(f"ds_write_b32 v{HT}, v{HG+1} offset:128")
    e("s_waitcnt lgkmcnt(0)")
    lds_add(e, C_GOK, HT)
    e.extend(trace(45))
    if OPT.get("nohelp") == 2:
        lds_add(e, C_GOK, HT)
        e("s_barrier")
        stamp_end(e, 64)
        e("s_endpgm")
    e("s_and_b32 s38, s28, 3")
    e("s_cmp_lg_u32 s38, s30")
    e("s_cbranch_scc1 L_nored")
    e("s_lshr_b32 s38, s28, 3")
    e("s_add_u32 s43, s45, s38")
    e("v_lshlrev_b32 v15, 1, v155")
    e("s_lshl_b32 s38, s43, 8")
    e(f"s_add_u32 s38, s38, {F3}")
    e(f"v_add_u32 v{HT}, s38, v15")
    flag_poll(e, HT, HT + 2)
    e.extend(trace(46))
    e("s_lshl_b32 s43, s43, 3")
    e("s_and_b32 s38, s28, 7")
    e("s_add_u32 s43, s43, s38")
    e("s_lshl_b32 s38, s43, 14")
    e(f"s_add_u32 s38, s38, {WS_PART}")
    for p in range(16):
        if p and p % 4 == 0: e("s_add_u32 s38, s38, 4096")
        e(f"buffer_load_dwordx4 {vr(HP+4*p,4)}, v10, s[24:27], s38 offen offset:{(p&3)*1024} sc1")
    e("s_waitcnt vmcnt(0)")
    e.extend(trace(47))
    for st in (32, 16, 8, 4):
        for i in range(0, st, 2): e(f"v_pk_add_f32 {vr(HP+i,2)}, {vr(HP+i,2)}, {vr(HP+st+i,2)}")
    e(f"v_permlane32_swap_b32 v{HP}, v{HP+2}")
    e(f"v_permlane32_swap_b32 v{HP+1}, v{HP+3}")
    e(f"v_pk_add_f32 {vr(HP,2)}, {vr(HP,2)}, {vr(HP+2,2)}")
    e(f"v_cvt_pk_bf16_f32 v{HP}, v{HP}, v{HP+1}")
    e(f"v_lshrrev_b32 v{HT}, 5, v1")
    e(f"v_lshl_add_u32 v{HT}, v{HT}, 2, v15")
    e("s_lshl_b32 s38, s43, 8")
    e(f"s_add_u32 s38, s38, {WS_KVF}")
    e(f"buffer_store_dword v{HP}, v{HT}, s[24:27], s38 offen sc1")
    e("s_lshl_b32 s38, s43, 3")
    e(f"s_add_u32 s38, s38, {F3P}")
    e("s_waitcnt vmcnt(0)")
    e.extend(trace(48))
    flag_store(e, "s38", HT)
    e.label("L_nored")
    e.extend(stamp(2))
    e("s_lshl_b32 s38, s28, 9")
    e(f"s_add_u32 s38, s38, {FP}")
    e("v_lshlrev_b32 v2, 2, v155")
    e("v_add_u32 v2, s38, v2")
    e("s_mov_b32 s77, 0")
    e("s_mov_b32 s35, 0")
    e.label("L_fpp")
    e(f"buffer_load_dwordx4 {vr(HD,4)}, v2, s[24:27], 0 offen sc1")
    e("s_add_u32 s77, s77, 1")
    e("s_waitcnt vmcnt(0)")
    e(f"v_cmp_ne_u64 vcc, s[78:79], {vr(HD,2)}")
    e("s_cbranch_vccz L_fpd")
    e(f"s_sleep {8 * OPT.get('slp', 1)}")
    e(f"s_cmp_lt_u32 s77, {OPT['spin']}")
    e("s_cbranch_scc1 L_fpp")
    e("s_branch L_fpx")
    e.label("L_fpd")
    e(f"v_cmp_ne_u32 vcc, s37, v{HD+2}")
    e("s_cbranch_vccnz L_fpx")
    if OPT.get("loc", 1):
        lds_add(e, C_LOC, HT)
        e("s_mov_b32 s35, 1")
    e.label("L_fpx")
    e.extend(trace(57))
    e("s_add_u32 s45, s45, s30")
    e("s_lshl_b32 s38, s45, 6")
    e(f"s_add_u32 s38, s38, {F3P}")
    e(f"v_and_b32 v{HT}, 56, v156")
    e(f"v_add_u32 v{HT}, s38, v{HT}")
    flag_poll(e, HT, HT + 2)
    e.extend(trace(49))
    e("s_lshl_b32 s38, s45, 11")
    e(f"s_add_u32 s38, s38, {WS_KVF}")
    for q in range(4):
        e(f"buffer_load_dwordx2 {vr(HK+2*q,2)}, v156, s[24:27], s38 offen offset:{q*512} sc1")
    e("s_waitcnt vmcnt(0)")
    e.extend(trace(50))
    for u in range(2): e(mfma(HD + 16 * u, HK, HQ + 8 * u, None))
    for u in range(2): e(mfma(HD + 16 * u, HK + 4, HQ + 8 * u + 4, HD + 16 * u))
    for u in range(2):
        D = HD + 16 * u
        e(f"v_add_f32 v{HT}, {fbits(1e-6)}, v{D+8}")
        e(f"v_rcp_f32 v{HT}, v{HT}")
        e(f"v_mul_f32 v{HT}, v{HT}, v{HG+u}")
        for i in range(0, 8, 2): e(f"v_pk_mul_f32 {vr(D+i,2)}, {vr(D+i,2)}, {vr(HT,2)} op_sel_hi:[1,0]")
        for q in range(4): e(f"v_cvt_pk_bf16_f32 v{D+q}, v{D+2*q}, v{D+2*q+1}")
    e("s_add_u32 s38, s36, 65536")
    e(f"buffer_store_dwordx4 {vr(HD,4)}, v10, s[24:27], s36 offen sc1")
    e(f"buffer_store_dwordx4 {vr(HD+16,4)}, v10, s[24:27], s38 offen sc1")
    e.extend(trace(51))
    e.extend(stamp(3))
    if OPT.get("nohelp") == 3:
        lds_add(e, C_GOK, HT)
        e("s_barrier")
        stamp_end(e, 64)
        e("s_endpgm")
    ACC = [16, 32]; WFR = [48, 56, 132]; OF = 64; PT = 128
    srd(e, 4, 54, 512*512*2)
    srd(e, 8, 64, 512*512*2)
    srd(e, 12, 68, 2048*512*2)
    e("s_lshl_b32 s44, s28, 1")
    e("s_add_u32 s44, s44, s46")
    e("s_lshl_b32 s43, s44, 16")
    e("s_lshl_b32 s38, s47, 14")
    e("s_add_u32 s43, s43, s38")
    e(f"s_add_u32 s43, s43, {WS_OC}")
    def wdma(sd):
        e("s_lshl_b32 s38, s30, 17")
        e("s_lshl_b32 s39, s29, 7")
        e("s_add_u32 s38, s38, s39")
        e("s_lshl_b32 s39, s30, 14")
        for g in range(4):
            e("s_mov_b32 m0, s39")
            for k in range(4):
                e(f"buffer_load_dwordx4 v{144+k}, s[{sd}:{sd+3}], s38 offen offset:{k*1024} lds")
            if g < 3:
                e("s_add_u32 s38, s38, 32768")
                e("s_add_u32 s39, s39, 4096")
    def oload(base_add, g0=0, g1=4):
        for g in range(g0, g1):
            e(f"s_add_u32 s38, s43, {base_add + g*4096}")
            for t in range(4 * g, 4 * g + 4):
                e(f"buffer_load_dwordx4 {vr(OF+4*t,4)}, v10, s[24:27], s38 offen offset:{(t&3)*1024} sc1")
    WA = [148]
    def rd(t):
        return [f"ds_read_b64_tr_b16 {vr(WFR[t%3]+4*nt+2*u,2)}, v{WA[0]+nt} offset:{(16*t+8*u)*128}" for nt in range(2) for u in range(2)]
    def step(t, first, fill=[]):
        if t < 14: e.extend(rd(t + 2))
        e(f"s_waitcnt lgkmcnt({4*min(2, 15-t)})")
        for nt in ((1, 0) if t == 15 else (0, 1)):
            e(mfma(ACC[nt], WFR[t % 3] + 4 * nt, OF + 4 * t, None if (first and t == 0) else ACC[nt]))
            e.extend(fill[nt * 5:nt * 5 + 5])
    def check(g):
        b = OF + 16 * g
        l = [f"v_max3_u32 v{PT}, v{b}, v{b+1}, v{b+2}", f"v_max3_u32 v{PT+1}, v{b+3}, v{b+4}, v{b+5}"]
        for i in (6, 10):
            l += [f"v_max3_u32 v{PT}, v{PT}, v{b+i}, v{b+i+1}", f"v_max3_u32 v{PT+1}, v{PT+1}, v{b+i+2}, v{b+i+3}"]
        l += [f"v_max3_u32 v{PT}, v{PT}, v{b+14}, v{b+15}", f"v_max_u32 v{PT}, v{PT}, v{PT+1}", f"v_cmp_eq_u32 vcc, -1, v{PT}"]
        return l
    NG = OPT.get("ng", 2)
    def pgemm(tag, first, pace, base):
        e(f"s_waitcnt vmcnt({4*(NG-1)})")
        e.extend(check(0))
        for g in range(4):
            e(f"s_cbranch_vccnz L_retry{tag}{g}")
            e.label(f"L_go{tag}{g}")
            if g == 0 and not first: e.extend(trace(40))
            for t in range(4 * g, 4 * g + 4):
                if t % 4 == 3 and g < 3: step(t, first, [f"s_waitcnt vmcnt({4*(min(4, g+1+NG)-g-2)})"] + check(g + 1))
                else: step(t, first)
                if t % 4 == 0 and g + NG < 4: oload(base, g + NG, g + NG + 1)
                if pace: e(f"s_sleep {pace}")
    if OPT.get("late", 0):
        lds_wait(e, C_PROG, 8, PT, sleep=8)
        e.extend(trace(54))
        wdma(4)
        e("v_lshlrev_b32 v2, 10, v1")
        e("s_lshl_b32 s38, s30, 17")
        e("s_lshl_b32 s39, s29, 7")
        e("s_add_u32 s38, s38, s39")
        e("buffer_load_dword v3, v2, s[8:11], s38 offen")
        e("s_add_u32 s38, s38, 65536")
        e("buffer_load_dword v4, v2, s[8:11], s38 offen")
        e("s_mov_b32 s77, 0")
        e.label("L_apoll")
        oload(0)
        e("s_add_u32 s77, s77, 1")
        e("s_waitcnt vmcnt(0)")
        e(f"v_max3_u32 v{PT}, v{OF}, v{OF+1}, v{OF+2}")
        e(f"v_max3_u32 v{PT+1}, v{OF+3}, v{OF+4}, v{OF+5}")
        for i_ in range(6, 62, 4):
            e(f"v_max3_u32 v{PT}, v{PT}, v{OF+i_}, v{OF+i_+1}")
            e(f"v_max3_u32 v{PT+1}, v{PT+1}, v{OF+i_+2}, v{OF+i_+3}")
        e(f"v_max3_u32 v{PT}, v{PT}, v{OF+62}, v{OF+63}")
        e(f"v_max_u32 v{PT}, v{PT}, v{PT+1}")
        e(f"v_cmp_eq_u32 vcc, -1, v{PT}")
        e("s_cbranch_vccz L_aready")
        e("s_sleep 32")
        e(f"s_cmp_lt_u32 s77, {OPT['spin']}")
        e("s_cbranch_scc1 L_apoll")
        e.label("L_aready")
        lds_add(e, C_HS, PT)
        lds_wait(e, C_HS, 4, PT)
        e.extend(trace(55))
        e.extend(rd(0) + rd(1))
        e("v_add_u32 v2, 0x10000, v148")
        e("v_add_u32 v3, 0x10000, v149")
        e("s_lshl_b32 s36, s44, 15")
        e("s_lshl_b32 s39, s29, 7")
        e("s_add_u32 s36, s36, s39")
        e("s_lshl_b32 s39, s47, 6")
        e("s_add_u32 s36, s36, s39")
        e("s_lshl_b32 s38, s30, 17")
        e("s_lshl_b32 s39, s29, 7")
        e("s_add_u32 s38, s38, s39")
        e("s_lshl_b32 s39, s30, 14")
        e("s_add_u32 s39, s39, 0x10000")
        e.extend(stamp(4))
        lds_wait(e, C_DONE, 8, PT, sleep=OPT.get("dsleep", 2))
        e.extend(trace(56))
        for t in range(16):
            if t % 4 == 0: e("s_mov_b32 m0, s39")
            e(f"buffer_load_dwordx4 v{144+t%4}, s[8:11], s38 offen offset:{(t%4)*1024} lds")
            if t % 4 == 3:
                e("s_add_u32 s38, s38, 32768"); e("s_add_u32 s39, s39, 4096")
            step(t, True)
        e.extend(trace(58))
        WA[0] = 2
        e("s_mov_b32 s77, 0")
        oload(32768, 0, NG)
        e(f"s_waitcnt vmcnt({4*NG})")
        e("s_barrier")
    else:
        lds_wait(e, C_PROG, 8, PT, sleep=8)
        e.extend(trace(54))
        wdma(4)
        oload(0, 0, NG)
        e(f"s_waitcnt vmcnt({4*NG})")
        lds_add(e, C_HS, PT)
        lds_wait(e, C_HS, 4, PT)
        e.extend(trace(55))
        e.extend(rd(0) + rd(1))
        e("s_mov_b32 s77, 0")
        e(f"s_setprio {OPT.get('aprio', 2)}")
        pgemm("A", True, OPT.get("pace", 0), 0)
        e("s_setprio 3")
        e.extend(trace(56))
        lds_add(e, C_HS, PT)
        lds_wait(e, C_HS, 8, PT)
        e.extend(trace(58))
        wdma(8)
        e("s_lshl_b32 s36, s44, 15")
        e("s_lshl_b32 s39, s29, 7")
        e("s_add_u32 s36, s36, s39")
        e("s_lshl_b32 s39, s47, 6")
        e("s_add_u32 s36, s36, s39")
        e("s_mov_b32 s77, 0")
        e("s_waitcnt vmcnt(0)")
        e.extend(stamp(4))
        e("s_barrier")
    e.extend(stamp(5))
    if not OPT.get("late", 0): oload(32768, 0, NG)
    e.extend(rd(0) + rd(1))
    pgemm("B", False, 0, 32768)
    e.extend(trace(42))
    if OPT.get("trace"): e("v_writelane_b32 v159, s77, 41")
    for q in range(4): e(f"ds_write_b128 v150, {vr(ACC[1]+4*q,4)} offset:{q*1024}")
    e("s_waitcnt lgkmcnt(0)")
    e("s_barrier")
    for q in range(4): e(f"ds_read_b128 {vr(OF+4*q,4)}, v151 offset:{q*1024}")
    A = ACC[0]
    for pr in range(2):
        e(f"s_waitcnt lgkmcnt({2-2*pr})")
        for i in range(8 * pr, 8 * pr + 8, 2): e(f"v_pk_add_f32 {vr(A+i,2)}, {vr(A+i,2)}, {vr(OF+i,2)}")
        for q in range(4): e(f"v_cvt_pk_bf16_f32 v{A+8*pr+q}, v{A+8*pr+2*q}, v{A+8*pr+2*q+1}")
    for pr in range(2):
        e(f"v_permlane32_swap_b32 v{A+8*pr}, v{A+8*pr+2}")
        e(f"v_permlane32_swap_b32 v{A+8*pr+1}, v{A+8*pr+3}")
    for pr in range(2):
        e(f"buffer_store_dwordx4 {vr(A+8*pr,4)}, v152, s[12:15], s36 offen offset:{pr*32}" + ["", " sc1", " nt", " sc0 sc1"][OPT.get("ost", 0)])
    e.extend(trace(43))
    e("s_or_b32 s38, s2, s30")
    e("s_cbranch_scc1 L_noepoch")
    e(f"s_mov_b32 s38, {WS_EPOCH}")
    flag_store(e, "s38", PT)
    e.label("L_noepoch")
    stamp_end(e, 64)
    e.label("L_done")
    e("s_endpgm")
    for tag, base in ((("B", 32768),) if OPT.get("late", 0) else (("A", 0), ("B", 32768))):
        for g in range(4):
            e.label(f"L_retry{tag}{g}")
            if tag == "A": e("s_sleep 8")
            oload(base, g, min(4, g + NG))
            e("s_add_u32 s77, s77, 1")
            e(f"s_waitcnt vmcnt({4*(min(4, g+NG)-g-1)})")
            e.extend(check(g))
            e(f"s_cbranch_vccz L_go{tag}{g}")
            e(f"s_cmp_lt_u32 s77, {OPT['spin']}")
            e(f"s_cbranch_scc1 L_retry{tag}{g}")
            e(f"s_branch L_go{tag}{g}")

    e.label("L_compute")
    ACC = 96; EACC = 128; WF = 144; I0 = 148; ONE = 156
    e("s_and_b32 s44, s30, 3")
    e("s_lshr_b32 s40, s30, 2")
    if OPT.get("pf", 0):
        e("s_cmp_lt_u32 s44, 3")
        e("s_movk_i32 s38, 1024")
        e("s_cselect_b32 s38, 3072, s38")
        e("v_mul_lo_u32 v30, v1, s38")
        e("s_add_u32 s39, s31, s40")
        e("s_and_b32 s39, s39, 7")
        e("s_mul_i32 s38, s38, s39")
        e("s_lshl_b32 s38, s38, 6")
        e("s_add_u32 s39, s44, 1")
        e("s_cmp_lt_u32 s44, 2")
        e("s_cselect_b32 s39, s39, 0")
        e("s_lshl_b32 s39, s39, 10")
        e("s_add_u32 s38, s38, s39")
        e("s_lshl_b32 s39, s29, 7")
        e("s_add_u32 s38, s38, s39")
        e("v_add_u32 v30, s38, v30")
        e("s_waitcnt lgkmcnt(0)")
        e("s_cmp_lt_u32 s44, 3")
        e("s_cselect_b32 s16, s50, s58")
        e("s_cselect_b32 s17, s51, s59")
        mask = {1: 0x0f, 2: 0xff, 3: 0x33, 4: 0x03}[OPT["pf"]]
        e(f"s_lshr_b32 s38, {mask}, s30")
        e("s_and_b32 s38, s38, 1")
        e("s_cbranch_scc0 L_nopf")
        e("global_load_dword v31, v30, s[16:17]")
        e.label("L_nopf")
    e("v_and_b32 v11, 31, v1")
    e("v_lshrrev_b32 v22, 5, v1")
    e("v_bfe_u32 v23, v1, 1, 3")
    e("v_xor_b32 v23, v23, v22")
    e("v_lshlrev_b32 v23, 4, v23")
    e("v_lshl_add_u32 v12, v11, 7, v23")
    e(f"v_add_u32 v12, {XT}, v12")
    for t in range(1, 4): e(f"v_xor_b32 v{12+t}, {32*t}, v12")
    su_w = ["v_lshrrev_b32 v22, 5, v1", "v_bfe_u32 v23, v1, 2, 2", "v_lshl_add_u32 v20, v22, 3, v23", "v_lshlrev_b32 v20, 7, v20",
            "v_bfe_u32 v23, v1, 3, 2", "v_xor_b32 v23, s44, v23", "v_lshl_add_u32 v20, v23, 5, v20", "v_bfe_u32 v24, v1, 4, 1",
            "v_lshl_add_u32 v20, v24, 13, v20", "v_and_b32 v23, 3, v1", "v_lshl_add_u32 v20, v23, 3, v20"]
    su_s = ["s_lshl_b32 s45, s29, 2", "s_add_u32 s45, s45, s44", "s_lshl_b32 s47, s28, 1", "s_xor_b32 s46, s40, 1",
            "s_add_u32 s47, s47, s46", "s_lshl_b32 s43, s47, 6", "s_add_u32 s43, s43, s45", "s_lshl_b32 s43, s43, 10",
            f"s_add_u32 s43, s43, {WS_OC+32*1024}",
            f"s_mov_b32 s74, {fbits(LOG2E)}", f"s_mov_b32 s75, {fbits(-LOG2E)}", f"s_mov_b32 s76, {fbits(0.25*LOG2E)}",
            "s_lshl_b32 s38, s44, 10", f"s_add_u32 s38, s38, {HND}", "v_add_u32 v28, s38, v10"]
    su_ws = ["s_waitcnt lgkmcnt(0)", f"s_load_dwordx2 s[78:79], s[72:73], {hex(WS_EPOCH)}",
             "s_mov_b32 s24, s72", "s_mov_b32 s25, s73", f"s_mov_b32 s26, {hex(WS_SIZE)}", "s_mov_b32 s27, 0x00020000"]
    su_ep = ["s_waitcnt lgkmcnt(0)", "s_add_u32 s78, s78, 1"]
    def su_id(n, I0):
        l = ["v_and_b32 v11, 31, v1", "v_lshrrev_b32 v22, 5, v1", "v_lshlrev_b32 v22, 2, v22", "v_sub_u32 v11, v11, v22",
             "v_mov_b32 v22, 0x3f80", "v_mov_b32 v23, 0x3f800000"]
        for sgn in range(n):
            for q in range(4):
                f0 = 16 * sgn + (2 * q if q < 2 else 8 + 2 * (q - 2))
                l += [f"v_cmp_eq_u32 vcc, {f0}, v11", f"v_cmp_eq_u32 s[38:39], {f0+1}, v11",
                      f"v_cndmask_b32 v{I0+4*sgn+q}, 0, v22, vcc", f"v_cndmask_b32 v{I0+4*sgn+q}, v{I0+4*sgn+q}, v23, s[38:39]"]
        return l
    Q = 4; NM = 8; O = 24; S = [40, 56]; PK = 72; KF = [80, 84]; VF = [144, 152]; AK = 2; AV = 3; T = 106
    U = 4; NIT = 16
    SEG = OPT.get("seg", (2, 8, 15, 16))
    ATT_SETUP = [f"v_mov_b32 v{AK}, v10", f"v_lshrrev_b32 v{T}, 5, v1", f"v_and_b32 v{AV}, 15, v1", f"v_lshlrev_b32 v{AV}, 4, v{AV}",
                 f"v_lshl_add_u32 v{AV}, v{T}, 8, v{AV}", f"v_add_u32 v{AV}, 1024, v{AV}", f"v_and_b32 v{T}, 27, v1",
                 f"v_mov_b32 v{T+1}, 0x3f803f80", f"v_cmp_eq_u32 vcc, 16, v{T}", "s_mov_b32 s20, 0xffff", "s_mov_b32 s21, 0xffff",
                 f"v_cndmask_b32 v{VF[0]}, 0, v{T+1}, vcc"] + [f"v_mov_b32 v{VF[0]+1}, v{VF[0]}"] + [f"v_mov_b64 {vr(VF[0]+i,2)}, {vr(VF[0],2)}" for i in range(2, 16, 2)] + \
                [f"s_mov_b32 s22, {SEG[0]}", "s_mov_b32 s23, 0"]
    def fr(buf, t):
        if buf == 0:
            b = 32 + 12 * t; return (b, b + 4, b + 8)
        return [(80, 84, 88), (128, 132, 136), (92, 140, 16), (4, 160, 164)][t]
    def reads(buf, g):
        l = []; p = g % 8; so = SLOT[g] & 0xffff; wa = 21 if g == 8 else 20
        for t in range(4):
            xa, xb, w = fr(buf, t)
            l.append(f"ds_read_b128 {vr(xa,4)}, v{12+t} offset:{p*8192}")
            for u in range(2):
                l.append(f"ds_read_b64_tr_b16 {vr(w+2*u,2)}, v{wa} offset:{so+(16*t+4*u)*128}")
            l.append(f"ds_read_b128 {vr(xb,4)}, v{12+t} offset:{p*8192+4096}")
        return l
    def mfmas(buf, first):
        l = []
        for t in range(4):
            xa, xb, w = fr(buf, t); z = first and t == 0
            l.append(mfma(ACC, w, xa, None if z else ACC))
            l.append(mfma(ACC + 16, w, xb, None if z else ACC + 16))
        return l
    def gpass(g0, first, last, extra={}):
        pend = None; NS = OPT.get("gspread", 5)
        for i in range(first, last + 1):
            e("s_barrier")
            mm = mfmas(pend & 1, pend == 0) if pend is not None else []
            todo = None
            for c in range(8):
                if USE[g0 + c] == i: todo = c
            if todo is not None:
                r = reads(todo & 1, g0 + todo)
                e.extend(spread(mm[:NS], r) + mm[NS:] if mm else r)
                e.extend(extra.get(i, []))
                e("s_waitcnt lgkmcnt(0)")
            else:
                e.extend(mm)
                e.extend(extra.get(i, []))
            pend = todo
        if pend is not None and g0 == 0: e.extend(mfmas(pend & 1, False))
    PU = [32, 48]; PH = [64, 72]; TM = [80, 84]; VFR = [88, 92]
    e("s_cmp_lg_u32 s40, 0")
    e("s_cbranch_scc1 L_qwave")
    e(f"v_mov_b32 v26, {MISC}")
    for i in range(4): e(f"v_mov_b32 v{32+i}, 0")
    e("ds_write_b128 v26, v[32:35]")
    e("ds_write_b128 v26, v[32:35] offset:16")
    e.extend(su_w)
    e.extend(su_ws)
    wph = ["v_and_b32 v23, 15, v1", "v_lshlrev_b32 v23, 3, v23", "v_lshrrev_b32 v22, 5, v1", "v_lshl_add_u32 v25, v22, 7, v23",
           "s_lshl_b32 s38, s44, 9", f"s_add_u32 s38, s38, {WPH}", "v_add_u32 v25, s38, v25"]
    wpr = [f"ds_read_b64_tr_b16 {vr(WF+2*u,2)}, v25 offset:{u*256}" for u in range(2)]
    one = ["v_bfe_u32 v24, v1, 4, 1", f"v_mul_u32_u24 v{ONE}, 0x3f80, v24", f"v_lshl_or_b32 v{ONE}, v{ONE}, 16, v{ONE}"]
    xs = [i for i in range(8) if i not in USE.values() or i == USE[8] and i not in [USE[c] for c in range(8)]]
    idl = su_id(2, I0)
    KEND = USE[7] + 1
    kx = {xs[0]: su_s + wph, xs[1]: idl[:22], xs[2]: idl[22:] + one, xs[3]: su_ep + stamp(0), 9: wpr}
    if "pf8" in OPT:
        kx[OPT["pf8"]] = ["s_cmp_lt_u32 s44, 2", "s_cbranch_scc1 L_nopf8", "global_load_dword v31, v30, s[16:17]", "L_nopf8:"] + kx.get(OPT["pf8"], [])
    gpass(0, 0, KEND, kx)
    e.extend(stamp(1))
    k = []
    for u in range(2):
        for q in range(4): k.append(f"v_cvt_pk_bf16_f32 v{PH[u]+q}, v{ACC+16*u+2*q}, v{ACC+16*u+2*q+1}")
    for u in range(2): k.append(mfma(PU[u], WF, PH[u], None))
    for u in range(2):
        a = ACC + 16 * u
        for q in range(4): k.append(f"v_cvt_pk_bf16_f32 v{VFR[u]+q}, v{a+8+2*q}, v{a+8+2*q+1}")
    for u in range(2): k.append(mfma(ACC + 16 * u, VFR[u], I0, None))
    k += interleave(*[phi_unit(PU[u], TM[u], PH[u]) for u in range(2)])
    for u in range(2): k.append(mfma(PU[u], PH[u], I0, None))
    for u in range(2): k.append(mfma(PU[u], PH[u] + 4, I0 + 4, PU[u]))
    for u in range(2):
        a = ACC + 16 * u
        for q in range(8): k.append(f"v_cvt_pk_bf16_f32 v{a+q}, v{a+2*q}, v{a+2*q+1}")
        for q in range(8): k.append(f"v_or_b32 v{a+q}, v{a+q}, v{ONE}")
    for u in range(2):
        for q in range(8): k.append(f"v_cvt_pk_bf16_f32 v{PH[u]+q}, v{PU[u]+2*q}, v{PU[u]+2*q+1}")
    D3 = EACC
    for u in range(2):
        k.append(mfma(D3, PH[u], ACC + 16 * u, None if u == 0 else D3))
        k.append(mfma(D3, PH[u] + 4, ACC + 16 * u + 4, D3))
    PST = ["v_and_b32 v112, 31, v1", "v_lshlrev_b32 v112, 4, v112", "v_lshrrev_b32 v113, 5, v1", "v_lshl_add_u32 v112, v113, 14, v112",
          "s_lshl_b32 s38, s45, 17", "s_lshl_b32 s39, s28, 9", "s_add_u32 s38, s38, s39", f"s_add_u32 s38, s38, {WS_PART}"]
    for q in range(4):
        PST.append(f"buffer_store_dwordx4 {vr(D3+4*q,4)}, v112, s[24:27], s38 offen sc1")
        if q < 3: PST.append("s_add_u32 s38, s38, 32768")
    DEFER = OPT.get("defer", 1)
    if not DEFER: k += PST
    if not OPT.get("pk", 1): k = unpk(k)
    k = [x.strip() for x in fix_hazards(k, pre=mfmas(1, False))]
    def cost(x):
        if "mfma" in x: return 48
        if "v_exp" in x or "v_rcp" in x: return 8
        if "s_nop" in x: return 4 * (int(x.split()[1]) + 1)
        return 4
    NB = 20 - KEND
    acc = 260; nb = 0; LIM = OPT.get("klim", 140)
    for x in k:
        if nb < NB and acc + cost(x) > (LIM if nb < NB - 1 else OPT.get("klast", 300)):
            e("s_barrier"); nb += 1; acc = 0
            if nb == NB:
                e.extend(stamp(2)); e("s_setprio 2")
        e(x); acc += cost(x)
    while nb < NB:
        e("s_barrier"); nb += 1
    e("ds_read_b128 v[4:7], v28")
    e.extend(ATT_SETUP)
    e("s_branch L_attn")
    e.label("L_qwave")
    e.extend(su_w)
    e.extend(su_s)
    e.extend(ATT_SETUP)
    e("s_lshl_b32 s38, s44, 11")
    e(f"s_add_u32 s38, s38, {PHQ}")
    e("v_add_u32 v29, s38, v10")
    e("s_mov_b32 s41, 0")
    e.extend([x for x in su_ws if "s_load" not in x])
    e("s_cmp_eq_u32 s30, 6")
    e("s_cbranch_scc1 L_touch")
    e("s_cmp_eq_u32 s30, 7")
    e("s_cbranch_scc1 L_touch7")
    e("s_cmp_gt_u32 s3, 2")
    e("s_cbranch_scc1 L_qidle")
    e("s_lshl_b32 s38, s44, 12")
    for t in range(4): e(f"v_add_u32 v{16+t}, s38, v{12+t}")
    e("v_and_b32 v23, 15, v1")
    e("v_lshlrev_b32 v23, 3, v23")
    e("v_lshl_add_u32 v26, v22, 8, v23")
    e("v_lshlrev_b32 v27, 4, v22")
    e("s_lshl_b32 s42, s28, 1")
    e("s_add_u32 s42, s42, s44")
    e("s_cmp_eq_u32 s3, 2")
    e("s_cbranch_scc1 L_qgate")
    def extloop(gate):
        nbar = 0
        if not gate: e.extend(su_id(1, 160))
        def xr(p):
            B = 32 + 32 * (p % 3); va = 21 if p % 2 == 0 else 25
            l = [f"s_lshl_b32 s38, s31, {7 if gate else 11}", f"v_add_u32 v{va}, s38, v{27 if gate else 26}",
                 "s_add_u32 s31, s31, 1", "s_and_b32 s31, s31, 7"]
            r = []
            for t in range(4):
                r.append(f"ds_read_b128 {vr(B+8*t,4)}, v{16+t} offset:{p*8192}")
                if gate: r.append(f"ds_read_b128 {vr(B+8*t+4,4)}, v{va} offset:{t*32}")
                else:
                    for u in range(2): r.append(f"ds_read_b64_tr_b16 {vr(B+8*t+4+2*u,2)}, v{va} offset:{t*512+u*128}")
            return l, r
        def xm(p):
            B = 32 + 32 * (p % 3)
            return [mfma(EACC, B + 8 * t + 4, B + 8 * t, None if (p == 0 and t == 0) else EACC) for t in range(4)]
        n = 8 if gate else 12
        for p in range(0, 8, 2):
            a0, r0 = xr(p); a1, r1 = xr(p + 1)
            e.extend(a0 + a1)
            while nbar <= POS[f"x{p//2}"]:
                e("s_barrier"); nbar += 1
            e.extend(spread(xm(p - 1)[:3], r0 + r1) + xm(p - 1)[3:] if p else r0 + r1)
            e(f"s_waitcnt lgkmcnt({n})")
            e.extend(xm(p))
            e("s_waitcnt lgkmcnt(0)")
        while nbar <= XL + 1:
            e("s_barrier"); nbar += 1
        e.extend(xm(7))
    extloop(False)
    for q in range(4): e(f"v_cvt_pk_bf16_f32 v{EACC+q}, v{EACC+2*q}, v{EACC+2*q+1}")
    e("s_lshl_b32 s38, s42, 11")
    e("s_lshl_b32 s41, s44, 1")
    e("s_add_u32 s41, s41, s3")
    e("s_lshl_b32 s41, s41, 5")
    e("s_add_u32 s41, s41, s28")
    e(f"s_lshl_b32 s41, s41, {FS}")
    e(f"s_add_u32 s41, s41, {F1}")
    e("s_cmp_eq_u32 s3, 1")
    e("s_cbranch_scc1 L_qv")
    e(f"buffer_store_dwordx4 {vr(EACC,4)}, v10, s[24:27], s38 offen sc1")
    e("s_branch L_q5")
    e.label("L_qv")
    e("s_nop 1")
    e(mfma(32, EACC, 160, None))
    e("v_lshrrev_b32 v11, 5, v1")
    e("v_and_b32 v22, 15, v1")
    e("v_lshlrev_b32 v22, 4, v22")
    e("v_lshl_add_u32 v22, v11, 8, v22")
    for q in range(8): e(f"v_cvt_pk_bf16_f32 v{EACC+8+q}, v{32+2*q}, v{32+2*q+1}")
    e("s_mov_b32 exec_lo, 0xffff")
    e("s_mov_b32 exec_hi, 0xffff")
    e(f"buffer_store_dwordx4 {vr(EACC+8,4)}, v22, s[24:27], s38 offen offset:1024 sc1")
    e(f"buffer_store_dwordx4 {vr(EACC+12,4)}, v22, s[24:27], s38 offen offset:1536 sc1")
    e("s_mov_b64 exec, -1")
    e("s_branch L_q5")
    e.label("L_qgate")
    extloop(True)
    e(f"v_cvt_pk_bf16_f32 v11, v{EACC}, v{EACC}")
    e("v_and_b32 v11, 0xffff0000, v11")
    e("v_mul_f32 v11, s75, v11")
    e("v_exp_f32 v11, v11")
    e("v_add_f32 v11, 1.0, v11")
    e("v_rcp_f32 v11, v11")
    e("v_cvt_pk_bf16_f32 v11, v11, v11")
    e("v_and_b32 v11, 0xffff0000, v11")
    e("v_lshlrev_b32 v22, 2, v1")
    e("s_lshl_b32 s38, s42, 7")
    e(f"s_add_u32 s38, s38, {WS_GATE}")
    e("s_lshl_b32 s41, s42, 3")
    e(f"s_add_u32 s41, s41, {FG}")
    e("s_mov_b32 exec_hi, 0")
    e("buffer_store_dword v11, v22, s[24:27], s38 offen sc1")
    e("s_mov_b64 exec, -1")
    e("s_branch L_q5")
    SPF = OPT.get("spf", 0)
    FSTEP = XL + OPT.get("flat", 4)
    for wv in (6, 7):
        e.label("L_touch" if wv == 6 else "L_touch7")
        if SPF:
            pitch = 3072 if wv == 6 else 1024; p = 50 if wv == 6 else 58
            for ch in range(2):
                e(f"s_add_u32 s38, s31, {ch}")
                e("s_and_b32 s38, s38, 7")
                e(f"s_mul_i32 s38, s38, {64*pitch}")
                e("s_lshl_b32 s39, s29, 7")
                e("s_add_u32 s38, s38, s39")
                e(f"s_add_u32 s{4+2*ch}, s{p}, s38")
                e(f"s_addc_u32 s{5+2*ch}, s{p+1}, 0")
            ld = [f"s_load_dword s{8+(r&7)}, s[{4+2*(r>>6)}:{5+2*(r>>6)}], {(r&63)*pitch}" for r in range(64 * SPF)]
            n0 = OPT.get("spf0", 24); n1 = OPT.get("spf1", 5)
            e.extend(ld[:n0]); k_ = n0
            for i in range(FSTEP + 1):
                e("s_barrier")
                e.extend(ld[k_:k_ + n1]); k_ += n1
            e(f"v_add_u32 v21, {S5}, v20")
            e("s_branch L_noflag")
    e.label("L_qidle")
    for i in range(XL + 2): e("s_barrier")
    e.label("L_q5")
    e(su_ws[1])
    e(f"v_add_u32 v21, {S5}, v20")
    fl = Emitter()
    fl("s_cmp_eq_u32 s41, 0")
    fl("s_cbranch_scc1 L_noflag")
    fl.extend(su_ep)
    fl("s_waitcnt vmcnt(0)")
    flag_store(fl, "s41", 22)
    fl.label("L_noflag")
    gpass(8, XL + 2, 19, {FSTEP: fl.lines, USE[9] - 1: stamp(0) + ["s_setprio 1"]})
    mm = mfmas(1, False)
    def qconv(u):
        a = ACC + 16 * u; d = 76 if u else 68; l = []
        for i in range(8, 16, 2): l.append(f"v_pk_mul_f32 {vr(a+i,2)}, {vr(a+i,2)}, s[76:77] op_sel_hi:[1,0]")
        for q in range(4): l.append(f"v_cvt_pk_bf16_f32 v{(76 if u else 4)+q}, v{a+8+2*q}, v{a+8+2*q+1}")
        if u: l.append("ds_write_b128 v28, v[76:79]")
        for q in range(4): l.append(f"v_cvt_pk_bf16_f32 v{PH[u]+q}, v{a+2*q}, v{a+2*q+1}")
        l.append(f"ds_write_b128 v29, {vr(PH[u],4)} offset:{u*1024}")
        return l
    e.extend(mm[1::2] + mm[0:4:2])
    e("s_nop 7"); e("s_nop 1")
    c1 = unpk(qconv(1))
    e.extend(c1[:8] + [mm[4]] + c1[8:14] + [mm[6]] + c1[14:])
    e.extend(stamp(1))
    c0 = qconv(0)
    e.extend(c0[8:] + c0[:8])
    e("s_waitcnt lgkmcnt(0)")
    e.extend(stamp(2))
    e("s_barrier")
    e.label("L_attn")
    if OPT.get("rts"): e.extend(["s_memrealtime s[80:81]", "s_waitcnt lgkmcnt(0)", "s_sub_u32 s80, s80, s92", "s_add_u32 s80, s80, s94"])
    e.extend(stamp(3))
    e("s_setprio 2")
    e(f"ds_read_b128 {vr(KF[0],4)}, v{AK}")
    e(f"ds_read_b128 {vr(KF[1],4)}, v{AK} offset:2048")
    e("s_mov_b64 exec, s[20:21]")
    e(f"ds_read_b128 {vr(VF[0],4)}, v{AV}")
    e(f"ds_read_b128 {vr(VF[0]+4,4)}, v{AV} offset:512")
    e("s_mov_b64 exec, -1")
    for i in range(0, 16, 2): e(f"v_mov_b64 {vr(O+i,2)}, 0")
    for i in range(0, 4, 2): e(f"v_mov_b64 {vr(PK+4+i,2)}, 0")
    e("s_waitcnt lgkmcnt(0)")
    e(mfma(S[0], KF[0], Q, None))
    e(mfma(S[1], KF[1], Q, None))
    e(f"v_max3_f32 v{T}, v{S[0]}, v{S[0]+1}, v{S[0]+2}")
    e(f"v_max3_f32 v{T+1}, v{S[0]+3}, v{S[0]+4}, v{S[0]+5}")
    for i in range(6, 30, 4):
        e(f"v_max3_f32 v{T}, v{T}, v{S[0]+i}, v{S[0]+i+1}")
        e(f"v_max3_f32 v{T+1}, v{T+1}, v{S[0]+i+2}, v{S[0]+i+3}")
    e(f"v_max3_f32 v{T}, v{T}, v{S[0]+30}, v{S[0]+31}")
    e(f"v_max_f32 v{T}, v{T}, v{T+1}")
    def setnm():
        e(f"v_mov_b32 v{T+1}, v{T}")
        e(f"v_permlane32_swap_b32 v{T}, v{T+1}")
        e(f"v_max_f32 v{T}, v{T}, v{T+1}")
        for i in range(2): e(f"v_sub_f32 v{NM+i}, 0, v{T}")
        for i in range(2, 16, 2): e(f"v_mov_b64 {vr(NM+i,2)}, {vr(NM,2)}")
    setnm()
    e(mfma(S[0], KF[0], Q, NM))
    e("s_nop 7"); e("s_nop 1")
    body = Emitter()
    ex = lambda i: f"v_exp_f32 v{i}, v{i}"
    for j in range(U):
        a = j & 1; b = a ^ 1; Sa = S[a]
        cv = lambda q: f"v_cvt_pk_bf16_f32 v{PK+q}, v{Sa+2*q}, v{Sa+2*q+1}"
        body(mfma(S[b], KF[b], Q, NM))
        body(f"ds_read_b128 {vr(KF[a],4)}, v{AK} offset:{(j+2)*2048}")
        for i in range(7): body(ex(Sa + i))
        body(mfma(O, VF[b] + 4, PK + 4, O))
        body("s_mov_b64 exec, s[20:21]")
        body(f"ds_read_b128 {vr(VF[b],4)}, v{AV} offset:{(j+1)*2048}")
        body(f"ds_read_b128 {vr(VF[b]+4,4)}, v{AV} offset:{(j+1)*2048+512}")
        body("s_mov_b64 exec, -1")
        body(ex(Sa + 7)); body(ex(Sa + 8))
        for q in range(4): body(cv(q))
        body(ex(Sa + 9)); body(ex(Sa + 10))
        body("s_waitcnt lgkmcnt(3)")
        body(mfma(O, VF[a], PK, O))
        for i in range(11, 16): body(ex(Sa + i))
        if j == U - 1:
            body(f"v_add_u32 v{AK}, {U*2048}, v{AK}")
            body(f"v_add_u32 v{AV}, {U*2048}, v{AV}")
            body("s_add_u32 s23, s23, 1")
            body("s_cmp_lt_u32 s23, s22")
        for q in range(4, 8): body(cv(q))
        body("s_waitcnt lgkmcnt(2)")
    rep = []
    fix_hazards(body.lines, pre=body.lines, report=rep)
    assert not rep, rep
    e(".p2align 6")
    e.label("L_loop")
    if OPT.get("trace") == 3:
        e.extend(["s_memtime s[96:97]", "s_waitcnt lgkmcnt(0)", "s_sub_u32 s96, s96, s94", "s_lshl_b32 s97, s23, 1", "s_add_u32 m0, s97, 1", "v_writelane_b32 v111, s96, m0"])
    e.extend(body.lines)
    e("s_cbranch_scc1 L_loop")
    e(f"s_cmp_lg_u32 s22, {SEG[3]}")
    e("s_cbranch_scc1 L_seg")
    e(mfma(O, VF[1] + 4, PK + 4, O))
    if OPT.get("rts"): e.extend(["s_memrealtime s[82:83]", "s_waitcnt lgkmcnt(0)", "s_sub_u32 s82, s82, s92", "s_add_u32 s82, s82, s94"])
    e.extend(stamp(4))
    e(f"ds_read_b32 v{T+4}, v{T+4}")
    if OPT.get("late", 0):
        e("s_mov_b64 exec, 1")
        e(f"ds_add_u32 v{T+6}, v{T+7}")
        e("s_mov_b64 exec, -1")
    e(f"v_lshlrev_b32 v{AK}, 4, v1")
    e(f"v_fma_f32 v{T+1}, v{O}, 0, v{O+8}")
    e(f"v_mul_f32 v{T+3}, 0, v{O+1}")
    e(f"v_rcp_f32 v{T}, v{O+8}")
    for i in range(2, 8): e(f"v_fma_f32 v{T+1+2*(i&1)}, v{O+i}, 0, v{T+1+2*(i&1)}")
    e(f"v_add_f32 v{T+1}, v{T+1}, v{T+3}")
    e(f"v_cmp_ngt_f32 vcc, s39, v{T+1}")
    e("s_cbranch_vccnz L_fallback")
    e.label("L_fin")
    e(f"v_mul_f32 v{T}, v{T}, v{T+2}")
    for i in range(0, 8, 2): e(f"v_pk_mul_f32 {vr(O+i,2)}, {vr(O+i,2)}, {vr(T,2)} op_sel_hi:[1,0]")
    for q in range(4): e(f"v_cvt_pk_bf16_f32 v{O+q}, v{O+2*q}, v{O+2*q+1}")
    e("s_waitcnt lgkmcnt(0)")
    e(f"v_cmp_eq_u32 vcc, 0, v{T+4}")
    e("s_cbranch_vccnz L_far")
    e(f"buffer_store_dwordx4 {vr(O,4)}, v{AK}, s[24:27], s43 offen")
    if OPT.get("cbar", 1) & 1: e("s_barrier")
    if OPT["stamp"] == 1: e("s_branch L_cend")
    else: e("s_endpgm")
    e.label("L_far")
    e(f"buffer_store_dwordx4 {vr(O,4)}, v{AK}, s[24:27], s43 offen sc1")
    if OPT.get("cbar", 1) & 2: e("s_barrier")
    e.label("L_cend")
    e.extend(stamp(5))
    if OPT.get("trace") == 3: e("v_mov_b32 v159, v111")
    if OPT["stamp"] == 1: stamp_end(e, 40)
    e("s_endpgm")
    e.label("L_seg")
    e(f"s_cmp_eq_u32 s22, {SEG[1]}")
    e("s_cbranch_scc1 L_seg1")
    e(f"s_cmp_gt_u32 s22, {SEG[1]}")
    e("s_cbranch_scc1 L_seg2")
    if DEFER:
        e(f"s_cmp_lg_u32 s22, {SEG[0]}")
        e("s_cbranch_scc1 L_segf")
        lds_wait(e, C_KVALL, 4, T, sleep=1)
        e(f"s_mov_b32 s22, {SEG[1]}")
        e("s_cmp_lg_u32 s40, 0")
        e("s_cbranch_scc1 L_loop")
        e.extend(PST)
        e(f"s_mov_b32 s22, {SEG[0] + OPT.get('fgap', 2)}")
        e("s_branch L_loop")
        e.label("L_segf")
    e(f"s_mov_b32 s22, {SEG[1]}")
    if not DEFER:
        e("s_cmp_lg_u32 s40, 0")
        e("s_cbranch_scc1 L_seg0b")
    e("s_lshl_b32 s38, s45, 5")
    e("s_add_u32 s38, s38, s28")
    e("s_lshl_b32 s38, s38, 3")
    e(f"s_add_u32 s38, s38, {F3}")
    e("s_waitcnt vmcnt(0)")
    flag_store(e, "s38", T)
    e.label("L_seg0b")
    if not DEFER: lds_wait(e, C_KVALL, 4, T, sleep=1)
    e("s_branch L_loop")
    e.label("L_seg1")
    e(f"s_mov_b32 s22, {SEG[2]}")
    lds_add(e, C_PROG, T)
    lds_wait(e, C_GOK, 4, T)
    e("s_lshl_b32 s38, s46, 7")
    e(f"s_add_u32 s38, s38, {C_GATE}")
    e(f"v_and_b32 v{T}, 31, v1")
    e(f"v_lshl_add_u32 v{T}, v{T}, 2, s38")
    e(f"ds_read_b32 v{T+2}, v{T}")
    e(f"v_mov_b32 v{T+4}, {C_LOC}")
    e(f"v_mov_b32 v{T+6}, {C_DONE}")
    e(f"v_mov_b32 v{T+7}, 1")
    e(f"s_mov_b32 s39, {fbits(2.0**120)}")
    e("s_waitcnt lgkmcnt(0)")
    e(f"v_sub_f32 v{T+2}, 1.0, v{T+2}")
    e(f"v_cvt_pk_bf16_f32 v{T+2}, v{T+2}, v{T+2}")
    e(f"v_and_b32 v{T+2}, 0xffff0000, v{T+2}")
    e("s_cmp_lg_u32 s40, 0")
    e("s_cbranch_scc1 L_loop")
    e("s_setprio 1")
    e(f"s_mov_b32 s22, {OPT.get('kdrop', 16)}")
    e("s_branch L_loop")
    e.label("L_seg2")
    e(f"s_mov_b32 s22, {SEG[3]}")
    e("s_setprio 1")
    e("s_cmp_lg_u32 s40, 0")
    e("s_cbranch_scc1 L_loop")
    e("s_setprio 0")
    e("s_branch L_loop")
    e.label("L_fallback")
    e("s_waitcnt lgkmcnt(0)")
    e(f"v_add_u32 v{AV}, {-64*2048 & 0xffffffff}, v{AV}")
    e(f"v_mov_b32 v{T}, 0xff800000")
    e("s_mov_b32 s38, 0")
    e.label("L_fb1")
    e(f"buffer_load_dwordx4 {vr(KF[0],4)}, v{AK}, s[24:27], s38 offen sc1")
    e("s_add_u32 s38, s38, 2048")
    e("s_waitcnt vmcnt(0)")
    e(mfma(S[0], KF[0], Q, None))
    for i in range(8): e(f"v_max3_f32 v{T}, v{T}, v{S[0]+2*i}, v{S[0]+2*i+1}")
    e("s_cmp_lt_u32 s38, 0x20000")
    e("s_cbranch_scc1 L_fb1")
    setnm()
    for i in range(16): e(f"v_mov_b32 v{O+i}, 0")
    e("s_mov_b32 s38, 0")
    e.label("L_fb2")
    e(f"buffer_load_dwordx4 {vr(KF[0],4)}, v{AK}, s[24:27], s38 offen sc1")
    e("s_mov_b64 exec, s[20:21]")
    e(f"buffer_load_dwordx4 {vr(VF[0],4)}, v{AV}, s[24:27], s38 offen sc1")
    e(f"buffer_load_dwordx4 {vr(VF[0]+4,4)}, v{AV}, s[24:27], s38 offen offset:512 sc1")
    e("s_mov_b64 exec, -1")
    e("s_add_u32 s38, s38, 2048")
    e("s_waitcnt vmcnt(0)")
    e(mfma(S[0], KF[0], Q, NM))
    for i in range(16): e(ex(S[0] + i))
    for q in range(8): e(f"v_cvt_pk_bf16_f32 v{PK+q}, v{S[0]+2*q}, v{S[0]+2*q+1}")
    e(mfma(O, VF[0], PK, O))
    e(mfma(O, VF[0] + 4, PK + 4, O))
    e("s_nop 7")
    e("s_cmp_lt_u32 s38, 0x20000")
    e("s_cbranch_scc1 L_fb2")
    e("s_nop 7"); e("s_nop 7")
    e(f"v_rcp_f32 v{T}, v{O+8}")
    e("s_branch L_fin")
    return fix_hazards(e.lines if OPT.get("pk", 1) else unpk(e.lines))

def build():
    hdr = open("cdna_kernels/%s.s.ref" % NAME).read().split("\n")
    hdr = [l for l in hdr if l.startswith(";") and "@launch" not in l]
    out = list(hdr)
    out.append(f"; @launch grid=(256,1,1) block=(768,1,1) lds={LDS_BYTES}")
    out.append('.amdgcn_target "amdgcn-amd-amdhsa--gfx950"')
    out.append(".text")
    k = NAME + "_kernel"
    out += [f".globl {k}", ".p2align 8", f".type {k},@function", f"{k}:"]
    out += gen()
    out.append('.section .rodata,"a"')
    out.append(f""".p2align 6
.amdhsa_kernel {k}
  .amdhsa_next_free_vgpr 168
  .amdhsa_next_free_sgpr {102 if OPT['stamp'] else 80}
  .amdhsa_accum_offset 168
  .amdhsa_group_segment_fixed_size 0
  .amdhsa_kernarg_size 104
  .amdhsa_user_sgpr_count 2
  .amdhsa_user_sgpr_kernarg_segment_ptr 1
  .amdhsa_system_sgpr_workgroup_id_x 1
.end_amdhsa_kernel
""")
    return "\n".join(out) + "\n"

if __name__ == "__main__":
    dst = "f.s"
    for a in sys.argv[1:]:
        k, v = a.split("=")
        if k == "out": dst = v
        elif "," in v: OPT[k] = tuple(int(x) for x in v.split(","))
        else: OPT[k] = int(v)
    open(dst, "w").write(build())
    print("wrote", dst)
```

```python
import sys, math, struct
from asmlib import *

NAME = "gated_mix__linear_kernel_hedgehog__grouped_kv_mqa__prompt"
WS_KVB  = 0x000000
WS_GATE = 0x020000
WS_FL   = 0x024000
F1 = WS_FL + 0x8000; FG = WS_FL + 0x400; F3 = WS_FL + 0x1000; F3P = WS_FL + 0x3000; F4 = WS_FL + 0x4000
WS_EPOCH = WS_FL + 0x800
FP = WS_FL + 0x4000
WS_KVF  = 0x030000
WS_PART = 0x100000
WS_OC   = 0x500000
WS_STAMP = 0x900000
WS_SIZE = 0xB00000
XT = 65536; EXT = 0; S5 = 131072; PHQ = 131072; HND = 147456; WPH = 155648; MISC = 157696
LDS_BYTES = 158720
C_KVALL = MISC; C_PROG = MISC + 4; C_HS = MISC + 8; C_GOK = MISC + 12; C_LOC = MISC + 16; C_DONE = MISC + 20; C_GATE = MISC + 64

def fbits(x): return "0x%08x" % struct.unpack("<I", struct.pack("<f", x))[0]
LOG2E = math.log2(math.e)
OPT = dict(map=1, rot=3, pf=0, dep=3, round_pq=0, stamp=0, spin=1 << 16)

def srd(e, d, lo, nbytes):
    e(f"s_mov_b32 s{d}, s{lo}")
    e(f"s_mov_b32 s{d+1}, s{lo+1}")
    e(f"s_mov_b32 s{d+2}, {hex(nbytes)}")
    e(f"s_mov_b32 s{d+3}, 0x00020000")

def stamp_begin(e):
    if OPT["stamp"]:
        e("s_memrealtime s[92:93]")
        e("s_memtime s[94:95]")
        for k in range(6): e(f"s_mov_b32 s{80+2*k}, 0")
def stamp(k):
    return [f"s_memtime s[{80+2*k}:{81+2*k}]"] if OPT["stamp"] else []
def trace(idx):
    if not OPT.get("trace"): return []
    return ["s_memtime s[96:97]", "s_waitcnt lgkmcnt(0)", "s_sub_u32 s96, s96, s94", f"v_writelane_b32 v159, s96, {idx}"]
def stamp_end(e, vt):
    if OPT.get("trace"):
        e(f"v_lshlrev_b32 v{vt}, 2, v0")
        e("s_mul_i32 s100, s2, 3072")
        e(f"s_add_u32 s100, s100, {WS_STAMP + 0x40000}")
        e(f"buffer_store_dword v159, v{vt}, s[24:27], s100 offen")
    if OPT["stamp"]:
        e("s_waitcnt vmcnt(0)")
        e("s_memrealtime s[96:97]")
        e("s_memtime s[98:99]")
        e("s_waitcnt lgkmcnt(0)")
        for r in (98, 80, 82, 84, 86, 88, 90): e(f"s_sub_u32 s{r}, s{r}, s94")
        e(f"v_lshrrev_b32 v{vt+12}, 6, v0")
        e(f"v_lshlrev_b32 v{vt+12}, 6, v{vt+12}")
        e("s_lshl_b32 s100, s2, 10")
        e(f"s_add_u32 s100, s100, {WS_STAMP}")
        for i, r in enumerate((92, 96, 98, 80, 82, 84, 86, 88, 90, 90, 90, 90)):
            e(f"v_mov_b32 v{vt+i}, s{r}")
        for q in range(3):
            e(f"buffer_store_dwordx4 v[{vt+4*q}:{vt+4*q+3}], v{vt+12}, s[24:27], s100 offen offset:{16*q}")

def phi_unit(P, T, O):
    l = []
    if OPT["round_pq"]:
        for q in range(4): l.append(f"v_cvt_pk_bf16_f32 v{P+8+q}, v{P+2*q}, v{P+2*q+1}")
        for q in range(4):
            l.append(f"v_lshlrev_b32 v{P+2*q}, 16, v{P+8+q}")
            l.append(f"v_and_b32 v{P+2*q+1}, 0xffff0000, v{P+8+q}")
    A = T; B = T + 2
    l += [f"v_max3_f32 v{A}, v{P}, v{P+1}, v{P+2}",
          f"v_max3_f32 v{B}, -v{P}, -v{P+1}, -v{P+2}",
          f"v_max3_f32 v{A}, v{A}, v{P+3}, v{P+4}",
          f"v_max3_f32 v{B}, v{B}, -v{P+3}, -v{P+4}",
          f"v_max3_f32 v{A}, v{A}, v{P+5}, v{P+6}",
          f"v_max3_f32 v{B}, v{B}, -v{P+5}, -v{P+6}",
          f"v_max_f32 v{A}, v{A}, v{P+7}",
          f"v_max_f32_e64 v{B}, v{B}, -v{P+7}",
          f"v_permlane32_swap_b32 v{A}, v{B}",
          f"v_max_f32 v{A}, v{A}, v{B}",
          f"v_mul_f32 v{A}, s75, v{A}",
          f"v_mov_b32 v{B}, v{A}",
          f"v_permlane32_swap_b32 v{A}, v{B}"]
    if OPT.get("pk", 1):
        for i in range(0, 8, 2):
            l.append(f"v_pk_fma_f32 {vr(P+8+i,2)}, {vr(P+i,2)}, s[74:75], {vr(B,2)} op_sel_hi:[1,0,0] neg_lo:[1,0,0] neg_hi:[1,0,0]")
            l.append(f"v_pk_fma_f32 {vr(P+i,2)}, {vr(P+i,2)}, s[74:75], {vr(A,2)} op_sel_hi:[1,0,0]")
    else:
        for i in range(8):
            l.append(f"v_fma_f32 v{P+8+i}, -v{P+i}, s74, v{B}")
            l.append(f"v_fma_f32 v{P+i}, v{P+i}, s74, v{A}")
    for i in range(16): l.append(f"v_exp_f32 v{P+i}, v{P+i}")
    for sg in range(2):
        l.append(f"v_pk_add_f32 {vr(O+4*sg,2)}, {vr(P+8*sg,2)}, {vr(P+8*sg+2,2)}")
        l.append(f"v_pk_add_f32 {vr(O+4*sg+2,2)}, {vr(P+8*sg+4,2)}, {vr(P+8*sg+6,2)}")
    for sg in range(2):
        l.append(f"v_pk_add_f32 {vr(O+4*sg,2)}, {vr(O+4*sg,2)}, {vr(O+4*sg+2,2)}")
    for sg in range(2):
        l.append(f"v_add_f32 v{T+2*sg}, v{O+4*sg}, v{O+4*sg+1}")
    l += [f"v_permlane32_swap_b32 v{A}, v{B}",
          f"v_add_f32 v{A}, v{A}, v{B}",
          f"v_rcp_f32 v{A}, v{A}",
          f"v_mov_b32 v{B}, v{A}",
          f"v_permlane32_swap_b32 v{A}, v{B}"]
    for i in range(0, 8, 2):
        l.append(f"v_pk_mul_f32 {vr(P+i,2)}, {vr(P+i,2)}, {vr(A,2)} op_sel_hi:[1,0]")
        l.append(f"v_pk_mul_f32 {vr(P+8+i,2)}, {vr(P+8+i,2)}, {vr(B,2)} op_sel_hi:[1,0]")
    for q in range(8): l.append(f"v_cvt_pk_bf16_f32 v{O+q}, v{P+2*q}, v{P+2*q+1}")
    return l

import re as _re
def unpk(lines):
    out = []
    for l in lines:
        m = _re.match(r"\s*v_pk_(add|mul)_f32 v\[(\d+):\d+\], v\[(\d+):\d+\], ([vs])\[(\d+):\d+\](.*)", l)
        if not m: out.append(l); continue
        op, d, a, k, b, mods = m.group(1), int(m.group(2)), int(m.group(3)), m.group(4), int(m.group(5)), m.group(6)
        bc = "op_sel_hi:[1,0]" in mods
        assert mods.strip() in ("", "op_sel_hi:[1,0]"), l
        for i in range(2):
            out.append(f"    v_{op}_f32 v{d+i}, {k}{b if bc else b+i}, v{a+i}")
    return out

def spread(mm, r):
    out = []; n = len(mm); k = 0
    for i, x in enumerate(mm):
        out.append(x)
        hi = (len(r) * (i + 1) + n - 1) // n
        out += r[k:hi]; k = max(k, hi)
    return out + r[k:]

_uid = [0]
def uid(p):
    _uid[0] += 1
    return f"{p}_{_uid[0]}"

def flag_store(e, soff, vt):
    e(f"v_mov_b32 v{vt}, s78")
    e(f"v_mov_b32 v{vt+1}, s79")
    e(f"v_mov_b32 v{vt+2}, 0")
    e("s_mov_b64 exec, 1")
    e(f"buffer_store_dwordx2 {vr(vt,2)}, v{vt+2}, s[24:27], {soff} offen sc1")
    e("s_mov_b64 exec, -1")

def flag_poll(e, vaddr, vt, sleep=4):
    L = uid("FP"); D = uid("FD")
    e("s_mov_b32 s77, 0")
    e.label(L)
    e(f"buffer_load_dwordx2 {vr(vt,2)}, v{vaddr}, s[24:27], 0 offen sc1")
    e("s_add_u32 s77, s77, 1")
    e("s_waitcnt vmcnt(0)")
    e(f"v_cmp_ne_u64 vcc, s[78:79], {vr(vt,2)}")
    e(f"s_cbranch_vccz {D}")
    e(f"s_cmp_gt_u32 s77, {OPT['spin']}")
    e(f"s_cbranch_scc1 {D}")
    e(f"s_sleep {max(2, sleep * OPT.get('slp', 1))}")
    e(f"s_branch {L}")
    e.label(D)

def lds_add(e, addr, vt):
    e(f"v_mov_b32 v{vt}, {addr}")
    e(f"v_mov_b32 v{vt+1}, 1")
    e("s_mov_b64 exec, 1")
    e(f"ds_add_u32 v{vt}, v{vt+1}")
    e("s_mov_b64 exec, -1")

def lds_wait(e, addr, target, vt, sleep=4):
    L = uid("LW"); D = uid("LD")
    e(f"v_mov_b32 v{vt}, {addr}")
    e("s_mov_b32 s77, 0")
    e.label(L)
    e(f"ds_read_b32 v{vt+1}, v{vt}")
    e("s_add_u32 s77, s77, 1")
    e("s_waitcnt lgkmcnt(0)")
    e(f"v_cmp_gt_u32 vcc, {target}, v{vt+1}")
    e(f"s_cbranch_vccz {D}")
    e(f"s_cmp_gt_u32 s77, {OPT['spin']*8}")
    e(f"s_cbranch_scc1 {D}")
    e(f"s_sleep {sleep * OPT.get('slp', 1) if sleep > 1 else sleep}")
    e(f"s_branch {L}")
    e.label(D)

def gen():
    e = Emitter()
    ORD = {0: "x0 x1 x2 x3 w0 w1 w2 w3 w4 w5 w6 w7 w8",
           1: "x0 x1 x2 x3 w0 w8",
           2: "x0 w0 w8 x1 x2 x3",
           3: "x0 w0 x1 x2 x3 w8",
           4: "x0 x1 w0 x2 x3 w8",
           5: "x0 x1 x2 w0 x3 w8",
           6: "x0 w0 x1 w8 x2 x3"}[OPT.get("ord", 0)].split()
    ORD += [f"w{g}" for g in range(16) if f"w{g}" not in ORD]
    POS = {n: i for i, n in enumerate(ORD)}
    XL = POS["x3"]
    ring = [n for n in ORD if n[0] == "w" and n != "w8"]
    SLOT = {int(n[1:]): ((r + 1) % 4) * 16384 for r, n in enumerate(ring)}
    SLOT[8] = S5
    USE = {}; last = -1
    for c in range(8):
        last = max(POS[f"w{c}"], POS[f"x{c//2}"], last + 1); USE[c] = last
    last = XL + 1
    for c in range(8, 16):
        last = max(POS[f"w{c}"], last + 1); USE[c] = last
    assert USE[15] == 19
    e("s_cmp_ge_u32 s2, 256")
    e("s_cbranch_scc1 L_done")
    e("s_load_dwordx16 s[48:63], s[0:1], 0")
    e("s_load_dwordx8 s[64:71], s[0:1], 64")
    e("s_load_dwordx2 s[72:73], s[0:1], 96")
    stamp_begin(e)
    if OPT.get("trace"): e("v_mov_b32 v159, 0")
    e("v_and_b32 v1, 63, v0")
    e("v_lshrrev_b32 v11, 6, v0")
    e("v_readfirstlane_b32 s30, v11")
    e("s_and_b32 s36, s2, 7")
    e("s_lshr_b32 s37, s2, 3")
    lc = {0: 1, 1: 2, 2: 3}[OPT["map"]]
    e(f"s_and_b32 s29, s36, {(8>>lc)-1}")
    e(f"s_lshl_b32 s29, s29, {lc}")
    e(f"s_lshr_b32 s38, s37, {5-lc}")
    e("s_or_b32 s29, s29, s38")
    e(f"s_lshr_b32 s28, s36, {3-lc}")
    e(f"s_lshl_b32 s28, s28, {5-lc}")
    e(f"s_and_b32 s38, s37, {(32>>lc)-1}")
    e("s_add_u32 s28, s28, s38")
    if OPT["rot"] == 1:
        e("s_add_u32 s31, s28, s29"); e("s_lshl_b32 s31, s31, 1"); e("s_and_b32 s31, s31, 6")
    elif OPT["rot"] == 3:
        e("s_lshl_b32 s31, s29, 1"); e("s_add_u32 s31, s31, s28"); e("s_and_b32 s31, s31, 7")
    elif OPT["rot"] == 4:
        e("s_add_u32 s31, s28, s29"); e("s_and_b32 s31, s31, 7")
    elif OPT["rot"] == 5:
        e("s_lshl_b32 s31, s28, 1"); e("s_add_u32 s31, s31, s29"); e("s_and_b32 s31, s31, 7")
    elif OPT["rot"] == 6:
        e("s_lshl_b32 s31, s28, 1"); e("s_add_u32 s31, s31, s29"); e("s_add_u32 s31, s31, s36"); e("s_and_b32 s31, s31, 7")
    elif OPT["rot"] == 2:
        e("s_add_u32 s31, s28, s29"); e("s_lshl_b32 s31, s31, 2"); e("s_and_b32 s31, s31, 4")
    else:
        e("s_mov_b32 s31, 0")
    roles = {0: (0, 1, 2), 1: (3, 7, 6), 2: (3, 7, 2), 3: (7, 6, 5), 4: (7, 6, 0)}[OPT.get("role", 3)]
    tab = sum((roles.index(c) if c in roles else 3) << (2 * c) for c in range(8))
    e("s_lshl_b32 s3, s29, 1")
    e(f"s_lshr_b32 s3, {hex(tab)}, s3")
    e("s_and_b32 s3, s3, 3")
    e("v_lshlrev_b32 v10, 4, v1")
    if OPT.get("lf", 0):
        e("s_sub_u32 s30, s30, 4")
        e("s_cbranch_scc0 L_compute")
        e("s_add_u32 s30, s30, 12")
    else:
        e("s_cmp_lt_u32 s30, 8")
        e("s_cbranch_scc1 L_compute")
    e("s_setprio 3")
    e("s_sub_u32 s30, s30, 8")
    e("v_lshrrev_b32 v11, 3, v1")
    e("v_and_b32 v12, 7, v1")
    e("v_lshrrev_b32 v13, 4, v1")
    e("v_xor_b32 v14, v12, v13")
    e("v_lshlrev_b32 v14, 4, v14")
    e("v_lshl_add_u32 v2, v11, 10, v14")
    e("v_xor_b32 v3, 64, v2")
    e("v_add_u32 v3, 7168, v3")
    e("s_lshl_b32 s32, s28, 16")
    e("s_lshl_b32 s38, s30, 14")
    e("s_add_u32 s32, s32, s38")
    e("s_lshl_b32 s41, s30, 11")
    e("s_lshl_b32 s40, s30, 12")
    e("s_mov_b32 s36, s31")
    e("v_and_b32 v13, 1, v13")
    e("v_lshlrev_b32 v13, 1, v13")
    e("v_xor_b32 v14, v12, v13")
    e("v_lshlrev_b32 v14, 4, v14")
    e("v_mul_u32_u24 v6, 3072, v11")
    e("v_add_u32 v6, v6, v14")
    e(f"v_add_u32 v7, {8*3072-1024}, v6")
    e("v_xor_b32 v8, 64, v6")
    e(f"v_add_u32 v9, {8*3072-1024}, v8")
    e("s_lshl_b32 s38, s29, 7")
    e("s_mul_i32 s33, s30, 49152")
    e("s_add_u32 s33, s33, s38")
    e("v_xor_b32 v14, 64, v14")
    e("v_lshl_add_u32 v4, v11, 10, v14")
    e("v_add_u32 v5, 7168, v4")
    e("s_lshl_b32 s34, s30, 14")
    e("s_add_u32 s34, s34, s38")
    e("s_waitcnt lgkmcnt(0)")
    e.extend(trace(60))
    srd(e, 4, 48, 2048*512*2)
    srd(e, 8, 50, 512*1536*2)
    srd(e, 12, 58, 512*512*2)
    e("s_cmp_gt_u32 s3, 2")
    e("s_cbranch_scc1 L_noext")
    e("s_cmp_eq_u32 s3, 0")
    e("s_cselect_b32 s16, s60, s62")
    e("s_cselect_b32 s17, s61, s63")
    e("s_cmp_eq_u32 s3, 2")
    e("s_cselect_b32 s16, s66, s16")
    e("s_cselect_b32 s17, s67, s17")
    e("s_mov_b32 s18, 16384")
    e("s_cselect_b32 s18, 1024, s18")
    e("s_mov_b32 s19, 0x00020000")
    e("s_mov_b32 m0, s40")
    for i in range(4):
        e(f"buffer_load_dwordx4 v10, s[16:19], s40 offen offset:{i*1024} lds")
    e.label("L_noext")
    def item(i):
        l = []; nm = ORD[i]; idx = int(nm[1:])
        if nm[0] == "x":
            for q in range(2):
                l.append("s_lshl_b32 s38, s31, 7")
                l.append("s_add_u32 s38, s38, s32")
                l.append(f"s_add_u32 m0, s41, {XT + (2*idx+q)*8192}")
                l.append("s_add_u32 s31, s31, 1")
                for k in range(2):
                    l.append(f"buffer_load_dwordx4 v{2+k}, s[4:7], s38 offen offset:{k*1024} lds")
                l.append("s_and_b32 s31, s31, 7")
        else:
            g = idx
            l.append(f"s_add_u32 s35, s36, {g % 8}")
            l.append("s_and_b32 s35, s35, 7")
            l.append("s_mul_i32 s39, s35, 196608")
            l.append("s_add_u32 s39, s39, s33")
            l.append(f"s_add_u32 m0, s41, {SLOT[g]}")
            if g < 8: l.append("s_add_u32 s39, s39, 1024")
            else: l.append("s_lshl_b32 s38, s35, 16")
            for k in range(2):
                l.append(f"buffer_load_dwordx4 v{6+k}, s[8:11], s39 offen offset:{k*1024} lds")
            l.append(f"s_add_u32 m0, s41, {SLOT[g]+8192}")
            if g < 8:
                l.append("s_add_u32 s39, s39, 1024")
                for k in range(2):
                    l.append(f"buffer_load_dwordx4 v{8+k}, s[8:11], s39 offen offset:{k*1024} lds")
            else:
                l.append("s_add_u32 s38, s38, s34")
                for k in range(2):
                    l.append(f"buffer_load_dwordx4 v{4+k}, s[12:15], s38 offen offset:{k*1024} lds")
        return l
    def earliest(i):
        nm = ORD[i]; idx = int(nm[1:])
        if nm[0] == "x" or idx == 8: return -1
        r = ring.index(nm)
        if r < 3: return -1
        if r == 3: return XL + 1
        return USE[int(ring[r - 4][1:])] + 1
    DEP = OPT.get("dep", 3)
    for i in range(DEP): e.extend(item(i))
    e.extend(trace(61))
    e(f"s_load_dwordx2 s[78:79], s[72:73], {hex(WS_EPOCH)}")
    srd(e, 20, 52, 32*16*16*2)
    srd(e, 24, 72, WS_SIZE)
    e("s_and_b32 s46, s30, 1")
    e("s_lshr_b32 s47, s30, 1")
    e("v_bfe_u32 v13, v1, 4, 1")
    e("v_lshlrev_b32 v15, 2, v13")
    e("v_xor_b32 v15, v12, v15")
    e("v_lshlrev_b32 v15, 4, v15")
    e("v_lshl_add_u32 v144, v11, 10, v15")
    for k in range(1, 4): e(f"v_add_u32 v{144+k}, {k*7168}, v144")
    e("v_lshrrev_b32 v16, 5, v1")
    e("v_bfe_u32 v15, v1, 2, 2")
    e("v_lshl_add_u32 v148, v16, 2, v15")
    e("v_lshlrev_b32 v148, 7, v148")
    e("v_lshrrev_b32 v15, 1, v15")
    e("v_xor_b32 v15, s47, v15")
    e("v_lshl_add_u32 v148, v15, 6, v148")
    e("v_lshl_add_u32 v148, v13, 5, v148")
    e("v_and_b32 v15, 3, v1")
    e("v_lshl_add_u32 v148, v15, 3, v148")
    e("s_lshl_b32 s38, s47, 15")
    e("v_add_u32 v148, s38, v148")
    e("v_xor_b32 v149, 64, v148")
    e(f"s_add_u32 s38, s40, {PHQ}")
    e("v_add_u32 v150, s38, v10")
    e("v_xor_b32 v151, 0x2000, v150")
    e("v_and_b32 v155, 31, v1")
    e("v_lshlrev_b32 v152, 10, v155")
    e("v_lshl_add_u32 v152, v16, 4, v152")
    e("v_lshlrev_b32 v155, 2, v155")
    e("v_and_b32 v153, 15, v1")
    e("v_lshlrev_b32 v153, 3, v153")
    e("v_lshl_add_u32 v153, v16, 7, v153")
    e("s_lshl_b32 s38, s30, 9")
    e(f"s_add_u32 s38, s38, {WPH}")
    e("v_add_u32 v153, s38, v153")
    e(f"s_add_u32 s38, s41, {PHQ}")
    e("v_add_u32 v154, s38, v10")
    e("v_lshlrev_b32 v156, 3, v1")
    e("s_getreg_b32 s37, hwreg(HW_REG_XCC_ID, 0, 4)")
    e(f"s_mov_b32 s74, {fbits(LOG2E)}")
    e(f"s_mov_b32 s75, {fbits(-LOG2E)}")
    e("v_and_b32 v15, 31, v1")
    FS = OPT.get("fs", 3)
    e(f"v_lshlrev_b32 v15, {FS}, v15")
    e(f"s_lshl_b32 s38, s30, {FS+5}")
    e(f"s_add_u32 s38, s38, {F1}")
    e("v_add_u32 v15, s38, v15")
    e("s_lshl_b32 s42, s30, 10")
    assert WS_KVB == 0
    def kvdma(n):
        l = []
        for _ in range(n):
            l.append("s_mov_b32 m0, s42")
            l.append("s_nop 0")
            l.append("buffer_load_dwordx4 v10, s[24:27], s42 offen sc1 lds")
            l.append("s_add_u32 s42, s42, 4096")
        return l
    out = []
    e("s_and_b32 s38, s30, 1")
    e("s_lshl_b32 s38, s38, 10")
    e(f"s_add_u32 m0, s38, {WPH}")
    e("s_lshl_b32 s39, s29, 11")
    e("s_add_u32 s38, s38, s39")
    e("buffer_load_dwordx4 v10, s[20:23], s38 offen lds")
    for i in range(DEP): out += [i] * 4
    out.append("w")
    nxt = DEP
    def waitfor(tag):
        idx = max(k for k, t in enumerate(out) if t == tag)
        n = len(out) - 1 - idx
        del out[:idx + 1]
        return f"s_waitcnt vmcnt({n})"
    PA = OPT.get("pa", 14)
    poll = "buffer_load_dwordx2 v[16:17], v15, s[24:27], 0 offen sc1"
    e.extend(trace(62))
    for i in range(18):
        e(waitfor(i))
        e.extend(trace(2 * i))
        e("s_barrier")
        e.extend(trace(2 * i + 1))
        if i == 0:
            e.extend(stamp(0))
        if i == 8:
            e("s_waitcnt lgkmcnt(0)")
            e("s_add_u32 s78, s78, 1")
        while nxt <= min(19, i + DEP) and earliest(nxt) <= i:
            e.extend(item(nxt)); out += [nxt] * 4; nxt += 1
        assert nxt > i + 1
        if i == PA:
            e(poll); out.append("p")
    if "p" in out: e(waitfor("p"))
    e("v_cmp_ne_u64 vcc, s[78:79], v[16:17]")
    e("s_cbranch_vccnz L_kvlate")
    save = list(out)
    e.extend(kvdma(4)); out += ["k0"] * 4
    if 18 in out: e(waitfor(18))
    e("s_barrier")
    e.extend(kvdma(4)); out += ["k1"] * 4
    if 19 in out: e(waitfor(19))
    e("s_barrier")
    e.extend(kvdma(4)); out += ["k2"] * 4
    e.label("L_kv20")
    e("s_waitcnt vmcnt(4)")
    e("s_barrier")
    e("s_branch L_kvjoin")
    e.label("L_kvlate")
    out[:] = save
    e(poll); out.append("p")
    if 18 in out: e(waitfor(18))
    e("s_barrier")
    if 19 in out: e(waitfor(19))
    e("s_barrier")
    e("s_waitcnt vmcnt(0)")
    e("v_cmp_ne_u64 vcc, s[78:79], v[16:17]")
    e("s_cbranch_vccz L_kvlate2")
    flag_poll(e, 15, 16, sleep=0)
    e.label("L_kvlate2")
    e.extend(kvdma(12))
    e("s_branch L_kv20")
    e.label("L_kvjoin")
    e.extend(stamp(1))
    e.extend(kvdma(20))
    HQ = 16; HK = 32; HG = 40; HT = 42; HD = 48; HP = 80
    for u in range(2): e(f"ds_read_b128 {vr(HQ+8*u,4)}, v154 offset:{u*1024}")
    for u in range(2): e(f"ds_read_b64_tr_b16 {vr(HK+2*u,2)}, v153 offset:{u*256}")
    e("s_lshl_b32 s38, s28, 4")
    e(f"s_add_u32 s38, s38, {FG}")
    e(f"v_and_b32 v{HT+4}, 8, v156")
    e(f"v_add_u32 v{HT+4}, s38, v{HT+4}")
    e("s_waitcnt vmcnt(0)")
    e.extend(trace(44))
    lds_add(e, C_KVALL, HT)
    if OPT.get("nohelp") == 1:
        lds_add(e, C_GOK, HT)
        e("s_barrier")
        stamp_end(e, 64)
        e("s_endpgm")
    e("s_lshl_b32 s45, s29, 2")
    e("s_lshl_b32 s36, s28, 7")
    e("s_add_u32 s36, s36, s45")
    e("s_add_u32 s36, s36, s30")
    e("s_lshl_b32 s36, s36, 10")
    e(f"s_add_u32 s36, s36, {WS_OC}")
    e(f"v_mov_b64 {vr(HD,2)}, -1")
    e(f"v_mov_b64 {vr(HD+2,2)}, -1")
    for i in range(4):
        e(f"s_add_u32 s38, s36, {i*32768}")
        e(f"buffer_store_dwordx4 {vr(HD,4)}, v10, s[24:27], s38 offen sc1")
    flag_poll(e, HT + 4, HT + 2)
    e("s_lshl_b32 s38, s28, 5")
    e("s_add_u32 s38, s38, s45")
    e("s_add_u32 s38, s38, s30")
    e("s_lshl_b32 s38, s38, 4")
    e(f"s_add_u32 s38, s38, {FP}")
    e(f"v_mov_b32 v{HD+4}, s78")
    e(f"v_mov_b32 v{HD+5}, s79")
    e(f"v_mov_b32 v{HD+6}, s37")
    e(f"v_mov_b32 v{HD+7}, 0")
    e("s_mov_b64 exec, 1")
    e(f"buffer_store_dwordx4 {vr(HD+4,4)}, v{HD+7}, s[24:27], s38 offen sc1")
    e("s_mov_b64 exec, -1")
    e("s_lshl_b32 s38, s28, 8")
    e(f"s_add_u32 s38, s38, {WS_GATE}")
    e(f"buffer_load_dword v{HG}, v155, s[24:27], s38 offen sc1")
    e(f"buffer_load_dword v{HG+1}, v155, s[24:27], s38 offen offset:128 sc1")
    e("s_waitcnt lgkmcnt(0)")
    for u in range(2): e(mfma(HD + 16 * u, HK, HQ + 8 * u, None))
    e.extend(interleave(*[phi_unit(HD + 16 * u, HP + 4 * u, HQ + 8 * u) for u in range(2)]))
    e(f"v_add_u32 v{HT}, {C_GATE}, v155")
    e("s_waitcnt vmcnt(0)")
    e(f"ds_write_b32 v{HT}, v{HG}")
    e(f"ds_write_b32 v{HT}, v{HG+1} offset:128")
    e("s_waitcnt lgkmcnt(0)")
    lds_add(e, C_GOK, HT)
    e.extend(trace(45))
    if OPT.get("nohelp") == 2:
        lds_add(e, C_GOK, HT)
        e("s_barrier")
        stamp_end(e, 64)
        e("s_endpgm")
    e("s_and_b32 s38, s28, 3")
    e("s_cmp_lg_u32 s38, s30")
    e("s_cbranch_scc1 L_nored")
    e("s_lshr_b32 s38, s28, 3")
    e("s_add_u32 s43, s45, s38")
    e("v_lshlrev_b32 v15, 1, v155")
    e("s_lshl_b32 s38, s43, 8")
    e(f"s_add_u32 s38, s38, {F3}")
    e(f"v_add_u32 v{HT}, s38, v15")
    flag_poll(e, HT, HT + 2)
    e.extend(trace(46))
    e("s_lshl_b32 s43, s43, 3")
    e("s_and_b32 s38, s28, 7")
    e("s_add_u32 s43, s43, s38")
    e("s_lshl_b32 s38, s43, 14")
    e(f"s_add_u32 s38, s38, {WS_PART}")
    for p in range(16):
        if p and p % 4 == 0: e("s_add_u32 s38, s38, 4096")
        e(f"buffer_load_dwordx4 {vr(HP+4*p,4)}, v10, s[24:27], s38 offen offset:{(p&3)*1024} sc1")
    e("s_waitcnt vmcnt(0)")
    e.extend(trace(47))
    for st in (32, 16, 8, 4):
        for i in range(0, st, 2): e(f"v_pk_add_f32 {vr(HP+i,2)}, {vr(HP+i,2)}, {vr(HP+st+i,2)}")
    e(f"v_permlane32_swap_b32 v{HP}, v{HP+2}")
    e(f"v_permlane32_swap_b32 v{HP+1}, v{HP+3}")
    e(f"v_pk_add_f32 {vr(HP,2)}, {vr(HP,2)}, {vr(HP+2,2)}")
    e(f"v_cvt_pk_bf16_f32 v{HP}, v{HP}, v{HP+1}")
    e(f"v_lshrrev_b32 v{HT}, 5, v1")
    e(f"v_lshl_add_u32 v{HT}, v{HT}, 2, v15")
    e("s_lshl_b32 s38, s43, 8")
    e(f"s_add_u32 s38, s38, {WS_KVF}")
    e(f"buffer_store_dword v{HP}, v{HT}, s[24:27], s38 offen sc1")
    e("s_lshl_b32 s38, s43, 3")
    e(f"s_add_u32 s38, s38, {F3P}")
    e("s_waitcnt vmcnt(0)")
    e.extend(trace(48))
    flag_store(e, "s38", HT)
    e.label("L_nored")
    e.extend(stamp(2))
    e("s_lshl_b32 s38, s28, 9")
    e(f"s_add_u32 s38, s38, {FP}")
    e("v_lshlrev_b32 v2, 2, v155")
    e("v_add_u32 v2, s38, v2")
    e("s_mov_b32 s77, 0")
    e("s_mov_b32 s35, 0")
    e.label("L_fpp")
    e(f"buffer_load_dwordx4 {vr(HD,4)}, v2, s[24:27], 0 offen sc1")
    e("s_add_u32 s77, s77, 1")
    e("s_waitcnt vmcnt(0)")
    e(f"v_cmp_ne_u64 vcc, s[78:79], {vr(HD,2)}")
    e("s_cbranch_vccz L_fpd")
    e(f"s_sleep {8 * OPT.get('slp', 1)}")
    e(f"s_cmp_lt_u32 s77, {OPT['spin']}")
    e("s_cbranch_scc1 L_fpp")
    e("s_branch L_fpx")
    e.label("L_fpd")
    e(f"v_cmp_ne_u32 vcc, s37, v{HD+2}")
    e("s_cbranch_vccnz L_fpx")
    if OPT.get("loc", 1):
        lds_add(e, C_LOC, HT)
        e("s_mov_b32 s35, 1")
    e.label("L_fpx")
    e.extend(trace(57))
    e("s_add_u32 s45, s45, s30")
    e("s_lshl_b32 s38, s45, 6")
    e(f"s_add_u32 s38, s38, {F3P}")
    e(f"v_and_b32 v{HT}, 56, v156")
    e(f"v_add_u32 v{HT}, s38, v{HT}")
    flag_poll(e, HT, HT + 2)
    e.extend(trace(49))
    e("s_lshl_b32 s38, s45, 11")
    e(f"s_add_u32 s38, s38, {WS_KVF}")
    for q in range(4):
        e(f"buffer_load_dwordx2 {vr(HK+2*q,2)}, v156, s[24:27], s38 offen offset:{q*512} sc1")
    e("s_waitcnt vmcnt(0)")
    e.extend(trace(50))
    for u in range(2): e(mfma(HD + 16 * u, HK, HQ + 8 * u, None))
    for u in range(2): e(mfma(HD + 16 * u, HK + 4, HQ + 8 * u + 4, HD + 16 * u))
    for u in range(2):
        D = HD + 16 * u
        e(f"v_add_f32 v{HT}, {fbits(1e-6)}, v{D+8}")
        e(f"v_rcp_f32 v{HT}, v{HT}")
        e(f"v_mul_f32 v{HT}, v{HT}, v{HG+u}")
        for i in range(0, 8, 2): e(f"v_pk_mul_f32 {vr(D+i,2)}, {vr(D+i,2)}, {vr(HT,2)} op_sel_hi:[1,0]")
        for q in range(4): e(f"v_cvt_pk_bf16_f32 v{D+q}, v{D+2*q}, v{D+2*q+1}")
    e("s_add_u32 s38, s36, 65536")
    e(f"buffer_store_dwordx4 {vr(HD,4)}, v10, s[24:27], s36 offen sc1")
    e(f"buffer_store_dwordx4 {vr(HD+16,4)}, v10, s[24:27], s38 offen sc1")
    e.extend(trace(51))
    e.extend(stamp(3))
    if OPT.get("nohelp") == 3:
        lds_add(e, C_GOK, HT)
        e("s_barrier")
        stamp_end(e, 64)
        e("s_endpgm")
    ACC = [16, 32]; WFR = [48, 56, 132]; OF = 64; PT = 128
    srd(e, 4, 54, 512*512*2)
    srd(e, 8, 64, 512*512*2)
    srd(e, 12, 68, 2048*512*2)
    e("s_lshl_b32 s44, s28, 1")
    e("s_add_u32 s44, s44, s46")
    e("s_lshl_b32 s43, s44, 16")
    e("s_lshl_b32 s38, s47, 14")
    e("s_add_u32 s43, s43, s38")
    e(f"s_add_u32 s43, s43, {WS_OC}")
    def wdma(sd):
        e("s_lshl_b32 s38, s30, 17")
        e("s_lshl_b32 s39, s29, 7")
        e("s_add_u32 s38, s38, s39")
        e("s_lshl_b32 s39, s30, 14")
        for g in range(4):
            e("s_mov_b32 m0, s39")
            for k in range(4):
                e(f"buffer_load_dwordx4 v{144+k}, s[{sd}:{sd+3}], s38 offen offset:{k*1024} lds")
            if g < 3:
                e("s_add_u32 s38, s38, 32768")
                e("s_add_u32 s39, s39, 4096")
    def oload(base_add, g0=0, g1=4):
        for g in range(g0, g1):
            e(f"s_add_u32 s38, s43, {base_add + g*4096}")
            for t in range(4 * g, 4 * g + 4):
                e(f"buffer_load_dwordx4 {vr(OF+4*t,4)}, v10, s[24:27], s38 offen offset:{(t&3)*1024} sc1")
    WA = [148]
    def rd(t):
        return [f"ds_read_b64_tr_b16 {vr(WFR[t%3]+4*nt+2*u,2)}, v{WA[0]+nt} offset:{(16*t+8*u)*128}" for nt in range(2) for u in range(2)]
    def step(t, first, fill=[]):
        if t < 14: e.extend(rd(t + 2))
        e(f"s_waitcnt lgkmcnt({4*min(2, 15-t)})")
        for nt in ((1, 0) if t == 15 else (0, 1)):
            e(mfma(ACC[nt], WFR[t % 3] + 4 * nt, OF + 4 * t, None if (first and t == 0) else ACC[nt]))
            e.extend(fill[nt * 5:nt * 5 + 5])
    def check(g):
        b = OF + 16 * g
        l = [f"v_max3_u32 v{PT}, v{b}, v{b+1}, v{b+2}", f"v_max3_u32 v{PT+1}, v{b+3}, v{b+4}, v{b+5}"]
        for i in (6, 10):
            l += [f"v_max3_u32 v{PT}, v{PT}, v{b+i}, v{b+i+1}", f"v_max3_u32 v{PT+1}, v{PT+1}, v{b+i+2}, v{b+i+3}"]
        l += [f"v_max3_u32 v{PT}, v{PT}, v{b+14}, v{b+15}", f"v_max_u32 v{PT}, v{PT}, v{PT+1}", f"v_cmp_eq_u32 vcc, -1, v{PT}"]
        return l
    NG = OPT.get("ng", 2)
    def pgemm(tag, first, pace, base):
        e(f"s_waitcnt vmcnt({4*(NG-1)})")
        e.extend(check(0))
        for g in range(4):
            e(f"s_cbranch_vccnz L_retry{tag}{g}")
            e.label(f"L_go{tag}{g}")
            if g == 0 and not first: e.extend(trace(40))
            for t in range(4 * g, 4 * g + 4):
                if t % 4 == 3 and g < 3: step(t, first, [f"s_waitcnt vmcnt({4*(min(4, g+1+NG)-g-2)})"] + check(g + 1))
                else: step(t, first)
                if t % 4 == 0 and g + NG < 4: oload(base, g + NG, g + NG + 1)
                if pace: e(f"s_sleep {pace}")
    if OPT.get("late", 0):
        lds_wait(e, C_PROG, 8, PT, sleep=8)
        e.extend(trace(54))
        wdma(4)
        e("v_lshlrev_b32 v2, 10, v1")
        e("s_lshl_b32 s38, s30, 17")
        e("s_lshl_b32 s39, s29, 7")
        e("s_add_u32 s38, s38, s39")
        e("buffer_load_dword v3, v2, s[8:11], s38 offen")
        e("s_add_u32 s38, s38, 65536")
        e("buffer_load_dword v4, v2, s[8:11], s38 offen")
        e("s_mov_b32 s77, 0")
        e.label("L_apoll")
        oload(0)
        e("s_add_u32 s77, s77, 1")
        e("s_waitcnt vmcnt(0)")
        e(f"v_max3_u32 v{PT}, v{OF}, v{OF+1}, v{OF+2}")
        e(f"v_max3_u32 v{PT+1}, v{OF+3}, v{OF+4}, v{OF+5}")
        for i_ in range(6, 62, 4):
            e(f"v_max3_u32 v{PT}, v{PT}, v{OF+i_}, v{OF+i_+1}")
            e(f"v_max3_u32 v{PT+1}, v{PT+1}, v{OF+i_+2}, v{OF+i_+3}")
        e(f"v_max3_u32 v{PT}, v{PT}, v{OF+62}, v{OF+63}")
        e(f"v_max_u32 v{PT}, v{PT}, v{PT+1}")
        e(f"v_cmp_eq_u32 vcc, -1, v{PT}")
        e("s_cbranch_vccz L_aready")
        e("s_sleep 32")
        e(f"s_cmp_lt_u32 s77, {OPT['spin']}")
        e("s_cbranch_scc1 L_apoll")
        e.label("L_aready")
        lds_add(e, C_HS, PT)
        lds_wait(e, C_HS, 4, PT)
        e.extend(trace(55))
        e.extend(rd(0) + rd(1))
        e("v_add_u32 v2, 0x10000, v148")
        e("v_add_u32 v3, 0x10000, v149")
        e("s_lshl_b32 s36, s44, 15")
        e("s_lshl_b32 s39, s29, 7")
        e("s_add_u32 s36, s36, s39")
        e("s_lshl_b32 s39, s47, 6")
        e("s_add_u32 s36, s36, s39")
        e("s_lshl_b32 s38, s30, 17")
        e("s_lshl_b32 s39, s29, 7")
        e("s_add_u32 s38, s38, s39")
        e("s_lshl_b32 s39, s30, 14")
        e("s_add_u32 s39, s39, 0x10000")
        e.extend(stamp(4))
        lds_wait(e, C_DONE, 8, PT, sleep=OPT.get("dsleep", 2))
        e.extend(trace(56))
        for t in range(16):
            if t % 4 == 0: e("s_mov_b32 m0, s39")
            e(f"buffer_load_dwordx4 v{144+t%4}, s[8:11], s38 offen offset:{(t%4)*1024} lds")
            if t % 4 == 3:
                e("s_add_u32 s38, s38, 32768"); e("s_add_u32 s39, s39, 4096")
            step(t, True)
        e.extend(trace(58))
        WA[0] = 2
        e("s_mov_b32 s77, 0")
        oload(32768, 0, NG)
        e(f"s_waitcnt vmcnt({4*NG})")
        e("s_barrier")
    else:
        lds_wait(e, C_PROG, 8, PT, sleep=8)
        e.extend(trace(54))
        wdma(4)
        oload(0, 0, NG)
        e(f"s_waitcnt vmcnt({4*NG})")
        lds_add(e, C_HS, PT)
        lds_wait(e, C_HS, 4, PT)
        e.extend(trace(55))
        e.extend(rd(0) + rd(1))
        e("s_mov_b32 s77, 0")
        e(f"s_setprio {OPT.get('aprio', 2)}")
        pgemm("A", True, OPT.get("pace", 0), 0)
        e("s_setprio 3")
        e.extend(trace(56))
        lds_add(e, C_HS, PT)
        lds_wait(e, C_HS, 8, PT)
        e.extend(trace(58))
        wdma(8)
        e("s_lshl_b32 s36, s44, 15")
        e("s_lshl_b32 s39, s29, 7")
        e("s_add_u32 s36, s36, s39")
        e("s_lshl_b32 s39, s47, 6")
        e("s_add_u32 s36, s36, s39")
        e("s_mov_b32 s77, 0")
        e("s_waitcnt vmcnt(0)")
        e.extend(stamp(4))
        e("s_barrier")
    e.extend(stamp(5))
    if not OPT.get("late", 0): oload(32768, 0, NG)
    e.extend(rd(0) + rd(1))
    pgemm("B", False, 0, 32768)
    e.extend(trace(42))
    if OPT.get("trace"): e("v_writelane_b32 v159, s77, 41")
    for q in range(4): e(f"ds_write_b128 v150, {vr(ACC[1]+4*q,4)} offset:{q*1024}")
    e("s_waitcnt lgkmcnt(0)")
    e("s_barrier")
    for q in range(4): e(f"ds_read_b128 {vr(OF+4*q,4)}, v151 offset:{q*1024}")
    A = ACC[0]
    for pr in range(2):
        e(f"s_waitcnt lgkmcnt({2-2*pr})")
        for i in range(8 * pr, 8 * pr + 8, 2): e(f"v_pk_add_f32 {vr(A+i,2)}, {vr(A+i,2)}, {vr(OF+i,2)}")
        for q in range(4): e(f"v_cvt_pk_bf16_f32 v{A+8*pr+q}, v{A+8*pr+2*q}, v{A+8*pr+2*q+1}")
    for pr in range(2):
        e(f"v_permlane32_swap_b32 v{A+8*pr}, v{A+8*pr+2}")
        e(f"v_permlane32_swap_b32 v{A+8*pr+1}, v{A+8*pr+3}")
    for pr in range(2):
        e(f"buffer_store_dwordx4 {vr(A+8*pr,4)}, v152, s[12:15], s36 offen offset:{pr*32}" + ["", " sc1", " nt", " sc0 sc1"][OPT.get("ost", 0)])
    e.extend(trace(43))
    e("s_or_b32 s38, s2, s30")
    e("s_cbranch_scc1 L_noepoch")
    e(f"s_mov_b32 s38, {WS_EPOCH}")
    flag_store(e, "s38", PT)
    e.label("L_noepoch")
    stamp_end(e, 64)
    e.label("L_done")
    e("s_endpgm")
    for tag, base in ((("B", 32768),) if OPT.get("late", 0) else (("A", 0), ("B", 32768))):
        for g in range(4):
            e.label(f"L_retry{tag}{g}")
            if tag == "A": e("s_sleep 8")
            oload(base, g, min(4, g + NG))
            e("s_add_u32 s77, s77, 1")
            e(f"s_waitcnt vmcnt({4*(min(4, g+NG)-g-1)})")
            e.extend(check(g))
            e(f"s_cbranch_vccz L_go{tag}{g}")
            e(f"s_cmp_lt_u32 s77, {OPT['spin']}")
            e(f"s_cbranch_scc1 L_retry{tag}{g}")
            e(f"s_branch L_go{tag}{g}")

    e.label("L_compute")
    ACC = 96; EACC = 128; WF = 144; I0 = 148; ONE = 156
    e("s_and_b32 s44, s30, 3")
    e("s_lshr_b32 s40, s30, 2")
    if OPT.get("pf", 0):
        e("s_cmp_lt_u32 s44, 3")
        e("s_movk_i32 s38, 1024")
        e("s_cselect_b32 s38, 3072, s38")
        e("v_mul_lo_u32 v30, v1, s38")
        e("s_add_u32 s39, s31, s40" if not OPT.get("pfs") else "s_mov_b32 s39, s31")
        e("s_and_b32 s39, s39, 7")
        e("s_mul_i32 s38, s38, s39")
        e("s_lshl_b32 s38, s38, 6")
        e("s_add_u32 s39, s44, 1")
        e("s_cmp_lt_u32 s44, 2")
        e("s_cselect_b32 s39, s39, 0")
        e("s_lshl_b32 s39, s39, 10")
        e("s_add_u32 s38, s38, s39")
        e("s_lshl_b32 s39, s29, 7")
        e("s_add_u32 s38, s38, s39")
        e("v_add_u32 v30, s38, v30")
        e("s_waitcnt lgkmcnt(0)")
        e("s_cmp_lt_u32 s44, 3")
        e("s_cselect_b32 s16, s50, s58")
        e("s_cselect_b32 s17, s51, s59")
        mask = {1: 0x0f, 2: 0xff, 3: 0x33, 4: 0x03, 5: 0}[OPT["pf"]]
        e(f"s_lshr_b32 s38, {mask}, s30")
        e("s_and_b32 s38, s38, 1")
        e("s_cbranch_scc0 L_nopf")
        e("global_load_dword v31, v30, s[16:17]")
        e.label("L_nopf")
    e("v_and_b32 v11, 31, v1")
    e("v_lshrrev_b32 v22, 5, v1")
    e("v_bfe_u32 v23, v1, 1, 3")
    e("v_xor_b32 v23, v23, v22")
    e("v_lshlrev_b32 v23, 4, v23")
    e("v_lshl_add_u32 v12, v11, 7, v23")
    e(f"v_add_u32 v12, {XT}, v12")
    for t in range(1, 4): e(f"v_xor_b32 v{12+t}, {32*t}, v12")
    su_w = ["v_lshrrev_b32 v22, 5, v1", "v_bfe_u32 v23, v1, 2, 2", "v_lshl_add_u32 v20, v22, 3, v23", "v_lshlrev_b32 v20, 7, v20",
            "v_bfe_u32 v23, v1, 3, 2", "v_xor_b32 v23, s44, v23", "v_lshl_add_u32 v20, v23, 5, v20", "v_bfe_u32 v24, v1, 4, 1",
            "v_lshl_add_u32 v20, v24, 13, v20", "v_and_b32 v23, 3, v1", "v_lshl_add_u32 v20, v23, 3, v20"]
    su_s = ["s_lshl_b32 s45, s29, 2", "s_add_u32 s45, s45, s44", "s_lshl_b32 s47, s28, 1", "s_xor_b32 s46, s40, 1",
            "s_add_u32 s47, s47, s46", "s_lshl_b32 s43, s47, 6", "s_add_u32 s43, s43, s45", "s_lshl_b32 s43, s43, 10",
            f"s_add_u32 s43, s43, {WS_OC+32*1024}",
            f"s_mov_b32 s74, {fbits(LOG2E)}", f"s_mov_b32 s75, {fbits(-LOG2E)}", f"s_mov_b32 s76, {fbits(0.25*LOG2E)}",
            "s_lshl_b32 s38, s44, 10", f"s_add_u32 s38, s38, {HND}", "v_add_u32 v28, s38, v10"]
    su_ws = ["s_waitcnt lgkmcnt(0)", f"s_load_dwordx2 s[78:79], s[72:73], {hex(WS_EPOCH)}",
             "s_mov_b32 s24, s72", "s_mov_b32 s25, s73", f"s_mov_b32 s26, {hex(WS_SIZE)}", "s_mov_b32 s27, 0x00020000"]
    su_ep = ["s_waitcnt lgkmcnt(0)", "s_add_u32 s78, s78, 1"]
    def su_id(n, I0):
        l = ["v_and_b32 v11, 31, v1", "v_lshrrev_b32 v22, 5, v1", "v_lshlrev_b32 v22, 2, v22", "v_sub_u32 v11, v11, v22",
             "v_mov_b32 v22, 0x3f80", "v_mov_b32 v23, 0x3f800000"]
        for sgn in range(n):
            for q in range(4):
                f0 = 16 * sgn + (2 * q if q < 2 else 8 + 2 * (q - 2))
                l += [f"v_cmp_eq_u32 vcc, {f0}, v11", f"v_cmp_eq_u32 s[38:39], {f0+1}, v11",
                      f"v_cndmask_b32 v{I0+4*sgn+q}, 0, v22, vcc", f"v_cndmask_b32 v{I0+4*sgn+q}, v{I0+4*sgn+q}, v23, s[38:39]"]
        return l
    Q = 4; NM = 8; O = 24; S = [40, 56]; PK = 72; KF = [80, 84]; VF = [144, 152]; AK = 2; AV = 3; T = 106
    U = 4; NIT = 16
    SEG = OPT.get("seg", (2, 8, 15, 16))
    ATT_SETUP = [f"v_mov_b32 v{AK}, v10", f"v_lshrrev_b32 v{T}, 5, v1", f"v_and_b32 v{AV}, 15, v1", f"v_lshlrev_b32 v{AV}, 4, v{AV}",
                 f"v_lshl_add_u32 v{AV}, v{T}, 8, v{AV}", f"v_add_u32 v{AV}, 1024, v{AV}", f"v_and_b32 v{T}, 27, v1",
                 f"v_mov_b32 v{T+1}, 0x3f803f80", f"v_cmp_eq_u32 vcc, 16, v{T}", "s_mov_b32 s20, 0xffff", "s_mov_b32 s21, 0xffff",
                 f"v_cndmask_b32 v{VF[0]}, 0, v{T+1}, vcc"] + [f"v_mov_b32 v{VF[0]+1}, v{VF[0]}"] + [f"v_mov_b64 {vr(VF[0]+i,2)}, {vr(VF[0],2)}" for i in range(2, 16, 2)] + \
                [f"s_mov_b32 s22, {SEG[0]}", "s_mov_b32 s23, 0"]
    def fr(buf, t):
        if buf == 0:
            b = 32 + 12 * t; return (b, b + 4, b + 8)
        return [(80, 84, 88), (128, 132, 136), (92, 140, 16), (4, 160, 164)][t]
    def reads(buf, g):
        l = []; p = g % 8; so = SLOT[g] & 0xffff; wa = 21 if g == 8 else 20
        for t in range(4):
            xa, xb, w = fr(buf, t)
            l.append(f"ds_read_b128 {vr(xa,4)}, v{12+t} offset:{p*8192}")
            for u in range(2):
                l.append(f"ds_read_b64_tr_b16 {vr(w+2*u,2)}, v{wa} offset:{so+(16*t+4*u)*128}")
            l.append(f"ds_read_b128 {vr(xb,4)}, v{12+t} offset:{p*8192+4096}")
        return l
    def mfmas(buf, first):
        l = []
        for t in range(4):
            xa, xb, w = fr(buf, t); z = first and t == 0
            l.append(mfma(ACC, w, xa, None if z else ACC))
            l.append(mfma(ACC + 16, w, xb, None if z else ACC + 16))
        return l
    def gpass(g0, first, last, extra={}):
        pend = None; NS = OPT.get("gspread", 5)
        for i in range(first, last + 1):
            e("s_barrier")
            mm = mfmas(pend & 1, pend == 0) if pend is not None else []
            todo = None
            for c in range(8):
                if USE[g0 + c] == i: todo = c
            if todo is not None:
                r = reads(todo & 1, g0 + todo)
                e.extend(spread(mm[:NS], r) + mm[NS:] if mm else r)
                e.extend(extra.get(i, []))
                e("s_waitcnt lgkmcnt(0)")
            else:
                e.extend(mm)
                e.extend(extra.get(i, []))
            pend = todo
        if pend is not None and g0 == 0: e.extend(mfmas(pend & 1, False))
    PU = [32, 48]; PH = [64, 72]; TM = [80, 84]; VFR = [88, 92]
    e("s_cmp_lg_u32 s40, 0")
    e("s_cbranch_scc1 L_qwave")
    e(f"v_mov_b32 v26, {MISC}")
    for i in range(4): e(f"v_mov_b32 v{32+i}, 0")
    e("ds_write_b128 v26, v[32:35]")
    e("ds_write_b128 v26, v[32:35] offset:16")
    e.extend(su_w)
    e.extend(su_ws)
    wph = ["v_and_b32 v23, 15, v1", "v_lshlrev_b32 v23, 3, v23", "v_lshrrev_b32 v22, 5, v1", "v_lshl_add_u32 v25, v22, 7, v23",
           "s_lshl_b32 s38, s44, 9", f"s_add_u32 s38, s38, {WPH}", "v_add_u32 v25, s38, v25"]
    wpr = [f"ds_read_b64_tr_b16 {vr(WF+2*u,2)}, v25 offset:{u*256}" for u in range(2)]
    one = ["v_bfe_u32 v24, v1, 4, 1", f"v_mul_u32_u24 v{ONE}, 0x3f80, v24", f"v_lshl_or_b32 v{ONE}, v{ONE}, 16, v{ONE}"]
    xs = [i for i in range(8) if i not in USE.values() or i == USE[8] and i not in [USE[c] for c in range(8)]]
    idl = su_id(2, I0)
    KEND = USE[7] + 1
    kx = {xs[0]: su_s + wph, xs[1]: idl[:22], xs[2]: idl[22:] + one, xs[3]: su_ep + stamp(0), 9: wpr}
    if "pf8" in OPT:
        kx[OPT["pf8"]] = ["s_cmp_lt_u32 s44, 2", "s_cbranch_scc1 L_nopf8", "global_load_dword v31, v30, s[16:17]", "L_nopf8:"] + kx.get(OPT["pf8"], [])
    gpass(0, 0, KEND, kx)
    e.extend(stamp(1))
    k = []
    for u in range(2):
        for q in range(4): k.append(f"v_cvt_pk_bf16_f32 v{PH[u]+q}, v{ACC+16*u+2*q}, v{ACC+16*u+2*q+1}")
    for u in range(2): k.append(mfma(PU[u], WF, PH[u], None))
    for u in range(2):
        a = ACC + 16 * u
        for q in range(4): k.append(f"v_cvt_pk_bf16_f32 v{VFR[u]+q}, v{a+8+2*q}, v{a+8+2*q+1}")
    for u in range(2): k.append(mfma(ACC + 16 * u, VFR[u], I0, None))
    k += interleave(*[phi_unit(PU[u], TM[u], PH[u]) for u in range(2)])
    for u in range(2): k.append(mfma(PU[u], PH[u], I0, None))
    for u in range(2): k.append(mfma(PU[u], PH[u] + 4, I0 + 4, PU[u]))
    for u in range(2):
        a = ACC + 16 * u
        for q in range(8): k.append(f"v_cvt_pk_bf16_f32 v{a+q}, v{a+2*q}, v{a+2*q+1}")
        for q in range(8): k.append(f"v_or_b32 v{a+q}, v{a+q}, v{ONE}")
    for u in range(2):
        for q in range(8): k.append(f"v_cvt_pk_bf16_f32 v{PH[u]+q}, v{PU[u]+2*q}, v{PU[u]+2*q+1}")
    D3 = EACC
    for u in range(2):
        k.append(mfma(D3, PH[u], ACC + 16 * u, None if u == 0 else D3))
        k.append(mfma(D3, PH[u] + 4, ACC + 16 * u + 4, D3))
    PST = ["v_and_b32 v112, 31, v1", "v_lshlrev_b32 v112, 4, v112", "v_lshrrev_b32 v113, 5, v1", "v_lshl_add_u32 v112, v113, 14, v112",
          "s_lshl_b32 s38, s45, 17", "s_lshl_b32 s39, s28, 9", "s_add_u32 s38, s38, s39", f"s_add_u32 s38, s38, {WS_PART}"]
    for q in range(4):
        PST.append(f"buffer_store_dwordx4 {vr(D3+4*q,4)}, v112, s[24:27], s38 offen sc1")
        if q < 3: PST.append("s_add_u32 s38, s38, 32768")
    DEFER = OPT.get("defer", 1)
    if not DEFER: k += PST
    if not OPT.get("pk", 1): k = unpk(k)
    k = [x.strip() for x in fix_hazards(k, pre=mfmas(1, False))]
    def cost(x):
        if "mfma" in x: return 48
        if "v_exp" in x or "v_rcp" in x: return 8
        if "s_nop" in x: return 4 * (int(x.split()[1]) + 1)
        return 4
    NB = 20 - KEND
    acc = 260; nb = 0; LIM = OPT.get("klim", 140)
    for x in k:
        if nb < NB and acc + cost(x) > (LIM if nb < NB - 1 else OPT.get("klast", 300)):
            e("s_barrier"); nb += 1; acc = 0
            if nb == NB:
                e.extend(stamp(2)); e("s_setprio 2")
        e(x); acc += cost(x)
    while nb < NB:
        e("s_barrier"); nb += 1
    e("ds_read_b128 v[4:7], v28")
    e.extend(ATT_SETUP)
    e("s_branch L_attn")
    e.label("L_qwave")
    e.extend(su_w)
    e.extend(su_s)
    e.extend(ATT_SETUP)
    e("s_lshl_b32 s38, s44, 11")
    e(f"s_add_u32 s38, s38, {PHQ}")
    e("v_add_u32 v29, s38, v10")
    e("s_mov_b32 s41, 0")
    e.extend([x for x in su_ws if "s_load" not in x])
    e("s_cmp_eq_u32 s30, 6")
    e("s_cbranch_scc1 L_touch")
    e("s_cmp_eq_u32 s30, 7")
    e("s_cbranch_scc1 L_touch7")
    e("s_cmp_gt_u32 s3, 2")
    e("s_cbranch_scc1 L_qidle")
    e("s_lshl_b32 s38, s44, 12")
    for t in range(4): e(f"v_add_u32 v{16+t}, s38, v{12+t}")
    e("v_and_b32 v23, 15, v1")
    e("v_lshlrev_b32 v23, 3, v23")
    e("v_lshl_add_u32 v26, v22, 8, v23")
    e("v_lshlrev_b32 v27, 4, v22")
    e("s_lshl_b32 s42, s28, 1")
    e("s_add_u32 s42, s42, s44")
    e("s_cmp_eq_u32 s3, 2")
    e("s_cbranch_scc1 L_qgate")
    def extloop(gate):
        nbar = 0
        if not gate: e.extend(su_id(1, 160))
        def xr(p):
            B = 32 + 32 * (p % 3); va = 21 if p % 2 == 0 else 25
            l = [f"s_lshl_b32 s38, s31, {7 if gate else 11}", f"v_add_u32 v{va}, s38, v{27 if gate else 26}",
                 "s_add_u32 s31, s31, 1", "s_and_b32 s31, s31, 7"]
            r = []
            for t in range(4):
                r.append(f"ds_read_b128 {vr(B+8*t,4)}, v{16+t} offset:{p*8192}")
                if gate: r.append(f"ds_read_b128 {vr(B+8*t+4,4)}, v{va} offset:{t*32}")
                else:
                    for u in range(2): r.append(f"ds_read_b64_tr_b16 {vr(B+8*t+4+2*u,2)}, v{va} offset:{t*512+u*128}")
            return l, r
        def xm(p):
            B = 32 + 32 * (p % 3)
            return [mfma(EACC, B + 8 * t + 4, B + 8 * t, None if (p == 0 and t == 0) else EACC) for t in range(4)]
        n = 8 if gate else 12
        for p in range(0, 8, 2):
            a0, r0 = xr(p); a1, r1 = xr(p + 1)
            e.extend(a0 + a1)
            while nbar <= POS[f"x{p//2}"]:
                e("s_barrier"); nbar += 1
            e.extend(spread(xm(p - 1)[:3], r0 + r1) + xm(p - 1)[3:] if p else r0 + r1)
            e(f"s_waitcnt lgkmcnt({n})")
            e.extend(xm(p))
            e("s_waitcnt lgkmcnt(0)")
        while nbar <= XL + 1:
            e("s_barrier"); nbar += 1
        e.extend(xm(7))
        if OPT.get("xp", 0): e("s_setprio 3")
    extloop(False)
    for q in range(4): e(f"v_cvt_pk_bf16_f32 v{EACC+q}, v{EACC+2*q}, v{EACC+2*q+1}")
    e("s_lshl_b32 s38, s42, 11")
    e("s_lshl_b32 s41, s44, 1")
    e("s_add_u32 s41, s41, s3")
    e("s_lshl_b32 s41, s41, 5")
    e("s_add_u32 s41, s41, s28")
    e(f"s_lshl_b32 s41, s41, {FS}")
    e(f"s_add_u32 s41, s41, {F1}")
    e("s_cmp_eq_u32 s3, 1")
    e("s_cbranch_scc1 L_qv")
    e(f"buffer_store_dwordx4 {vr(EACC,4)}, v10, s[24:27], s38 offen sc1")
    e("s_branch L_q5")
    e.label("L_qv")
    e("s_nop 1")
    e(mfma(32, EACC, 160, None))
    e("v_lshrrev_b32 v11, 5, v1")
    e("v_and_b32 v22, 15, v1")
    e("v_lshlrev_b32 v22, 4, v22")
    e("v_lshl_add_u32 v22, v11, 8, v22")
    for q in range(8): e(f"v_cvt_pk_bf16_f32 v{EACC+8+q}, v{32+2*q}, v{32+2*q+1}")
    e("s_mov_b32 exec_lo, 0xffff")
    e("s_mov_b32 exec_hi, 0xffff")
    e(f"buffer_store_dwordx4 {vr(EACC+8,4)}, v22, s[24:27], s38 offen offset:1024 sc1")
    e(f"buffer_store_dwordx4 {vr(EACC+12,4)}, v22, s[24:27], s38 offen offset:1536 sc1")
    e("s_mov_b64 exec, -1")
    e("s_branch L_q5")
    e.label("L_qgate")
    extloop(True)
    e(f"v_cvt_pk_bf16_f32 v11, v{EACC}, v{EACC}")
    e("v_and_b32 v11, 0xffff0000, v11")
    e("v_mul_f32 v11, s75, v11")
    e("v_exp_f32 v11, v11")
    e("v_add_f32 v11, 1.0, v11")
    e("v_rcp_f32 v11, v11")
    e("v_cvt_pk_bf16_f32 v11, v11, v11")
    e("v_and_b32 v11, 0xffff0000, v11")
    e("v_lshlrev_b32 v22, 2, v1")
    e("s_lshl_b32 s38, s42, 7")
    e(f"s_add_u32 s38, s38, {WS_GATE}")
    e("s_lshl_b32 s41, s42, 3")
    e(f"s_add_u32 s41, s41, {FG}")
    e("s_mov_b32 exec_hi, 0")
    e("buffer_store_dword v11, v22, s[24:27], s38 offen sc1")
    e("s_mov_b64 exec, -1")
    e("s_branch L_q5")
    SPF = OPT.get("spf", 0)
    FSTEP = XL + OPT.get("flat", 4)
    for wv in (6, 7):
        e.label("L_touch" if wv == 6 else "L_touch7")
        if OPT.get("pfs") and wv == 7:
            a0, st_ = OPT["pfs"]
            e("s_and_b32 s38, s29, 3")
            for i in range(FSTEP + 1):
                e("s_barrier")
                if i >= a0 and (i - a0) % st_ == 0 and (i - a0) // st_ < 4:
                    e(f"s_cmp_eq_u32 s38, {(i - a0) // st_}")
                    e(f"s_cbranch_scc0 L_pfs{i}")
                    e("global_load_dword v31, v30, s[16:17]")
                    e.label(f"L_pfs{i}")
            e(f"v_add_u32 v21, {S5}, v20")
            e("s_branch L_noflag")
        if SPF:
            pitch = 3072 if wv == 6 else 1024; p = 50 if wv == 6 else 58
            for ch in range(2):
                e(f"s_add_u32 s38, s31, {ch}")
                e("s_and_b32 s38, s38, 7")
                e(f"s_mul_i32 s38, s38, {64*pitch}")
                e("s_lshl_b32 s39, s29, 7")
                e("s_add_u32 s38, s38, s39")
                e(f"s_add_u32 s{4+2*ch}, s{p}, s38")
                e(f"s_addc_u32 s{5+2*ch}, s{p+1}, 0")
            ld = [f"s_load_dword s{8+(r&7)}, s[{4+2*(r>>6)}:{5+2*(r>>6)}], {(r&63)*pitch}" for r in range(64 * SPF)]
            n0 = OPT.get("spf0", 24); n1 = OPT.get("spf1", 5)
            e.extend(ld[:n0]); k_ = n0
            for i in range(FSTEP + 1):
                e("s_barrier")
                e.extend(ld[k_:k_ + n1]); k_ += n1
            e(f"v_add_u32 v21, {S5}, v20")
            e("s_branch L_noflag")
    e.label("L_qidle")
    for i in range(XL + 2): e("s_barrier")
    e.label("L_q5")
    e(su_ws[1])
    e(f"v_add_u32 v21, {S5}, v20")
    fl = Emitter()
    fl("s_cmp_eq_u32 s41, 0")
    fl("s_cbranch_scc1 L_noflag")
    fl.extend(su_ep)
    fl("s_waitcnt vmcnt(0)")
    flag_store(fl, "s41", 22)
    fl.label("L_noflag")
    gpass(8, XL + 2, 19, {FSTEP: fl.lines, USE[9] - 1: stamp(0) + ["s_setprio 1"]})
    mm = mfmas(1, False)
    def qconv(u):
        a = ACC + 16 * u; d = 76 if u else 68; l = []
        for i in range(8, 16, 2): l.append(f"v_pk_mul_f32 {vr(a+i,2)}, {vr(a+i,2)}, s[76:77] op_sel_hi:[1,0]")
        for q in range(4): l.append(f"v_cvt_pk_bf16_f32 v{(76 if u else 4)+q}, v{a+8+2*q}, v{a+8+2*q+1}")
        if u: l.append("ds_write_b128 v28, v[76:79]")
        for q in range(4): l.append(f"v_cvt_pk_bf16_f32 v{PH[u]+q}, v{a+2*q}, v{a+2*q+1}")
        l.append(f"ds_write_b128 v29, {vr(PH[u],4)} offset:{u*1024}")
        return l
    e.extend(mm[1::2] + mm[0:4:2])
    e("s_nop 7"); e("s_nop 1")
    c1 = unpk(qconv(1))
    e.extend(c1[:8] + [mm[4]] + c1[8:14] + [mm[6]] + c1[14:])
    e.extend(stamp(1))
    c0 = qconv(0)
    e.extend(c0[8:] + c0[:8])
    e("s_waitcnt lgkmcnt(0)")
    e.extend(stamp(2))
    e("s_barrier")
    e.label("L_attn")
    if OPT.get("rts"): e.extend(["s_memrealtime s[80:81]", "s_waitcnt lgkmcnt(0)", "s_sub_u32 s80, s80, s92", "s_add_u32 s80, s80, s94"])
    e.extend(stamp(3))
    e("s_setprio 2")
    e(f"ds_read_b128 {vr(KF[0],4)}, v{AK}")
    e(f"ds_read_b128 {vr(KF[1],4)}, v{AK} offset:2048")
    e("s_mov_b64 exec, s[20:21]")
    e(f"ds_read_b128 {vr(VF[0],4)}, v{AV}")
    e(f"ds_read_b128 {vr(VF[0]+4,4)}, v{AV} offset:512")
    e("s_mov_b64 exec, -1")
    for i in range(0, 16, 2): e(f"v_mov_b64 {vr(O+i,2)}, 0")
    for i in range(0, 4, 2): e(f"v_mov_b64 {vr(PK+4+i,2)}, 0")
    e("s_waitcnt lgkmcnt(0)")
    e(mfma(S[0], KF[0], Q, None))
    e(mfma(S[1], KF[1], Q, None))
    e(f"v_max3_f32 v{T}, v{S[0]}, v{S[0]+1}, v{S[0]+2}")
    e(f"v_max3_f32 v{T+1}, v{S[0]+3}, v{S[0]+4}, v{S[0]+5}")
    for i in range(6, 30, 4):
        e(f"v_max3_f32 v{T}, v{T}, v{S[0]+i}, v{S[0]+i+1}")
        e(f"v_max3_f32 v{T+1}, v{T+1}, v{S[0]+i+2}, v{S[0]+i+3}")
    e(f"v_max3_f32 v{T}, v{T}, v{S[0]+30}, v{S[0]+31}")
    e(f"v_max_f32 v{T}, v{T}, v{T+1}")
    def setnm():
        e(f"v_mov_b32 v{T+1}, v{T}")
        e(f"v_permlane32_swap_b32 v{T}, v{T+1}")
        e(f"v_max_f32 v{T}, v{T}, v{T+1}")
        for i in range(2): e(f"v_sub_f32 v{NM+i}, 0, v{T}")
        for i in range(2, 16, 2): e(f"v_mov_b64 {vr(NM+i,2)}, {vr(NM,2)}")
    setnm()
    e(mfma(S[0], KF[0], Q, NM))
    e("s_nop 7"); e("s_nop 1")
    body = Emitter()
    ex = lambda i: f"v_exp_f32 v{i}, v{i}"
    for j in range(U):
        a = j & 1; b = a ^ 1; Sa = S[a]
        cv = lambda q: f"v_cvt_pk_bf16_f32 v{PK+q}, v{Sa+2*q}, v{Sa+2*q+1}"
        body(mfma(S[b], KF[b], Q, NM))
        body(f"ds_read_b128 {vr(KF[a],4)}, v{AK} offset:{(j+2)*2048}")
        for i in range(7): body(ex(Sa + i))
        body(mfma(O, VF[b] + 4, PK + 4, O))
        body("s_mov_b64 exec, s[20:21]")
        body(f"ds_read_b128 {vr(VF[b],4)}, v{AV} offset:{(j+1)*2048}")
        body(f"ds_read_b128 {vr(VF[b]+4,4)}, v{AV} offset:{(j+1)*2048+512}")
        body("s_mov_b64 exec, -1")
        body(ex(Sa + 7)); body(ex(Sa + 8))
        for q in range(4): body(cv(q))
        body(ex(Sa + 9)); body(ex(Sa + 10))
        body("s_waitcnt lgkmcnt(3)")
        body(mfma(O, VF[a], PK, O))
        for i in range(11, 16): body(ex(Sa + i))
        if j == U - 1:
            body(f"v_add_u32 v{AK}, {U*2048}, v{AK}")
            body(f"v_add_u32 v{AV}, {U*2048}, v{AV}")
            body("s_add_u32 s23, s23, 1")
            body("s_cmp_lt_u32 s23, s22")
        for q in range(4, 8): body(cv(q))
        body("s_waitcnt lgkmcnt(2)")
    rep = []
    fix_hazards(body.lines, pre=body.lines, report=rep)
    assert not rep, rep
    e(".p2align 6")
    e.label("L_loop")
    if OPT.get("trace") == 3:
        e.extend(["s_memtime s[96:97]", "s_waitcnt lgkmcnt(0)", "s_sub_u32 s96, s96, s94", "s_lshl_b32 s97, s23, 1", "s_add_u32 m0, s97, 1", "v_writelane_b32 v111, s96, m0"])
    e.extend(body.lines)
    e("s_cbranch_scc1 L_loop")
    e(f"s_cmp_lg_u32 s22, {SEG[3]}")
    e("s_cbranch_scc1 L_seg")
    e(mfma(O, VF[1] + 4, PK + 4, O))
    if OPT.get("rts"): e.extend(["s_memrealtime s[82:83]", "s_waitcnt lgkmcnt(0)", "s_sub_u32 s82, s82, s92", "s_add_u32 s82, s82, s94"])
    e.extend(stamp(4))
    e(f"ds_read_b32 v{T+4}, v{T+4}")
    if OPT.get("late", 0):
        e("s_mov_b64 exec, 1")
        e(f"ds_add_u32 v{T+6}, v{T+7}")
        e("s_mov_b64 exec, -1")
    e(f"v_lshlrev_b32 v{AK}, 4, v1")
    e(f"v_fma_f32 v{T+1}, v{O}, 0, v{O+8}")
    e(f"v_mul_f32 v{T+3}, 0, v{O+1}")
    e(f"v_rcp_f32 v{T}, v{O+8}")
    for i in range(2, 8): e(f"v_fma_f32 v{T+1+2*(i&1)}, v{O+i}, 0, v{T+1+2*(i&1)}")
    e(f"v_add_f32 v{T+1}, v{T+1}, v{T+3}")
    e(f"v_cmp_ngt_f32 vcc, s39, v{T+1}")
    e("s_cbranch_vccnz L_fallback")
    e.label("L_fin")
    e(f"v_mul_f32 v{T}, v{T}, v{T+2}")
    for i in range(0, 8, 2): e(f"v_pk_mul_f32 {vr(O+i,2)}, {vr(O+i,2)}, {vr(T,2)} op_sel_hi:[1,0]")
    for q in range(4): e(f"v_cvt_pk_bf16_f32 v{O+q}, v{O+2*q}, v{O+2*q+1}")
    e("s_waitcnt lgkmcnt(0)")
    e(f"v_cmp_eq_u32 vcc, 0, v{T+4}")
    e("s_cbranch_vccnz L_far")
    e(f"buffer_store_dwordx4 {vr(O,4)}, v{AK}, s[24:27], s43 offen")
    if OPT.get("cbar", 1) & 1: e("s_barrier")
    if OPT["stamp"] == 1: e("s_branch L_cend")
    else: e("s_endpgm")
    e.label("L_far")
    e(f"buffer_store_dwordx4 {vr(O,4)}, v{AK}, s[24:27], s43 offen sc1")
    if OPT.get("cbar", 1) & 2: e("s_barrier")
    e.label("L_cend")
    e.extend(stamp(5))
    if OPT.get("trace") == 3: e("v_mov_b32 v159, v111")
    if OPT["stamp"] == 1: stamp_end(e, 40)
    e("s_endpgm")
    e.label("L_seg")
    e(f"s_cmp_eq_u32 s22, {SEG[1]}")
    e("s_cbranch_scc1 L_seg1")
    e(f"s_cmp_gt_u32 s22, {SEG[1]}")
    e("s_cbranch_scc1 L_seg2")
    if DEFER:
        e(f"s_cmp_lg_u32 s22, {SEG[0]}")
        e("s_cbranch_scc1 L_segf")
        lds_wait(e, C_KVALL, 4, T, sleep=1)
        e(f"s_mov_b32 s22, {SEG[1]}")
        e("s_cmp_lg_u32 s40, 0")
        e("s_cbranch_scc1 L_loop")
        e.extend(PST)
        e(f"s_mov_b32 s22, {SEG[0] + OPT.get('fgap', 2)}")
        e("s_branch L_loop")
        e.label("L_segf")
    e(f"s_mov_b32 s22, {SEG[1]}")
    if not DEFER:
        e("s_cmp_lg_u32 s40, 0")
        e("s_cbranch_scc1 L_seg0b")
    e("s_lshl_b32 s38, s45, 5")
    e("s_add_u32 s38, s38, s28")
    e("s_lshl_b32 s38, s38, 3")
    e(f"s_add_u32 s38, s38, {F3}")
    e("s_waitcnt vmcnt(0)")
    flag_store(e, "s38", T)
    e.label("L_seg0b")
    if not DEFER: lds_wait(e, C_KVALL, 4, T, sleep=1)
    e("s_branch L_loop")
    e.label("L_seg1")
    e(f"s_mov_b32 s22, {SEG[2]}")
    lds_add(e, C_PROG, T)
    lds_wait(e, C_GOK, 4, T)
    e("s_lshl_b32 s38, s46, 7")
    e(f"s_add_u32 s38, s38, {C_GATE}")
    e(f"v_and_b32 v{T}, 31, v1")
    e(f"v_lshl_add_u32 v{T}, v{T}, 2, s38")
    e(f"ds_read_b32 v{T+2}, v{T}")
    e(f"v_mov_b32 v{T+4}, {C_LOC}")
    e(f"v_mov_b32 v{T+6}, {C_DONE}")
    e(f"v_mov_b32 v{T+7}, 1")
    e(f"s_mov_b32 s39, {fbits(2.0**120)}")
    e("s_waitcnt lgkmcnt(0)")
    e(f"v_sub_f32 v{T+2}, 1.0, v{T+2}")
    e(f"v_cvt_pk_bf16_f32 v{T+2}, v{T+2}, v{T+2}")
    e(f"v_and_b32 v{T+2}, 0xffff0000, v{T+2}")
    e("s_cmp_lg_u32 s40, 0")
    e("s_cbranch_scc1 L_loop")
    e("s_setprio 1")
    e(f"s_mov_b32 s22, {OPT.get('kdrop', 16)}")
    e("s_branch L_loop")
    e.label("L_seg2")
    e(f"s_mov_b32 s22, {SEG[3]}")
    e("s_setprio 1")
    e("s_cmp_lg_u32 s40, 0")
    e("s_cbranch_scc1 L_loop")
    e("s_setprio 0")
    e("s_branch L_loop")
    e.label("L_fallback")
    e("s_waitcnt lgkmcnt(0)")
    e(f"v_add_u32 v{AV}, {-64*2048 & 0xffffffff}, v{AV}")
    e(f"v_mov_b32 v{T}, 0xff800000")
    e("s_mov_b32 s38, 0")
    e.label("L_fb1")
    e(f"buffer_load_dwordx4 {vr(KF[0],4)}, v{AK}, s[24:27], s38 offen sc1")
    e("s_add_u32 s38, s38, 2048")
    e("s_waitcnt vmcnt(0)")
    e(mfma(S[0], KF[0], Q, None))
    for i in range(8): e(f"v_max3_f32 v{T}, v{T}, v{S[0]+2*i}, v{S[0]+2*i+1}")
    e("s_cmp_lt_u32 s38, 0x20000")
    e("s_cbranch_scc1 L_fb1")
    setnm()
    for i in range(16): e(f"v_mov_b32 v{O+i}, 0")
    e("s_mov_b32 s38, 0")
    e.label("L_fb2")
    e(f"buffer_load_dwordx4 {vr(KF[0],4)}, v{AK}, s[24:27], s38 offen sc1")
    e("s_mov_b64 exec, s[20:21]")
    e(f"buffer_load_dwordx4 {vr(VF[0],4)}, v{AV}, s[24:27], s38 offen sc1")
    e(f"buffer_load_dwordx4 {vr(VF[0]+4,4)}, v{AV}, s[24:27], s38 offen offset:512 sc1")
    e("s_mov_b64 exec, -1")
    e("s_add_u32 s38, s38, 2048")
    e("s_waitcnt vmcnt(0)")
    e(mfma(S[0], KF[0], Q, NM))
    for i in range(16): e(ex(S[0] + i))
    for q in range(8): e(f"v_cvt_pk_bf16_f32 v{PK+q}, v{S[0]+2*q}, v{S[0]+2*q+1}")
    e(mfma(O, VF[0], PK, O))
    e(mfma(O, VF[0] + 4, PK + 4, O))
    e("s_nop 7")
    e("s_cmp_lt_u32 s38, 0x20000")
    e("s_cbranch_scc1 L_fb2")
    e("s_nop 7"); e("s_nop 7")
    e(f"v_rcp_f32 v{T}, v{O+8}")
    e("s_branch L_fin")
    return fix_hazards(e.lines if OPT.get("pk", 1) else unpk(e.lines))

def build():
    hdr = open("cdna_kernels/%s.s.ref" % NAME).read().split("\n")
    hdr = [l for l in hdr if l.startswith(";") and "@launch" not in l]
    out = list(hdr)
    out.append(f"; @launch grid=(256,1,1) block=(768,1,1) lds={LDS_BYTES}")
    out.append('.amdgcn_target "amdgcn-amd-amdhsa--gfx950"')
    out.append(".text")
    k = NAME + "_kernel"
    out += [f".globl {k}", ".p2align 8", f".type {k},@function", f"{k}:"]
    out += gen()
    out.append('.section .rodata,"a"')
    out.append(f""".p2align 6
.amdhsa_kernel {k}
  .amdhsa_next_free_vgpr 168
  .amdhsa_next_free_sgpr {102 if OPT['stamp'] else 80}
  .amdhsa_accum_offset 168
  .amdhsa_group_segment_fixed_size 0
  .amdhsa_kernarg_size 104
  .amdhsa_user_sgpr_count 2
  .amdhsa_user_sgpr_kernarg_segment_ptr 1
  .amdhsa_system_sgpr_workgroup_id_x 1
.end_amdhsa_kernel
""")
    return "\n".join(out) + "\n"

if __name__ == "__main__":
    dst = "f.s"
    for a in sys.argv[1:]:
        k, v = a.split("=")
        if k == "out": dst = v
        elif "," in v: OPT[k] = tuple(int(x) for x in v.split(","))
        else: OPT[k] = int(v)
    open(dst, "w").write(build())
    print("wrote", dst)
```

```python
import sys, math, struct
from asmlib import *

NAME = "gated_mix__linear_kernel_hedgehog__grouped_kv_mqa__prompt"
WS_KVB  = 0x000000
WS_GATE = 0x020000
WS_FL   = 0x024000
F1 = WS_FL + 0x8000; FG = WS_FL + 0x400; F3 = WS_FL + 0x1000; F3P = WS_FL + 0x3000; F4 = WS_FL + 0x4000
WS_EPOCH = WS_FL + 0x800
FP = WS_FL + 0x4000
WS_KVF  = 0x030000
WS_PART = 0x100000
WS_OC   = 0x500000
WS_STAMP = 0x900000
WS_SIZE = 0xB00000
XT = 65536; EXT = 0; S5 = 131072; PHQ = 131072; HND = 147456; WPH = 155648; MISC = 157696
LDS_BYTES = 158720
C_KVALL = MISC; C_PROG = MISC + 4; C_HS = MISC + 8; C_GOK = MISC + 12; C_LOC = MISC + 16; C_DONE = MISC + 20; C_GATE = MISC + 64

def fbits(x): return "0x%08x" % struct.unpack("<I", struct.pack("<f", x))[0]
LOG2E = math.log2(math.e)
OPT = dict(map=1, rot=3, pf=0, dep=3, round_pq=0, stamp=0, spin=1 << 16)

def srd(e, d, lo, nbytes):
    e(f"s_mov_b32 s{d}, s{lo}")
    e(f"s_mov_b32 s{d+1}, s{lo+1}")
    e(f"s_mov_b32 s{d+2}, {hex(nbytes)}")
    e(f"s_mov_b32 s{d+3}, 0x00020000")

def stamp_begin(e):
    if OPT["stamp"]:
        e("s_memrealtime s[92:93]")
        e("s_memtime s[94:95]")
        for k in range(6): e(f"s_mov_b32 s{80+2*k}, 0")
def stamp(k):
    return [f"s_memtime s[{80+2*k}:{81+2*k}]"] if OPT["stamp"] else []
def trace(idx):
    if not OPT.get("trace"): return []
    return ["s_memtime s[96:97]", "s_waitcnt lgkmcnt(0)", "s_sub_u32 s96, s96, s94", f"v_writelane_b32 v159, s96, {idx}"]
def stamp_end(e, vt):
    if OPT.get("trace"):
        e(f"v_lshlrev_b32 v{vt}, 2, v0")
        e("s_mul_i32 s100, s2, 3072")
        e(f"s_add_u32 s100, s100, {WS_STAMP + 0x40000}")
        e(f"buffer_store_dword v159, v{vt}, s[24:27], s100 offen")
    if OPT["stamp"]:
        e("s_waitcnt vmcnt(0)")
        e("s_memrealtime s[96:97]")
        e("s_memtime s[98:99]")
        e("s_waitcnt lgkmcnt(0)")
        for r in (98, 80, 82, 84, 86, 88, 90): e(f"s_sub_u32 s{r}, s{r}, s94")
        e(f"v_lshrrev_b32 v{vt+12}, 6, v0")
        e(f"v_lshlrev_b32 v{vt+12}, 6, v{vt+12}")
        e("s_lshl_b32 s100, s2, 10")
        e(f"s_add_u32 s100, s100, {WS_STAMP}")
        for i, r in enumerate((92, 96, 98, 80, 82, 84, 86, 88, 90, 90, 90, 90)):
            e(f"v_mov_b32 v{vt+i}, s{r}")
        for q in range(3):
            e(f"buffer_store_dwordx4 v[{vt+4*q}:{vt+4*q+3}], v{vt+12}, s[24:27], s100 offen offset:{16*q}")

def phi_unit(P, T, O):
    l = []
    if OPT["round_pq"]:
        for q in range(4): l.append(f"v_cvt_pk_bf16_f32 v{P+8+q}, v{P+2*q}, v{P+2*q+1}")
        for q in range(4):
            l.append(f"v_lshlrev_b32 v{P+2*q}, 16, v{P+8+q}")
            l.append(f"v_and_b32 v{P+2*q+1}, 0xffff0000, v{P+8+q}")
    A = T; B = T + 2
    l += [f"v_max3_f32 v{A}, v{P}, v{P+1}, v{P+2}",
          f"v_max3_f32 v{B}, -v{P}, -v{P+1}, -v{P+2}",
          f"v_max3_f32 v{A}, v{A}, v{P+3}, v{P+4}",
          f"v_max3_f32 v{B}, v{B}, -v{P+3}, -v{P+4}",
          f"v_max3_f32 v{A}, v{A}, v{P+5}, v{P+6}",
          f"v_max3_f32 v{B}, v{B}, -v{P+5}, -v{P+6}",
          f"v_max_f32 v{A}, v{A}, v{P+7}",
          f"v_max_f32_e64 v{B}, v{B}, -v{P+7}",
          f"v_permlane32_swap_b32 v{A}, v{B}",
          f"v_max_f32 v{A}, v{A}, v{B}",
          f"v_mul_f32 v{A}, s75, v{A}",
          f"v_mov_b32 v{B}, v{A}",
          f"v_permlane32_swap_b32 v{A}, v{B}"]
    if OPT.get("pk", 1):
        for i in range(0, 8, 2):
            l.append(f"v_pk_fma_f32 {vr(P+8+i,2)}, {vr(P+i,2)}, s[74:75], {vr(B,2)} op_sel_hi:[1,0,0] neg_lo:[1,0,0] neg_hi:[1,0,0]")
            l.append(f"v_pk_fma_f32 {vr(P+i,2)}, {vr(P+i,2)}, s[74:75], {vr(A,2)} op_sel_hi:[1,0,0]")
    else:
        for i in range(8):
            l.append(f"v_fma_f32 v{P+8+i}, -v{P+i}, s74, v{B}")
            l.append(f"v_fma_f32 v{P+i}, v{P+i}, s74, v{A}")
    for i in range(16): l.append(f"v_exp_f32 v{P+i}, v{P+i}")
    for sg in range(2):
        l.append(f"v_pk_add_f32 {vr(O+4*sg,2)}, {vr(P+8*sg,2)}, {vr(P+8*sg+2,2)}")
        l.append(f"v_pk_add_f32 {vr(O+4*sg+2,2)}, {vr(P+8*sg+4,2)}, {vr(P+8*sg+6,2)}")
    for sg in range(2):
        l.append(f"v_pk_add_f32 {vr(O+4*sg,2)}, {vr(O+4*sg,2)}, {vr(O+4*sg+2,2)}")
    for sg in range(2):
        l.append(f"v_add_f32 v{T+2*sg}, v{O+4*sg}, v{O+4*sg+1}")
    l += [f"v_permlane32_swap_b32 v{A}, v{B}",
          f"v_add_f32 v{A}, v{A}, v{B}",
          f"v_rcp_f32 v{A}, v{A}",
          f"v_mov_b32 v{B}, v{A}",
          f"v_permlane32_swap_b32 v{A}, v{B}"]
    for i in range(0, 8, 2):
        l.append(f"v_pk_mul_f32 {vr(P+i,2)}, {vr(P+i,2)}, {vr(A,2)} op_sel_hi:[1,0]")
        l.append(f"v_pk_mul_f32 {vr(P+8+i,2)}, {vr(P+8+i,2)}, {vr(B,2)} op_sel_hi:[1,0]")
    for q in range(8): l.append(f"v_cvt_pk_bf16_f32 v{O+q}, v{P+2*q}, v{P+2*q+1}")
    return l

import re as _re
def unpk(lines):
    out = []
    for l in lines:
        m = _re.match(r"\s*v_pk_(add|mul)_f32 v\[(\d+):\d+\], v\[(\d+):\d+\], ([vs])\[(\d+):\d+\](.*)", l)
        if not m: out.append(l); continue
        op, d, a, k, b, mods = m.group(1), int(m.group(2)), int(m.group(3)), m.group(4), int(m.group(5)), m.group(6)
        bc = "op_sel_hi:[1,0]" in mods
        assert mods.strip() in ("", "op_sel_hi:[1,0]"), l
        for i in range(2):
            out.append(f"    v_{op}_f32 v{d+i}, {k}{b if bc else b+i}, v{a+i}")
    return out

def spread(mm, r):
    out = []; n = len(mm); k = 0
    for i, x in enumerate(mm):
        out.append(x)
        hi = (len(r) * (i + 1) + n - 1) // n
        out += r[k:hi]; k = max(k, hi)
    return out + r[k:]

_uid = [0]
def uid(p):
    _uid[0] += 1
    return f"{p}_{_uid[0]}"

def flag_store(e, soff, vt):
    e(f"v_mov_b32 v{vt}, s78")
    e(f"v_mov_b32 v{vt+1}, s79")
    e(f"v_mov_b32 v{vt+2}, 0")
    e("s_mov_b64 exec, 1")
    e(f"buffer_store_dwordx2 {vr(vt,2)}, v{vt+2}, s[24:27], {soff} offen sc1")
    e("s_mov_b64 exec, -1")

def flag_poll(e, vaddr, vt, sleep=4):
    L = uid("FP"); D = uid("FD")
    e("s_mov_b32 s77, 0")
    e.label(L)
    e(f"buffer_load_dwordx2 {vr(vt,2)}, v{vaddr}, s[24:27], 0 offen sc1")
    e("s_add_u32 s77, s77, 1")
    e("s_waitcnt vmcnt(0)")
    e(f"v_cmp_ne_u64 vcc, s[78:79], {vr(vt,2)}")
    e(f"s_cbranch_vccz {D}")
    e(f"s_cmp_gt_u32 s77, {OPT['spin']}")
    e(f"s_cbranch_scc1 {D}")
    e(f"s_sleep {max(2, sleep * OPT.get('slp', 1))}")
    e(f"s_branch {L}")
    e.label(D)

def lds_add(e, addr, vt):
    e(f"v_mov_b32 v{vt}, {addr}")
    e(f"v_mov_b32 v{vt+1}, 1")
    e("s_mov_b64 exec, 1")
    e(f"ds_add_u32 v{vt}, v{vt+1}")
    e("s_mov_b64 exec, -1")

def lds_wait(e, addr, target, vt, sleep=4):
    L = uid("LW"); D = uid("LD")
    e(f"v_mov_b32 v{vt}, {addr}")
    e("s_mov_b32 s77, 0")
    e.label(L)
    e(f"ds_read_b32 v{vt+1}, v{vt}")
    e("s_add_u32 s77, s77, 1")
    e("s_waitcnt lgkmcnt(0)")
    e(f"v_cmp_gt_u32 vcc, {target}, v{vt+1}")
    e(f"s_cbranch_vccz {D}")
    e(f"s_cmp_gt_u32 s77, {OPT['spin']*8}")
    e(f"s_cbranch_scc1 {D}")
    e(f"s_sleep {sleep * OPT.get('slp', 1) if sleep > 1 else sleep}")
    e(f"s_branch {L}")
    e.label(D)

def gen():
    e = Emitter()
    ORD = {0: "x0 x1 x2 x3 w0 w1 w2 w3 w4 w5 w6 w7 w8",
           1: "x0 x1 x2 x3 w0 w8",
           2: "x0 w0 w8 x1 x2 x3",
           3: "x0 w0 x1 x2 x3 w8",
           4: "x0 x1 w0 x2 x3 w8",
           5: "x0 x1 x2 w0 x3 w8",
           6: "x0 w0 x1 w8 x2 x3"}[OPT.get("ord", 0)].split()
    ORD += [f"w{g}" for g in range(16) if f"w{g}" not in ORD]
    POS = {n: i for i, n in enumerate(ORD)}
    XL = POS["x3"]
    ring = [n for n in ORD if n[0] == "w" and n != "w8"]
    SLOT = {int(n[1:]): ((r + 1) % 4) * 16384 for r, n in enumerate(ring)}
    SLOT[8] = S5
    USE = {}; last = -1
    for c in range(8):
        last = max(POS[f"w{c}"], POS[f"x{c//2}"], last + 1); USE[c] = last
    last = XL + 1
    for c in range(8, 16):
        last = max(POS[f"w{c}"], last + 1); USE[c] = last
    assert USE[15] == 19
    e("s_cmp_ge_u32 s2, 256")
    e("s_cbranch_scc1 L_done")
    e("s_load_dwordx16 s[48:63], s[0:1], 0")
    e("s_load_dwordx8 s[64:71], s[0:1], 64")
    e("s_load_dwordx2 s[72:73], s[0:1], 96")
    stamp_begin(e)
    if OPT.get("trace"): e("v_mov_b32 v159, 0")
    e("v_and_b32 v1, 63, v0")
    e("v_lshrrev_b32 v11, 6, v0")
    e("v_readfirstlane_b32 s30, v11")
    e("s_and_b32 s36, s2, 7")
    e("s_lshr_b32 s37, s2, 3")
    lc = {0: 1, 1: 2, 2: 3}[OPT["map"]]
    e(f"s_and_b32 s29, s36, {(8>>lc)-1}")
    e(f"s_lshl_b32 s29, s29, {lc}")
    e(f"s_lshr_b32 s38, s37, {5-lc}")
    e("s_or_b32 s29, s29, s38")
    e(f"s_lshr_b32 s28, s36, {3-lc}")
    e(f"s_lshl_b32 s28, s28, {5-lc}")
    e(f"s_and_b32 s38, s37, {(32>>lc)-1}")
    e("s_add_u32 s28, s28, s38")
    if OPT["rot"] == 1:
        e("s_add_u32 s31, s28, s29"); e("s_lshl_b32 s31, s31, 1"); e("s_and_b32 s31, s31, 6")
    elif OPT["rot"] == 3:
        e("s_lshl_b32 s31, s29, 1"); e("s_add_u32 s31, s31, s28"); e("s_and_b32 s31, s31, 7")
    elif OPT["rot"] == 4:
        e("s_add_u32 s31, s28, s29"); e("s_and_b32 s31, s31, 7")
    elif OPT["rot"] == 5:
        e("s_lshl_b32 s31, s28, 1"); e("s_add_u32 s31, s31, s29"); e("s_and_b32 s31, s31, 7")
    elif OPT["rot"] == 6:
        e("s_lshl_b32 s31, s28, 1"); e("s_add_u32 s31, s31, s29"); e("s_add_u32 s31, s31, s36"); e("s_and_b32 s31, s31, 7")
    elif OPT["rot"] == 2:
        e("s_add_u32 s31, s28, s29"); e("s_lshl_b32 s31, s31, 2"); e("s_and_b32 s31, s31, 4")
    else:
        e("s_mov_b32 s31, 0")
    roles = {0: (0, 1, 2), 1: (3, 7, 6), 2: (3, 7, 2), 3: (7, 6, 5), 4: (7, 6, 0)}[OPT.get("role", 3)]
    tab = sum((roles.index(c) if c in roles else 3) << (2 * c) for c in range(8))
    e("s_lshl_b32 s3, s29, 1")
    e(f"s_lshr_b32 s3, {hex(tab)}, s3")
    e("s_and_b32 s3, s3, 3")
    e("v_lshlrev_b32 v10, 4, v1")
    if OPT.get("lf", 0):
        e("s_sub_u32 s30, s30, 4")
        e("s_cbranch_scc0 L_compute")
        e("s_add_u32 s30, s30, 12")
    else:
        e("s_cmp_lt_u32 s30, 8")
        e("s_cbranch_scc1 L_compute")
    e("s_setprio 3")
    e("s_sub_u32 s30, s30, 8")
    e("v_lshrrev_b32 v11, 3, v1")
    e("v_and_b32 v12, 7, v1")
    e("v_lshrrev_b32 v13, 4, v1")
    e("v_xor_b32 v14, v12, v13")
    e("v_lshlrev_b32 v14, 4, v14")
    e("v_lshl_add_u32 v2, v11, 10, v14")
    e("v_xor_b32 v3, 64, v2")
    e("v_add_u32 v3, 7168, v3")
    e("s_lshl_b32 s32, s28, 16")
    e("s_lshl_b32 s38, s30, 14")
    e("s_add_u32 s32, s32, s38")
    e("s_lshl_b32 s41, s30, 11")
    e("s_lshl_b32 s40, s30, 12")
    e("s_mov_b32 s36, s31")
    e("v_and_b32 v13, 1, v13")
    e("v_lshlrev_b32 v13, 1, v13")
    e("v_xor_b32 v14, v12, v13")
    e("v_lshlrev_b32 v14, 4, v14")
    e("v_mul_u32_u24 v6, 3072, v11")
    e("v_add_u32 v6, v6, v14")
    e(f"v_add_u32 v7, {8*3072-1024}, v6")
    e("v_xor_b32 v8, 64, v6")
    e(f"v_add_u32 v9, {8*3072-1024}, v8")
    e("s_lshl_b32 s38, s29, 7")
    e("s_mul_i32 s33, s30, 49152")
    e("s_add_u32 s33, s33, s38")
    e("v_xor_b32 v14, 64, v14")
    e("v_lshl_add_u32 v4, v11, 10, v14")
    e("v_add_u32 v5, 7168, v4")
    e("s_lshl_b32 s34, s30, 14")
    e("s_add_u32 s34, s34, s38")
    e("s_waitcnt lgkmcnt(0)")
    e.extend(trace(60))
    srd(e, 4, 48, 2048*512*2)
    srd(e, 8, 50, 512*1536*2)
    srd(e, 12, 58, 512*512*2)
    e("s_cmp_gt_u32 s3, 2")
    e("s_cbranch_scc1 L_noext")
    e("s_cmp_eq_u32 s3, 0")
    e("s_cselect_b32 s16, s60, s62")
    e("s_cselect_b32 s17, s61, s63")
    e("s_cmp_eq_u32 s3, 2")
    e("s_cselect_b32 s16, s66, s16")
    e("s_cselect_b32 s17, s67, s17")
    e("s_mov_b32 s18, 16384")
    e("s_cselect_b32 s18, 1024, s18")
    e("s_mov_b32 s19, 0x00020000")
    e("s_mov_b32 m0, s40")
    for i in range(4):
        e(f"buffer_load_dwordx4 v10, s[16:19], s40 offen offset:{i*1024} lds")
    e.label("L_noext")
    def item(i):
        l = []; nm = ORD[i]; idx = int(nm[1:])
        if nm[0] == "x":
            for q in range(2):
                l.append("s_lshl_b32 s38, s31, 7")
                l.append("s_add_u32 s38, s38, s32")
                l.append(f"s_add_u32 m0, s41, {XT + (2*idx+q)*8192}")
                l.append("s_add_u32 s31, s31, 1")
                for k in range(2):
                    l.append(f"buffer_load_dwordx4 v{2+k}, s[4:7], s38 offen offset:{k*1024} lds")
                l.append("s_and_b32 s31, s31, 7")
        else:
            g = idx
            l.append(f"s_add_u32 s35, s36, {g % 8}")
            l.append("s_and_b32 s35, s35, 7")
            l.append("s_mul_i32 s39, s35, 196608")
            l.append("s_add_u32 s39, s39, s33")
            l.append(f"s_add_u32 m0, s41, {SLOT[g]}")
            if g < 8: l.append("s_add_u32 s39, s39, 1024")
            else: l.append("s_lshl_b32 s38, s35, 16")
            for k in range(2):
                l.append(f"buffer_load_dwordx4 v{6+k}, s[8:11], s39 offen offset:{k*1024} lds")
            l.append(f"s_add_u32 m0, s41, {SLOT[g]+8192}")
            if g < 8:
                l.append("s_add_u32 s39, s39, 1024")
                for k in range(2):
                    l.append(f"buffer_load_dwordx4 v{8+k}, s[8:11], s39 offen offset:{k*1024} lds")
            else:
                l.append("s_add_u32 s38, s38, s34")
                for k in range(2):
                    l.append(f"buffer_load_dwordx4 v{4+k}, s[12:15], s38 offen offset:{k*1024} lds")
        return l
    def earliest(i):
        nm = ORD[i]; idx = int(nm[1:])
        if nm[0] == "x" or idx == 8: return -1
        r = ring.index(nm)
        if r < 3: return -1
        if r == 3: return XL + 1
        return USE[int(ring[r - 4][1:])] + 1
    DEP = OPT.get("dep", 3)
    for i in range(DEP): e.extend(item(i))
    e.extend(trace(61))
    e(f"s_load_dwordx2 s[78:79], s[72:73], {hex(WS_EPOCH)}")
    srd(e, 20, 52, 32*16*16*2)
    srd(e, 24, 72, WS_SIZE)
    e("s_and_b32 s46, s30, 1")
    e("s_lshr_b32 s47, s30, 1")
    e("v_bfe_u32 v13, v1, 4, 1")
    e("v_lshlrev_b32 v15, 2, v13")
    e("v_xor_b32 v15, v12, v15")
    e("v_lshlrev_b32 v15, 4, v15")
    e("v_lshl_add_u32 v144, v11, 10, v15")
    for k in range(1, 4): e(f"v_add_u32 v{144+k}, {k*7168}, v144")
    e("v_lshrrev_b32 v16, 5, v1")
    e("v_bfe_u32 v15, v1, 2, 2")
    e("v_lshl_add_u32 v148, v16, 2, v15")
    e("v_lshlrev_b32 v148, 7, v148")
    e("v_lshrrev_b32 v15, 1, v15")
    e("v_xor_b32 v15, s47, v15")
    e("v_lshl_add_u32 v148, v15, 6, v148")
    e("v_lshl_add_u32 v148, v13, 5, v148")
    e("v_and_b32 v15, 3, v1")
    e("v_lshl_add_u32 v148, v15, 3, v148")
    e("s_lshl_b32 s38, s47, 15")
    e("v_add_u32 v148, s38, v148")
    e("v_xor_b32 v149, 64, v148")
    e(f"s_add_u32 s38, s40, {PHQ}")
    e("v_add_u32 v150, s38, v10")
    e("v_xor_b32 v151, 0x2000, v150")
    e("v_and_b32 v155, 31, v1")
    e("v_lshlrev_b32 v152, 10, v155")
    e("v_lshl_add_u32 v152, v16, 4, v152")
    e("v_lshlrev_b32 v155, 2, v155")
    e("v_and_b32 v153, 15, v1")
    e("v_lshlrev_b32 v153, 3, v153")
    e("v_lshl_add_u32 v153, v16, 7, v153")
    e("s_lshl_b32 s38, s30, 9")
    e(f"s_add_u32 s38, s38, {WPH}")
    e("v_add_u32 v153, s38, v153")
    e(f"s_add_u32 s38, s41, {PHQ}")
    e("v_add_u32 v154, s38, v10")
    e("v_lshlrev_b32 v156, 3, v1")
    e("s_getreg_b32 s37, hwreg(HW_REG_XCC_ID, 0, 4)" if OPT.get("loc", 0) else "s_mov_b32 s37, 0")
    e(f"s_mov_b32 s74, {fbits(LOG2E)}")
    e(f"s_mov_b32 s75, {fbits(-LOG2E)}")
    e("v_and_b32 v15, 31, v1")
    FS = OPT.get("fs", 3)
    e(f"v_lshlrev_b32 v15, {FS}, v15")
    e(f"s_lshl_b32 s38, s30, {FS+5}")
    e(f"s_add_u32 s38, s38, {F1}")
    e("v_add_u32 v15, s38, v15")
    e("s_lshl_b32 s42, s30, 10")
    assert WS_KVB == 0
    def kvdma(n):
        l = []
        for _ in range(n):
            l.append("s_mov_b32 m0, s42")
            l.append("s_nop 0")
            l.append("buffer_load_dwordx4 v10, s[24:27], s42 offen sc1 lds")
            l.append("s_add_u32 s42, s42, 4096")
        return l
    out = []
    e("s_and_b32 s38, s30, 1")
    e("s_lshl_b32 s38, s38, 10")
    e(f"s_add_u32 m0, s38, {WPH}")
    e("s_lshl_b32 s39, s29, 11")
    e("s_add_u32 s38, s38, s39")
    e("buffer_load_dwordx4 v10, s[20:23], s38 offen lds")
    for i in range(DEP): out += [i] * 4
    out.append("w")
    nxt = DEP
    def waitfor(tag):
        idx = max(k for k, t in enumerate(out) if t == tag)
        n = len(out) - 1 - idx
        del out[:idx + 1]
        return f"s_waitcnt vmcnt({n})"
    PA = OPT.get("pa", 14)
    poll = "buffer_load_dwordx2 v[16:17], v15, s[24:27], 0 offen sc1"
    e.extend(trace(62))
    for i in range(18):
        e(waitfor(i))
        e.extend(trace(2 * i))
        e("s_barrier")
        e.extend(trace(2 * i + 1))
        if i == 0:
            e.extend(stamp(0))
        if i == 8:
            e("s_waitcnt lgkmcnt(0)")
            e("s_add_u32 s78, s78, 1")
        while nxt <= min(19, i + DEP) and earliest(nxt) <= i:
            e.extend(item(nxt)); out += [nxt] * 4; nxt += 1
        assert nxt > i + 1
        if i == PA:
            e(poll); out.append("p")
    if "p" in out: e(waitfor("p"))
    e("v_cmp_ne_u64 vcc, s[78:79], v[16:17]")
    e("s_cbranch_vccnz L_kvlate")
    save = list(out)
    e.extend(kvdma(4)); out += ["k0"] * 4
    if 18 in out: e(waitfor(18))
    e("s_barrier")
    e.extend(kvdma(4)); out += ["k1"] * 4
    if 19 in out: e(waitfor(19))
    e("s_barrier")
    e.extend(kvdma(4)); out += ["k2"] * 4
    e.label("L_kv20")
    e("s_waitcnt vmcnt(4)")
    e("s_barrier")
    e("s_branch L_kvjoin")
    e.label("L_kvlate")
    out[:] = save
    e(poll); out.append("p")
    if 18 in out: e(waitfor(18))
    e("s_barrier")
    if 19 in out: e(waitfor(19))
    e("s_barrier")
    e("s_waitcnt vmcnt(0)")
    e("v_cmp_ne_u64 vcc, s[78:79], v[16:17]")
    e("s_cbranch_vccz L_kvlate2")
    flag_poll(e, 15, 16, sleep=0)
    e.label("L_kvlate2")
    e.extend(kvdma(12))
    e("s_branch L_kv20")
    e.label("L_kvjoin")
    e.extend(stamp(1))
    e.extend(kvdma(20))
    HQ = 16; HK = 32; HG = 40; HT = 42; HD = 48; HP = 80
    for u in range(2): e(f"ds_read_b128 {vr(HQ+8*u,4)}, v154 offset:{u*1024}")
    for u in range(2): e(f"ds_read_b64_tr_b16 {vr(HK+2*u,2)}, v153 offset:{u*256}")
    e("s_lshl_b32 s38, s28, 4")
    e(f"s_add_u32 s38, s38, {FG}")
    e(f"v_and_b32 v{HT+4}, 8, v156")
    e(f"v_add_u32 v{HT+4}, s38, v{HT+4}")
    e("s_waitcnt vmcnt(0)")
    e.extend(trace(44))
    lds_add(e, C_KVALL, HT)
    if OPT.get("nohelp") == 1:
        lds_add(e, C_GOK, HT)
        e("s_barrier")
        stamp_end(e, 64)
        e("s_endpgm")
    e("s_lshl_b32 s45, s29, 2")
    e("s_lshl_b32 s36, s28, 7")
    e("s_add_u32 s36, s36, s45")
    e("s_add_u32 s36, s36, s30")
    e("s_lshl_b32 s36, s36, 10")
    e(f"s_add_u32 s36, s36, {WS_OC}")
    e(f"v_mov_b64 {vr(HD,2)}, -1")
    e(f"v_mov_b64 {vr(HD+2,2)}, -1")
    for i in range(4):
        e(f"s_add_u32 s38, s36, {i*32768}")
        e(f"buffer_store_dwordx4 {vr(HD,4)}, v10, s[24:27], s38 offen sc1")
    flag_poll(e, HT + 4, HT + 2)
    e("s_lshl_b32 s38, s28, 5")
    e("s_add_u32 s38, s38, s45")
    e("s_add_u32 s38, s38, s30")
    e("s_lshl_b32 s38, s38, 4")
    e(f"s_add_u32 s38, s38, {FP}")
    e(f"v_mov_b32 v{HD+4}, s78")
    e(f"v_mov_b32 v{HD+5}, s79")
    e(f"v_mov_b32 v{HD+6}, s37")
    e(f"v_mov_b32 v{HD+7}, 0")
    e("s_mov_b64 exec, 1")
    e(f"buffer_store_dwordx4 {vr(HD+4,4)}, v{HD+7}, s[24:27], s38 offen sc1")
    e("s_mov_b64 exec, -1")
    e("s_lshl_b32 s38, s28, 8")
    e(f"s_add_u32 s38, s38, {WS_GATE}")
    e(f"buffer_load_dword v{HG}, v155, s[24:27], s38 offen sc1")
    e(f"buffer_load_dword v{HG+1}, v155, s[24:27], s38 offen offset:128 sc1")
    e("s_waitcnt lgkmcnt(0)")
    for u in range(2): e(mfma(HD + 16 * u, HK, HQ + 8 * u, None))
    e.extend(interleave(*[phi_unit(HD + 16 * u, HP + 4 * u, HQ + 8 * u) for u in range(2)]))
    e(f"v_add_u32 v{HT}, {C_GATE}, v155")
    e("s_waitcnt vmcnt(0)")
    e(f"ds_write_b32 v{HT}, v{HG}")
    e(f"ds_write_b32 v{HT}, v{HG+1} offset:128")
    e("s_waitcnt lgkmcnt(0)")
    lds_add(e, C_GOK, HT)
    e.extend(trace(45))
    if OPT.get("nohelp") == 2:
        lds_add(e, C_GOK, HT)
        e("s_barrier")
        stamp_end(e, 64)
        e("s_endpgm")
    e("s_and_b32 s38, s28, 3")
    e("s_cmp_lg_u32 s38, s30")
    e("s_cbranch_scc1 L_nored")
    e("s_lshr_b32 s38, s28, 3")
    e("s_add_u32 s43, s45, s38")
    e("v_lshlrev_b32 v15, 1, v155")
    e("s_lshl_b32 s38, s43, 8")
    e(f"s_add_u32 s38, s38, {F3}")
    e(f"v_add_u32 v{HT}, s38, v15")
    flag_poll(e, HT, HT + 2)
    e.extend(trace(46))
    e("s_lshl_b32 s43, s43, 3")
    e("s_and_b32 s38, s28, 7")
    e("s_add_u32 s43, s43, s38")
    e("s_lshl_b32 s38, s43, 14")
    e(f"s_add_u32 s38, s38, {WS_PART}")
    for p in range(16):
        if p and p % 4 == 0: e("s_add_u32 s38, s38, 4096")
        e(f"buffer_load_dwordx4 {vr(HP+4*p,4)}, v10, s[24:27], s38 offen offset:{(p&3)*1024} sc1")
    e("s_waitcnt vmcnt(0)")
    e.extend(trace(47))
    for st in (32, 16, 8, 4):
        for i in range(0, st, 2): e(f"v_pk_add_f32 {vr(HP+i,2)}, {vr(HP+i,2)}, {vr(HP+st+i,2)}")
    e(f"v_permlane32_swap_b32 v{HP}, v{HP+2}")
    e(f"v_permlane32_swap_b32 v{HP+1}, v{HP+3}")
    e(f"v_pk_add_f32 {vr(HP,2)}, {vr(HP,2)}, {vr(HP+2,2)}")
    e(f"v_cvt_pk_bf16_f32 v{HP}, v{HP}, v{HP+1}")
    e(f"v_lshrrev_b32 v{HT}, 5, v1")
    e(f"v_lshl_add_u32 v{HT}, v{HT}, 2, v15")
    e("s_lshl_b32 s38, s43, 8")
    e(f"s_add_u32 s38, s38, {WS_KVF}")
    e(f"buffer_store_dword v{HP}, v{HT}, s[24:27], s38 offen sc1")
    e("s_lshl_b32 s38, s43, 3")
    e(f"s_add_u32 s38, s38, {F3P}")
    e("s_waitcnt vmcnt(0)")
    e.extend(trace(48))
    flag_store(e, "s38", HT)
    e.label("L_nored")
    e.extend(stamp(2))
    e("s_lshl_b32 s38, s28, 9")
    e(f"s_add_u32 s38, s38, {FP}")
    e("v_lshlrev_b32 v2, 2, v155")
    e("v_add_u32 v2, s38, v2")
    e("s_mov_b32 s77, 0")
    e("s_mov_b32 s35, 0")
    e.label("L_fpp")
    e(f"buffer_load_dwordx4 {vr(HD,4)}, v2, s[24:27], 0 offen sc1")
    e("s_add_u32 s77, s77, 1")
    e("s_waitcnt vmcnt(0)")
    e(f"v_cmp_ne_u64 vcc, s[78:79], {vr(HD,2)}")
    e("s_cbranch_vccz L_fpd")
    e(f"s_sleep {8 * OPT.get('slp', 1)}")
    e(f"s_cmp_lt_u32 s77, {OPT['spin']}")
    e("s_cbranch_scc1 L_fpp")
    e("s_branch L_fpx")
    e.label("L_fpd")
    if OPT.get("loc", 0):
        e(f"v_cmp_ne_u32 vcc, s37, v{HD+2}")
        e("s_cbranch_vccnz L_fpx")
        lds_add(e, C_LOC, HT)
        e("s_mov_b32 s35, 1")
    e.label("L_fpx")
    e.extend(trace(57))
    e("s_add_u32 s45, s45, s30")
    e("s_lshl_b32 s38, s45, 6")
    e(f"s_add_u32 s38, s38, {F3P}")
    e(f"v_and_b32 v{HT}, 56, v156")
    e(f"v_add_u32 v{HT}, s38, v{HT}")
    flag_poll(e, HT, HT + 2)
    e.extend(trace(49))
    e("s_lshl_b32 s38, s45, 11")
    e(f"s_add_u32 s38, s38, {WS_KVF}")
    for q in range(4):
        e(f"buffer_load_dwordx2 {vr(HK+2*q,2)}, v156, s[24:27], s38 offen offset:{q*512} sc1")
    e("s_waitcnt vmcnt(0)")
    e.extend(trace(50))
    for u in range(2): e(mfma(HD + 16 * u, HK, HQ + 8 * u, None))
    for u in range(2): e(mfma(HD + 16 * u, HK + 4, HQ + 8 * u + 4, HD + 16 * u))
    for u in range(2):
        D = HD + 16 * u
        e(f"v_add_f32 v{HT}, {fbits(1e-6)}, v{D+8}")
        e(f"v_rcp_f32 v{HT}, v{HT}")
        e(f"v_mul_f32 v{HT}, v{HT}, v{HG+u}")
        for i in range(0, 8, 2): e(f"v_pk_mul_f32 {vr(D+i,2)}, {vr(D+i,2)}, {vr(HT,2)} op_sel_hi:[1,0]")
        for q in range(4): e(f"v_cvt_pk_bf16_f32 v{D+q}, v{D+2*q}, v{D+2*q+1}")
    e("s_add_u32 s38, s36, 65536")
    e(f"buffer_store_dwordx4 {vr(HD,4)}, v10, s[24:27], s36 offen sc1")
    e(f"buffer_store_dwordx4 {vr(HD+16,4)}, v10, s[24:27], s38 offen sc1")
    e.extend(trace(51))
    e.extend(stamp(3))
    if OPT.get("nohelp") == 3:
        lds_add(e, C_GOK, HT)
        e("s_barrier")
        stamp_end(e, 64)
        e("s_endpgm")
    ACC = [16, 32]; WFR = [48, 56, 132]; OF = 64; PT = 128
    srd(e, 4, 54, 512*512*2)
    srd(e, 8, 64, 512*512*2)
    srd(e, 12, 68, 2048*512*2)
    e("s_lshl_b32 s44, s28, 1")
    e("s_add_u32 s44, s44, s46")
    e("s_lshl_b32 s43, s44, 16")
    e("s_lshl_b32 s38, s47, 14")
    e("s_add_u32 s43, s43, s38")
    e(f"s_add_u32 s43, s43, {WS_OC}")
    def wdma(sd):
        e("s_lshl_b32 s38, s30, 17")
        e("s_lshl_b32 s39, s29, 7")
        e("s_add_u32 s38, s38, s39")
        e("s_lshl_b32 s39, s30, 14")
        for g in range(4):
            e("s_mov_b32 m0, s39")
            for k in range(4):
                e(f"buffer_load_dwordx4 v{144+k}, s[{sd}:{sd+3}], s38 offen offset:{k*1024} lds")
            if g < 3:
                e("s_add_u32 s38, s38, 32768")
                e("s_add_u32 s39, s39, 4096")
    def oload(base_add, g0=0, g1=4):
        for g in range(g0, g1):
            e(f"s_add_u32 s38, s43, {base_add + g*4096}")
            for t in range(4 * g, 4 * g + 4):
                e(f"buffer_load_dwordx4 {vr(OF+4*t,4)}, v10, s[24:27], s38 offen offset:{(t&3)*1024} sc1")
    WA = [148]
    def rd(t):
        return [f"ds_read_b64_tr_b16 {vr(WFR[t%3]+4*nt+2*u,2)}, v{WA[0]+nt} offset:{(16*t+8*u)*128}" for nt in range(2) for u in range(2)]
    def step(t, first, fill=[]):
        if t < 14: e.extend(rd(t + 2))
        e(f"s_waitcnt lgkmcnt({4*min(2, 15-t)})")
        for nt in ((1, 0) if t == 15 else (0, 1)):
            e(mfma(ACC[nt], WFR[t % 3] + 4 * nt, OF + 4 * t, None if (first and t == 0) else ACC[nt]))
            e.extend(fill[nt * 5:nt * 5 + 5])
    def check(g):
        b = OF + 16 * g
        l = [f"v_max3_u32 v{PT}, v{b}, v{b+1}, v{b+2}", f"v_max3_u32 v{PT+1}, v{b+3}, v{b+4}, v{b+5}"]
        for i in (6, 10):
            l += [f"v_max3_u32 v{PT}, v{PT}, v{b+i}, v{b+i+1}", f"v_max3_u32 v{PT+1}, v{PT+1}, v{b+i+2}, v{b+i+3}"]
        l += [f"v_max3_u32 v{PT}, v{PT}, v{b+14}, v{b+15}", f"v_max_u32 v{PT}, v{PT}, v{PT+1}", f"v_cmp_eq_u32 vcc, -1, v{PT}"]
        return l
    NG = OPT.get("ng", 2)
    def pgemm(tag, first, pace, base):
        e(f"s_waitcnt vmcnt({4*(NG-1)})")
        e.extend(check(0))
        for g in range(4):
            e(f"s_cbranch_vccnz L_retry{tag}{g}")
            e.label(f"L_go{tag}{g}")
            if g == 0 and not first: e.extend(trace(40))
            for t in range(4 * g, 4 * g + 4):
                if t % 4 == 3 and g < 3: step(t, first, [f"s_waitcnt vmcnt({4*(min(4, g+1+NG)-g-2)})"] + check(g + 1))
                else: step(t, first)
                if t % 4 == 0 and g + NG < 4: oload(base, g + NG, g + NG + 1)
                if pace: e(f"s_sleep {pace}")
    if OPT.get("late", 0):
        lds_wait(e, C_PROG, 8, PT, sleep=8)
        e.extend(trace(54))
        wdma(4)
        e("v_lshlrev_b32 v2, 10, v1")
        e("s_lshl_b32 s38, s30, 17")
        e("s_lshl_b32 s39, s29, 7")
        e("s_add_u32 s38, s38, s39")
        e("buffer_load_dword v3, v2, s[8:11], s38 offen")
        e("s_add_u32 s38, s38, 65536")
        e("buffer_load_dword v4, v2, s[8:11], s38 offen")
        e("s_mov_b32 s77, 0")
        e.label("L_apoll")
        oload(0)
        e("s_add_u32 s77, s77, 1")
        e("s_waitcnt vmcnt(0)")
        e(f"v_max3_u32 v{PT}, v{OF}, v{OF+1}, v{OF+2}")
        e(f"v_max3_u32 v{PT+1}, v{OF+3}, v{OF+4}, v{OF+5}")
        for i_ in range(6, 62, 4):
            e(f"v_max3_u32 v{PT}, v{PT}, v{OF+i_}, v{OF+i_+1}")
            e(f"v_max3_u32 v{PT+1}, v{PT+1}, v{OF+i_+2}, v{OF+i_+3}")
        e(f"v_max3_u32 v{PT}, v{PT}, v{OF+62}, v{OF+63}")
        e(f"v_max_u32 v{PT}, v{PT}, v{PT+1}")
        e(f"v_cmp_eq_u32 vcc, -1, v{PT}")
        e("s_cbranch_vccz L_aready")
        e("s_sleep 32")
        e(f"s_cmp_lt_u32 s77, {OPT['spin']}")
        e("s_cbranch_scc1 L_apoll")
        e.label("L_aready")
        lds_add(e, C_HS, PT)
        lds_wait(e, C_HS, 4, PT)
        e.extend(trace(55))
        e.extend(rd(0) + rd(1))
        e("v_add_u32 v2, 0x10000, v148")
        e("v_add_u32 v3, 0x10000, v149")
        e("s_lshl_b32 s36, s44, 15")
        e("s_lshl_b32 s39, s29, 7")
        e("s_add_u32 s36, s36, s39")
        e("s_lshl_b32 s39, s47, 6")
        e("s_add_u32 s36, s36, s39")
        e("s_lshl_b32 s38, s30, 17")
        e("s_lshl_b32 s39, s29, 7")
        e("s_add_u32 s38, s38, s39")
        e("s_lshl_b32 s39, s30, 14")
        e("s_add_u32 s39, s39, 0x10000")
        e.extend(stamp(4))
        if OPT["late"] == 1: lds_wait(e, C_DONE, 8, PT, sleep=OPT.get("dsleep", 2))
        else: e("s_barrier")
        e.extend(trace(56))
        nd = 0; OE = OPT.get("oe", 16)
        for t in range(16):
            for _ in range(0 if OPT["late"] == 3 else OPT.get("fl", (1,) * 16)[t] if t < len(OPT.get("fl", (1,) * 16)) else 0):
                if nd % 4 == 0: e("s_mov_b32 m0, s39")
                e(f"buffer_load_dwordx4 v{144+nd%4}, s[8:11], s38 offen offset:{(nd%4)*1024} lds")
                if nd % 4 == 3:
                    e("s_add_u32 s38, s38, 32768"); e("s_add_u32 s39, s39, 4096")
                nd += 1
            if t == OE: oload(32768, 0, NG)
            step(t, True)
        assert nd == 16 or OPT["late"] == 3
        e.extend(trace(58))
        WA[0] = 2
        e("s_mov_b32 s77, 0")
        if OE > 15: oload(32768, 0, NG)
        e(f"s_waitcnt vmcnt({4*NG})")
        e("s_barrier")
    else:
        lds_wait(e, C_PROG, 8, PT, sleep=8)
        e.extend(trace(54))
        wdma(4)
        oload(0, 0, NG)
        e(f"s_waitcnt vmcnt({4*NG})")
        lds_add(e, C_HS, PT)
        lds_wait(e, C_HS, 4, PT)
        e.extend(trace(55))
        e.extend(rd(0) + rd(1))
        e("s_mov_b32 s77, 0")
        e(f"s_setprio {OPT.get('aprio', 2)}")
        pgemm("A", True, OPT.get("pace", 0), 0)
        e("s_setprio 3")
        e.extend(trace(56))
        lds_add(e, C_HS, PT)
        lds_wait(e, C_HS, 8, PT)
        e.extend(trace(58))
        wdma(8)
        e("s_lshl_b32 s36, s44, 15")
        e("s_lshl_b32 s39, s29, 7")
        e("s_add_u32 s36, s36, s39")
        e("s_lshl_b32 s39, s47, 6")
        e("s_add_u32 s36, s36, s39")
        e("s_mov_b32 s77, 0")
        e("s_waitcnt vmcnt(0)")
        e.extend(stamp(4))
        e("s_barrier")
    e.extend(stamp(5))
    if not OPT.get("late", 0): oload(32768, 0, NG)
    e.extend(rd(0) + rd(1))
    pgemm("B", False, 0, 32768)
    e.extend(trace(42))
    if OPT.get("trace"): e("v_writelane_b32 v159, s77, 41")
    for q in range(4): e(f"ds_write_b128 v150, {vr(ACC[1]+4*q,4)} offset:{q*1024}")
    e("s_waitcnt lgkmcnt(0)")
    e("s_barrier")
    for q in range(4): e(f"ds_read_b128 {vr(OF+4*q,4)}, v151 offset:{q*1024}")
    A = ACC[0]
    for pr in range(2):
        e(f"s_waitcnt lgkmcnt({2-2*pr})")
        for i in range(8 * pr, 8 * pr + 8, 2): e(f"v_pk_add_f32 {vr(A+i,2)}, {vr(A+i,2)}, {vr(OF+i,2)}")
        for q in range(4): e(f"v_cvt_pk_bf16_f32 v{A+8*pr+q}, v{A+8*pr+2*q}, v{A+8*pr+2*q+1}")
    for pr in range(2):
        e(f"v_permlane32_swap_b32 v{A+8*pr}, v{A+8*pr+2}")
        e(f"v_permlane32_swap_b32 v{A+8*pr+1}, v{A+8*pr+3}")
    for pr in range(2):
        e(f"buffer_store_dwordx4 {vr(A+8*pr,4)}, v152, s[12:15], s36 offen offset:{pr*32}" + ["", " sc1", " nt", " sc0 sc1"][OPT.get("ost", 0)])
    e.extend(trace(43))
    e("s_or_b32 s38, s2, s30")
    e("s_cbranch_scc1 L_noepoch")
    e(f"s_mov_b32 s38, {WS_EPOCH}")
    flag_store(e, "s38", PT)
    e.label("L_noepoch")
    stamp_end(e, 64)
    e.label("L_done")
    e("s_endpgm")
    for tag, base in ((("B", 32768),) if OPT.get("late", 0) else (("A", 0), ("B", 32768))):
        for g in range(4):
            e.label(f"L_retry{tag}{g}")
            if tag == "A": e("s_sleep 8")
            oload(base, g, min(4, g + NG))
            e("s_add_u32 s77, s77, 1")
            e(f"s_waitcnt vmcnt({4*(min(4, g+NG)-g-1)})")
            e.extend(check(g))
            e(f"s_cbranch_vccz L_go{tag}{g}")
            e(f"s_cmp_lt_u32 s77, {OPT['spin']}")
            e(f"s_cbranch_scc1 L_retry{tag}{g}")
            e(f"s_branch L_go{tag}{g}")

    e.label("L_compute")
    ACC = 96; EACC = 128; WF = 144; I0 = 148; ONE = 156
    e("s_and_b32 s44, s30, 3")
    e("s_lshr_b32 s40, s30, 2")
    if OPT.get("pf", 0):
        e("s_cmp_lt_u32 s44, 3")
        e("s_movk_i32 s38, 1024")
        e("s_cselect_b32 s38, 3072, s38")
        e("v_mul_lo_u32 v30, v1, s38")
        e("s_add_u32 s39, s31, s40" if not OPT.get("pfs") else "s_mov_b32 s39, s31")
        e("s_and_b32 s39, s39, 7")
        e("s_mul_i32 s38, s38, s39")
        e("s_lshl_b32 s38, s38, 6")
        e("s_add_u32 s39, s44, 1")
        e("s_cmp_lt_u32 s44, 2")
        e("s_cselect_b32 s39, s39, 0")
        e("s_lshl_b32 s39, s39, 10")
        e("s_add_u32 s38, s38, s39")
        e("s_lshl_b32 s39, s29, 7")
        e("s_add_u32 s38, s38, s39")
        e("v_add_u32 v30, s38, v30")
        e("s_waitcnt lgkmcnt(0)")
        e("s_cmp_lt_u32 s44, 3")
        e("s_cselect_b32 s16, s50, s58")
        e("s_cselect_b32 s17, s51, s59")
        mask = {1: 0x0f, 2: 0xff, 3: 0x33, 4: 0x03, 5: 0}[OPT["pf"]]
        e(f"s_lshr_b32 s38, {mask}, s30")
        e("s_and_b32 s38, s38, 1")
        e("s_cbranch_scc0 L_nopf")
        e("global_load_dword v31, v30, s[16:17]")
        e.label("L_nopf")
    e("v_and_b32 v11, 31, v1")
    e("v_lshrrev_b32 v22, 5, v1")
    e("v_bfe_u32 v23, v1, 1, 3")
    e("v_xor_b32 v23, v23, v22")
    e("v_lshlrev_b32 v23, 4, v23")
    e("v_lshl_add_u32 v12, v11, 7, v23")
    e(f"v_add_u32 v12, {XT}, v12")
    for t in range(1, 4): e(f"v_xor_b32 v{12+t}, {32*t}, v12")
    su_w = ["v_lshrrev_b32 v22, 5, v1", "v_bfe_u32 v23, v1, 2, 2", "v_lshl_add_u32 v20, v22, 3, v23", "v_lshlrev_b32 v20, 7, v20",
            "v_bfe_u32 v23, v1, 3, 2", "v_xor_b32 v23, s44, v23", "v_lshl_add_u32 v20, v23, 5, v20", "v_bfe_u32 v24, v1, 4, 1",
            "v_lshl_add_u32 v20, v24, 13, v20", "v_and_b32 v23, 3, v1", "v_lshl_add_u32 v20, v23, 3, v20"]
    su_s = ["s_lshl_b32 s45, s29, 2", "s_add_u32 s45, s45, s44", "s_lshl_b32 s47, s28, 1", "s_xor_b32 s46, s40, 1",
            "s_add_u32 s47, s47, s46", "s_lshl_b32 s43, s47, 6", "s_add_u32 s43, s43, s45", "s_lshl_b32 s43, s43, 10",
            f"s_add_u32 s43, s43, {WS_OC+32*1024}",
            f"s_mov_b32 s74, {fbits(LOG2E)}", f"s_mov_b32 s75, {fbits(-LOG2E)}", f"s_mov_b32 s76, {fbits(0.25*LOG2E)}",
            "s_lshl_b32 s38, s44, 10", f"s_add_u32 s38, s38, {HND}", "v_add_u32 v28, s38, v10"]
    su_ws = ["s_waitcnt lgkmcnt(0)", f"s_load_dwordx2 s[78:79], s[72:73], {hex(WS_EPOCH)}",
             "s_mov_b32 s24, s72", "s_mov_b32 s25, s73", f"s_mov_b32 s26, {hex(WS_SIZE)}", "s_mov_b32 s27, 0x00020000"]
    su_ep = ["s_waitcnt lgkmcnt(0)", "s_add_u32 s78, s78, 1"]
    def su_id(n, I0):
        l = ["v_and_b32 v11, 31, v1", "v_lshrrev_b32 v22, 5, v1", "v_lshlrev_b32 v22, 2, v22", "v_sub_u32 v11, v11, v22",
             "v_mov_b32 v22, 0x3f80", "v_mov_b32 v23, 0x3f800000"]
        for sgn in range(n):
            for q in range(4):
                f0 = 16 * sgn + (2 * q if q < 2 else 8 + 2 * (q - 2))
                l += [f"v_cmp_eq_u32 vcc, {f0}, v11", f"v_cmp_eq_u32 s[38:39], {f0+1}, v11",
                      f"v_cndmask_b32 v{I0+4*sgn+q}, 0, v22, vcc", f"v_cndmask_b32 v{I0+4*sgn+q}, v{I0+4*sgn+q}, v23, s[38:39]"]
        return l
    Q = 4; NM = 8; O = 24; S = [40, 56]; PK = 72; KF = [80, 84]; VF = [144, 152]; AK = 2; AV = 3; T = 106
    U = 4; NIT = 16
    SEG = OPT.get("seg", (2, 8, 15, 16))
    ATT_SETUP = [f"v_mov_b32 v{AK}, v10", f"v_lshrrev_b32 v{T}, 5, v1", f"v_and_b32 v{AV}, 15, v1", f"v_lshlrev_b32 v{AV}, 4, v{AV}",
                 f"v_lshl_add_u32 v{AV}, v{T}, 8, v{AV}", f"v_add_u32 v{AV}, 1024, v{AV}", f"v_and_b32 v{T}, 27, v1",
                 f"v_mov_b32 v{T+1}, 0x3f803f80", f"v_cmp_eq_u32 vcc, 16, v{T}", "s_mov_b32 s20, 0xffff", "s_mov_b32 s21, 0xffff",
                 f"v_cndmask_b32 v{VF[0]}, 0, v{T+1}, vcc"] + [f"v_mov_b32 v{VF[0]+1}, v{VF[0]}"] + [f"v_mov_b64 {vr(VF[0]+i,2)}, {vr(VF[0],2)}" for i in range(2, 16, 2)] + \
                [f"s_mov_b32 s22, {SEG[0]}", "s_mov_b32 s23, 0"]
    def fr(buf, t):
        if buf == 0:
            b = 32 + 12 * t; return (b, b + 4, b + 8)
        return [(80, 84, 88), (128, 132, 136), (92, 140, 16), (4, 160, 164)][t]
    def reads(buf, g):
        l = []; p = g % 8; so = SLOT[g] & 0xffff; wa = 21 if g == 8 else 20
        for t in range(4):
            xa, xb, w = fr(buf, t)
            l.append(f"ds_read_b128 {vr(xa,4)}, v{12+t} offset:{p*8192}")
            for u in range(2):
                l.append(f"ds_read_b64_tr_b16 {vr(w+2*u,2)}, v{wa} offset:{so+(16*t+4*u)*128}")
            l.append(f"ds_read_b128 {vr(xb,4)}, v{12+t} offset:{p*8192+4096}")
        return l
    def mfmas(buf, first):
        l = []
        for t in range(4):
            xa, xb, w = fr(buf, t); z = first and t == 0
            l.append(mfma(ACC, w, xa, None if z else ACC))
            l.append(mfma(ACC + 16, w, xb, None if z else ACC + 16))
        return l
    def gpass(g0, first, last, extra={}):
        pend = None; NS = OPT.get("gspread", 5)
        for i in range(first, last + 1):
            e("s_barrier")
            mm = mfmas(pend & 1, pend == 0) if pend is not None else []
            todo = None
            for c in range(8):
                if USE[g0 + c] == i: todo = c
            if todo is not None:
                r = reads(todo & 1, g0 + todo)
                e.extend(spread(mm[:NS], r) + mm[NS:] if mm else r)
                e.extend(extra.get(i, []))
                e("s_waitcnt lgkmcnt(0)")
            else:
                e.extend(mm)
                e.extend(extra.get(i, []))
            pend = todo
        if pend is not None and g0 == 0: e.extend(mfmas(pend & 1, False))
    PU = [32, 48]; PH = [64, 72]; TM = [80, 84]; VFR = [88, 92]
    e("s_cmp_lg_u32 s40, 0")
    e("s_cbranch_scc1 L_qwave")
    e(f"v_mov_b32 v26, {MISC}")
    for i in range(4): e(f"v_mov_b32 v{32+i}, 0")
    e("ds_write_b128 v26, v[32:35]")
    e("ds_write_b128 v26, v[32:35] offset:16")
    e.extend(su_w)
    e.extend(su_ws)
    wph = ["v_and_b32 v23, 15, v1", "v_lshlrev_b32 v23, 3, v23", "v_lshrrev_b32 v22, 5, v1", "v_lshl_add_u32 v25, v22, 7, v23",
           "s_lshl_b32 s38, s44, 9", f"s_add_u32 s38, s38, {WPH}", "v_add_u32 v25, s38, v25"]
    wpr = [f"ds_read_b64_tr_b16 {vr(WF+2*u,2)}, v25 offset:{u*256}" for u in range(2)]
    one = ["v_bfe_u32 v24, v1, 4, 1", f"v_mul_u32_u24 v{ONE}, 0x3f80, v24", f"v_lshl_or_b32 v{ONE}, v{ONE}, 16, v{ONE}"]
    xs = [i for i in range(8) if i not in USE.values() or i == USE[8] and i not in [USE[c] for c in range(8)]]
    idl = su_id(2, I0)
    KEND = USE[7] + 1
    kx = {xs[0]: su_s + wph, xs[1]: idl[:22], xs[2]: idl[22:] + one, xs[3]: su_ep + stamp(0), 9: wpr}
    if "pf8" in OPT:
        kx[OPT["pf8"]] = ["s_cmp_lt_u32 s44, 2", "s_cbranch_scc1 L_nopf8", "global_load_dword v31, v30, s[16:17]", "L_nopf8:"] + kx.get(OPT["pf8"], [])
    gpass(0, 0, KEND, kx)
    e.extend(stamp(1))
    k = []
    for u in range(2):
        for q in range(4): k.append(f"v_cvt_pk_bf16_f32 v{PH[u]+q}, v{ACC+16*u+2*q}, v{ACC+16*u+2*q+1}")
    for u in range(2): k.append(mfma(PU[u], WF, PH[u], None))
    for u in range(2):
        a = ACC + 16 * u
        for q in range(4): k.append(f"v_cvt_pk_bf16_f32 v{VFR[u]+q}, v{a+8+2*q}, v{a+8+2*q+1}")
    for u in range(2): k.append(mfma(ACC + 16 * u, VFR[u], I0, None))
    k += interleave(*[phi_unit(PU[u], TM[u], PH[u]) for u in range(2)])
    for u in range(2): k.append(mfma(PU[u], PH[u], I0, None))
    for u in range(2): k.append(mfma(PU[u], PH[u] + 4, I0 + 4, PU[u]))
    for u in range(2):
        a = ACC + 16 * u
        for q in range(8): k.append(f"v_cvt_pk_bf16_f32 v{a+q}, v{a+2*q}, v{a+2*q+1}")
        for q in range(8): k.append(f"v_or_b32 v{a+q}, v{a+q}, v{ONE}")
    for u in range(2):
        for q in range(8): k.append(f"v_cvt_pk_bf16_f32 v{PH[u]+q}, v{PU[u]+2*q}, v{PU[u]+2*q+1}")
    D3 = EACC
    for u in range(2):
        k.append(mfma(D3, PH[u], ACC + 16 * u, None if u == 0 else D3))
        k.append(mfma(D3, PH[u] + 4, ACC + 16 * u + 4, D3))
    PST = ["v_and_b32 v112, 31, v1", "v_lshlrev_b32 v112, 4, v112", "v_lshrrev_b32 v113, 5, v1", "v_lshl_add_u32 v112, v113, 14, v112",
          "s_lshl_b32 s38, s45, 17", "s_lshl_b32 s39, s28, 9", "s_add_u32 s38, s38, s39", f"s_add_u32 s38, s38, {WS_PART}"]
    for q in range(4):
        PST.append(f"buffer_store_dwordx4 {vr(D3+4*q,4)}, v112, s[24:27], s38 offen sc1")
        if q < 3: PST.append("s_add_u32 s38, s38, 32768")
    DEFER = OPT.get("defer", 1)
    if not DEFER: k += PST
    if not OPT.get("pk", 1): k = unpk(k)
    k = [x.strip() for x in fix_hazards(k, pre=mfmas(1, False))]
    def cost(x):
        if "mfma" in x: return 48
        if "v_exp" in x or "v_rcp" in x: return 8
        if "s_nop" in x: return 4 * (int(x.split()[1]) + 1)
        return 4
    NB = 20 - KEND
    acc = 260; nb = 0; LIM = OPT.get("klim", 140)
    for x in k:
        if nb < NB and acc + cost(x) > (LIM if nb < NB - 1 else OPT.get("klast", 300)):
            e("s_barrier"); nb += 1; acc = 0
            if nb == NB:
                e.extend(stamp(2)); e("s_setprio 2")
        e(x); acc += cost(x)
    while nb < NB:
        e("s_barrier"); nb += 1
    e("ds_read_b128 v[4:7], v28")
    e.extend(ATT_SETUP)
    e("s_branch L_attn")
    e.label("L_qwave")
    e.extend(su_w)
    e.extend(su_s)
    e.extend(ATT_SETUP)
    e("s_lshl_b32 s38, s44, 11")
    e(f"s_add_u32 s38, s38, {PHQ}")
    e("v_add_u32 v29, s38, v10")
    e("s_mov_b32 s41, 0")
    e.extend([x for x in su_ws if "s_load" not in x])
    e("s_cmp_eq_u32 s30, 6")
    e("s_cbranch_scc1 L_touch")
    e("s_cmp_eq_u32 s30, 7")
    e("s_cbranch_scc1 L_touch7")
    e("s_cmp_gt_u32 s3, 2")
    e("s_cbranch_scc1 L_qidle")
    e("s_lshl_b32 s38, s44, 12")
    for t in range(4): e(f"v_add_u32 v{16+t}, s38, v{12+t}")
    e("v_and_b32 v23, 15, v1")
    e("v_lshlrev_b32 v23, 3, v23")
    e("v_lshl_add_u32 v26, v22, 8, v23")
    e("v_lshlrev_b32 v27, 4, v22")
    e("s_lshl_b32 s42, s28, 1")
    e("s_add_u32 s42, s42, s44")
    e("s_cmp_eq_u32 s3, 2")
    e("s_cbranch_scc1 L_qgate")
    def extloop(gate):
        nbar = 0
        if not gate: e.extend(su_id(1, 160))
        def xr(p):
            B = 32 + 32 * (p % 3); va = 21 if p % 2 == 0 else 25
            l = [f"s_lshl_b32 s38, s31, {7 if gate else 11}", f"v_add_u32 v{va}, s38, v{27 if gate else 26}",
                 "s_add_u32 s31, s31, 1", "s_and_b32 s31, s31, 7"]
            r = []
            for t in range(4):
                r.append(f"ds_read_b128 {vr(B+8*t,4)}, v{16+t} offset:{p*8192}")
                if gate: r.append(f"ds_read_b128 {vr(B+8*t+4,4)}, v{va} offset:{t*32}")
                else:
                    for u in range(2): r.append(f"ds_read_b64_tr_b16 {vr(B+8*t+4+2*u,2)}, v{va} offset:{t*512+u*128}")
            return l, r
        def xm(p):
            B = 32 + 32 * (p % 3)
            return [mfma(EACC, B + 8 * t + 4, B + 8 * t, None if (p == 0 and t == 0) else EACC) for t in range(4)]
        n = 8 if gate else 12
        for p in range(0, 8, 2):
            a0, r0 = xr(p); a1, r1 = xr(p + 1)
            e.extend(a0 + a1)
            while nbar <= POS[f"x{p//2}"]:
                e("s_barrier"); nbar += 1
            e.extend(spread(xm(p - 1)[:3], r0 + r1) + xm(p - 1)[3:] if p else r0 + r1)
            e(f"s_waitcnt lgkmcnt({n})")
            e.extend(xm(p))
            e("s_waitcnt lgkmcnt(0)")
        while nbar <= XL + 1:
            e("s_barrier"); nbar += 1
        e.extend(xm(7))
        if OPT.get("xp", 0): e("s_setprio 3")
    extloop(False)
    for q in range(4): e(f"v_cvt_pk_bf16_f32 v{EACC+q}, v{EACC+2*q}, v{EACC+2*q+1}")
    e("s_lshl_b32 s38, s42, 11")
    e("s_lshl_b32 s41, s44, 1")
    e("s_add_u32 s41, s41, s3")
    e("s_lshl_b32 s41, s41, 5")
    e("s_add_u32 s41, s41, s28")
    e(f"s_lshl_b32 s41, s41, {FS}")
    e(f"s_add_u32 s41, s41, {F1}")
    e("s_cmp_eq_u32 s3, 1")
    e("s_cbranch_scc1 L_qv")
    e(f"buffer_store_dwordx4 {vr(EACC,4)}, v10, s[24:27], s38 offen sc1")
    e("s_branch L_q5")
    e.label("L_qv")
    e("s_nop 1")
    e(mfma(32, EACC, 160, None))
    e("v_lshrrev_b32 v11, 5, v1")
    e("v_and_b32 v22, 15, v1")
    e("v_lshlrev_b32 v22, 4, v22")
    e("v_lshl_add_u32 v22, v11, 8, v22")
    for q in range(8): e(f"v_cvt_pk_bf16_f32 v{EACC+8+q}, v{32+2*q}, v{32+2*q+1}")
    e("s_mov_b32 exec_lo, 0xffff")
    e("s_mov_b32 exec_hi, 0xffff")
    e(f"buffer_store_dwordx4 {vr(EACC+8,4)}, v22, s[24:27], s38 offen offset:1024 sc1")
    e(f"buffer_store_dwordx4 {vr(EACC+12,4)}, v22, s[24:27], s38 offen offset:1536 sc1")
    e("s_mov_b64 exec, -1")
    e("s_branch L_q5")
    e.label("L_qgate")
    extloop(True)
    e(f"v_cvt_pk_bf16_f32 v11, v{EACC}, v{EACC}")
    e("v_and_b32 v11, 0xffff0000, v11")
    e("v_mul_f32 v11, s75, v11")
    e("v_exp_f32 v11, v11")
    e("v_add_f32 v11, 1.0, v11")
    e("v_rcp_f32 v11, v11")
    e("v_cvt_pk_bf16_f32 v11, v11, v11")
    e("v_and_b32 v11, 0xffff0000, v11")
    e("v_lshlrev_b32 v22, 2, v1")
    e("s_lshl_b32 s38, s42, 7")
    e(f"s_add_u32 s38, s38, {WS_GATE}")
    e("s_lshl_b32 s41, s42, 3")
    e(f"s_add_u32 s41, s41, {FG}")
    e("s_mov_b32 exec_hi, 0")
    e("buffer_store_dword v11, v22, s[24:27], s38 offen sc1")
    e("s_mov_b64 exec, -1")
    e("s_branch L_q5")
    SPF = OPT.get("spf", 0)
    FSTEP = XL + OPT.get("flat", 4)
    for wv in (6, 7):
        e.label("L_touch" if wv == 6 else "L_touch7")
        if OPT.get("pfs") and wv == 7:
            a0, st_ = OPT["pfs"]
            e("s_and_b32 s38, s29, 3")
            for i in range(FSTEP + 1):
                e("s_barrier")
                if i >= a0 and (i - a0) % st_ == 0 and (i - a0) // st_ < 4:
                    e(f"s_cmp_eq_u32 s38, {(i - a0) // st_}")
                    e(f"s_cbranch_scc0 L_pfs{i}")
                    e("global_load_dword v31, v30, s[16:17]")
                    e.label(f"L_pfs{i}")
            e(f"v_add_u32 v21, {S5}, v20")
            e("s_branch L_noflag")
        if SPF:
            pitch = 3072 if wv == 6 else 1024; p = 50 if wv == 6 else 58
            for ch in range(2):
                e(f"s_add_u32 s38, s31, {ch}")
                e("s_and_b32 s38, s38, 7")
                e(f"s_mul_i32 s38, s38, {64*pitch}")
                e("s_lshl_b32 s39, s29, 7")
                e("s_add_u32 s38, s38, s39")
                e(f"s_add_u32 s{4+2*ch}, s{p}, s38")
                e(f"s_addc_u32 s{5+2*ch}, s{p+1}, 0")
            ld = [f"s_load_dword s{8+(r&7)}, s[{4+2*(r>>6)}:{5+2*(r>>6)}], {(r&63)*pitch}" for r in range(64 * SPF)]
            n0 = OPT.get("spf0", 24); n1 = OPT.get("spf1", 5)
            e.extend(ld[:n0]); k_ = n0
            for i in range(FSTEP + 1):
                e("s_barrier")
                e.extend(ld[k_:k_ + n1]); k_ += n1
            e(f"v_add_u32 v21, {S5}, v20")
            e("s_branch L_noflag")
    e.label("L_qidle")
    for i in range(XL + 2): e("s_barrier")
    e.label("L_q5")
    e(su_ws[1])
    e(f"v_add_u32 v21, {S5}, v20")
    fl = Emitter()
    fl("s_cmp_eq_u32 s41, 0")
    fl("s_cbranch_scc1 L_noflag")
    fl.extend(su_ep)
    fl("s_waitcnt vmcnt(0)")
    flag_store(fl, "s41", 22)
    fl.label("L_noflag")
    gpass(8, XL + 2, 19, {FSTEP: fl.lines, USE[9] - 1: stamp(0) + ["s_setprio 1"]})
    mm = mfmas(1, False)
    def qconv(u):
        a = ACC + 16 * u; d = 76 if u else 68; l = []
        for i in range(8, 16, 2): l.append(f"v_pk_mul_f32 {vr(a+i,2)}, {vr(a+i,2)}, s[76:77] op_sel_hi:[1,0]")
        for q in range(4): l.append(f"v_cvt_pk_bf16_f32 v{(76 if u else 4)+q}, v{a+8+2*q}, v{a+8+2*q+1}")
        if u: l.append("ds_write_b128 v28, v[76:79]")
        for q in range(4): l.append(f"v_cvt_pk_bf16_f32 v{PH[u]+q}, v{a+2*q}, v{a+2*q+1}")
        l.append(f"ds_write_b128 v29, {vr(PH[u],4)} offset:{u*1024}")
        return l
    e.extend(mm[1::2] + mm[0:4:2])
    e("s_nop 7"); e("s_nop 1")
    c1 = unpk(qconv(1))
    e.extend(c1[:8] + [mm[4]] + c1[8:14] + [mm[6]] + c1[14:])
    e.extend(stamp(1))
    c0 = qconv(0)
    e.extend(c0[8:] + c0[:8])
    e("s_waitcnt lgkmcnt(0)")
    e.extend(stamp(2))
    e("s_barrier")
    e.label("L_attn")
    if OPT.get("rts"): e.extend(["s_memrealtime s[80:81]", "s_waitcnt lgkmcnt(0)", "s_sub_u32 s80, s80, s92", "s_add_u32 s80, s80, s94"])
    e.extend(stamp(3))
    e("s_setprio 2")
    e(f"ds_read_b128 {vr(KF[0],4)}, v{AK}")
    e(f"ds_read_b128 {vr(KF[1],4)}, v{AK} offset:2048")
    e("s_mov_b64 exec, s[20:21]")
    e(f"ds_read_b128 {vr(VF[0],4)}, v{AV}")
    e(f"ds_read_b128 {vr(VF[0]+4,4)}, v{AV} offset:512")
    e("s_mov_b64 exec, -1")
    for i in range(0, 16, 2): e(f"v_mov_b64 {vr(O+i,2)}, 0")
    for i in range(0, 4, 2): e(f"v_mov_b64 {vr(PK+4+i,2)}, 0")
    e("s_waitcnt lgkmcnt(0)")
    e(mfma(S[0], KF[0], Q, None))
    e(mfma(S[1], KF[1], Q, None))
    e(f"v_max3_f32 v{T}, v{S[0]}, v{S[0]+1}, v{S[0]+2}")
    e(f"v_max3_f32 v{T+1}, v{S[0]+3}, v{S[0]+4}, v{S[0]+5}")
    for i in range(6, 30, 4):
        e(f"v_max3_f32 v{T}, v{T}, v{S[0]+i}, v{S[0]+i+1}")
        e(f"v_max3_f32 v{T+1}, v{T+1}, v{S[0]+i+2}, v{S[0]+i+3}")
    e(f"v_max3_f32 v{T}, v{T}, v{S[0]+30}, v{S[0]+31}")
    e(f"v_max_f32 v{T}, v{T}, v{T+1}")
    def setnm():
        e(f"v_mov_b32 v{T+1}, v{T}")
        e(f"v_permlane32_swap_b32 v{T}, v{T+1}")
        e(f"v_max_f32 v{T}, v{T}, v{T+1}")
        for i in range(2): e(f"v_sub_f32 v{NM+i}, 0, v{T}")
        for i in range(2, 16, 2): e(f"v_mov_b64 {vr(NM+i,2)}, {vr(NM,2)}")
    setnm()
    e(mfma(S[0], KF[0], Q, NM))
    e("s_nop 7"); e("s_nop 1")
    body = Emitter()
    ex = lambda i: f"v_exp_f32 v{i}, v{i}"
    for j in range(U):
        a = j & 1; b = a ^ 1; Sa = S[a]
        cv = lambda q: f"v_cvt_pk_bf16_f32 v{PK+q}, v{Sa+2*q}, v{Sa+2*q+1}"
        body(mfma(S[b], KF[b], Q, NM))
        body(f"ds_read_b128 {vr(KF[a],4)}, v{AK} offset:{(j+2)*2048}")
        for i in range(7): body(ex(Sa + i))
        body(mfma(O, VF[b] + 4, PK + 4, O))
        body("s_mov_b64 exec, s[20:21]")
        body(f"ds_read_b128 {vr(VF[b],4)}, v{AV} offset:{(j+1)*2048}")
        body(f"ds_read_b128 {vr(VF[b]+4,4)}, v{AV} offset:{(j+1)*2048+512}")
        body("s_mov_b64 exec, -1")
        body(ex(Sa + 7)); body(ex(Sa + 8))
        for q in range(4): body(cv(q))
        body(ex(Sa + 9)); body(ex(Sa + 10))
        body("s_waitcnt lgkmcnt(3)")
        body(mfma(O, VF[a], PK, O))
        for i in range(11, 16): body(ex(Sa + i))
        if j == U - 1:
            body(f"v_add_u32 v{AK}, {U*2048}, v{AK}")
            body(f"v_add_u32 v{AV}, {U*2048}, v{AV}")
            body("s_add_u32 s23, s23, 1")
            body("s_cmp_lt_u32 s23, s22")
        for q in range(4, 8): body(cv(q))
        body("s_waitcnt lgkmcnt(2)")
    rep = []
    fix_hazards(body.lines, pre=body.lines, report=rep)
    assert not rep, rep
    e(".p2align 6")
    e.label("L_loop")
    if OPT.get("trace") == 3:
        e.extend(["s_memtime s[96:97]", "s_waitcnt lgkmcnt(0)", "s_sub_u32 s96, s96, s94", "s_lshl_b32 s97, s23, 1", "s_add_u32 m0, s97, 1", "v_writelane_b32 v111, s96, m0"])
    e.extend(body.lines)
    e("s_cbranch_scc1 L_loop")
    e(f"s_cmp_lg_u32 s22, {SEG[3]}")
    e("s_cbranch_scc1 L_seg")
    e(mfma(O, VF[1] + 4, PK + 4, O))
    if OPT.get("rts"): e.extend(["s_memrealtime s[82:83]", "s_waitcnt lgkmcnt(0)", "s_sub_u32 s82, s82, s92", "s_add_u32 s82, s82, s94"])
    e.extend(stamp(4))
    if OPT.get("loc", 0): e(f"ds_read_b32 v{T+4}, v{T+4}")
    if OPT.get("late", 0) == 1:
        e("s_mov_b64 exec, 1")
        e(f"ds_add_u32 v{T+6}, v{T+7}")
        e("s_mov_b64 exec, -1")
    e(f"v_lshlrev_b32 v{AK}, 4, v1")
    e(f"v_fma_f32 v{T+1}, v{O}, 0, v{O+8}")
    e(f"v_mul_f32 v{T+3}, 0, v{O+1}")
    e(f"v_rcp_f32 v{T}, v{O+8}")
    for i in range(2, 8): e(f"v_fma_f32 v{T+1+2*(i&1)}, v{O+i}, 0, v{T+1+2*(i&1)}")
    e(f"v_add_f32 v{T+1}, v{T+1}, v{T+3}")
    e(f"v_cmp_ngt_f32 vcc, s39, v{T+1}")
    e("s_cbranch_vccnz L_fallback")
    e.label("L_fin")
    e(f"v_mul_f32 v{T}, v{T}, v{T+2}")
    for i in range(0, 8, 2): e(f"v_pk_mul_f32 {vr(O+i,2)}, {vr(O+i,2)}, {vr(T,2)} op_sel_hi:[1,0]")
    for q in range(4): e(f"v_cvt_pk_bf16_f32 v{O+q}, v{O+2*q}, v{O+2*q+1}")
    if OPT.get("loc", 0):
        e("s_waitcnt lgkmcnt(0)")
        e(f"v_cmp_eq_u32 vcc, 0, v{T+4}")
        e("s_cbranch_vccnz L_far")
        e(f"buffer_store_dwordx4 {vr(O,4)}, v{AK}, s[24:27], s43 offen")
        if OPT.get("cbar", 1) & 1: e("s_barrier")
        if OPT["stamp"] == 1: e("s_branch L_cend")
        else: e("s_endpgm")
    e.label("L_far")
    e(f"buffer_store_dwordx4 {vr(O,4)}, v{AK}, s[24:27], s43 offen sc1")
    if OPT.get("cbar", 1) & 2 or OPT.get("late", 0) >= 2:
        e("s_waitcnt lgkmcnt(0)")
        e("s_barrier")
    if OPT.get("late", 0) == 3:
        for g in range(2):
            e(f"s_add_u32 m0, s33, {g*4096}")
            e(f"s_add_u32 s38, s32, {g*32768}")
            for k_ in range(4):
                e(f"buffer_load_dwordx4 v{114+k_}, s[4:7], s38 offen offset:{k_*1024} lds")
        e("s_waitcnt vmcnt(0)")
    e.label("L_cend")
    e.extend(stamp(5))
    if OPT.get("trace") == 3: e("v_mov_b32 v159, v111")
    if OPT["stamp"] == 1: stamp_end(e, 40)
    e("s_endpgm")
    e.label("L_seg")
    e(f"s_cmp_eq_u32 s22, {SEG[1]}")
    e("s_cbranch_scc1 L_seg1")
    e(f"s_cmp_gt_u32 s22, {SEG[1]}")
    e("s_cbranch_scc1 L_seg2")
    if DEFER:
        e(f"s_cmp_lg_u32 s22, {SEG[0]}")
        e("s_cbranch_scc1 L_segf")
        lds_wait(e, C_KVALL, 4, T, sleep=1)
        e(f"s_mov_b32 s22, {SEG[1]}")
        e("s_cmp_lg_u32 s40, 0")
        e("s_cbranch_scc1 L_loop")
        e.extend(PST)
        e(f"s_mov_b32 s22, {SEG[0] + OPT.get('fgap', 2)}")
        e("s_branch L_loop")
        e.label("L_segf")
    e(f"s_mov_b32 s22, {SEG[1]}")
    if not DEFER:
        e("s_cmp_lg_u32 s40, 0")
        e("s_cbranch_scc1 L_seg0b")
    e("s_lshl_b32 s38, s45, 5")
    e("s_add_u32 s38, s38, s28")
    e("s_lshl_b32 s38, s38, 3")
    e(f"s_add_u32 s38, s38, {F3}")
    e("s_waitcnt vmcnt(0)")
    flag_store(e, "s38", T)
    e.label("L_seg0b")
    if not DEFER: lds_wait(e, C_KVALL, 4, T, sleep=1)
    e("s_branch L_loop")
    e.label("L_seg1")
    e(f"s_mov_b32 s22, {SEG[2]}")
    lds_add(e, C_PROG, T)
    lds_wait(e, C_GOK, 4, T)
    e("s_lshl_b32 s38, s46, 7")
    e(f"s_add_u32 s38, s38, {C_GATE}")
    e(f"v_and_b32 v{T}, 31, v1")
    e(f"v_lshl_add_u32 v{T}, v{T}, 2, s38")
    e(f"ds_read_b32 v{T+2}, v{T}")
    if OPT.get("loc", 0): e(f"v_mov_b32 v{T+4}, {C_LOC}")
    if OPT.get("late", 0) == 1:
        e(f"v_mov_b32 v{T+6}, {C_DONE}")
        e(f"v_mov_b32 v{T+7}, 1")
    if OPT.get("late", 0) == 3:
        e("v_lshrrev_b32 v112, 2, v1")
        e("v_and_b32 v112, 4, v112")
        e("v_xor_b32 v112, v112, v1")
        e("v_and_b32 v112, 7, v112")
        e("v_lshlrev_b32 v112, 4, v112")
        e("v_lshrrev_b32 v113, 3, v1")
        e("v_lshl_add_u32 v114, v113, 10, v112")
        for k_ in range(1, 4): e(f"v_add_u32 v{114+k_}, {k_*7168}, v114")
        srd(e, 4, 64, 512*512*2)
        e("s_lshl_b32 s32, s30, 16")
        e("s_lshl_b32 s33, s29, 7")
        e("s_add_u32 s32, s32, s33")
        e("s_lshl_b32 s33, s30, 13")
        e("s_add_u32 s33, s33, 0x10000")
    e(f"s_mov_b32 s39, {fbits(2.0**120)}")
    e("s_waitcnt lgkmcnt(0)")
    e(f"v_sub_f32 v{T+2}, 1.0, v{T+2}")
    e(f"v_cvt_pk_bf16_f32 v{T+2}, v{T+2}, v{T+2}")
    e(f"v_and_b32 v{T+2}, 0xffff0000, v{T+2}")
    e("s_cmp_lg_u32 s40, 0")
    e("s_cbranch_scc1 L_loop")
    e("s_setprio 1")
    e(f"s_mov_b32 s22, {OPT.get('kdrop', 16)}")
    e("s_branch L_loop")
    e.label("L_seg2")
    e(f"s_mov_b32 s22, {SEG[3]}")
    e("s_setprio 1")
    e("s_cmp_lg_u32 s40, 0")
    e("s_cbranch_scc1 L_loop")
    e("s_setprio 0")
    e("s_branch L_loop")
    e.label("L_fallback")
    e("s_waitcnt lgkmcnt(0)")
    e(f"v_add_u32 v{AV}, {-64*2048 & 0xffffffff}, v{AV}")
    e(f"v_mov_b32 v{T}, 0xff800000")
    e("s_mov_b32 s38, 0")
    e.label("L_fb1")
    e(f"buffer_load_dwordx4 {vr(KF[0],4)}, v{AK}, s[24:27], s38 offen sc1")
    e("s_add_u32 s38, s38, 2048")
    e("s_waitcnt vmcnt(0)")
    e(mfma(S[0], KF[0], Q, None))
    for i in range(8): e(f"v_max3_f32 v{T}, v{T}, v{S[0]+2*i}, v{S[0]+2*i+1}")
    e("s_cmp_lt_u32 s38, 0x20000")
    e("s_cbranch_scc1 L_fb1")
    setnm()
    for i in range(16): e(f"v_mov_b32 v{O+i}, 0")
    e("s_mov_b32 s38, 0")
    e.label("L_fb2")
    e(f"buffer_load_dwordx4 {vr(KF[0],4)}, v{AK}, s[24:27], s38 offen sc1")
    e("s_mov_b64 exec, s[20:21]")
    e(f"buffer_load_dwordx4 {vr(VF[0],4)}, v{AV}, s[24:27], s38 offen sc1")
    e(f"buffer_load_dwordx4 {vr(VF[0]+4,4)}, v{AV}, s[24:27], s38 offen offset:512 sc1")
    e("s_mov_b64 exec, -1")
    e("s_add_u32 s38, s38, 2048")
    e("s_waitcnt vmcnt(0)")
    e(mfma(S[0], KF[0], Q, NM))
    for i in range(16): e(ex(S[0] + i))
    for q in range(8): e(f"v_cvt_pk_bf16_f32 v{PK+q}, v{S[0]+2*q}, v{S[0]+2*q+1}")
    e(mfma(O, VF[0], PK, O))
    e(mfma(O, VF[0] + 4, PK + 4, O))
    e("s_nop 7")
    e("s_cmp_lt_u32 s38, 0x20000")
    e("s_cbranch_scc1 L_fb2")
    e("s_nop 7"); e("s_nop 7")
    e(f"v_rcp_f32 v{T}, v{O+8}")
    e("s_branch L_fin")
    return fix_hazards(e.lines if OPT.get("pk", 1) else unpk(e.lines))

def build():
    hdr = open("cdna_kernels/%s.s.ref" % NAME).read().split("\n")
    hdr = [l for l in hdr if l.startswith(";") and "@launch" not in l]
    out = list(hdr)
    out.append(f"; @launch grid=(256,1,1) block=(768,1,1) lds={LDS_BYTES}")
    out.append('.amdgcn_target "amdgcn-amd-amdhsa--gfx950"')
    out.append(".text")
    k = NAME + "_kernel"
    out += [f".globl {k}", ".p2align 8", f".type {k},@function", f"{k}:"]
    out += gen()
    out.append('.section .rodata,"a"')
    out.append(f""".p2align 6
.amdhsa_kernel {k}
  .amdhsa_next_free_vgpr 168
  .amdhsa_next_free_sgpr {102 if OPT['stamp'] else 80}
  .amdhsa_accum_offset 168
  .amdhsa_group_segment_fixed_size 0
  .amdhsa_kernarg_size 104
  .amdhsa_user_sgpr_count 2
  .amdhsa_user_sgpr_kernarg_segment_ptr 1
  .amdhsa_system_sgpr_workgroup_id_x 1
.end_amdhsa_kernel
""")
    return "\n".join(out) + "\n"

if __name__ == "__main__":
    dst = "f.s"
    for a in sys.argv[1:]:
        k, v = a.split("=")
        if k == "out": dst = v
        elif "," in v: OPT[k] = tuple(int(x) for x in v.split(","))
        else: OPT[k] = int(v)
    open(dst, "w").write(build())
    print("wrote", dst)
```

```python
import sys, math, struct
from asmlib import *

NAME = "gated_mix__linear_kernel_hedgehog__grouped_kv_mqa__prompt"
WS_KVB  = 0x000000
WS_GATE = 0x020000
WS_FL   = 0x024000
F1 = WS_FL + 0x8000; FG = WS_FL + 0x400; F3 = WS_FL + 0x1000; F3P = WS_FL + 0x3000; F4 = WS_FL + 0x4000
WS_EPOCH = WS_FL + 0x800
FP = WS_FL + 0x4000
WS_KVF  = 0x030000
WS_PART = 0x100000
WS_OC   = 0x500000
WS_STAMP = 0x900000
WS_SIZE = 0xB00000
XT = 65536; EXT = 0; S5 = 131072; PHQ = 131072; HND = 147456; WPH = 155648; MISC = 157696
LDS_BYTES = 158720
C_KVALL = MISC; C_PROG = MISC + 4; C_HS = MISC + 8; C_GOK = MISC + 12; C_LOC = MISC + 16; C_DONE = MISC + 20; C_GATE = MISC + 64

def fbits(x): return "0x%08x" % struct.unpack("<I", struct.pack("<f", x))[0]
LOG2E = math.log2(math.e)
OPT = dict(map=1, rot=3, pf=0, dep=3, round_pq=0, stamp=0, spin=1 << 16)

def srd(e, d, lo, nbytes):
    e(f"s_mov_b32 s{d}, s{lo}")
    e(f"s_mov_b32 s{d+1}, s{lo+1}")
    e(f"s_mov_b32 s{d+2}, {hex(nbytes)}")
    e(f"s_mov_b32 s{d+3}, 0x00020000")

def stamp_begin(e):
    if OPT["stamp"]:
        e("s_memrealtime s[92:93]")
        e("s_memtime s[94:95]")
        for k in range(6): e(f"s_mov_b32 s{80+2*k}, 0")
def stamp(k):
    return [f"s_memtime s[{80+2*k}:{81+2*k}]"] if OPT["stamp"] else []
def trace(idx):
    if not OPT.get("trace"): return []
    return ["s_memtime s[96:97]", "s_waitcnt lgkmcnt(0)", "s_sub_u32 s96, s96, s94", f"v_writelane_b32 v159, s96, {idx}"]
def stamp_end(e, vt):
    if OPT.get("trace"):
        e(f"v_lshlrev_b32 v{vt}, 2, v0")
        e("s_mul_i32 s100, s2, 3072")
        e(f"s_add_u32 s100, s100, {WS_STAMP + 0x40000}")
        e(f"buffer_store_dword v159, v{vt}, s[24:27], s100 offen")
    if OPT["stamp"]:
        e("s_waitcnt vmcnt(0)")
        e("s_memrealtime s[96:97]")
        e("s_memtime s[98:99]")
        e("s_waitcnt lgkmcnt(0)")
        for r in (98, 80, 82, 84, 86, 88, 90): e(f"s_sub_u32 s{r}, s{r}, s94")
        e(f"v_lshrrev_b32 v{vt+12}, 6, v0")
        e(f"v_lshlrev_b32 v{vt+12}, 6, v{vt+12}")
        e("s_lshl_b32 s100, s2, 10")
        e(f"s_add_u32 s100, s100, {WS_STAMP}")
        for i, r in enumerate((92, 96, 98, 80, 82, 84, 86, 88, 90, 90, 90, 90)):
            e(f"v_mov_b32 v{vt+i}, s{r}")
        for q in range(3):
            e(f"buffer_store_dwordx4 v[{vt+4*q}:{vt+4*q+3}], v{vt+12}, s[24:27], s100 offen offset:{16*q}")

def phi_unit(P, T, O):
    l = []
    if OPT["round_pq"]:
        for q in range(4): l.append(f"v_cvt_pk_bf16_f32 v{P+8+q}, v{P+2*q}, v{P+2*q+1}")
        for q in range(4):
            l.append(f"v_lshlrev_b32 v{P+2*q}, 16, v{P+8+q}")
            l.append(f"v_and_b32 v{P+2*q+1}, 0xffff0000, v{P+8+q}")
    A = T; B = T + 2
    l += [f"v_max3_f32 v{A}, v{P}, v{P+1}, v{P+2}",
          f"v_max3_f32 v{B}, -v{P}, -v{P+1}, -v{P+2}",
          f"v_max3_f32 v{A}, v{A}, v{P+3}, v{P+4}",
          f"v_max3_f32 v{B}, v{B}, -v{P+3}, -v{P+4}",
          f"v_max3_f32 v{A}, v{A}, v{P+5}, v{P+6}",
          f"v_max3_f32 v{B}, v{B}, -v{P+5}, -v{P+6}",
          f"v_max_f32 v{A}, v{A}, v{P+7}",
          f"v_max_f32_e64 v{B}, v{B}, -v{P+7}",
          f"v_permlane32_swap_b32 v{A}, v{B}",
          f"v_max_f32 v{A}, v{A}, v{B}",
          f"v_mul_f32 v{A}, s75, v{A}",
          f"v_mov_b32 v{B}, v{A}",
          f"v_permlane32_swap_b32 v{A}, v{B}"]
    if OPT.get("pk", 1):
        for i in range(0, 8, 2):
            l.append(f"v_pk_fma_f32 {vr(P+8+i,2)}, {vr(P+i,2)}, s[74:75], {vr(B,2)} op_sel_hi:[1,0,0] neg_lo:[1,0,0] neg_hi:[1,0,0]")
            l.append(f"v_pk_fma_f32 {vr(P+i,2)}, {vr(P+i,2)}, s[74:75], {vr(A,2)} op_sel_hi:[1,0,0]")
    else:
        for i in range(8):
            l.append(f"v_fma_f32 v{P+8+i}, -v{P+i}, s74, v{B}")
            l.append(f"v_fma_f32 v{P+i}, v{P+i}, s74, v{A}")
    for i in range(16): l.append(f"v_exp_f32 v{P+i}, v{P+i}")
    for sg in range(2):
        l.append(f"v_pk_add_f32 {vr(O+4*sg,2)}, {vr(P+8*sg,2)}, {vr(P+8*sg+2,2)}")
        l.append(f"v_pk_add_f32 {vr(O+4*sg+2,2)}, {vr(P+8*sg+4,2)}, {vr(P+8*sg+6,2)}")
    for sg in range(2):
        l.append(f"v_pk_add_f32 {vr(O+4*sg,2)}, {vr(O+4*sg,2)}, {vr(O+4*sg+2,2)}")
    for sg in range(2):
        l.append(f"v_add_f32 v{T+2*sg}, v{O+4*sg}, v{O+4*sg+1}")
    l += [f"v_permlane32_swap_b32 v{A}, v{B}",
          f"v_add_f32 v{A}, v{A}, v{B}",
          f"v_rcp_f32 v{A}, v{A}",
          f"v_mov_b32 v{B}, v{A}",
          f"v_permlane32_swap_b32 v{A}, v{B}"]
    for i in range(0, 8, 2):
        l.append(f"v_pk_mul_f32 {vr(P+i,2)}, {vr(P+i,2)}, {vr(A,2)} op_sel_hi:[1,0]")
        l.append(f"v_pk_mul_f32 {vr(P+8+i,2)}, {vr(P+8+i,2)}, {vr(B,2)} op_sel_hi:[1,0]")
    for q in range(8): l.append(f"v_cvt_pk_bf16_f32 v{O+q}, v{P+2*q}, v{P+2*q+1}")
    return l

import re as _re
def unpk(lines):
    out = []
    for l in lines:
        m = _re.match(r"\s*v_pk_(add|mul)_f32 v\[(\d+):\d+\], v\[(\d+):\d+\], ([vs])\[(\d+):\d+\](.*)", l)
        if not m: out.append(l); continue
        op, d, a, k, b, mods = m.group(1), int(m.group(2)), int(m.group(3)), m.group(4), int(m.group(5)), m.group(6)
        bc = "op_sel_hi:[1,0]" in mods
        assert mods.strip() in ("", "op_sel_hi:[1,0]"), l
        for i in range(2):
            out.append(f"    v_{op}_f32 v{d+i}, {k}{b if bc else b+i}, v{a+i}")
    return out

def spread(mm, r):
    out = []; n = len(mm); k = 0
    for i, x in enumerate(mm):
        out.append(x)
        hi = (len(r) * (i + 1) + n - 1) // n
        out += r[k:hi]; k = max(k, hi)
    return out + r[k:]

_uid = [0]
def uid(p):
    _uid[0] += 1
    return f"{p}_{_uid[0]}"

def flag_store(e, soff, vt):
    e(f"v_mov_b32 v{vt}, s78")
    e(f"v_mov_b32 v{vt+1}, s79")
    e(f"v_mov_b32 v{vt+2}, 0")
    e("s_mov_b64 exec, 1")
    e(f"buffer_store_dwordx2 {vr(vt,2)}, v{vt+2}, s[24:27], {soff} offen sc1")
    e("s_mov_b64 exec, -1")

def flag_poll(e, vaddr, vt, sleep=4):
    L = uid("FP"); D = uid("FD")
    e("s_mov_b32 s77, 0")
    e.label(L)
    e(f"buffer_load_dwordx2 {vr(vt,2)}, v{vaddr}, s[24:27], 0 offen sc1")
    e("s_add_u32 s77, s77, 1")
    e("s_waitcnt vmcnt(0)")
    e(f"v_cmp_ne_u64 vcc, s[78:79], {vr(vt,2)}")
    e(f"s_cbranch_vccz {D}")
    e(f"s_cmp_gt_u32 s77, {OPT['spin']}")
    e(f"s_cbranch_scc1 {D}")
    e(f"s_sleep {max(2, sleep * OPT.get('slp', 1))}")
    e(f"s_branch {L}")
    e.label(D)

def lds_add(e, addr, vt):
    e(f"v_mov_b32 v{vt}, {addr}")
    e(f"v_mov_b32 v{vt+1}, 1")
    e("s_mov_b64 exec, 1")
    e(f"ds_add_u32 v{vt}, v{vt+1}")
    e("s_mov_b64 exec, -1")

def lds_wait(e, addr, target, vt, sleep=4):
    L = uid("LW"); D = uid("LD")
    e(f"v_mov_b32 v{vt}, {addr}")
    e("s_mov_b32 s77, 0")
    e.label(L)
    e(f"ds_read_b32 v{vt+1}, v{vt}")
    e("s_add_u32 s77, s77, 1")
    e("s_waitcnt lgkmcnt(0)")
    e(f"v_cmp_gt_u32 vcc, {target}, v{vt+1}")
    e(f"s_cbranch_vccz {D}")
    e(f"s_cmp_gt_u32 s77, {OPT['spin']*8}")
    e(f"s_cbranch_scc1 {D}")
    e(f"s_sleep {sleep * OPT.get('slp', 1) if sleep > 1 else sleep}")
    e(f"s_branch {L}")
    e.label(D)

def gen():
    e = Emitter()
    ORD = {0: "x0 x1 x2 x3 w0 w1 w2 w3 w4 w5 w6 w7 w8",
           1: "x0 x1 x2 x3 w0 w8",
           2: "x0 w0 w8 x1 x2 x3",
           3: "x0 w0 x1 x2 x3 w8",
           4: "x0 x1 w0 x2 x3 w8",
           5: "x0 x1 x2 w0 x3 w8",
           6: "x0 w0 x1 w8 x2 x3"}[OPT.get("ord", 0)].split()
    ORD += [f"w{g}" for g in range(16) if f"w{g}" not in ORD]
    POS = {n: i for i, n in enumerate(ORD)}
    XL = POS["x3"]
    ring = [n for n in ORD if n[0] == "w" and n != "w8"]
    SLOT = {int(n[1:]): ((r + 1) % 4) * 16384 for r, n in enumerate(ring)}
    SLOT[8] = S5
    USE = {}; last = -1
    for c in range(8):
        last = max(POS[f"w{c}"], POS[f"x{c//2}"], last + 1); USE[c] = last
    last = XL + 1
    for c in range(8, 16):
        last = max(POS[f"w{c}"], last + 1); USE[c] = last
    assert USE[15] == 19
    e("s_cmp_ge_u32 s2, 256")
    e("s_cbranch_scc1 L_done")
    e("s_load_dwordx16 s[48:63], s[0:1], 0")
    e("s_load_dwordx8 s[64:71], s[0:1], 64")
    e("s_load_dwordx2 s[72:73], s[0:1], 96")
    stamp_begin(e)
    if OPT.get("trace"): e("v_mov_b32 v159, 0")
    e("v_and_b32 v1, 63, v0")
    e("v_lshrrev_b32 v11, 6, v0")
    e("v_readfirstlane_b32 s30, v11")
    e("s_and_b32 s36, s2, 7")
    e("s_lshr_b32 s37, s2, 3")
    lc = {0: 1, 1: 2, 2: 3}[OPT["map"]]
    e(f"s_and_b32 s29, s36, {(8>>lc)-1}")
    e(f"s_lshl_b32 s29, s29, {lc}")
    e(f"s_lshr_b32 s38, s37, {5-lc}")
    e("s_or_b32 s29, s29, s38")
    e(f"s_lshr_b32 s28, s36, {3-lc}")
    e(f"s_lshl_b32 s28, s28, {5-lc}")
    e(f"s_and_b32 s38, s37, {(32>>lc)-1}")
    e("s_add_u32 s28, s28, s38")
    if OPT["rot"] == 1:
        e("s_add_u32 s31, s28, s29"); e("s_lshl_b32 s31, s31, 1"); e("s_and_b32 s31, s31, 6")
    elif OPT["rot"] == 3:
        e("s_lshl_b32 s31, s29, 1"); e("s_add_u32 s31, s31, s28"); e("s_and_b32 s31, s31, 7")
    elif OPT["rot"] == 4:
        e("s_add_u32 s31, s28, s29"); e("s_and_b32 s31, s31, 7")
    elif OPT["rot"] == 5:
        e("s_lshl_b32 s31, s28, 1"); e("s_add_u32 s31, s31, s29"); e("s_and_b32 s31, s31, 7")
    elif OPT["rot"] == 6:
        e("s_lshl_b32 s31, s28, 1"); e("s_add_u32 s31, s31, s29"); e("s_add_u32 s31, s31, s36"); e("s_and_b32 s31, s31, 7")
    elif OPT["rot"] == 2:
        e("s_add_u32 s31, s28, s29"); e("s_lshl_b32 s31, s31, 2"); e("s_and_b32 s31, s31, 4")
    else:
        e("s_mov_b32 s31, 0")
    roles = {0: (0, 1, 2), 1: (3, 7, 6), 2: (3, 7, 2), 3: (7, 6, 5), 4: (7, 6, 0)}[OPT.get("role", 3)]
    tab = sum((roles.index(c) if c in roles else 3) << (2 * c) for c in range(8))
    e("s_lshl_b32 s3, s29, 1")
    e(f"s_lshr_b32 s3, {hex(tab)}, s3")
    e("s_and_b32 s3, s3, 3")
    e("v_lshlrev_b32 v10, 4, v1")
    if OPT.get("lf", 0):
        e("s_sub_u32 s30, s30, 4")
        e("s_cbranch_scc0 L_compute")
        e("s_add_u32 s30, s30, 12")
    else:
        e("s_cmp_lt_u32 s30, 8")
        e("s_cbranch_scc1 L_compute")
    e("s_setprio 3")
    e("s_sub_u32 s30, s30, 8")
    e("v_lshrrev_b32 v11, 3, v1")
    e("v_and_b32 v12, 7, v1")
    e("v_lshrrev_b32 v13, 4, v1")
    e("v_xor_b32 v14, v12, v13")
    e("v_lshlrev_b32 v14, 4, v14")
    e("v_lshl_add_u32 v2, v11, 10, v14")
    e("v_xor_b32 v3, 64, v2")
    e("v_add_u32 v3, 7168, v3")
    e("s_lshl_b32 s32, s28, 16")
    e("s_lshl_b32 s38, s30, 14")
    e("s_add_u32 s32, s32, s38")
    e("s_lshl_b32 s41, s30, 11")
    e("s_lshl_b32 s40, s30, 12")
    e("s_mov_b32 s36, s31")
    e("v_and_b32 v13, 1, v13")
    e("v_lshlrev_b32 v13, 1, v13")
    e("v_xor_b32 v14, v12, v13")
    e("v_lshlrev_b32 v14, 4, v14")
    e("v_mul_u32_u24 v6, 3072, v11")
    e("v_add_u32 v6, v6, v14")
    e(f"v_add_u32 v7, {8*3072-1024}, v6")
    e("v_xor_b32 v8, 64, v6")
    e(f"v_add_u32 v9, {8*3072-1024}, v8")
    e("s_lshl_b32 s38, s29, 7")
    e("s_mul_i32 s33, s30, 49152")
    e("s_add_u32 s33, s33, s38")
    e("v_xor_b32 v14, 64, v14")
    e("v_lshl_add_u32 v4, v11, 10, v14")
    e("v_add_u32 v5, 7168, v4")
    e("s_lshl_b32 s34, s30, 14")
    e("s_add_u32 s34, s34, s38")
    e("s_waitcnt lgkmcnt(0)")
    e.extend(trace(60))
    srd(e, 4, 48, 2048*512*2)
    srd(e, 8, 50, 512*1536*2)
    srd(e, 12, 58, 512*512*2)
    e("s_cmp_gt_u32 s3, 2")
    e("s_cbranch_scc1 L_noext")
    e("s_cmp_eq_u32 s3, 0")
    e("s_cselect_b32 s16, s60, s62")
    e("s_cselect_b32 s17, s61, s63")
    e("s_cmp_eq_u32 s3, 2")
    e("s_cselect_b32 s16, s66, s16")
    e("s_cselect_b32 s17, s67, s17")
    e("s_mov_b32 s18, 16384")
    e("s_cselect_b32 s18, 1024, s18")
    e("s_mov_b32 s19, 0x00020000")
    e("s_mov_b32 m0, s40")
    for i in range(4):
        e(f"buffer_load_dwordx4 v10, s[16:19], s40 offen offset:{i*1024} lds")
    e.label("L_noext")
    def item(i):
        l = []; nm = ORD[i]; idx = int(nm[1:])
        if nm[0] == "x":
            for q in range(2):
                l.append("s_lshl_b32 s38, s31, 7")
                l.append("s_add_u32 s38, s38, s32")
                l.append(f"s_add_u32 m0, s41, {XT + (2*idx+q)*8192}")
                l.append("s_add_u32 s31, s31, 1")
                for k in range(2):
                    l.append(f"buffer_load_dwordx4 v{2+k}, s[4:7], s38 offen offset:{k*1024} lds")
                l.append("s_and_b32 s31, s31, 7")
        else:
            g = idx
            l.append(f"s_add_u32 s35, s36, {g % 8}")
            l.append("s_and_b32 s35, s35, 7")
            l.append("s_mul_i32 s39, s35, 196608")
            l.append("s_add_u32 s39, s39, s33")
            l.append(f"s_add_u32 m0, s41, {SLOT[g]}")
            if g < 8: l.append("s_add_u32 s39, s39, 1024")
            else: l.append("s_lshl_b32 s38, s35, 16")
            for k in range(2):
                l.append(f"buffer_load_dwordx4 v{6+k}, s[8:11], s39 offen offset:{k*1024} lds")
            l.append(f"s_add_u32 m0, s41, {SLOT[g]+8192}")
            if g < 8:
                l.append("s_add_u32 s39, s39, 1024")
                for k in range(2):
                    l.append(f"buffer_load_dwordx4 v{8+k}, s[8:11], s39 offen offset:{k*1024} lds")
            else:
                l.append("s_add_u32 s38, s38, s34")
                for k in range(2):
                    l.append(f"buffer_load_dwordx4 v{4+k}, s[12:15], s38 offen offset:{k*1024} lds")
        return l
    def earliest(i):
        nm = ORD[i]; idx = int(nm[1:])
        if nm[0] == "x" or idx == 8: return -1
        r = ring.index(nm)
        if r < 3: return -1
        if r == 3: return XL + 1
        return USE[int(ring[r - 4][1:])] + 1
    DEP = OPT.get("dep", 3)
    for i in range(DEP): e.extend(item(i))
    e.extend(trace(61))
    e(f"s_load_dwordx2 s[78:79], s[72:73], {hex(WS_EPOCH)}")
    srd(e, 20, 52, 32*16*16*2)
    srd(e, 24, 72, WS_SIZE)
    e("s_and_b32 s46, s30, 1")
    e("s_lshr_b32 s47, s30, 1")
    e("v_bfe_u32 v13, v1, 4, 1")
    e("v_lshlrev_b32 v15, 2, v13")
    e("v_xor_b32 v15, v12, v15")
    e("v_lshlrev_b32 v15, 4, v15")
    e("v_lshl_add_u32 v144, v11, 10, v15")
    for k in range(1, 4): e(f"v_add_u32 v{144+k}, {k*7168}, v144")
    e("v_lshrrev_b32 v16, 5, v1")
    e("v_bfe_u32 v15, v1, 2, 2")
    e("v_lshl_add_u32 v148, v16, 2, v15")
    e("v_lshlrev_b32 v148, 7, v148")
    e("v_lshrrev_b32 v15, 1, v15")
    e("v_xor_b32 v15, s47, v15")
    e("v_lshl_add_u32 v148, v15, 6, v148")
    e("v_lshl_add_u32 v148, v13, 5, v148")
    e("v_and_b32 v15, 3, v1")
    e("v_lshl_add_u32 v148, v15, 3, v148")
    e("s_lshl_b32 s38, s47, 15")
    e("v_add_u32 v148, s38, v148")
    e("v_xor_b32 v149, 64, v148")
    e(f"s_add_u32 s38, s40, {PHQ}")
    e("v_add_u32 v150, s38, v10")
    e("v_xor_b32 v151, 0x2000, v150")
    e("v_and_b32 v155, 31, v1")
    e("v_lshlrev_b32 v152, 10, v155")
    e("v_lshl_add_u32 v152, v16, 4, v152")
    e("v_lshlrev_b32 v155, 2, v155")
    e("v_and_b32 v153, 15, v1")
    e("v_lshlrev_b32 v153, 3, v153")
    e("v_lshl_add_u32 v153, v16, 7, v153")
    e("s_lshl_b32 s38, s30, 9")
    e(f"s_add_u32 s38, s38, {WPH}")
    e("v_add_u32 v153, s38, v153")
    e(f"s_add_u32 s38, s41, {PHQ}")
    e("v_add_u32 v154, s38, v10")
    e("v_lshlrev_b32 v156, 3, v1")
    e("s_getreg_b32 s37, hwreg(HW_REG_XCC_ID, 0, 4)" if OPT.get("loc", 0) else "s_mov_b32 s37, 0")
    e(f"s_mov_b32 s74, {fbits(LOG2E)}")
    e(f"s_mov_b32 s75, {fbits(-LOG2E)}")
    e("v_and_b32 v15, 31, v1")
    FS = OPT.get("fs", 3)
    e(f"v_lshlrev_b32 v15, {FS}, v15")
    e(f"s_lshl_b32 s38, s30, {FS+5}")
    e(f"s_add_u32 s38, s38, {F1}")
    e("v_add_u32 v15, s38, v15")
    e("s_lshl_b32 s42, s30, 10")
    assert WS_KVB == 0
    def kvdma(n):
        l = []
        for _ in range(n):
            l.append("s_mov_b32 m0, s42")
            l.append("s_nop 0")
            l.append("buffer_load_dwordx4 v10, s[24:27], s42 offen sc1 lds")
            l.append("s_add_u32 s42, s42, 4096")
        return l
    out = []
    e("s_and_b32 s38, s30, 1")
    e("s_lshl_b32 s38, s38, 10")
    e(f"s_add_u32 m0, s38, {WPH}")
    e("s_lshl_b32 s39, s29, 11")
    e("s_add_u32 s38, s38, s39")
    e("buffer_load_dwordx4 v10, s[20:23], s38 offen lds")
    for i in range(DEP): out += [i] * 4
    out.append("w")
    nxt = DEP
    def waitfor(tag):
        idx = max(k for k, t in enumerate(out) if t == tag)
        n = len(out) - 1 - idx
        del out[:idx + 1]
        return f"s_waitcnt vmcnt({n})"
    PA = OPT.get("pa", 14)
    poll = "buffer_load_dwordx2 v[16:17], v15, s[24:27], 0 offen sc1"
    e.extend(trace(62))
    for i in range(18):
        e(waitfor(i))
        e.extend(trace(2 * i))
        e("s_barrier")
        e.extend(trace(2 * i + 1))
        if i == 0:
            e.extend(stamp(0))
        if i == 8:
            e("s_waitcnt lgkmcnt(0)")
            e("s_add_u32 s78, s78, 1")
        while nxt <= min(19, i + DEP) and earliest(nxt) <= i:
            e.extend(item(nxt)); out += [nxt] * 4; nxt += 1
        assert nxt > i + 1
        if i == PA:
            e(poll); out.append("p")
    if "p" in out: e(waitfor("p"))
    e("v_cmp_ne_u64 vcc, s[78:79], v[16:17]")
    e("s_cbranch_vccnz L_kvlate")
    save = list(out)
    e.extend(kvdma(4)); out += ["k0"] * 4
    if 18 in out: e(waitfor(18))
    e("s_barrier")
    e.extend(kvdma(4)); out += ["k1"] * 4
    if 19 in out: e(waitfor(19))
    e("s_barrier")
    e.extend(kvdma(4)); out += ["k2"] * 4
    e.label("L_kv20")
    e("s_waitcnt vmcnt(4)")
    e("s_barrier")
    e("s_branch L_kvjoin")
    e.label("L_kvlate")
    out[:] = save
    e(poll); out.append("p")
    if 18 in out: e(waitfor(18))
    e("s_barrier")
    if 19 in out: e(waitfor(19))
    e("s_barrier")
    e("s_waitcnt vmcnt(0)")
    e("v_cmp_ne_u64 vcc, s[78:79], v[16:17]")
    e("s_cbranch_vccz L_kvlate2")
    flag_poll(e, 15, 16, sleep=0)
    e.label("L_kvlate2")
    e.extend(kvdma(12))
    e("s_branch L_kv20")
    e.label("L_kvjoin")
    e.extend(stamp(1))
    e.extend(kvdma(20))
    HQ = 16; HK = 32; HG = 40; HT = 42; HD = 48; HP = 80
    for u in range(2): e(f"ds_read_b128 {vr(HQ+8*u,4)}, v154 offset:{u*1024}")
    for u in range(2): e(f"ds_read_b64_tr_b16 {vr(HK+2*u,2)}, v153 offset:{u*256}")
    e("s_lshl_b32 s38, s28, 4")
    e(f"s_add_u32 s38, s38, {FG}")
    e(f"v_and_b32 v{HT+4}, 8, v156")
    e(f"v_add_u32 v{HT+4}, s38, v{HT+4}")
    e("s_waitcnt vmcnt(0)")
    e.extend(trace(44))
    lds_add(e, C_KVALL, HT)
    if OPT.get("nohelp") == 1:
        lds_add(e, C_GOK, HT)
        e("s_barrier")
        stamp_end(e, 64)
        e("s_endpgm")
    e("s_lshl_b32 s45, s29, 2")
    e("s_lshl_b32 s36, s28, 7")
    e("s_add_u32 s36, s36, s45")
    e("s_add_u32 s36, s36, s30")
    e("s_lshl_b32 s36, s36, 10")
    e(f"s_add_u32 s36, s36, {WS_OC}")
    e(f"v_mov_b64 {vr(HD,2)}, -1")
    e(f"v_mov_b64 {vr(HD+2,2)}, -1")
    for i in range(4):
        e(f"s_add_u32 s38, s36, {i*32768}")
        e(f"buffer_store_dwordx4 {vr(HD,4)}, v10, s[24:27], s38 offen sc1")
    flag_poll(e, HT + 4, HT + 2)
    e("s_lshl_b32 s38, s28, 5")
    e("s_add_u32 s38, s38, s45")
    e("s_add_u32 s38, s38, s30")
    e("s_lshl_b32 s38, s38, 4")
    e(f"s_add_u32 s38, s38, {FP}")
    e(f"v_mov_b32 v{HD+4}, s78")
    e(f"v_mov_b32 v{HD+5}, s79")
    e(f"v_mov_b32 v{HD+6}, s37")
    e(f"v_mov_b32 v{HD+7}, 0")
    e("s_mov_b64 exec, 1")
    e(f"buffer_store_dwordx4 {vr(HD+4,4)}, v{HD+7}, s[24:27], s38 offen sc1")
    e("s_mov_b64 exec, -1")
    e("s_lshl_b32 s38, s28, 8")
    e(f"s_add_u32 s38, s38, {WS_GATE}")
    e(f"buffer_load_dword v{HG}, v155, s[24:27], s38 offen sc1")
    e(f"buffer_load_dword v{HG+1}, v155, s[24:27], s38 offen offset:128 sc1")
    e("s_waitcnt lgkmcnt(0)")
    for u in range(2): e(mfma(HD + 16 * u, HK, HQ + 8 * u, None))
    e.extend(interleave(*[phi_unit(HD + 16 * u, HP + 4 * u, HQ + 8 * u) for u in range(2)]))
    e(f"v_add_u32 v{HT}, {C_GATE}, v155")
    e("s_waitcnt vmcnt(0)")
    e(f"ds_write_b32 v{HT}, v{HG}")
    e(f"ds_write_b32 v{HT}, v{HG+1} offset:128")
    e("s_waitcnt lgkmcnt(0)")
    lds_add(e, C_GOK, HT)
    e.extend(trace(45))
    if OPT.get("nohelp") == 2:
        lds_add(e, C_GOK, HT)
        e("s_barrier")
        stamp_end(e, 64)
        e("s_endpgm")
    e("s_and_b32 s38, s28, 3")
    e("s_cmp_lg_u32 s38, s30")
    e("s_cbranch_scc1 L_nored")
    e("s_lshr_b32 s38, s28, 3")
    e("s_add_u32 s43, s45, s38")
    e("v_lshlrev_b32 v15, 1, v155")
    e("s_lshl_b32 s38, s43, 8")
    e(f"s_add_u32 s38, s38, {F3}")
    e(f"v_add_u32 v{HT}, s38, v15")
    flag_poll(e, HT, HT + 2)
    e.extend(trace(46))
    e("s_lshl_b32 s43, s43, 3")
    e("s_and_b32 s38, s28, 7")
    e("s_add_u32 s43, s43, s38")
    e("s_lshl_b32 s38, s43, 14")
    e(f"s_add_u32 s38, s38, {WS_PART}")
    for p in range(16):
        if p and p % 4 == 0: e("s_add_u32 s38, s38, 4096")
        e(f"buffer_load_dwordx4 {vr(HP+4*p,4)}, v10, s[24:27], s38 offen offset:{(p&3)*1024} sc1")
    e("s_waitcnt vmcnt(0)")
    e.extend(trace(47))
    for st in (32, 16, 8, 4):
        for i in range(0, st, 2): e(f"v_pk_add_f32 {vr(HP+i,2)}, {vr(HP+i,2)}, {vr(HP+st+i,2)}")
    e(f"v_permlane32_swap_b32 v{HP}, v{HP+2}")
    e(f"v_permlane32_swap_b32 v{HP+1}, v{HP+3}")
    e(f"v_pk_add_f32 {vr(HP,2)}, {vr(HP,2)}, {vr(HP+2,2)}")
    e(f"v_cvt_pk_bf16_f32 v{HP}, v{HP}, v{HP+1}")
    e(f"v_lshrrev_b32 v{HT}, 5, v1")
    e(f"v_lshl_add_u32 v{HT}, v{HT}, 2, v15")
    e("s_lshl_b32 s38, s43, 8")
    e(f"s_add_u32 s38, s38, {WS_KVF}")
    e(f"buffer_store_dword v{HP}, v{HT}, s[24:27], s38 offen sc1")
    e("s_lshl_b32 s38, s43, 3")
    e(f"s_add_u32 s38, s38, {F3P}")
    e("s_waitcnt vmcnt(0)")
    e.extend(trace(48))
    flag_store(e, "s38", HT)
    e.label("L_nored")
    e.extend(stamp(2))
    e("s_lshl_b32 s38, s28, 9")
    e(f"s_add_u32 s38, s38, {FP}")
    e("v_lshlrev_b32 v2, 2, v155")
    e("v_add_u32 v2, s38, v2")
    e("s_mov_b32 s77, 0")
    e("s_mov_b32 s35, 0")
    e.label("L_fpp")
    e(f"buffer_load_dwordx4 {vr(HD,4)}, v2, s[24:27], 0 offen sc1")
    e("s_add_u32 s77, s77, 1")
    e("s_waitcnt vmcnt(0)")
    e(f"v_cmp_ne_u64 vcc, s[78:79], {vr(HD,2)}")
    e("s_cbranch_vccz L_fpd")
    e(f"s_sleep {8 * OPT.get('slp', 1)}")
    e(f"s_cmp_lt_u32 s77, {OPT['spin']}")
    e("s_cbranch_scc1 L_fpp")
    e("s_branch L_fpx")
    e.label("L_fpd")
    if OPT.get("loc", 0):
        e(f"v_cmp_ne_u32 vcc, s37, v{HD+2}")
        e("s_cbranch_vccnz L_fpx")
        lds_add(e, C_LOC, HT)
        e("s_mov_b32 s35, 1")
    e.label("L_fpx")
    e.extend(trace(57))
    e("s_add_u32 s45, s45, s30")
    e("s_lshl_b32 s38, s45, 6")
    e(f"s_add_u32 s38, s38, {F3P}")
    e(f"v_and_b32 v{HT}, 56, v156")
    e(f"v_add_u32 v{HT}, s38, v{HT}")
    flag_poll(e, HT, HT + 2)
    e.extend(trace(49))
    e("s_lshl_b32 s38, s45, 11")
    e(f"s_add_u32 s38, s38, {WS_KVF}")
    for q in range(4):
        e(f"buffer_load_dwordx2 {vr(HK+2*q,2)}, v156, s[24:27], s38 offen offset:{q*512} sc1")
    e("s_waitcnt vmcnt(0)")
    e.extend(trace(50))
    for u in range(2): e(mfma(HD + 16 * u, HK, HQ + 8 * u, None))
    for u in range(2): e(mfma(HD + 16 * u, HK + 4, HQ + 8 * u + 4, HD + 16 * u))
    for u in range(2):
        D = HD + 16 * u
        e(f"v_add_f32 v{HT}, {fbits(1e-6)}, v{D+8}")
        e(f"v_rcp_f32 v{HT}, v{HT}")
        e(f"v_mul_f32 v{HT}, v{HT}, v{HG+u}")
        for i in range(0, 8, 2): e(f"v_pk_mul_f32 {vr(D+i,2)}, {vr(D+i,2)}, {vr(HT,2)} op_sel_hi:[1,0]")
        for q in range(4): e(f"v_cvt_pk_bf16_f32 v{D+q}, v{D+2*q}, v{D+2*q+1}")
    e("s_add_u32 s38, s36, 65536")
    e(f"buffer_store_dwordx4 {vr(HD,4)}, v10, s[24:27], s36 offen sc1")
    e(f"buffer_store_dwordx4 {vr(HD+16,4)}, v10, s[24:27], s38 offen sc1")
    e.extend(trace(51))
    e.extend(stamp(3))
    if OPT.get("nohelp") == 3:
        lds_add(e, C_GOK, HT)
        e("s_barrier")
        stamp_end(e, 64)
        e("s_endpgm")
    ACC = [16, 32]; WFR = [48, 56, 132]; OF = 64; PT = 128
    srd(e, 4, 54, 512*512*2)
    srd(e, 8, 64, 512*512*2)
    srd(e, 12, 68, 2048*512*2)
    e("s_lshl_b32 s44, s28, 1")
    e("s_add_u32 s44, s44, s46")
    e("s_lshl_b32 s43, s44, 16")
    e("s_lshl_b32 s38, s47, 14")
    e("s_add_u32 s43, s43, s38")
    e(f"s_add_u32 s43, s43, {WS_OC}")
    def wdma(sd):
        e("s_lshl_b32 s38, s30, 17")
        e("s_lshl_b32 s39, s29, 7")
        e("s_add_u32 s38, s38, s39")
        e("s_lshl_b32 s39, s30, 14")
        for g in range(4):
            e("s_mov_b32 m0, s39")
            for k in range(4):
                e(f"buffer_load_dwordx4 v{144+k}, s[{sd}:{sd+3}], s38 offen offset:{k*1024} lds")
            if g < 3:
                e("s_add_u32 s38, s38, 32768")
                e("s_add_u32 s39, s39, 4096")
    def oload(base_add, g0=0, g1=4):
        for g in range(g0, g1):
            e(f"s_add_u32 s38, s43, {base_add + g*4096}")
            for t in range(4 * g, 4 * g + 4):
                e(f"buffer_load_dwordx4 {vr(OF+4*t,4)}, v10, s[24:27], s38 offen offset:{(t&3)*1024} sc1")
    WA = [148]
    def rd(t):
        return [f"ds_read_b64_tr_b16 {vr(WFR[t%3]+4*nt+2*u,2)}, v{WA[0]+nt} offset:{(16*t+8*u)*128}" for nt in range(2) for u in range(2)]
    def step(t, first, fill=[]):
        if t < 14: e.extend(rd(t + 2))
        e(f"s_waitcnt lgkmcnt({4*min(2, 15-t)})")
        for nt in ((1, 0) if t == 15 else (0, 1)):
            e(mfma(ACC[nt], WFR[t % 3] + 4 * nt, OF + 4 * t, None if (first and t == 0) else ACC[nt]))
            e.extend(fill[nt * 5:nt * 5 + 5])
    def check(g):
        b = OF + 16 * g
        l = [f"v_max3_u32 v{PT}, v{b}, v{b+1}, v{b+2}", f"v_max3_u32 v{PT+1}, v{b+3}, v{b+4}, v{b+5}"]
        for i in (6, 10):
            l += [f"v_max3_u32 v{PT}, v{PT}, v{b+i}, v{b+i+1}", f"v_max3_u32 v{PT+1}, v{PT+1}, v{b+i+2}, v{b+i+3}"]
        l += [f"v_max3_u32 v{PT}, v{PT}, v{b+14}, v{b+15}", f"v_max_u32 v{PT}, v{PT}, v{PT+1}", f"v_cmp_eq_u32 vcc, -1, v{PT}"]
        return l
    NG = OPT.get("ng", 2)
    def pgemm(tag, first, pace, base):
        e(f"s_waitcnt vmcnt({4*(NG-1)})")
        e.extend(check(0))
        for g in range(4):
            e(f"s_cbranch_vccnz L_retry{tag}{g}")
            e.label(f"L_go{tag}{g}")
            if g == 0 and not first: e.extend(trace(40))
            for t in range(4 * g, 4 * g + 4):
                if t % 4 == 3 and g < 3: step(t, first, [f"s_waitcnt vmcnt({4*(min(4, g+1+NG)-g-2)})"] + check(g + 1))
                else: step(t, first)
                if t % 4 == 0 and g + NG < 4: oload(base, g + NG, g + NG + 1)
                if pace: e(f"s_sleep {pace}")
    if OPT.get("late", 0):
        lds_wait(e, C_PROG, 8, PT, sleep=8)
        e.extend(trace(54))
        wdma(4)
        e("v_lshlrev_b32 v2, 10, v1")
        e("s_lshl_b32 s38, s30, 17")
        e("s_lshl_b32 s39, s29, 7")
        e("s_add_u32 s38, s38, s39")
        e("buffer_load_dword v3, v2, s[8:11], s38 offen")
        e("s_add_u32 s38, s38, 65536")
        e("buffer_load_dword v4, v2, s[8:11], s38 offen")
        e("s_mov_b32 s77, 0")
        e.label("L_apoll")
        oload(0)
        e("s_add_u32 s77, s77, 1")
        e("s_waitcnt vmcnt(0)")
        e(f"v_max3_u32 v{PT}, v{OF}, v{OF+1}, v{OF+2}")
        e(f"v_max3_u32 v{PT+1}, v{OF+3}, v{OF+4}, v{OF+5}")
        for i_ in range(6, 62, 4):
            e(f"v_max3_u32 v{PT}, v{PT}, v{OF+i_}, v{OF+i_+1}")
            e(f"v_max3_u32 v{PT+1}, v{PT+1}, v{OF+i_+2}, v{OF+i_+3}")
        e(f"v_max3_u32 v{PT}, v{PT}, v{OF+62}, v{OF+63}")
        e(f"v_max_u32 v{PT}, v{PT}, v{PT+1}")
        e(f"v_cmp_eq_u32 vcc, -1, v{PT}")
        e("s_cbranch_vccz L_aready")
        e("s_sleep 32")
        e(f"s_cmp_lt_u32 s77, {OPT['spin']}")
        e("s_cbranch_scc1 L_apoll")
        e.label("L_aready")
        lds_add(e, C_HS, PT)
        lds_wait(e, C_HS, 4, PT)
        e.extend(trace(55))
        e.extend(rd(0) + rd(1))
        e("v_add_u32 v2, 0x10000, v148")
        e("v_add_u32 v3, 0x10000, v149")
        e("s_lshl_b32 s36, s44, 15")
        e("s_lshl_b32 s39, s29, 7")
        e("s_add_u32 s36, s36, s39")
        e("s_lshl_b32 s39, s47, 6")
        e("s_add_u32 s36, s36, s39")
        e("s_lshl_b32 s38, s30, 17")
        e("s_lshl_b32 s39, s29, 7")
        e("s_add_u32 s38, s38, s39")
        e("s_lshl_b32 s39, s30, 14")
        e("s_add_u32 s39, s39, 0x10000")
        e.extend(stamp(4))
        lds_wait(e, C_DONE, 8, PT, sleep=OPT.get("dsleep", 2))
        e.extend(trace(56))
        for t in range(16):
            if t % 4 == 0: e("s_mov_b32 m0, s39")
            e(f"buffer_load_dwordx4 v{144+t%4}, s[8:11], s38 offen offset:{(t%4)*1024} lds")
            if t % 4 == 3:
                e("s_add_u32 s38, s38, 32768"); e("s_add_u32 s39, s39, 4096")
            step(t, True)
        e.extend(trace(58))
        WA[0] = 2
        e("s_mov_b32 s77, 0")
        oload(32768, 0, NG)
        e(f"s_waitcnt vmcnt({4*NG})")
        e("s_barrier")
    else:
        lds_wait(e, C_PROG, 8, PT, sleep=8)
        e.extend(trace(54))
        wdma(4)
        oload(0, 0, NG)
        e(f"s_waitcnt vmcnt({4*NG})")
        lds_add(e, C_HS, PT)
        lds_wait(e, C_HS, 4, PT)
        e.extend(trace(55))
        e.extend(rd(0) + rd(1))
        e("s_mov_b32 s77, 0")
        e(f"s_setprio {OPT.get('aprio', 2)}")
        pgemm("A", True, OPT.get("pace", 0), 0)
        e("s_setprio 3")
        e.extend(trace(56))
        lds_add(e, C_HS, PT)
        lds_wait(e, C_HS, 8, PT)
        e.extend(trace(58))
        wdma(8)
        e("s_lshl_b32 s36, s44, 15")
        e("s_lshl_b32 s39, s29, 7")
        e("s_add_u32 s36, s36, s39")
        e("s_lshl_b32 s39, s47, 6")
        e("s_add_u32 s36, s36, s39")
        e("s_mov_b32 s77, 0")
        e("s_waitcnt vmcnt(0)")
        e.extend(stamp(4))
        e("s_barrier")
    e.extend(stamp(5))
    if not OPT.get("late", 0): oload(32768, 0, NG)
    e.extend(rd(0) + rd(1))
    pgemm("B", False, 0, 32768)
    e.extend(trace(42))
    if OPT.get("trace"): e("v_writelane_b32 v159, s77, 41")
    for q in range(4): e(f"ds_write_b128 v150, {vr(ACC[1]+4*q,4)} offset:{q*1024}")
    e("s_waitcnt lgkmcnt(0)")
    e("s_barrier")
    for q in range(4): e(f"ds_read_b128 {vr(OF+4*q,4)}, v151 offset:{q*1024}")
    A = ACC[0]
    for pr in range(2):
        e(f"s_waitcnt lgkmcnt({2-2*pr})")
        for i in range(8 * pr, 8 * pr + 8, 2): e(f"v_pk_add_f32 {vr(A+i,2)}, {vr(A+i,2)}, {vr(OF+i,2)}")
        for q in range(4): e(f"v_cvt_pk_bf16_f32 v{A+8*pr+q}, v{A+8*pr+2*q}, v{A+8*pr+2*q+1}")
    for pr in range(2):
        e(f"v_permlane32_swap_b32 v{A+8*pr}, v{A+8*pr+2}")
        e(f"v_permlane32_swap_b32 v{A+8*pr+1}, v{A+8*pr+3}")
    for pr in range(2):
        e(f"buffer_store_dwordx4 {vr(A+8*pr,4)}, v152, s[12:15], s36 offen offset:{pr*32}" + ["", " sc1", " nt", " sc0 sc1"][OPT.get("ost", 0)])
    e.extend(trace(43))
    e("s_or_b32 s38, s2, s30")
    e("s_cbranch_scc1 L_noepoch")
    e(f"s_mov_b32 s38, {WS_EPOCH}")
    flag_store(e, "s38", PT)
    e.label("L_noepoch")
    stamp_end(e, 64)
    e.label("L_done")
    e("s_endpgm")
    for tag, base in ((("B", 32768),) if OPT.get("late", 0) else (("A", 0), ("B", 32768))):
        for g in range(4):
            e.label(f"L_retry{tag}{g}")
            if tag == "A": e("s_sleep 8")
            oload(base, g, min(4, g + NG))
            e("s_add_u32 s77, s77, 1")
            e(f"s_waitcnt vmcnt({4*(min(4, g+NG)-g-1)})")
            e.extend(check(g))
            e(f"s_cbranch_vccz L_go{tag}{g}")
            e(f"s_cmp_lt_u32 s77, {OPT['spin']}")
            e(f"s_cbranch_scc1 L_retry{tag}{g}")
            e(f"s_branch L_go{tag}{g}")

    e.label("L_compute")
    ACC = 96; EACC = 128; WF = 144; I0 = 148; ONE = 156
    e("s_and_b32 s44, s30, 3")
    e("s_lshr_b32 s40, s30, 2")
    if OPT.get("pf", 0):
        e("s_cmp_lt_u32 s44, 3")
        e("s_movk_i32 s38, 1024")
        e("s_cselect_b32 s38, 3072, s38")
        e("v_mul_lo_u32 v30, v1, s38")
        e("s_add_u32 s39, s31, s40" if not OPT.get("pfs") else "s_mov_b32 s39, s31")
        e("s_and_b32 s39, s39, 7")
        e("s_mul_i32 s38, s38, s39")
        e("s_lshl_b32 s38, s38, 6")
        e("s_add_u32 s39, s44, 1")
        e("s_cmp_lt_u32 s44, 2")
        e("s_cselect_b32 s39, s39, 0")
        e("s_lshl_b32 s39, s39, 10")
        e("s_add_u32 s38, s38, s39")
        e("s_lshl_b32 s39, s29, 7")
        e("s_add_u32 s38, s38, s39")
        e("v_add_u32 v30, s38, v30")
        e("s_waitcnt lgkmcnt(0)")
        e("s_cmp_lt_u32 s44, 3")
        e("s_cselect_b32 s16, s50, s58")
        e("s_cselect_b32 s17, s51, s59")
        mask = {1: 0x0f, 2: 0xff, 3: 0x33, 4: 0x03, 5: 0}[OPT["pf"]]
        e(f"s_lshr_b32 s38, {mask}, s30")
        e("s_and_b32 s38, s38, 1")
        e("s_cbranch_scc0 L_nopf")
        e("global_load_dword v31, v30, s[16:17]")
        e.label("L_nopf")
    e("v_and_b32 v11, 31, v1")
    e("v_lshrrev_b32 v22, 5, v1")
    e("v_bfe_u32 v23, v1, 1, 3")
    e("v_xor_b32 v23, v23, v22")
    e("v_lshlrev_b32 v23, 4, v23")
    e("v_lshl_add_u32 v12, v11, 7, v23")
    e(f"v_add_u32 v12, {XT}, v12")
    for t in range(1, 4): e(f"v_xor_b32 v{12+t}, {32*t}, v12")
    su_w = ["v_lshrrev_b32 v22, 5, v1", "v_bfe_u32 v23, v1, 2, 2", "v_lshl_add_u32 v20, v22, 3, v23", "v_lshlrev_b32 v20, 7, v20",
            "v_bfe_u32 v23, v1, 3, 2", "v_xor_b32 v23, s44, v23", "v_lshl_add_u32 v20, v23, 5, v20", "v_bfe_u32 v24, v1, 4, 1",
            "v_lshl_add_u32 v20, v24, 13, v20", "v_and_b32 v23, 3, v1", "v_lshl_add_u32 v20, v23, 3, v20"]
    su_s = ["s_lshl_b32 s45, s29, 2", "s_add_u32 s45, s45, s44", "s_lshl_b32 s47, s28, 1", "s_xor_b32 s46, s40, 1",
            "s_add_u32 s47, s47, s46", "s_lshl_b32 s43, s47, 6", "s_add_u32 s43, s43, s45", "s_lshl_b32 s43, s43, 10",
            f"s_add_u32 s43, s43, {WS_OC+32*1024}",
            f"s_mov_b32 s74, {fbits(LOG2E)}", f"s_mov_b32 s75, {fbits(-LOG2E)}", f"s_mov_b32 s76, {fbits(0.25*LOG2E)}",
            "s_lshl_b32 s38, s44, 10", f"s_add_u32 s38, s38, {HND}", "v_add_u32 v28, s38, v10"]
    su_ws = ["s_waitcnt lgkmcnt(0)", f"s_load_dwordx2 s[78:79], s[72:73], {hex(WS_EPOCH)}",
             "s_mov_b32 s24, s72", "s_mov_b32 s25, s73", f"s_mov_b32 s26, {hex(WS_SIZE)}", "s_mov_b32 s27, 0x00020000"]
    su_ep = ["s_waitcnt lgkmcnt(0)", "s_add_u32 s78, s78, 1"]
    def su_id(n, I0):
        l = ["v_and_b32 v11, 31, v1", "v_lshrrev_b32 v22, 5, v1", "v_lshlrev_b32 v22, 2, v22", "v_sub_u32 v11, v11, v22",
             "v_mov_b32 v22, 0x3f80", "v_mov_b32 v23, 0x3f800000"]
        for sgn in range(n):
            for q in range(4):
                f0 = 16 * sgn + (2 * q if q < 2 else 8 + 2 * (q - 2))
                l += [f"v_cmp_eq_u32 vcc, {f0}, v11", f"v_cmp_eq_u32 s[38:39], {f0+1}, v11",
                      f"v_cndmask_b32 v{I0+4*sgn+q}, 0, v22, vcc", f"v_cndmask_b32 v{I0+4*sgn+q}, v{I0+4*sgn+q}, v23, s[38:39]"]
        return l
    Q = 4; NM = 8; O = 24; S = [40, 56]; PK = 72; KF = [80, 84]; VF = [144, 152]; AK = 2; AV = 3; T = 106
    U = 4; NIT = 16
    SEG = OPT.get("seg", (2, 8, 15, 16))
    ATT_SETUP = [f"v_mov_b32 v{AK}, v10", f"v_lshrrev_b32 v{T}, 5, v1", f"v_and_b32 v{AV}, 15, v1", f"v_lshlrev_b32 v{AV}, 4, v{AV}",
                 f"v_lshl_add_u32 v{AV}, v{T}, 8, v{AV}", f"v_add_u32 v{AV}, 1024, v{AV}", f"v_and_b32 v{T}, 27, v1",
                 f"v_mov_b32 v{T+1}, 0x3f803f80", f"v_cmp_eq_u32 vcc, 16, v{T}", "s_mov_b32 s20, 0xffff", "s_mov_b32 s21, 0xffff",
                 f"v_cndmask_b32 v{VF[0]}, 0, v{T+1}, vcc"] + [f"v_mov_b32 v{VF[0]+1}, v{VF[0]}"] + [f"v_mov_b64 {vr(VF[0]+i,2)}, {vr(VF[0],2)}" for i in range(2, 16, 2)] + \
                [f"s_mov_b32 s22, {SEG[0]}", "s_mov_b32 s23, 0"]
    def fr(buf, t):
        if buf == 0:
            b = 32 + 12 * t; return (b, b + 4, b + 8)
        return [(80, 84, 88), (128, 132, 136), (92, 140, 16), (4, 160, 164)][t]
    def reads(buf, g):
        l = []; p = g % 8; so = SLOT[g] & 0xffff; wa = 21 if g == 8 else 20
        for t in range(4):
            xa, xb, w = fr(buf, t)
            l.append(f"ds_read_b128 {vr(xa,4)}, v{12+t} offset:{p*8192}")
            for u in range(2):
                l.append(f"ds_read_b64_tr_b16 {vr(w+2*u,2)}, v{wa} offset:{so+(16*t+4*u)*128}")
            l.append(f"ds_read_b128 {vr(xb,4)}, v{12+t} offset:{p*8192+4096}")
        return l
    def mfmas(buf, first):
        l = []
        for t in range(4):
            xa, xb, w = fr(buf, t); z = first and t == 0
            l.append(mfma(ACC, w, xa, None if z else ACC))
            l.append(mfma(ACC + 16, w, xb, None if z else ACC + 16))
        return l
    def gpass(g0, first, last, extra={}):
        pend = None; NS = OPT.get("gspread", 5)
        for i in range(first, last + 1):
            e("s_barrier")
            mm = mfmas(pend & 1, pend == 0) if pend is not None else []
            todo = None
            for c in range(8):
                if USE[g0 + c] == i: todo = c
            if todo is not None:
                r = reads(todo & 1, g0 + todo)
                e.extend(spread(mm[:NS], r) + mm[NS:] if mm else r)
                e.extend(extra.get(i, []))
                e("s_waitcnt lgkmcnt(0)")
            else:
                e.extend(mm)
                e.extend(extra.get(i, []))
            pend = todo
        if pend is not None and g0 == 0: e.extend(mfmas(pend & 1, False))
    PU = [32, 48]; PH = [64, 72]; TM = [80, 84]; VFR = [88, 92]
    e("s_cmp_lg_u32 s40, 0")
    e("s_cbranch_scc1 L_qwave")
    e(f"v_mov_b32 v26, {MISC}")
    for i in range(4): e(f"v_mov_b32 v{32+i}, 0")
    e("ds_write_b128 v26, v[32:35]")
    e("ds_write_b128 v26, v[32:35] offset:16")
    e.extend(su_w)
    e.extend(su_ws)
    wph = ["v_and_b32 v23, 15, v1", "v_lshlrev_b32 v23, 3, v23", "v_lshrrev_b32 v22, 5, v1", "v_lshl_add_u32 v25, v22, 7, v23",
           "s_lshl_b32 s38, s44, 9", f"s_add_u32 s38, s38, {WPH}", "v_add_u32 v25, s38, v25"]
    wpr = [f"ds_read_b64_tr_b16 {vr(WF+2*u,2)}, v25 offset:{u*256}" for u in range(2)]
    one = ["v_bfe_u32 v24, v1, 4, 1", f"v_mul_u32_u24 v{ONE}, 0x3f80, v24", f"v_lshl_or_b32 v{ONE}, v{ONE}, 16, v{ONE}"]
    xs = [i for i in range(8) if i not in USE.values() or i == USE[8] and i not in [USE[c] for c in range(8)]]
    idl = su_id(2, I0)
    KEND = USE[7] + 1
    kx = {xs[0]: su_s + wph, xs[1]: idl[:22], xs[2]: idl[22:] + one, xs[3]: su_ep + stamp(0), 9: wpr}
    if "pf8" in OPT:
        kx[OPT["pf8"]] = ["s_cmp_lt_u32 s44, 2", "s_cbranch_scc1 L_nopf8", "global_load_dword v31, v30, s[16:17]", "L_nopf8:"] + kx.get(OPT["pf8"], [])
    gpass(0, 0, KEND, kx)
    e.extend(stamp(1))
    k = []
    for u in range(2):
        for q in range(4): k.append(f"v_cvt_pk_bf16_f32 v{PH[u]+q}, v{ACC+16*u+2*q}, v{ACC+16*u+2*q+1}")
    for u in range(2): k.append(mfma(PU[u], WF, PH[u], None))
    for u in range(2):
        a = ACC + 16 * u
        for q in range(4): k.append(f"v_cvt_pk_bf16_f32 v{VFR[u]+q}, v{a+8+2*q}, v{a+8+2*q+1}")
    for u in range(2): k.append(mfma(ACC + 16 * u, VFR[u], I0, None))
    k += interleave(*[phi_unit(PU[u], TM[u], PH[u]) for u in range(2)])
    for u in range(2): k.append(mfma(PU[u], PH[u], I0, None))
    for u in range(2): k.append(mfma(PU[u], PH[u] + 4, I0 + 4, PU[u]))
    for u in range(2):
        a = ACC + 16 * u
        for q in range(8): k.append(f"v_cvt_pk_bf16_f32 v{a+q}, v{a+2*q}, v{a+2*q+1}")
        for q in range(8): k.append(f"v_or_b32 v{a+q}, v{a+q}, v{ONE}")
    for u in range(2):
        for q in range(8): k.append(f"v_cvt_pk_bf16_f32 v{PH[u]+q}, v{PU[u]+2*q}, v{PU[u]+2*q+1}")
    D3 = EACC
    for u in range(2):
        k.append(mfma(D3, PH[u], ACC + 16 * u, None if u == 0 else D3))
        k.append(mfma(D3, PH[u] + 4, ACC + 16 * u + 4, D3))
    PST = ["v_and_b32 v112, 31, v1", "v_lshlrev_b32 v112, 4, v112", "v_lshrrev_b32 v113, 5, v1", "v_lshl_add_u32 v112, v113, 14, v112",
          "s_lshl_b32 s38, s45, 17", "s_lshl_b32 s39, s28, 9", "s_add_u32 s38, s38, s39", f"s_add_u32 s38, s38, {WS_PART}"]
    for q in range(4):
        PST.append(f"buffer_store_dwordx4 {vr(D3+4*q,4)}, v112, s[24:27], s38 offen sc1")
        if q < 3: PST.append("s_add_u32 s38, s38, 32768")
    DEFER = OPT.get("defer", 1)
    if not DEFER: k += PST
    if not OPT.get("pk", 1): k = unpk(k)
    k = [x.strip() for x in fix_hazards(k, pre=mfmas(1, False))]
    def cost(x):
        if "mfma" in x: return 48
        if "v_exp" in x or "v_rcp" in x: return 8
        if "s_nop" in x: return 4 * (int(x.split()[1]) + 1)
        return 4
    NB = 20 - KEND
    acc = 260; nb = 0; LIM = OPT.get("klim", 140)
    for x in k:
        if nb < NB and acc + cost(x) > (LIM if nb < NB - 1 else OPT.get("klast", 300)):
            e("s_barrier"); nb += 1; acc = 0
            if nb == NB:
                e.extend(stamp(2)); e("s_setprio 2")
        e(x); acc += cost(x)
    while nb < NB:
        e("s_barrier"); nb += 1
    e("ds_read_b128 v[4:7], v28")
    e.extend(ATT_SETUP)
    e("s_branch L_attn")
    e.label("L_qwave")
    e.extend(su_w)
    e.extend(su_s)
    e.extend(ATT_SETUP)
    e("s_lshl_b32 s38, s44, 11")
    e(f"s_add_u32 s38, s38, {PHQ}")
    e("v_add_u32 v29, s38, v10")
    e("s_mov_b32 s41, 0")
    e.extend([x for x in su_ws if "s_load" not in x])
    e("s_cmp_eq_u32 s30, 6")
    e("s_cbranch_scc1 L_touch")
    e("s_cmp_eq_u32 s30, 7")
    e("s_cbranch_scc1 L_touch7")
    e("s_cmp_gt_u32 s3, 2")
    e("s_cbranch_scc1 L_qidle")
    e("s_lshl_b32 s38, s44, 12")
    for t in range(4): e(f"v_add_u32 v{16+t}, s38, v{12+t}")
    e("v_and_b32 v23, 15, v1")
    e("v_lshlrev_b32 v23, 3, v23")
    e("v_lshl_add_u32 v26, v22, 8, v23")
    e("v_lshlrev_b32 v27, 4, v22")
    e("s_lshl_b32 s42, s28, 1")
    e("s_add_u32 s42, s42, s44")
    e("s_cmp_eq_u32 s3, 2")
    e("s_cbranch_scc1 L_qgate")
    def extloop(gate):
        nbar = 0
        if not gate: e.extend(su_id(1, 160))
        def xr(p):
            B = 32 + 32 * (p % 3); va = 21 if p % 2 == 0 else 25
            l = [f"s_lshl_b32 s38, s31, {7 if gate else 11}", f"v_add_u32 v{va}, s38, v{27 if gate else 26}",
                 "s_add_u32 s31, s31, 1", "s_and_b32 s31, s31, 7"]
            r = []
            for t in range(4):
                r.append(f"ds_read_b128 {vr(B+8*t,4)}, v{16+t} offset:{p*8192}")
                if gate: r.append(f"ds_read_b128 {vr(B+8*t+4,4)}, v{va} offset:{t*32}")
                else:
                    for u in range(2): r.append(f"ds_read_b64_tr_b16 {vr(B+8*t+4+2*u,2)}, v{va} offset:{t*512+u*128}")
            return l, r
        def xm(p):
            B = 32 + 32 * (p % 3)
            return [mfma(EACC, B + 8 * t + 4, B + 8 * t, None if (p == 0 and t == 0) else EACC) for t in range(4)]
        n = 8 if gate else 12
        for p in range(0, 8, 2):
            a0, r0 = xr(p); a1, r1 = xr(p + 1)
            e.extend(a0 + a1)
            while nbar <= POS[f"x{p//2}"]:
                e("s_barrier"); nbar += 1
            e.extend(spread(xm(p - 1)[:3], r0 + r1) + xm(p - 1)[3:] if p else r0 + r1)
            e(f"s_waitcnt lgkmcnt({n})")
            e.extend(xm(p))
            e("s_waitcnt lgkmcnt(0)")
        while nbar <= XL + 1:
            e("s_barrier"); nbar += 1
        e.extend(xm(7))
        if OPT.get("xp", 0): e("s_setprio 3")
    extloop(False)
    for q in range(4): e(f"v_cvt_pk_bf16_f32 v{EACC+q}, v{EACC+2*q}, v{EACC+2*q+1}")
    e("s_lshl_b32 s38, s42, 11")
    e("s_lshl_b32 s41, s44, 1")
    e("s_add_u32 s41, s41, s3")
    e("s_lshl_b32 s41, s41, 5")
    e("s_add_u32 s41, s41, s28")
    e(f"s_lshl_b32 s41, s41, {FS}")
    e(f"s_add_u32 s41, s41, {F1}")
    e("s_cmp_eq_u32 s3, 1")
    e("s_cbranch_scc1 L_qv")
    e(f"buffer_store_dwordx4 {vr(EACC,4)}, v10, s[24:27], s38 offen sc1")
    e("s_branch L_q5")
    e.label("L_qv")
    e("s_nop 1")
    e(mfma(32, EACC, 160, None))
    e("v_lshrrev_b32 v11, 5, v1")
    e("v_and_b32 v22, 15, v1")
    e("v_lshlrev_b32 v22, 4, v22")
    e("v_lshl_add_u32 v22, v11, 8, v22")
    for q in range(8): e(f"v_cvt_pk_bf16_f32 v{EACC+8+q}, v{32+2*q}, v{32+2*q+1}")
    e("s_mov_b32 exec_lo, 0xffff")
    e("s_mov_b32 exec_hi, 0xffff")
    e(f"buffer_store_dwordx4 {vr(EACC+8,4)}, v22, s[24:27], s38 offen offset:1024 sc1")
    e(f"buffer_store_dwordx4 {vr(EACC+12,4)}, v22, s[24:27], s38 offen offset:1536 sc1")
    e("s_mov_b64 exec, -1")
    e("s_branch L_q5")
    e.label("L_qgate")
    extloop(True)
    e(f"v_cvt_pk_bf16_f32 v11, v{EACC}, v{EACC}")
    e("v_and_b32 v11, 0xffff0000, v11")
    e("v_mul_f32 v11, s75, v11")
    e("v_exp_f32 v11, v11")
    e("v_add_f32 v11, 1.0, v11")
    e("v_rcp_f32 v11, v11")
    e("v_cvt_pk_bf16_f32 v11, v11, v11")
    e("v_and_b32 v11, 0xffff0000, v11")
    e("v_lshlrev_b32 v22, 2, v1")
    e("s_lshl_b32 s38, s42, 7")
    e(f"s_add_u32 s38, s38, {WS_GATE}")
    e("s_lshl_b32 s41, s42, 3")
    e(f"s_add_u32 s41, s41, {FG}")
    e("s_mov_b32 exec_hi, 0")
    e("buffer_store_dword v11, v22, s[24:27], s38 offen sc1")
    e("s_mov_b64 exec, -1")
    e("s_branch L_q5")
    SPF = OPT.get("spf", 0)
    FSTEP = XL + OPT.get("flat", 4)
    for wv in (6, 7):
        e.label("L_touch" if wv == 6 else "L_touch7")
        if OPT.get("pfs") and wv == 7:
            a0, st_ = OPT["pfs"]
            e("s_and_b32 s38, s29, 3")
            for i in range(FSTEP + 1):
                e("s_barrier")
                if i >= a0 and (i - a0) % st_ == 0 and (i - a0) // st_ < 4:
                    e(f"s_cmp_eq_u32 s38, {(i - a0) // st_}")
                    e(f"s_cbranch_scc0 L_pfs{i}")
                    e("global_load_dword v31, v30, s[16:17]")
                    e.label(f"L_pfs{i}")
            e(f"v_add_u32 v21, {S5}, v20")
            e("s_branch L_noflag")
        if SPF:
            pitch = 3072 if wv == 6 else 1024; p = 50 if wv == 6 else 58
            for ch in range(2):
                e(f"s_add_u32 s38, s31, {ch}")
                e("s_and_b32 s38, s38, 7")
                e(f"s_mul_i32 s38, s38, {64*pitch}")
                e("s_lshl_b32 s39, s29, 7")
                e("s_add_u32 s38, s38, s39")
                e(f"s_add_u32 s{4+2*ch}, s{p}, s38")
                e(f"s_addc_u32 s{5+2*ch}, s{p+1}, 0")
            ld = [f"s_load_dword s{8+(r&7)}, s[{4+2*(r>>6)}:{5+2*(r>>6)}], {(r&63)*pitch}" for r in range(64 * SPF)]
            n0 = OPT.get("spf0", 24); n1 = OPT.get("spf1", 5)
            e.extend(ld[:n0]); k_ = n0
            for i in range(FSTEP + 1):
                e("s_barrier")
                e.extend(ld[k_:k_ + n1]); k_ += n1
            e(f"v_add_u32 v21, {S5}, v20")
            e("s_branch L_noflag")
    e.label("L_qidle")
    for i in range(XL + 2): e("s_barrier")
    e.label("L_q5")
    e(su_ws[1])
    e(f"v_add_u32 v21, {S5}, v20")
    fl = Emitter()
    fl("s_cmp_eq_u32 s41, 0")
    fl("s_cbranch_scc1 L_noflag")
    fl.extend(su_ep)
    fl("s_waitcnt vmcnt(0)")
    flag_store(fl, "s41", 22)
    fl.label("L_noflag")
    gpass(8, XL + 2, 19, {FSTEP: fl.lines, USE[9] - 1: stamp(0) + ["s_setprio 1"]})
    mm = mfmas(1, False)
    def qconv(u):
        a = ACC + 16 * u; d = 76 if u else 68; l = []
        for i in range(8, 16, 2): l.append(f"v_pk_mul_f32 {vr(a+i,2)}, {vr(a+i,2)}, s[76:77] op_sel_hi:[1,0]")
        for q in range(4): l.append(f"v_cvt_pk_bf16_f32 v{(76 if u else 4)+q}, v{a+8+2*q}, v{a+8+2*q+1}")
        if u: l.append("ds_write_b128 v28, v[76:79]")
        for q in range(4): l.append(f"v_cvt_pk_bf16_f32 v{PH[u]+q}, v{a+2*q}, v{a+2*q+1}")
        l.append(f"ds_write_b128 v29, {vr(PH[u],4)} offset:{u*1024}")
        return l
    e.extend(mm[1::2] + mm[0:4:2])
    e("s_nop 7"); e("s_nop 1")
    c1 = unpk(qconv(1))
    e.extend(c1[:8] + [mm[4]] + c1[8:14] + [mm[6]] + c1[14:])
    e.extend(stamp(1))
    c0 = qconv(0)
    e.extend(c0[8:] + c0[:8])
    e("s_waitcnt lgkmcnt(0)")
    e.extend(stamp(2))
    e("s_barrier")
    e.label("L_attn")
    if OPT.get("rts"): e.extend(["s_memrealtime s[80:81]", "s_waitcnt lgkmcnt(0)", "s_sub_u32 s80, s80, s92", "s_add_u32 s80, s80, s94"])
    e.extend(stamp(3))
    e("s_setprio 2")
    e(f"ds_read_b128 {vr(KF[0],4)}, v{AK}")
    e(f"ds_read_b128 {vr(KF[1],4)}, v{AK} offset:2048")
    e("s_mov_b64 exec, s[20:21]")
    e(f"ds_read_b128 {vr(VF[0],4)}, v{AV}")
    e(f"ds_read_b128 {vr(VF[0]+4,4)}, v{AV} offset:512")
    e("s_mov_b64 exec, -1")
    for i in range(0, 16, 2): e(f"v_mov_b64 {vr(O+i,2)}, 0")
    for i in range(0, 4, 2): e(f"v_mov_b64 {vr(PK+4+i,2)}, 0")
    e("s_waitcnt lgkmcnt(0)")
    e(mfma(S[0], KF[0], Q, None))
    e(mfma(S[1], KF[1], Q, None))
    e(f"v_max3_f32 v{T}, v{S[0]}, v{S[0]+1}, v{S[0]+2}")
    e(f"v_max3_f32 v{T+1}, v{S[0]+3}, v{S[0]+4}, v{S[0]+5}")
    for i in range(6, 30, 4):
        e(f"v_max3_f32 v{T}, v{T}, v{S[0]+i}, v{S[0]+i+1}")
        e(f"v_max3_f32 v{T+1}, v{T+1}, v{S[0]+i+2}, v{S[0]+i+3}")
    e(f"v_max3_f32 v{T}, v{T}, v{S[0]+30}, v{S[0]+31}")
    e(f"v_max_f32 v{T}, v{T}, v{T+1}")
    def setnm():
        e(f"v_mov_b32 v{T+1}, v{T}")
        e(f"v_permlane32_swap_b32 v{T}, v{T+1}")
        e(f"v_max_f32 v{T}, v{T}, v{T+1}")
        for i in range(2): e(f"v_sub_f32 v{NM+i}, 0, v{T}")
        for i in range(2, 16, 2): e(f"v_mov_b64 {vr(NM+i,2)}, {vr(NM,2)}")
    setnm()
    e(mfma(S[0], KF[0], Q, NM))
    e("s_nop 7"); e("s_nop 1")
    body = Emitter()
    ex = lambda i: f"v_exp_f32 v{i}, v{i}"
    for j in range(U):
        a = j & 1; b = a ^ 1; Sa = S[a]
        cv = lambda q: f"v_cvt_pk_bf16_f32 v{PK+q}, v{Sa+2*q}, v{Sa+2*q+1}"
        body(mfma(S[b], KF[b], Q, NM))
        body(f"ds_read_b128 {vr(KF[a],4)}, v{AK} offset:{(j+2)*2048}")
        for i in range(7): body(ex(Sa + i))
        body(mfma(O, VF[b] + 4, PK + 4, O))
        body("s_mov_b64 exec, s[20:21]")
        body(f"ds_read_b128 {vr(VF[b],4)}, v{AV} offset:{(j+1)*2048}")
        body(f"ds_read_b128 {vr(VF[b]+4,4)}, v{AV} offset:{(j+1)*2048+512}")
        body("s_mov_b64 exec, -1")
        body(ex(Sa + 7)); body(ex(Sa + 8))
        for q in range(4): body(cv(q))
        body(ex(Sa + 9)); body(ex(Sa + 10))
        body("s_waitcnt lgkmcnt(3)")
        body(mfma(O, VF[a], PK, O))
        for i in range(11, 16): body(ex(Sa + i))
        if j == U - 1:
            body(f"v_add_u32 v{AK}, {U*2048}, v{AK}")
            body(f"v_add_u32 v{AV}, {U*2048}, v{AV}")
            body("s_add_u32 s23, s23, 1")
            body("s_cmp_lt_u32 s23, s22")
        for q in range(4, 8): body(cv(q))
        body("s_waitcnt lgkmcnt(2)")
    rep = []
    fix_hazards(body.lines, pre=body.lines, report=rep)
    assert not rep, rep
    e(".p2align 6")
    e.label("L_loop")
    if OPT.get("trace") == 3:
        e.extend(["s_memtime s[96:97]", "s_waitcnt lgkmcnt(0)", "s_sub_u32 s96, s96, s94", "s_lshl_b32 s97, s23, 1", "s_add_u32 m0, s97, 1", "v_writelane_b32 v111, s96, m0"])
    e.extend(body.lines)
    e("s_cbranch_scc1 L_loop")
    e(f"s_cmp_lg_u32 s22, {SEG[3]}")
    e("s_cbranch_scc1 L_seg")
    e(mfma(O, VF[1] + 4, PK + 4, O))
    if OPT.get("rts"): e.extend(["s_memrealtime s[82:83]", "s_waitcnt lgkmcnt(0)", "s_sub_u32 s82, s82, s92", "s_add_u32 s82, s82, s94"])
    e.extend(stamp(4))
    if OPT.get("loc", 0): e(f"ds_read_b32 v{T+4}, v{T+4}")
    if OPT.get("late", 0):
        e("s_mov_b64 exec, 1")
        e(f"ds_add_u32 v{T+6}, v{T+7}")
        e("s_mov_b64 exec, -1")
    e(f"v_lshlrev_b32 v{AK}, 4, v1")
    e(f"v_fma_f32 v{T+1}, v{O}, 0, v{O+8}")
    e(f"v_mul_f32 v{T+3}, 0, v{O+1}")
    e(f"v_rcp_f32 v{T}, v{O+8}")
    for i in range(2, 8): e(f"v_fma_f32 v{T+1+2*(i&1)}, v{O+i}, 0, v{T+1+2*(i&1)}")
    e(f"v_add_f32 v{T+1}, v{T+1}, v{T+3}")
    e(f"v_cmp_ngt_f32 vcc, s39, v{T+1}")
    e("s_cbranch_vccnz L_fallback")
    e.label("L_fin")
    e(f"v_mul_f32 v{T}, v{T}, v{T+2}")
    for i in range(0, 8, 2): e(f"v_pk_mul_f32 {vr(O+i,2)}, {vr(O+i,2)}, {vr(T,2)} op_sel_hi:[1,0]")
    for q in range(4): e(f"v_cvt_pk_bf16_f32 v{O+q}, v{O+2*q}, v{O+2*q+1}")
    if OPT.get("loc", 0):
        e("s_waitcnt lgkmcnt(0)")
        e(f"v_cmp_eq_u32 vcc, 0, v{T+4}")
        e("s_cbranch_vccnz L_far")
        e(f"buffer_store_dwordx4 {vr(O,4)}, v{AK}, s[24:27], s43 offen")
        if OPT.get("cbar", 1) & 1: e("s_barrier")
        if OPT["stamp"] == 1: e("s_branch L_cend")
        else: e("s_endpgm")
    e.label("L_far")
    e(f"buffer_store_dwordx4 {vr(O,4)}, v{AK}, s[24:27], s43 offen sc1")
    if OPT.get("cbar", 1) & 2: e("s_barrier")
    e.label("L_cend")
    e.extend(stamp(5))
    if OPT.get("trace") == 3: e("v_mov_b32 v159, v111")
    if OPT["stamp"] == 1: stamp_end(e, 40)
    e("s_endpgm")
    e.label("L_seg")
    e(f"s_cmp_eq_u32 s22, {SEG[1]}")
    e("s_cbranch_scc1 L_seg1")
    e(f"s_cmp_gt_u32 s22, {SEG[1]}")
    e("s_cbranch_scc1 L_seg2")
    if DEFER:
        e(f"s_cmp_lg_u32 s22, {SEG[0]}")
        e("s_cbranch_scc1 L_segf")
        lds_wait(e, C_KVALL, 4, T, sleep=1)
        e(f"s_mov_b32 s22, {SEG[1]}")
        e("s_cmp_lg_u32 s40, 0")
        e("s_cbranch_scc1 L_loop")
        e.extend(PST)
        e(f"s_mov_b32 s22, {SEG[0] + OPT.get('fgap', 2)}")
        e("s_branch L_loop")
        e.label("L_segf")
    e(f"s_mov_b32 s22, {SEG[1]}")
    if not DEFER:
        e("s_cmp_lg_u32 s40, 0")
        e("s_cbranch_scc1 L_seg0b")
    e("s_lshl_b32 s38, s45, 5")
    e("s_add_u32 s38, s38, s28")
    e("s_lshl_b32 s38, s38, 3")
    e(f"s_add_u32 s38, s38, {F3}")
    e("s_waitcnt vmcnt(0)")
    flag_store(e, "s38", T)
    e.label("L_seg0b")
    if not DEFER: lds_wait(e, C_KVALL, 4, T, sleep=1)
    e("s_branch L_loop")
    e.label("L_seg1")
    e(f"s_mov_b32 s22, {SEG[2]}")
    lds_add(e, C_PROG, T)
    lds_wait(e, C_GOK, 4, T)
    e("s_lshl_b32 s38, s46, 7")
    e(f"s_add_u32 s38, s38, {C_GATE}")
    e(f"v_and_b32 v{T}, 31, v1")
    e(f"v_lshl_add_u32 v{T}, v{T}, 2, s38")
    e(f"ds_read_b32 v{T+2}, v{T}")
    if OPT.get("loc", 0): e(f"v_mov_b32 v{T+4}, {C_LOC}")
    if OPT.get("late", 0):
        e(f"v_mov_b32 v{T+6}, {C_DONE}")
        e(f"v_mov_b32 v{T+7}, 1")
    e(f"s_mov_b32 s39, {fbits(2.0**120)}")
    e("s_waitcnt lgkmcnt(0)")
    e(f"v_sub_f32 v{T+2}, 1.0, v{T+2}")
    e(f"v_cvt_pk_bf16_f32 v{T+2}, v{T+2}, v{T+2}")
    e(f"v_and_b32 v{T+2}, 0xffff0000, v{T+2}")
    e("s_cmp_lg_u32 s40, 0")
    e("s_cbranch_scc1 L_loop")
    e("s_setprio 1")
    e(f"s_mov_b32 s22, {OPT.get('kdrop', 16)}")
    e("s_branch L_loop")
    e.label("L_seg2")
    e(f"s_mov_b32 s22, {SEG[3]}")
    e("s_setprio 1")
    e("s_cmp_lg_u32 s40, 0")
    e("s_cbranch_scc1 L_loop")
    e("s_setprio 0")
    e("s_branch L_loop")
    e.label("L_fallback")
    e("s_waitcnt lgkmcnt(0)")
    e(f"v_add_u32 v{AV}, {-64*2048 & 0xffffffff}, v{AV}")
    e(f"v_mov_b32 v{T}, 0xff800000")
    e("s_mov_b32 s38, 0")
    e.label("L_fb1")
    e(f"buffer_load_dwordx4 {vr(KF[0],4)}, v{AK}, s[24:27], s38 offen sc1")
    e("s_add_u32 s38, s38, 2048")
    e("s_waitcnt vmcnt(0)")
    e(mfma(S[0], KF[0], Q, None))
    for i in range(8): e(f"v_max3_f32 v{T}, v{T}, v{S[0]+2*i}, v{S[0]+2*i+1}")
    e("s_cmp_lt_u32 s38, 0x20000")
    e("s_cbranch_scc1 L_fb1")
    setnm()
    for i in range(16): e(f"v_mov_b32 v{O+i}, 0")
    e("s_mov_b32 s38, 0")
    e.label("L_fb2")
    e(f"buffer_load_dwordx4 {vr(KF[0],4)}, v{AK}, s[24:27], s38 offen sc1")
    e("s_mov_b64 exec, s[20:21]")
    e(f"buffer_load_dwordx4 {vr(VF[0],4)}, v{AV}, s[24:27], s38 offen sc1")
    e(f"buffer_load_dwordx4 {vr(VF[0]+4,4)}, v{AV}, s[24:27], s38 offen offset:512 sc1")
    e("s_mov_b64 exec, -1")
    e("s_add_u32 s38, s38, 2048")
    e("s_waitcnt vmcnt(0)")
    e(mfma(S[0], KF[0], Q, NM))
    for i in range(16): e(ex(S[0] + i))
    for q in range(8): e(f"v_cvt_pk_bf16_f32 v{PK+q}, v{S[0]+2*q}, v{S[0]+2*q+1}")
    e(mfma(O, VF[0], PK, O))
    e(mfma(O, VF[0] + 4, PK + 4, O))
    e("s_nop 7")
    e("s_cmp_lt_u32 s38, 0x20000")
    e("s_cbranch_scc1 L_fb2")
    e("s_nop 7"); e("s_nop 7")
    e(f"v_rcp_f32 v{T}, v{O+8}")
    e("s_branch L_fin")
    return fix_hazards(e.lines if OPT.get("pk", 1) else unpk(e.lines))

def build():
    hdr = open("cdna_kernels/%s.s.ref" % NAME).read().split("\n")
    hdr = [l for l in hdr if l.startswith(";") and "@launch" not in l]
    out = list(hdr)
    out.append(f"; @launch grid=(256,1,1) block=(768,1,1) lds={LDS_BYTES}")
    out.append('.amdgcn_target "amdgcn-amd-amdhsa--gfx950"')
    out.append(".text")
    k = NAME + "_kernel"
    out += [f".globl {k}", ".p2align 8", f".type {k},@function", f"{k}:"]
    out += gen()
    out.append('.section .rodata,"a"')
    out.append(f""".p2align 6
.amdhsa_kernel {k}
  .amdhsa_next_free_vgpr 168
  .amdhsa_next_free_sgpr {102 if OPT['stamp'] else 80}
  .amdhsa_accum_offset 168
  .amdhsa_group_segment_fixed_size 0
  .amdhsa_kernarg_size 104
  .amdhsa_user_sgpr_count 2
  .amdhsa_user_sgpr_kernarg_segment_ptr 1
  .amdhsa_system_sgpr_workgroup_id_x 1
.end_amdhsa_kernel
""")
    return "\n".join(out) + "\n"

if __name__ == "__main__":
    dst = "f.s"
    for a in sys.argv[1:]:
        k, v = a.split("=")
        if k == "out": dst = v
        elif "," in v: OPT[k] = tuple(int(x) for x in v.split(","))
        else: OPT[k] = int(v)
    open(dst, "w").write(build())
    print("wrote", dst)
```
